```python
import torch

def _softmax(x, axis=-1):
    return torch.softmax(x, dim=axis)
def _gelu(x):
    return torch.nn.functional.gelu(x, approximate="tanh")
def _silu(x):
    return torch.nn.functional.silu(x)
def _sigmoid(x):
    return torch.sigmoid(x)
def _layernorm(x, axis=-1, eps=1e-5):
    m = x.mean(dim=axis, keepdim=True)
    v = x.var(dim=axis, keepdim=True, unbiased=False)
    return (x - m) / torch.sqrt(v + eps)
def _scatter_add(tgt, idx, src, axis=0):
    return tgt.clone().index_add_(axis, idx, src)
def _segment_sum(src, seg, n):
    out = torch.zeros((n,) + src.shape[1:], dtype=src.dtype)
    return out.index_add_(0, seg, src)
def _pad(x, pw):
    flat = tuple(v for pair in reversed(pw) for v in pair)
    return torch.nn.functional.pad(x, flat)

kernel_name = 'standalone__paged_block_table_kv_radixattention__sampling'

def setup_inputs():

    _w = (lambda a: (lambda t: t.to(torch.bfloat16) if t.is_floating_point() else t)(torch.as_tensor(a)))
    B, H, Hkv, Dh = 16, 32, 8, 128
    Lk = 4096
    bs = 16
    nb = max(2, Lk // bs)
    P = max(1, nb // 2)
    n_phys = P + B * (nb - P)
    shared = torch.arange(P, dtype=torch.int64)
    priv = P + torch.arange(B * (nb - P), dtype=torch.int64).reshape(B, nb - P)
    bt = torch.cat([torch.tile(shared[None, :], (B, 1)), priv], dim=1)
    ctx = nb * bs - (torch.arange(1, B + 1, dtype=torch.int64) * 2654435761) % max(1, (nb * bs - P * bs) // 2)
    return {
        "q": _w((lambda *s: torch.randn(*s, dtype=torch.bfloat16) * 0.8)(B, H, Dh)),
        "k_cache": _w((lambda *s: torch.randn(*s, dtype=torch.bfloat16) * 0.8)(n_phys, bs, Hkv, Dh)),
        "v_cache": _w((lambda *s: torch.randn(*s, dtype=torch.bfloat16) * 0.05)(n_phys, bs, Hkv, Dh)),
        "block_table": _w(bt.to(torch.int64)),
        "ctx_lens": _w(torch.as_tensor(ctx).to(torch.int64)),
    }

def reference(q, k_cache, v_cache, block_table, ctx_lens):
    B, H, Dh = q.shape
    n_phys, bs, Hkv, _ = k_cache.shape
    nb = block_table.shape[1]
    Lk = nb * bs
    rep = H // Hkv
    k = k_cache[block_table].reshape(B, Lk, Hkv, Dh)
    v = v_cache[block_table].reshape(B, Lk, Hkv, Dh)
    k = (lambda x, n, axis: torch.repeat_interleave(x, n, dim=axis))(k, rep, axis=2)
    v = (lambda x, n, axis: torch.repeat_interleave(x, n, dim=axis))(v, rep, axis=2)
    scores = torch.einsum("bhd,bkhd->bhk", q, k) * (Dh ** -0.5)
    pos = torch.arange(Lk)
    valid = pos[None, :] < ctx_lens[:, None]
    scores = torch.where(valid[:, None, :], scores, -1e9)
    p = _softmax(scores, axis=-1)
    return torch.einsum("bhk,bkhd->bhd", p, v)
```

```python
import sys, struct, argparse

NAME = "standalone__paged_block_table_kv_radixattention__sampling"

HEADER = """; Kernarg layout for this problem (64 bytes, ptrs only, base s[0:1]):
"""

def f2u(x):
    return struct.unpack("<I", struct.pack("<f", x))[0]

class Gen:
    def __init__(self, opt):
        self.o = opt
        self.lines = []
        self.nlab = 0
    def e(self, s):
        self.lines.append("    " + s)
    def c(self, s):
        self.lines.append("    ; " + s)
    def lab(self, name):
        self.lines.append(name + ":")
    def newlab(self, p="L"):
        self.nlab += 1
        return f"{p}_{self.nlab}"

def vr(b, n=1):
    return f"v{b}" if n == 1 else f"v[{b}:{b+n-1}]"
def sr(b, n=1):
    return f"s{b}" if n == 1 else f"s[{b}:{b+n-1}]"

def build(opt):
    g = Gen(opt)
    e, c, lab = g.e, g.c, g.lab
    F = opt.F
    KVB = 2176 * 32768
    CSTR = 528
    WSTR = 16 * CSTR
    STAT = 8 * WSTR
    LDS = STAT + 8 * 128
    pol_priv = opt.pol
    sQ, sK, sV, sBT, sCTX, sOUT, sDBG, sWS = 4, 6, 8, 10, 12, 14, 16, 18
    srdK, srdV = 20, 24
    sC4 = 28
    sW, sH, sG, sHS, sFIN = 32, 33, 34, 35, 36
    sLAM, sREM, sSHL = 37, 38, 39
    sCS, sPLO, sPHI = 40, 41, 42
    mEV, mOD, mB0, mB1, mSL = 44, 46, 48, 50, 52
    sX = {"A": dict(b0=54, b1=55, pos=56, m=58), "B": dict(b0=60, b1=61, pos=62, m=64)}
    sCM = 66
    t0, t1, t2, t3, t4, t5, t6, t7 = 82, 83, 84, 85, 86, 87, 88, 89
    sST = 90
    vL, vG, vC = 1, 2, 3
    vKO, vVO = 4, 8
    vQ = 12
    vO = 28
    vM, vLs, vCG = 60, 61, 62
    vMETA = 63
    vTB = 64
    vFM, vFI = 66, 67
    vS = 68
    vP = 76
    vT = 80
    vLIM, vFILL, vMX, vAL, vX0, vX1 = 96, 97, 98, 99, 100, 101
    vX2, vX3 = 102, 103
    bufs = {"A": 104, "B": 168}
    NV = 232

    def stamp(i):
        if opt.stamps:
            e(f"s_memrealtime {sr(sST+2*i,2)}")

    e("s_cmp_ge_u32 s2, 256")
    e("s_cbranch_scc1 L_end")
    e(f"s_load_dwordx16 s[4:19], s[0:1], 0")
    stamp(0)
    e(f"v_and_b32 {vr(vL)}, 63, v0")
    e(f"v_lshrrev_b32 {vr(vX0)}, 6, v0")
    e(f"s_lshr_b32 {sr(t0)}, s2, 3")
    e(f"v_readfirstlane_b32 {sr(sW)}, {vr(vX0)}")
    e(f"s_and_b32 {sr(sH)}, s2, 7")
    e(f"s_cmp_ge_u32 {sr(t0)}, 16")
    e(f"s_cselect_b32 {sr(sFIN)}, 1, 0")
    e(f"s_and_b32 {sr(t1)}, {sr(t0)}, 3")
    e(f"s_bfe_u32 {sr(t2)}, {sr(t0)}, 0x20002")
    e(f"s_cmp_eq_u32 {sr(sFIN)}, 1")
    e(f"s_cselect_b32 {sr(sG)}, {sr(t2)}, {sr(t1)}")
    e(f"s_cselect_b32 {sr(sHS)}, {sr(t1)}, {sr(t2)}")
    if opt.finrot:
        e(f"s_mul_i32 {sr(t1)}, {sr(sFIN)}, {sr(t0)}")
        e(f"s_add_u32 {sr(sH)}, {sr(sH)}, {sr(t1)}")
        e(f"s_and_b32 {sr(sH)}, {sr(sH)}, 7")
    e(f"v_lshrrev_b32 {vr(vG)}, 4, {vr(vL)}")
    e(f"v_and_b32 {vr(vC)}, 15, {vr(vL)}")
    e(f"s_lshl_b32 {sr(t3)}, {sr(sH)}, 8")
    e(f"v_lshlrev_b32 {vr(vX0)}, 11, {vr(vG)}")
    e(f"v_lshl_add_u32 {vr(vX0)}, {vr(vC)}, 4, {vr(vX0)}")
    e(f"v_add_u32 {vr(vVO)}, {sr(t3)}, {vr(vX0)}")
    e(f"v_bfe_u32 {vr(vX1)}, {vr(vL)}, 2, 2")
    e(f"v_lshlrev_b32 {vr(vX1)}, 11, {vr(vX1)}")
    e(f"v_lshl_add_u32 {vr(vX1)}, {vr(vG)}, 6, {vr(vX1)}")
    e(f"v_and_b32 {vr(vX2)}, 3, {vr(vL)}")
    e(f"v_lshl_add_u32 {vr(vX1)}, {vr(vX2)}, 4, {vr(vX1)}")
    e(f"v_add_u32 {vr(vKO)}, {sr(t3)}, {vr(vX1)}")
    for n in range(1, 4):
        e(f"v_add_u32 {vr(vVO+n)}, {n*8192}, {vr(vVO)}")
        e(f"v_add_u32 {vr(vKO+n)}, {n*8192}, {vr(vKO)}")
    e(f"s_lshl_b32 {sr(t4)}, {sr(sG)}, 4")
    e("s_waitcnt lgkmcnt(0)")
    e(f"s_load_dwordx4 {sr(sC4,4)}, {sr(sCTX,2)}, {sr(t4)}")
    e(f"s_cmp_eq_u32 {sr(sFIN)}, 1")
    e("s_cbranch_scc0 L_helper_items")
    c("finisher items: step = 64 + w + 8*lane, slot fixed")
    e(f"s_add_u32 {sr(t0)}, {sr(sW)}, 64")
    e(f"v_lshl_add_u32 {vr(vX0)}, {vr(vL)}, 3, {sr(t0)}")
    e(f"v_mov_b32 {vr(vX1)}, {sr(sHS)}")
    e("s_branch L_items_done")
    lab("L_helper_items")
    e("s_waitcnt lgkmcnt(0)")
    for i in range(4):
        d = t0 + i
        e(f"s_min_i32 {sr(d)}, {sr(sC4+i)}, 4096")
        e(f"s_cmp_le_i32 {sr(sC4+i)}, 0")
        e(f"s_cselect_b32 {sr(d)}, 4096, {sr(d)}")
        e(f"s_add_u32 {sr(d)}, {sr(d)}, 31")
        e(f"s_lshr_b32 {sr(d)}, {sr(d)}, 5")
        e(f"s_sub_i32 {sr(d)}, {sr(d)}, {64+F}")
        e(f"s_max_i32 {sr(d)}, {sr(d)}, 0")
    e(f"s_add_u32 {sr(t1)}, {sr(t1)}, {sr(t0)}")
    e(f"s_add_u32 {sr(t2)}, {sr(t2)}, {sr(t1)}")
    e(f"s_add_u32 {sr(t3)}, {sr(t3)}, {sr(t2)}")
    e(f"s_mul_i32 {sr(t4)}, {sr(t3)}, {sr(sHS)}")
    e(f"s_add_u32 {sr(t5)}, {sr(t4)}, {sr(t3)}")
    e(f"s_lshr_b32 {sr(t4)}, {sr(t4)}, 2")
    e(f"s_lshr_b32 {sr(t5)}, {sr(t5)}, 2")
    e(f"s_add_u32 {sr(t4)}, {sr(t4)}, {sr(sW)}")
    e(f"s_sub_i32 {sr(t5)}, {sr(t5)}, {sr(t4)}")
    e(f"s_add_i32 {sr(t5)}, {sr(t5)}, 7")
    e(f"s_ashr_i32 {sr(t5)}, {sr(t5)}, 3")
    e(f"s_max_i32 {sr(sREM)}, {sr(t5)}, 0")
    e(f"s_sub_u32 {sr(t4)}, {sr(t4)}, 64")
    e(f"v_lshl_add_u32 {vr(vX2)}, {vr(vL)}, 3, {sr(t4)}")
    e(f"v_mov_b32 {vr(vX1)}, 0")
    e(f"v_mov_b32 {vr(vX3)}, 0")
    for i in range(3):
        e(f"v_cmp_ge_i32 {sr(sCM+2*i,2)}, {vr(vX2)}, {sr(t0+i)}")
    for i in range(3):
        e(f"v_mov_b32 {vr(vT+i)}, {sr(t0+i)}")
    for i in range(3):
        e(f"v_cndmask_b32 {vr(vX1)}, {vr(vX1)}, {i+1}, {sr(sCM+2*i,2)}")
        e(f"v_cndmask_b32 {vr(vX3)}, {vr(vX3)}, {vr(vT+i)}, {sr(sCM+2*i,2)}")
    e(f"v_sub_u32 {vr(vX0)}, {vr(vX2)}, {vr(vX3)}")
    e(f"v_add_u32 {vr(vX0)}, {64+F}, {vr(vX0)}")
    e(f"s_lshl_b32 {sr(t6)}, {sr(sHS)}, 4")
    e(f"s_add_u32 {sr(t6)}, {sr(t6)}, {sr(sW)}")
    e(f"v_lshrrev_b32 {vr(vX2)}, 2, {vr(vL)}")
    e(f"v_lshl_add_u32 {vr(vX2)}, {vr(vX2)}, 3, {sr(t6)}")
    e(f"v_and_b32 {vr(vX3)}, 3, {vr(vL)}")
    e(f"v_cmp_gt_u32 vcc, 8, {vr(vL)}")
    e("s_nop 1")
    e(f"v_cndmask_b32 {vr(vX0)}, {vr(vX0)}, {vr(vX2)}, vcc")
    e(f"v_cndmask_b32 {vr(vX1)}, {vr(vX1)}, {vr(vX3)}, vcc")
    lab("L_items_done")
    e(f"v_min_u32 {vr(vX0)}, 127, {vr(vX0)}")
    e(f"s_lshl_b32 {sr(t6)}, {sr(sG)}, 12")
    e(f"v_lshl_add_u32 {vr(vX2)}, {vr(vX1)}, 10, {sr(t6)}")
    e(f"v_lshl_add_u32 {vr(vX2)}, {vr(vX0)}, 3, {vr(vX2)}")
    e(f"global_load_dwordx2 {vr(vTB,2)}, {vr(vX2)}, {sr(sBT,2)}")
    e(f"v_lshlrev_b32 {vr(vMETA)}, 5, {vr(vX0)}")
    e(f"v_lshl_add_u32 {vr(vMETA)}, {vr(vX1)}, 18, {vr(vMETA)}")
    e(f"s_lshl_b32 {sr(t6)}, {sr(sG)}, 15")
    e(f"s_lshl_b32 {sr(t7)}, {sr(sH)}, 10")
    e(f"s_add_u32 {sr(t6)}, {sr(t6)}, {sr(t7)}")
    e(f"v_lshrrev_b32 {vr(vX0)}, 2, {vr(vC)}")
    e(f"v_lshl_add_u32 {vr(vX1)}, {vr(vX0)}, 13, {sr(t6)}")
    e(f"v_and_b32 {vr(vX3)}, 3, {vr(vC)}")
    e(f"v_lshl_add_u32 {vr(vX1)}, {vr(vX3)}, 8, {vr(vX1)}")
    e(f"v_lshl_add_u32 {vr(vX1)}, {vr(vG)}, 6, {vr(vX1)}")
    for m in range(4):
        e(f"global_load_dwordx4 {vr(vQ+4*m,4)}, {vr(vX1)}, {sr(sQ,2)} offset:{16*m}")
    e(f"s_mov_b32 {sr(srdK)}, {sr(sK)}")
    e(f"s_and_b32 {sr(srdK+1)}, {sr(sK+1)}, 0xffff")
    e(f"s_mov_b32 {sr(srdK+2)}, {KVB}")
    e(f"s_mov_b32 {sr(srdK+3)}, 0x20000")
    e(f"s_mov_b32 {sr(srdV)}, {sr(sV)}")
    e(f"s_and_b32 {sr(srdV+1)}, {sr(sV+1)}, 0xffff")
    e(f"s_mov_b32 {sr(srdV+2)}, {KVB}")
    e(f"s_mov_b32 {sr(srdV+3)}, 0x20000")
    e(f"s_mov_b32 {sr(mSL)}, 0x000f000f")
    e(f"s_mov_b32 {sr(mSL+1)}, 0x000f000f")
    e(f"s_mov_b32 {sr(sLAM)}, 0")
    e(f"s_mov_b32 {sr(sSHL)}, 0")
    e("s_waitcnt lgkmcnt(0)")
    e(f"s_cmp_eq_u32 {sr(sFIN)}, 1")
    e("s_cbranch_scc0 L_helper_cnt")
    c("finisher count: n = max(0, ceil((min(64+F, nsteps) - 64 - w)/8))")
    e(f"s_mov_b32 {sr(t0)}, {sr(sC4)}")
    for i in range(1, 4):
        e(f"s_cmp_eq_u32 {sr(sHS)}, {i}")
        e(f"s_cselect_b32 {sr(t0)}, {sr(sC4+i)}, {sr(t0)}")
    e(f"s_min_i32 {sr(t1)}, {sr(t0)}, 4096")
    e(f"s_cmp_le_i32 {sr(t0)}, 0")
    e(f"s_cselect_b32 {sr(t1)}, 4096, {sr(t1)}")
    e(f"s_add_u32 {sr(t1)}, {sr(t1)}, 31")
    e(f"s_lshr_b32 {sr(t1)}, {sr(t1)}, 5")
    e(f"s_min_u32 {sr(t1)}, {sr(t1)}, {64+F}")
    e(f"s_sub_i32 {sr(t1)}, {sr(t1)}, {sr(sW)}")
    e(f"s_sub_i32 {sr(t1)}, {sr(t1)}, {64-7}")
    e(f"s_ashr_i32 {sr(t1)}, {sr(t1)}, 3")
    e(f"s_max_i32 {sr(sREM)}, {sr(t1)}, 0")
    e("s_waitcnt vmcnt(4)")
    e("s_branch L_cnt_done")
    lab("L_helper_cnt")
    e("s_waitcnt vmcnt(4)")
    c("shared test on lanes 0..7: entries equal to quad lane 0")
    e("s_nop 1")
    e(f"v_mov_b32_dpp {vr(vX1)}, {vr(vTB)} quad_perm:[0,0,0,0] row_mask:0xf bank_mask:0xf")
    e(f"v_mov_b32_dpp {vr(vX3)}, {vr(vTB+1)} quad_perm:[0,0,0,0] row_mask:0xf bank_mask:0xf")
    e(f"v_cmp_ne_u32 {sr(sCM,2)}, {vr(vX1)}, {vr(vTB)}")
    e(f"v_cmp_ne_u32 {sr(sCM+2,2)}, {vr(vX3)}, {vr(vTB+1)}")
    e(f"s_or_b32 {sr(t0)}, {sr(sCM)}, {sr(sCM+2)}")
    e(f"s_and_b32 {sr(t0)}, {sr(t0)}, 0xff")
    e(f"s_cselect_b32 {sr(sSHL)}, 0, 8")
    e(f"s_cselect_b32 {sr(t1)}, 8, 2")
    e(f"s_add_u32 {sr(sREM)}, {sr(sREM)}, {sr(t1)}")
    lab("L_cnt_done")
    stamp(1)

    def fetch(X):
        d = sX[X]
        e(f"v_readlane_b32 {sr(t0)}, {vr(vTB)}, {sr(sLAM)}")
        e(f"v_readlane_b32 {sr(t1)}, {vr(vTB+1)}, {sr(sLAM)}")
        e(f"v_readlane_b32 {sr(t2)}, {vr(vMETA)}, {sr(sLAM)}")
        e(f"s_lshl_b32 {sr(d['b0'])}, {sr(t0)}, 15")
        e(f"s_lshl_b32 {sr(d['b1'])}, {sr(t1)}, 15")
        e(f"s_and_b32 {sr(d['pos'])}, {sr(t2)}, 0xffff")
        e(f"s_lshr_b32 {sr(t2)}, {sr(t2)}, 16")
        e(f"s_lshl_b64 {sr(d['m'],2)}, {sr(mSL,2)}, {sr(t2)}")
        e(f"s_cmp_lt_u32 {sr(sLAM)}, {sr(sSHL)}")
        e(f"s_cselect_b64 {sr(d['m'],2)}, -1, {sr(d['m'],2)}")
        e(f"s_cselect_b32 {sr(t3)}, 4, 1")
        e(f"s_add_u32 {sr(sLAM)}, {sr(sLAM)}, {sr(t3)}")
    def issueK(X, pol):
        d = sX[X]; b = bufs[X]
        for tl in range(2):
            for n in range(4):
                e(f"buffer_load_dwordx4 {vr(b+16*tl+4*n,4)}, {vr(vKO+n)}, {sr(srdK,4)}, {sr(d['b%d'%tl])} offen{pol}")
    def issueV(X, pol):
        d = sX[X]; b = bufs[X] + 32
        for tl in range(2):
            for n in range(4):
                e(f"buffer_load_dwordx4 {vr(b+16*tl+4*n,4)}, {vr(vVO+n)}, {sr(srdV,4)}, {sr(d['b%d'%tl])} offen{pol}")

    e(f"s_cmp_eq_u32 {sr(sREM)}, 0")
    e("s_cbranch_scc1 L_first_done")
    if opt.pol_shared != pol_priv:
        e(f"s_cmp_eq_u32 {sr(sFIN)}, 1")
        e("s_cbranch_scc1 L_first_fin")
        fetch("A"); issueK("A", opt.pol_shared); issueV("A", opt.pol_shared)
        fetch("B"); issueK("B", opt.pol_shared); issueV("B", opt.pol_shared)
        e("s_branch L_first_done")
        lab("L_first_fin")
    fetch("A"); issueK("A", pol_priv); issueV("A", pol_priv)
    e(f"s_cmp_lt_u32 {sr(sREM)}, 2")
    e("s_cbranch_scc1 L_first_done")
    fetch("B"); issueK("B", pol_priv); issueV("B", pol_priv)
    lab("L_first_done")
    e(f"s_mov_b32 {sr(sCS)}, 0x{f2u(128**-0.5 * 1.4426950408889634):08x}")
    e(f"s_mov_b32 {sr(sPLO)}, 0x05040100")
    e(f"s_mov_b32 {sr(sPHI)}, 0x07060302")
    for m_, val in ((mEV, 0x55555555), (mOD, 0xaaaaaaaa), (mB0, 0x33333333), (mB1, 0xcccccccc)):
        e(f"s_mov_b32 {sr(m_)}, 0x{val:08x}")
        e(f"s_mov_b32 {sr(m_+1)}, 0x{val:08x}")
    for i in range(32):
        e(f"v_mov_b32 {vr(vO+i)}, 0")
    e(f"v_mov_b32 {vr(vM)}, 0x{f2u(-1e30):08x}")
    e(f"v_mov_b32 {vr(vLs)}, 0")
    e(f"v_mov_b32 {vr(vFM)}, 0x{f2u(-1e9*1.4426950408889634):08x}")
    e(f"v_mov_b32 {vr(vFI)}, 0x{f2u(-3e38):08x}")
    e(f"v_lshrrev_b32 {vr(vX0)}, 2, {vr(vC)}")
    e(f"v_mov_b32 {vr(vCG)}, {sr(sC4)}")
    for i in range(1, 4):
        e(f"v_cmp_eq_u32 {sr(sCM+2*i,2)}, {i}, {vr(vX0)}")
    for i in range(1, 4):
        e(f"v_mov_b32 {vr(vT+i)}, {sr(sC4+i)}")
    for i in range(1, 4):
        e(f"v_cndmask_b32 {vr(vCG)}, {vr(vCG)}, {vr(vT+i)}, {sr(sCM+2*i,2)}")
    e(f"v_max_i32 {vr(vCG)}, 0, {vr(vCG)}")
    e(f"v_min_i32 {vr(vCG)}, 0x1000, {vr(vCG)}")
    e(f"v_sub_u32 {vr(vCG)}, {vr(vCG)}, {vr(vG)}")
    e(f"s_cmp_eq_u32 {sr(sREM)}, 0")
    e("s_cbranch_scc1 L_epi")

    DPP1 = "quad_perm:[1,0,3,2] row_mask:0xf bank_mask:0xf"
    DPP2 = "quad_perm:[2,3,0,1] row_mask:0xf bank_mask:0xf"

    def compute(X):
        d = sX[X]; kb = bufs[X]; vb = kb + 32
        E = lambda tl, n, w: kb + 16*tl + 4*n + w
        T = lambda tl, n1, w: vT + 8*tl + 4*n1 + w
        l1 = g.newlab(); l2 = g.newlab(); l3 = g.newlab(); l4 = g.newlab()
        e(f"s_cmp_gt_u32 {sr(sREM)}, 1")
        e("s_waitcnt vmcnt(24)")
        e(f"s_cbranch_scc1 {l1}")
        e("s_waitcnt vmcnt(8)")
        lab(l1)
        c("K quad transpose, stage 1")
        e(f"s_mov_b64 vcc, {sr(mEV,2)}")
        e("s_nop 0")
        for tl in range(2):
            for n1 in range(2):
                for w in range(4):
                    e(f"v_cndmask_b32_dpp {vr(T(tl,n1,w))}, {vr(E(tl,2*n1+1,w))}, {vr(E(tl,2*n1,w))}, vcc {DPP1}")
        e(f"s_mov_b64 vcc, {sr(mOD,2)}")
        for tl in range(2):
            for n1 in range(2):
                for w in range(4):
                    e(f"v_cndmask_b32_dpp {vr(E(tl,2*n1+1,w))}, {vr(E(tl,2*n1,w))}, {vr(E(tl,2*n1+1,w))}, vcc {DPP1}")
        c("stage 2")
        e(f"s_mov_b64 vcc, {sr(mB0,2)}")
        for tl in range(2):
            for w in range(4):
                e(f"v_cndmask_b32_dpp {vr(E(tl,0,w))}, {vr(T(tl,1,w))}, {vr(T(tl,0,w))}, vcc {DPP2}")
        for tl in range(2):
            for w in range(4):
                e(f"v_cndmask_b32_dpp {vr(E(tl,2,w))}, {vr(E(tl,3,w))}, {vr(E(tl,1,w))}, vcc {DPP2}")
        e(f"s_mov_b64 vcc, {sr(mB1,2)}")
        e(f"v_mfma_f32_16x16x32_bf16 {vr(vS,4)}, {vr(E(0,0,0),4)}, {vr(vQ,4)}, 0")
        e(f"v_mfma_f32_16x16x32_bf16 {vr(vS+4,4)}, {vr(E(1,0,0),4)}, {vr(vQ,4)}, 0")
        for tl in range(2):
            for w in range(4):
                e(f"v_cndmask_b32_dpp {vr(T(tl,1,w))}, {vr(T(tl,0,w))}, {vr(T(tl,1,w))}, vcc {DPP2}")
        e(f"v_mfma_f32_16x16x32_bf16 {vr(vS,4)}, {vr(E(0,2,0),4)}, {vr(vQ+4,4)}, {vr(vS,4)}")
        e(f"v_mfma_f32_16x16x32_bf16 {vr(vS+4,4)}, {vr(E(1,2,0),4)}, {vr(vQ+4,4)}, {vr(vS+4,4)}")
        for tl in range(2):
            for w in range(4):
                e(f"v_cndmask_b32_dpp {vr(E(tl,3,w))}, {vr(E(tl,1,w))}, {vr(E(tl,3,w))}, vcc {DPP2}")
        e(f"v_mfma_f32_16x16x32_bf16 {vr(vS,4)}, {vr(T(0,1,0),4)}, {vr(vQ+8,4)}, {vr(vS,4)}")
        e(f"v_mfma_f32_16x16x32_bf16 {vr(vS+4,4)}, {vr(T(1,1,0),4)}, {vr(vQ+8,4)}, {vr(vS+4,4)}")
        e(f"v_mfma_f32_16x16x32_bf16 {vr(vS,4)}, {vr(E(0,3,0),4)}, {vr(vQ+12,4)}, {vr(vS,4)}")
        e(f"v_mfma_f32_16x16x32_bf16 {vr(vS+4,4)}, {vr(E(1,3,0),4)}, {vr(vQ+12,4)}, {vr(vS+4,4)}")
        c("mask setup")
        e(f"v_subrev_u32 {vr(vLIM)}, {sr(d['pos'])}, {vr(vCG)}")
        e(f"v_cndmask_b32 {vr(vLIM)}, 0, {vr(vLIM)}, {sr(d['m'],2)}")
        e(f"v_cndmask_b32 {vr(vFILL)}, {vr(vFI)}, {vr(vFM)}, {sr(d['m'],2)}")
        for j in range(8):
            e(f"v_cmp_lt_i32 {sr(sCM+2*j,2)}, {(j>>2)*16+(j&3)*4}, {vr(vLIM)}")
        e(f"s_cmp_gt_u32 {sr(sREM)}, 2")
        e(f"s_cbranch_scc0 {l2}")
        fetch(X); issueK(X, pol_priv)
        lab(l2)
        c("softmax")
        for j in range(8):
            e(f"v_mul_f32 {vr(vS+j)}, {sr(sCS)}, {vr(vS+j)}")
        for j in range(8):
            e(f"v_cndmask_b32 {vr(vS+j)}, {vr(vFILL)}, {vr(vS+j)}, {sr(sCM+2*j,2)}")
        e(f"v_max3_f32 {vr(vMX)}, {vr(vS)}, {vr(vS+1)}, {vr(vS+2)}")
        e(f"v_max3_f32 {vr(vX0)}, {vr(vS+3)}, {vr(vS+4)}, {vr(vS+5)}")
        e(f"v_max3_f32 {vr(vMX)}, {vr(vMX)}, {vr(vS+6)}, {vr(vS+7)}")
        e(f"v_max3_f32 {vr(vMX)}, {vr(vMX)}, {vr(vX0)}, {vr(vM)}")
        e(f"v_mov_b32 {vr(vX0)}, {vr(vMX)}")
        e("s_nop 1")
        e(f"v_permlane32_swap_b32 {vr(vMX)}, {vr(vX0)}")
        e(f"v_max_f32 {vr(vMX)}, {vr(vMX)}, {vr(vX0)}")
        e(f"v_mov_b32 {vr(vX0)}, {vr(vMX)}")
        e("s_nop 1")
        e(f"v_permlane16_swap_b32 {vr(vMX)}, {vr(vX0)}")
        e(f"v_max_f32 {vr(vMX)}, {vr(vMX)}, {vr(vX0)}")
        e(f"v_sub_f32 {vr(vAL)}, {vr(vM)}, {vr(vMX)}")
        for j in range(8):
            e(f"v_sub_f32 {vr(vS+j)}, {vr(vS+j)}, {vr(vMX)}")
        e(f"v_exp_f32 {vr(vAL)}, {vr(vAL)}")
        for j in range(8):
            e(f"v_exp_f32 {vr(vS+j)}, {vr(vS+j)}")
        e(f"v_mov_b32 {vr(vM)}, {vr(vMX)}")
        e(f"v_mul_f32 {vr(vLs)}, {vr(vLs)}, {vr(vAL)}")
        for u in range(4):
            e(f"v_cvt_pk_bf16_f32 {vr(vP+u)}, {vr(vS+2*u)}, {vr(vS+2*u+1)}")
        e(f"v_add_f32 {vr(vX0)}, {vr(vS)}, {vr(vS+1)}")
        e(f"v_add_f32 {vr(vX1)}, {vr(vS+2)}, {vr(vS+3)}")
        e(f"v_add_f32 {vr(vX2)}, {vr(vS+4)}, {vr(vS+5)}")
        e(f"v_add_f32 {vr(vX3)}, {vr(vS+6)}, {vr(vS+7)}")
        e(f"v_add_f32 {vr(vX0)}, {vr(vX0)}, {vr(vX1)}")
        e(f"v_add_f32 {vr(vX2)}, {vr(vX2)}, {vr(vX3)}")
        e(f"v_add_f32 {vr(vLs)}, {vr(vLs)}, {vr(vX0)}")
        e(f"v_add_f32 {vr(vLs)}, {vr(vLs)}, {vr(vX2)}")
        for i in range(32):
            e(f"v_mul_f32 {vr(vO+i)}, {vr(vO+i)}, {vr(vAL)}")
        c("wait V")
        e(f"s_cmp_gt_u32 {sr(sREM)}, 2")
        e("s_waitcnt vmcnt(24)")
        e(f"s_cbranch_scc1 {l3}")
        e(f"s_cmp_gt_u32 {sr(sREM)}, 1")
        e("s_waitcnt vmcnt(16)")
        e(f"s_cbranch_scc1 {l3}")
        e("s_waitcnt vmcnt(0)")
        lab(l3)
        Vr = lambda n, w: vb + 4*n + w
        def perms(w4):
            tb = vT + 8*(w4 & 1)
            for u in range(4):
                e(f"v_perm_b32 {vr(tb+u)}, {vr(Vr(2*u+1,w4))}, {vr(Vr(2*u,w4))}, {sr(sPLO)}")
            for u in range(4):
                e(f"v_perm_b32 {vr(tb+4+u)}, {vr(Vr(2*u+1,w4))}, {vr(Vr(2*u,w4))}, {sr(sPHI)}")
        def pv(w4, h):
            tb = vT + 8*(w4 & 1) + 4*h
            ob = vO + 4*(2*w4+h)
            e(f"v_mfma_f32_16x16x32_bf16 {vr(ob,4)}, {vr(tb,4)}, {vr(vP,4)}, {vr(ob,4)}")
        perms(0)
        for w4 in range(4):
            pv(w4, 0)
            if w4 < 3:
                perms(w4+1)
            else:
                e("s_nop 0")
            pv(w4, 1)
        e(f"s_cmp_gt_u32 {sr(sREM)}, 2")
        e(f"s_cbranch_scc0 {l4}")
        issueV(X, pol_priv)
        lab(l4)

    lab("L_loop")
    compute("A")
    e(f"s_sub_u32 {sr(sREM)}, {sr(sREM)}, 1")
    e(f"s_cmp_eq_u32 {sr(sREM)}, 0")
    e("s_cbranch_scc1 L_epi")
    compute("B")
    e(f"s_sub_u32 {sr(sREM)}, {sr(sREM)}, 1")
    e(f"s_cmp_lg_u32 {sr(sREM)}, 0")
    e("s_cbranch_scc1 L_loop")

    lab("L_epi")
    stamp(2)
    c("reduce l over the 4 lane groups")
    e(f"v_mov_b32 {vr(vX0)}, {vr(vLs)}")
    e("s_nop 1")
    e(f"v_permlane32_swap_b32 {vr(vLs)}, {vr(vX0)}")
    e(f"v_add_f32 {vr(vLs)}, {vr(vLs)}, {vr(vX0)}")
    e(f"v_mov_b32 {vr(vX0)}, {vr(vLs)}")
    e("s_nop 1")
    e(f"v_permlane16_swap_b32 {vr(vLs)}, {vr(vX0)}")
    e(f"v_add_f32 {vr(vLs)}, {vr(vLs)}, {vr(vX0)}")
    e(f"s_mul_i32 {sr(t0)}, {sr(sW)}, {WSTR}")
    e(f"v_mul_u32_u24 {vr(vX1)}, {CSTR}, {vr(vC)}")
    e(f"v_lshl_add_u32 {vr(vX1)}, {vr(vG)}, 7, {vr(vX1)}")
    e(f"v_add_u32 {vr(vX1)}, {sr(t0)}, {vr(vX1)}")
    e(f"s_lshl_b32 {sr(t1)}, {sr(sW)}, 7")
    e(f"s_add_u32 {sr(t1)}, {sr(t1)}, {STAT}")
    e(f"v_lshl_add_u32 {vr(vX2)}, {vr(vC)}, 3, {sr(t1)}")
    e(f"ds_write_b64 {vr(vX2)}, {vr(vM,2)}")
    for ee in range(8):
        e(f"ds_write_b128 {vr(vX1)}, {vr(vO+4*ee,4)} offset:{16*ee}")
    vCC, vDQ, vA1, vA2, vWO = 4, 5, 6, 7, 8
    vSt = 104
    vOq = 120
    vGs = 152
    vGo = 160
    vR = 176
    vWt = 184
    e(f"v_lshrrev_b32 {vr(vCC)}, 5, v0")
    e(f"v_and_b32 {vr(vDQ)}, 31, v0")
    e(f"s_lshl_b32 {sr(t2)}, {sr(sH)}, 2")
    e(f"s_add_u32 {sr(t2)}, {sr(t2)}, {sr(sG)}")
    e(f"s_cmp_eq_u32 {sr(sFIN)}, 1")
    e("s_cbranch_scc1 L_fin")

    def lds_reduce(nglob):
        e(f"v_lshlrev_b32 {vr(vA1)}, 3, {vr(vCC)}")
        e(f"v_add_u32 {vr(vA1)}, {STAT}, {vr(vA1)}")
        e(f"v_mul_u32_u24 {vr(vA2)}, {CSTR}, {vr(vCC)}")
        e(f"v_lshl_add_u32 {vr(vA2)}, {vr(vDQ)}, 4, {vr(vA2)}")
        e("s_waitcnt lgkmcnt(0)")
        e("s_barrier")
        for w in range(8):
            e(f"ds_read_b64 {vr(vSt+2*w,2)}, {vr(vA1)} offset:{128*w}")
        for w in range(8):
            e(f"ds_read_b128 {vr(vOq+4*w,4)}, {vr(vA2)} offset:{WSTR*w}")
        e("s_waitcnt lgkmcnt(8)")
        ms = [vSt+2*w for w in range(8)]
        ls = [vSt+2*w+1 for w in range(8)]
        os_ = [vOq+4*w for w in range(8)]
        if nglob:
            e("s_waitcnt vmcnt(0)")
            ms += [vGs+2*h for h in range(4)]
            ls += [vGs+2*h+1 for h in range(4)]
            os_ += [vGo+4*h for h in range(4)]
        e(f"v_max3_f32 {vr(vMX)}, {vr(ms[0])}, {vr(ms[1])}, {vr(ms[2])}")
        i = 3
        while i < len(ms):
            if i + 1 < len(ms):
                e(f"v_max3_f32 {vr(vMX)}, {vr(vMX)}, {vr(ms[i])}, {vr(ms[i+1])}"); i += 2
            else:
                e(f"v_max_f32 {vr(vMX)}, {vr(vMX)}, {vr(ms[i])}"); i += 1
        for i in range(len(ms)):
            e(f"v_sub_f32 {vr(vWt+i)}, {vr(ms[i])}, {vr(vMX)}")
        for i in range(len(ms)):
            e(f"v_exp_f32 {vr(vWt+i)}, {vr(vWt+i)}")
        e("s_nop 0")
        e(f"v_mul_f32 {vr(vAL)}, {vr(vWt)}, {vr(ls[0])}")
        for i in range(1, len(ms)):
            e(f"v_fmac_f32 {vr(vAL)}, {vr(vWt+i)}, {vr(ls[i])}")
        e("s_waitcnt lgkmcnt(0)")
        for r in range(4):
            e(f"v_mul_f32 {vr(vR+r)}, {vr(vWt)}, {vr(os_[0]+r)}")
        for i in range(1, len(ms)):
            for r in range(4):
                e(f"v_fmac_f32 {vr(vR+r)}, {vr(vWt+i)}, {vr(os_[i]+r)}")

    c("---------- helper: publish the workgroup partial")
    lds_reduce(0)
    e(f"s_lshl_b32 {sr(t3)}, {sr(t2)}, 15")
    e(f"s_lshl_b32 {sr(t4)}, {sr(sHS)}, 9")
    e(f"s_add_u32 {sr(t3)}, {sr(t3)}, {sr(t4)}")
    e(f"v_lshl_add_u32 {vr(vWO)}, {vr(vCC)}, 11, {sr(t3)}")
    e(f"v_lshl_add_u32 {vr(vWO)}, {vr(vDQ)}, 4, {vr(vWO)}")
    e(f"global_store_dwordx4 {vr(vWO)}, {vr(vR,4)}, {sr(sWS,2)} sc1")
    e(f"s_lshl_b32 {sr(t3)}, {sr(t2)}, 9")
    e(f"s_lshl_b32 {sr(t4)}, {sr(sHS)}, 3")
    e(f"s_add_u32 {sr(t3)}, {sr(t3)}, {sr(t4)}")
    e(f"s_add_u32 {sr(t3)}, {sr(t3)}, 0x100000")
    e(f"v_lshl_add_u32 {vr(vA1)}, {vr(vCC)}, 5, {sr(t3)}")
    e(f"v_cmp_eq_u32 vcc, 0, {vr(vDQ)}")
    e(f"s_and_saveexec_b64 {sr(sCM,2)}, vcc")
    e(f"global_store_dwordx2 {vr(vA1)}, {vr(vMX,2)}, {sr(sWS,2)} sc1")
    e(f"s_mov_b64 exec, {sr(sCM,2)}")
    e("s_waitcnt vmcnt(0)")
    e("s_barrier")
    e(f"s_cmp_eq_u32 {sr(sW)}, 0")
    e("s_cbranch_scc0 L_done")
    e(f"s_lshl_b32 {sr(t3)}, {sr(t2)}, 2")
    e(f"v_mov_b32 {vr(vA1)}, {sr(t3)}")
    e(f"v_mov_b32 {vr(vA2)}, 1")
    e("s_mov_b64 exec, 1")
    e(f"global_atomic_add {vr(vA1)}, {vr(vA2)}, {sr(sDBG,2)}")
    e("s_mov_b64 exec, -1")
    e("s_branch L_done")

    c("---------- finisher")
    lab("L_fin")
    e(f"s_cmp_ge_u32 {sr(sW)}, 6")
    e("s_cbranch_scc1 L_merge")
    e("s_waitcnt lgkmcnt(0)")
    e("s_barrier")
    e("s_branch L_done")
    lab("L_merge")
    e(f"v_and_b32 {vr(vCC)}, 3, {vr(vCC)}")
    e(f"s_lshl_b32 {sr(t3)}, {sr(sHS)}, 2")
    e(f"v_add_u32 {vr(vCC)}, {sr(t3)}, {vr(vCC)}")
    e(f"s_lshl_b32 {sr(t3)}, {sr(t2)}, 2")
    e(f"v_mov_b32 {vr(vA1)}, {sr(t3)}")
    e(f"s_lshl_b32 {sr(t3)}, {sr(t2)}, 15")
    e(f"v_lshl_add_u32 {vr(vWO)}, {vr(vCC)}, 11, {sr(t3)}")
    e(f"v_lshl_add_u32 {vr(vWO)}, {vr(vDQ)}, 4, {vr(vWO)}")
    e(f"s_lshl_b32 {sr(t3)}, {sr(t2)}, 9")
    e(f"s_add_u32 {sr(t3)}, {sr(t3)}, 0x100000")
    e(f"v_lshl_add_u32 {vr(vWO+1)}, {vr(vCC)}, 5, {sr(t3)}")
    e(f"s_mov_b32 {sr(t5)}, 0")
    lab("L_poll")
    e(f"global_load_dword {vr(vA2)}, {vr(vA1)}, {sr(sDBG,2)} sc1")
    e("s_waitcnt vmcnt(0)")
    e(f"v_readfirstlane_b32 {sr(t4)}, {vr(vA2)}")
    e(f"s_cmp_ge_u32 {sr(t4)}, 4")
    e("s_cbranch_scc1 L_polled")
    e("s_sleep 2")
    e(f"s_add_u32 {sr(t5)}, {sr(t5)}, 1")
    e(f"s_cmp_lt_u32 {sr(t5)}, 0x40000")
    e("s_cbranch_scc1 L_poll")
    lab("L_polled")
    e(f"global_load_dwordx4 {vr(vGs,4)}, {vr(vWO+1)}, {sr(sWS,2)} sc1")
    e(f"global_load_dwordx4 {vr(vGs+4,4)}, {vr(vWO+1)}, {sr(sWS,2)} offset:16 sc1")
    for h in range(4):
        e(f"global_load_dwordx4 {vr(vGo+4*h,4)}, {vr(vWO)}, {sr(sWS,2)} offset:{512*h} sc1")
    lds_reduce(4)
    e(f"v_rcp_f32 {vr(vAL)}, {vr(vAL)}")
    e(f"s_lshl_b32 {sr(t3)}, {sr(sG)}, 2")
    e(f"s_add_u32 {sr(t3)}, {sr(t3)}, {sr(sHS)}")
    e(f"s_lshl_b32 {sr(t3)}, {sr(t3)}, 13")
    e(f"s_lshl_b32 {sr(t4)}, {sr(sH)}, 10")
    e(f"s_add_u32 {sr(t3)}, {sr(t3)}, {sr(t4)}")
    e(f"v_and_b32 {vr(vA1)}, 3, {vr(vCC)}")
    e(f"v_lshl_add_u32 {vr(vA1)}, {vr(vA1)}, 8, {sr(t3)}")
    e(f"v_lshrrev_b32 {vr(vA2)}, 3, {vr(vDQ)}")
    e(f"v_lshl_add_u32 {vr(vA1)}, {vr(vA2)}, 6, {vr(vA1)}")
    e(f"v_and_b32 {vr(vA2)}, 7, {vr(vDQ)}")
    e(f"v_lshl_add_u32 {vr(vA1)}, {vr(vA2)}, 1, {vr(vA1)}")
    for r in range(4):
        e(f"v_mul_f32 {vr(vR+r)}, {vr(vR+r)}, {vr(vAL)}")
    e(f"v_cvt_pk_bf16_f32 {vr(vR)}, {vr(vR)}, {vr(vR+1)}")
    e(f"v_cvt_pk_bf16_f32 {vr(vR+2)}, {vr(vR+2)}, {vr(vR+3)}")
    e(f"global_store_short {vr(vA1)}, {vr(vR)}, {sr(sOUT,2)}")
    e(f"global_store_short_d16_hi {vr(vA1)}, {vr(vR)}, {sr(sOUT,2)} offset:16")
    e(f"global_store_short {vr(vA1)}, {vr(vR+2)}, {sr(sOUT,2)} offset:32")
    e(f"global_store_short_d16_hi {vr(vA1)}, {vr(vR+2)}, {sr(sOUT,2)} offset:48")
    lab("L_done")
    if opt.stamps:
        e("s_waitcnt vmcnt(0)")
        stamp(3)
        e(f"s_getreg_b32 {sr(t5)}, hwreg(HW_REG_XCC_ID)")
        e(f"s_getreg_b32 {sr(t6)}, hwreg(HW_REG_HW_ID)")
        e("s_waitcnt lgkmcnt(0)")
        e(f"s_lshl_b32 {sr(t3)}, s2, 3")
        e(f"s_add_u32 {sr(t3)}, {sr(t3)}, {sr(sW)}")
        e(f"s_lshl_b32 {sr(t3)}, {sr(t3)}, 6")
        e(f"s_add_u32 {sr(t3)}, {sr(t3)}, 0x200000")
        e(f"v_mov_b32 v4, {sr(t3)}")
        for i in range(8):
            e(f"v_mov_b32 v{8+i}, {sr(sST+i)}")
        e(f"v_mov_b32 v16, {sr(t5)}")
        e(f"v_mov_b32 v17, {sr(t6)}")
        e("s_mov_b64 exec, 1")
        e(f"global_store_dwordx4 v4, v[8:11], {sr(sWS,2)}")
        e(f"global_store_dwordx4 v4, v[12:15], {sr(sWS,2)} offset:16")
        e(f"global_store_dwordx2 v4, v[16:17], {sr(sWS,2)} offset:32")
    lab("L_end")
    e("s_endpgm")

    out = HEADER
    out += f"; @launch grid=(256,1,1) block=(512,1,1) lds={LDS}\n"
    out += '.amdgcn_target "amdgcn-amd-amdhsa--gfx950"\n.text\n'
    out += f".globl {NAME}_kernel\n.p2align 8\n.type {NAME}_kernel,@function\n{NAME}_kernel:\n"
    out += "\n".join(g.lines) + "\n"
    out += f""".section .rodata,"a"
.p2align 6
.amdhsa_kernel {NAME}_kernel
  .amdhsa_next_free_vgpr {NV}
  .amdhsa_next_free_sgpr 100
  .amdhsa_accum_offset {NV}
  .amdhsa_group_segment_fixed_size 0
  .amdhsa_kernarg_size 64
  .amdhsa_user_sgpr_count 2
  .amdhsa_user_sgpr_kernarg_segment_ptr 1
  .amdhsa_system_sgpr_workgroup_id_x 1
.end_amdhsa_kernel
"""
    return out

if __name__ == "__main__":
    ap = argparse.ArgumentParser()
    ap.add_argument("-o", default=f"cdna_kernels/{NAME}.s")
    ap.add_argument("--F", type=int, default=28)
    ap.add_argument("--pol", default="")
    ap.add_argument("--pol_shared", default="")
    ap.add_argument("--stamps", action="store_true")
    ap.add_argument("--finrot", action="store_true")
    opt = ap.parse_args()
    opt.pol = (" " + opt.pol) if opt.pol else ""
    opt.pol_shared = (" " + opt.pol_shared) if opt.pol_shared else ""
    open(opt.o, "w").write(build(opt))
```

```python
import sys, struct, argparse

NAME = "standalone__paged_block_table_kv_radixattention__sampling"

HEADER = """; Kernarg layout for this problem (64 bytes, ptrs only, base s[0:1]):
"""

def f2u(x):
    return struct.unpack("<I", struct.pack("<f", x))[0]

class Gen:
    def __init__(self, opt):
        self.o = opt
        self.lines = []
        self.nlab = 0
    def e(self, s):
        self.lines.append("    " + s)
    def c(self, s):
        self.lines.append("    ; " + s)
    def lab(self, name):
        self.lines.append(name + ":")
    def newlab(self, p="L"):
        self.nlab += 1
        return f"{p}_{self.nlab}"

def vr(b, n=1):
    return f"v{b}" if n == 1 else f"v[{b}:{b+n-1}]"
def sr(b, n=1):
    return f"s{b}" if n == 1 else f"s[{b}:{b+n-1}]"

def build(opt):
    g = Gen(opt)
    e, c, lab = g.e, g.c, g.lab
    F = opt.F
    KVB = 2176 * 32768
    CSTR = 528
    WSTR = 16 * CSTR
    STAT = 8 * WSTR
    LDS = STAT + 8 * 128
    pol_priv = opt.pol
    sQ, sK, sV, sBT, sCTX, sOUT, sDBG, sWS = 4, 6, 8, 10, 12, 14, 16, 18
    srdK, srdV = 20, 24
    sC4 = 28
    sW, sH, sG, sHS, sFIN = 32, 33, 34, 35, 36
    sLAM, sREM, sSHL = 37, 38, 39
    sCS, sPLO, sPHI = 40, 41, 42
    mEV, mOD, mB0, mB1, mSL = 44, 46, 48, 50, 52
    sX = {"A": dict(b0=54, b1=55, pos=56, m=58), "B": dict(b0=60, b1=61, pos=62, m=64)}
    sCM = 66
    t0, t1, t2, t3, t4, t5, t6, t7 = 82, 83, 84, 85, 86, 87, 88, 89
    sST = 90
    vL, vG, vC = 1, 2, 3
    vKO, vVO = 4, 8
    vQ = 12
    vO = 28
    vM, vLs, vCG = 60, 61, 62
    vMETA = 63
    vTB = 64
    vFM, vFI = 66, 67
    vS = 68
    vP = 76
    vT = 80
    vLIM, vFILL, vMX, vAL, vX0, vX1 = 96, 97, 98, 99, 100, 101
    vX2, vX3 = 102, 103
    bufs = {"A": 104, "B": 168}
    NV = 232

    def stamp(i):
        if opt.stamps:
            e(f"s_memrealtime {sr(sST+2*i,2)}")

    e("s_cmp_ge_u32 s2, 256")
    e("s_cbranch_scc1 L_end")
    e(f"s_load_dwordx16 s[4:19], s[0:1], 0")
    stamp(0)
    e(f"v_and_b32 {vr(vL)}, 63, v0")
    e(f"v_lshrrev_b32 {vr(vX0)}, 6, v0")
    e(f"s_lshr_b32 {sr(t0)}, s2, 3")
    e(f"v_readfirstlane_b32 {sr(sW)}, {vr(vX0)}")
    e(f"s_and_b32 {sr(sH)}, s2, 7")
    e(f"s_cmp_ge_u32 {sr(t0)}, 16")
    e(f"s_cselect_b32 {sr(sFIN)}, 1, 0")
    e(f"s_and_b32 {sr(t1)}, {sr(t0)}, 3")
    e(f"s_bfe_u32 {sr(t2)}, {sr(t0)}, 0x20002")
    e(f"s_cmp_eq_u32 {sr(sFIN)}, 1")
    e(f"s_cselect_b32 {sr(sG)}, {sr(t2)}, {sr(t1)}")
    e(f"s_cselect_b32 {sr(sHS)}, {sr(t1)}, {sr(t2)}")
    if opt.finrot:
        e(f"s_mul_i32 {sr(t1)}, {sr(sFIN)}, {sr(t0)}")
        e(f"s_add_u32 {sr(sH)}, {sr(sH)}, {sr(t1)}")
        e(f"s_and_b32 {sr(sH)}, {sr(sH)}, 7")
    e(f"v_lshrrev_b32 {vr(vG)}, 4, {vr(vL)}")
    e(f"v_and_b32 {vr(vC)}, 15, {vr(vL)}")
    e(f"s_lshl_b32 {sr(t3)}, {sr(sH)}, 8")
    e(f"v_lshlrev_b32 {vr(vX0)}, 11, {vr(vG)}")
    e(f"v_lshl_add_u32 {vr(vX0)}, {vr(vC)}, 4, {vr(vX0)}")
    e(f"v_add_u32 {vr(vVO)}, {sr(t3)}, {vr(vX0)}")
    e(f"v_bfe_u32 {vr(vX1)}, {vr(vL)}, 2, 2")
    e(f"v_lshlrev_b32 {vr(vX1)}, 11, {vr(vX1)}")
    e(f"v_lshl_add_u32 {vr(vX1)}, {vr(vG)}, 6, {vr(vX1)}")
    e(f"v_and_b32 {vr(vX2)}, 3, {vr(vL)}")
    e(f"v_lshl_add_u32 {vr(vX1)}, {vr(vX2)}, 4, {vr(vX1)}")
    e(f"v_add_u32 {vr(vKO)}, {sr(t3)}, {vr(vX1)}")
    for n in range(1, 4):
        e(f"v_add_u32 {vr(vVO+n)}, {n*8192}, {vr(vVO)}")
        e(f"v_add_u32 {vr(vKO+n)}, {n*8192}, {vr(vKO)}")
    e(f"s_lshl_b32 {sr(t4)}, {sr(sG)}, 4")
    e("s_waitcnt lgkmcnt(0)")
    e(f"s_load_dwordx4 {sr(sC4,4)}, {sr(sCTX,2)}, {sr(t4)}")
    e(f"s_cmp_eq_u32 {sr(sFIN)}, 1")
    e("s_cbranch_scc0 L_helper_items")
    c("finisher items: step = 64 + w + 8*lane, slot fixed")
    e(f"s_add_u32 {sr(t0)}, {sr(sW)}, 64")
    e(f"v_lshl_add_u32 {vr(vX0)}, {vr(vL)}, 3, {sr(t0)}")
    e(f"v_mov_b32 {vr(vX1)}, {sr(sHS)}")
    e("s_branch L_items_done")
    lab("L_helper_items")
    e("s_waitcnt lgkmcnt(0)")
    for i in range(4):
        d = t0 + i
        e(f"s_min_i32 {sr(d)}, {sr(sC4+i)}, 4096")
        e(f"s_cmp_le_i32 {sr(sC4+i)}, 0")
        e(f"s_cselect_b32 {sr(d)}, 4096, {sr(d)}")
        e(f"s_add_u32 {sr(d)}, {sr(d)}, 31")
        e(f"s_lshr_b32 {sr(d)}, {sr(d)}, 5")
        e(f"s_sub_i32 {sr(d)}, {sr(d)}, {64+F}")
        e(f"s_max_i32 {sr(d)}, {sr(d)}, 0")
    e(f"s_add_u32 {sr(t1)}, {sr(t1)}, {sr(t0)}")
    e(f"s_add_u32 {sr(t2)}, {sr(t2)}, {sr(t1)}")
    e(f"s_add_u32 {sr(t3)}, {sr(t3)}, {sr(t2)}")
    e(f"s_mul_i32 {sr(t4)}, {sr(t3)}, {sr(sHS)}")
    e(f"s_add_u32 {sr(t5)}, {sr(t4)}, {sr(t3)}")
    e(f"s_lshr_b32 {sr(t4)}, {sr(t4)}, 2")
    e(f"s_lshr_b32 {sr(t5)}, {sr(t5)}, 2")
    e(f"s_add_u32 {sr(t4)}, {sr(t4)}, {sr(sW)}")
    e(f"s_sub_i32 {sr(t5)}, {sr(t5)}, {sr(t4)}")
    e(f"s_add_i32 {sr(t5)}, {sr(t5)}, 7")
    e(f"s_ashr_i32 {sr(t5)}, {sr(t5)}, 3")
    e(f"s_max_i32 {sr(sREM)}, {sr(t5)}, 0")
    e(f"s_sub_u32 {sr(t4)}, {sr(t4)}, 64")
    e(f"v_lshl_add_u32 {vr(vX2)}, {vr(vL)}, 3, {sr(t4)}")
    e(f"v_mov_b32 {vr(vX1)}, 0")
    e(f"v_mov_b32 {vr(vX3)}, 0")
    for i in range(3):
        e(f"v_cmp_ge_i32 {sr(sCM+2*i,2)}, {vr(vX2)}, {sr(t0+i)}")
    for i in range(3):
        e(f"v_mov_b32 {vr(vT+i)}, {sr(t0+i)}")
    for i in range(3):
        e(f"v_cndmask_b32 {vr(vX1)}, {vr(vX1)}, {i+1}, {sr(sCM+2*i,2)}")
        e(f"v_cndmask_b32 {vr(vX3)}, {vr(vX3)}, {vr(vT+i)}, {sr(sCM+2*i,2)}")
    e(f"v_sub_u32 {vr(vX0)}, {vr(vX2)}, {vr(vX3)}")
    e(f"v_add_u32 {vr(vX0)}, {64+F}, {vr(vX0)}")
    e(f"s_lshl_b32 {sr(t6)}, {sr(sHS)}, 4")
    e(f"s_add_u32 {sr(t6)}, {sr(t6)}, {sr(sW)}")
    e(f"v_lshrrev_b32 {vr(vX2)}, 2, {vr(vL)}")
    e(f"v_lshl_add_u32 {vr(vX2)}, {vr(vX2)}, 3, {sr(t6)}")
    e(f"v_and_b32 {vr(vX3)}, 3, {vr(vL)}")
    e(f"v_cmp_gt_u32 vcc, 8, {vr(vL)}")
    e("s_nop 1")
    e(f"v_cndmask_b32 {vr(vX0)}, {vr(vX0)}, {vr(vX2)}, vcc")
    e(f"v_cndmask_b32 {vr(vX1)}, {vr(vX1)}, {vr(vX3)}, vcc")
    lab("L_items_done")
    e(f"v_min_u32 {vr(vX0)}, 127, {vr(vX0)}")
    e(f"s_lshl_b32 {sr(t6)}, {sr(sG)}, 12")
    e(f"v_lshl_add_u32 {vr(vX2)}, {vr(vX1)}, 10, {sr(t6)}")
    e(f"v_lshl_add_u32 {vr(vX2)}, {vr(vX0)}, 3, {vr(vX2)}")
    e(f"global_load_dwordx2 {vr(vTB,2)}, {vr(vX2)}, {sr(sBT,2)}")
    e(f"v_lshlrev_b32 {vr(vMETA)}, 5, {vr(vX0)}")
    e(f"v_lshl_add_u32 {vr(vMETA)}, {vr(vX1)}, 18, {vr(vMETA)}")
    e(f"s_lshl_b32 {sr(t6)}, {sr(sG)}, 15")
    e(f"s_lshl_b32 {sr(t7)}, {sr(sH)}, 10")
    e(f"s_add_u32 {sr(t6)}, {sr(t6)}, {sr(t7)}")
    e(f"v_lshrrev_b32 {vr(vX0)}, 2, {vr(vC)}")
    e(f"v_lshl_add_u32 {vr(vX1)}, {vr(vX0)}, 13, {sr(t6)}")
    e(f"v_and_b32 {vr(vX3)}, 3, {vr(vC)}")
    e(f"v_lshl_add_u32 {vr(vX1)}, {vr(vX3)}, 8, {vr(vX1)}")
    e(f"v_lshl_add_u32 {vr(vX1)}, {vr(vG)}, 6, {vr(vX1)}")
    for m in range(4):
        e(f"global_load_dwordx4 {vr(vQ+4*m,4)}, {vr(vX1)}, {sr(sQ,2)} offset:{16*m}")
    e(f"s_mov_b32 {sr(srdK)}, {sr(sK)}")
    e(f"s_and_b32 {sr(srdK+1)}, {sr(sK+1)}, 0xffff")
    e(f"s_mov_b32 {sr(srdK+2)}, {KVB}")
    e(f"s_mov_b32 {sr(srdK+3)}, 0x20000")
    e(f"s_mov_b32 {sr(srdV)}, {sr(sV)}")
    e(f"s_and_b32 {sr(srdV+1)}, {sr(sV+1)}, 0xffff")
    e(f"s_mov_b32 {sr(srdV+2)}, {KVB}")
    e(f"s_mov_b32 {sr(srdV+3)}, 0x20000")
    e(f"s_mov_b32 {sr(mSL)}, 0x000f000f")
    e(f"s_mov_b32 {sr(mSL+1)}, 0x000f000f")
    e(f"s_mov_b32 {sr(sLAM)}, 0")
    e(f"s_mov_b32 {sr(sSHL)}, 0")
    e("s_waitcnt lgkmcnt(0)")
    e(f"s_cmp_eq_u32 {sr(sFIN)}, 1")
    e("s_cbranch_scc0 L_helper_cnt")
    c("finisher count: n = max(0, ceil((min(64+F, nsteps) - 64 - w)/8))")
    e(f"s_mov_b32 {sr(t0)}, {sr(sC4)}")
    for i in range(1, 4):
        e(f"s_cmp_eq_u32 {sr(sHS)}, {i}")
        e(f"s_cselect_b32 {sr(t0)}, {sr(sC4+i)}, {sr(t0)}")
    e(f"s_min_i32 {sr(t1)}, {sr(t0)}, 4096")
    e(f"s_cmp_le_i32 {sr(t0)}, 0")
    e(f"s_cselect_b32 {sr(t1)}, 4096, {sr(t1)}")
    e(f"s_add_u32 {sr(t1)}, {sr(t1)}, 31")
    e(f"s_lshr_b32 {sr(t1)}, {sr(t1)}, 5")
    e(f"s_min_u32 {sr(t1)}, {sr(t1)}, {64+F}")
    e(f"s_sub_i32 {sr(t1)}, {sr(t1)}, {sr(sW)}")
    e(f"s_sub_i32 {sr(t1)}, {sr(t1)}, {64-7}")
    e(f"s_ashr_i32 {sr(t1)}, {sr(t1)}, 3")
    e(f"s_max_i32 {sr(sREM)}, {sr(t1)}, 0")
    e("s_waitcnt vmcnt(4)")
    e("s_branch L_cnt_done")
    lab("L_helper_cnt")
    e("s_waitcnt vmcnt(4)")
    c("shared test on lanes 0..7: entries equal to quad lane 0")
    e("s_nop 1")
    e(f"v_mov_b32_dpp {vr(vX1)}, {vr(vTB)} quad_perm:[0,0,0,0] row_mask:0xf bank_mask:0xf")
    e(f"v_mov_b32_dpp {vr(vX3)}, {vr(vTB+1)} quad_perm:[0,0,0,0] row_mask:0xf bank_mask:0xf")
    e(f"v_cmp_ne_u32 {sr(sCM,2)}, {vr(vX1)}, {vr(vTB)}")
    e(f"v_cmp_ne_u32 {sr(sCM+2,2)}, {vr(vX3)}, {vr(vTB+1)}")
    e(f"s_or_b32 {sr(t0)}, {sr(sCM)}, {sr(sCM+2)}")
    e(f"s_and_b32 {sr(t0)}, {sr(t0)}, 0xff")
    e(f"s_cselect_b32 {sr(sSHL)}, 0, 8")
    e(f"s_cselect_b32 {sr(t1)}, 8, 2")
    e(f"s_add_u32 {sr(sREM)}, {sr(sREM)}, {sr(t1)}")
    lab("L_cnt_done")
    stamp(1)

    def fetch(X):
        d = sX[X]
        e(f"v_readlane_b32 {sr(t0)}, {vr(vTB)}, {sr(sLAM)}")
        e(f"v_readlane_b32 {sr(t1)}, {vr(vTB+1)}, {sr(sLAM)}")
        e(f"v_readlane_b32 {sr(t2)}, {vr(vMETA)}, {sr(sLAM)}")
        e(f"s_lshl_b32 {sr(d['b0'])}, {sr(t0)}, 15")
        e(f"s_lshl_b32 {sr(d['b1'])}, {sr(t1)}, 15")
        e(f"s_and_b32 {sr(d['pos'])}, {sr(t2)}, 0xffff")
        e(f"s_lshr_b32 {sr(t2)}, {sr(t2)}, 16")
        e(f"s_lshl_b64 {sr(d['m'],2)}, {sr(mSL,2)}, {sr(t2)}")
        e(f"s_cmp_lt_u32 {sr(sLAM)}, {sr(sSHL)}")
        e(f"s_cselect_b64 {sr(d['m'],2)}, -1, {sr(d['m'],2)}")
        e(f"s_cselect_b32 {sr(t3)}, 4, 1")
        e(f"s_add_u32 {sr(sLAM)}, {sr(sLAM)}, {sr(t3)}")
    def issueK(X, pol):
        d = sX[X]; b = bufs[X]
        for tl in range(2):
            for n in range(4):
                e(f"buffer_load_dwordx4 {vr(b+16*tl+4*n,4)}, {vr(vKO+n)}, {sr(srdK,4)}, {sr(d['b%d'%tl])} offen{pol}")
    def issueV(X, pol):
        d = sX[X]; b = bufs[X] + 32
        for tl in range(2):
            for n in range(4):
                e(f"buffer_load_dwordx4 {vr(b+16*tl+4*n,4)}, {vr(vVO+n)}, {sr(srdV,4)}, {sr(d['b%d'%tl])} offen{pol}")

    e(f"s_cmp_eq_u32 {sr(sREM)}, 0")
    e("s_cbranch_scc1 L_first_done")
    if opt.pol_shared != pol_priv:
        e(f"s_cmp_eq_u32 {sr(sFIN)}, 1")
        e("s_cbranch_scc1 L_first_fin")
        fetch("A"); issueK("A", opt.pol_shared); issueV("A", opt.pol_shared)
        fetch("B"); issueK("B", opt.pol_shared); issueV("B", opt.pol_shared)
        e("s_branch L_first_done")
        lab("L_first_fin")
    fetch("A"); issueK("A", pol_priv); issueV("A", pol_priv)
    e(f"s_cmp_lt_u32 {sr(sREM)}, 2")
    e("s_cbranch_scc1 L_first_done")
    fetch("B"); issueK("B", pol_priv); issueV("B", pol_priv)
    lab("L_first_done")
    e(f"s_mov_b32 {sr(sCS)}, 0x{f2u(128**-0.5 * 1.4426950408889634):08x}")
    e(f"s_mov_b32 {sr(sPLO)}, 0x05040100")
    e(f"s_mov_b32 {sr(sPHI)}, 0x07060302")
    for m_, val in ((mEV, 0x55555555), (mOD, 0xaaaaaaaa), (mB0, 0x33333333), (mB1, 0xcccccccc)):
        e(f"s_mov_b32 {sr(m_)}, 0x{val:08x}")
        e(f"s_mov_b32 {sr(m_+1)}, 0x{val:08x}")
    for i in range(32):
        e(f"v_mov_b32 {vr(vO+i)}, 0")
    e(f"v_mov_b32 {vr(vM)}, 0x{f2u(-1e30):08x}")
    e(f"v_mov_b32 {vr(vLs)}, 0")
    e(f"v_mov_b32 {vr(vFM)}, 0x{f2u(-1e9*1.4426950408889634):08x}")
    e(f"v_mov_b32 {vr(vFI)}, 0x{f2u(-3e38):08x}")
    e(f"v_lshrrev_b32 {vr(vX0)}, 2, {vr(vC)}")
    e(f"v_mov_b32 {vr(vCG)}, {sr(sC4)}")
    for i in range(1, 4):
        e(f"v_cmp_eq_u32 {sr(sCM+2*i,2)}, {i}, {vr(vX0)}")
    for i in range(1, 4):
        e(f"v_mov_b32 {vr(vT+i)}, {sr(sC4+i)}")
    for i in range(1, 4):
        e(f"v_cndmask_b32 {vr(vCG)}, {vr(vCG)}, {vr(vT+i)}, {sr(sCM+2*i,2)}")
    e(f"v_max_i32 {vr(vCG)}, 0, {vr(vCG)}")
    e(f"v_min_i32 {vr(vCG)}, 0x1000, {vr(vCG)}")
    e(f"v_sub_u32 {vr(vCG)}, {vr(vCG)}, {vr(vG)}")
    e(f"s_cmp_eq_u32 {sr(sREM)}, 0")
    e("s_cbranch_scc1 L_epi")

    DPP1 = "quad_perm:[1,0,3,2] row_mask:0xf bank_mask:0xf"
    DPP2 = "quad_perm:[2,3,0,1] row_mask:0xf bank_mask:0xf"

    def compute(X):
        d = sX[X]; kb = bufs[X]; vb = kb + 32
        E = lambda tl, n, w: kb + 16*tl + 4*n + w
        T = lambda tl, n1, w: vT + 8*tl + 4*n1 + w
        l1 = g.newlab(); l2 = g.newlab(); l3 = g.newlab(); l4 = g.newlab()
        e(f"s_cmp_gt_u32 {sr(sREM)}, 1")
        e("s_waitcnt vmcnt(24)")
        e(f"s_cbranch_scc1 {l1}")
        e("s_waitcnt vmcnt(8)")
        lab(l1)
        c("K quad transpose, stage 1")
        e(f"s_mov_b64 vcc, {sr(mEV,2)}")
        e("s_nop 0")
        for tl in range(2):
            for n1 in range(2):
                for w in range(4):
                    e(f"v_cndmask_b32_dpp {vr(T(tl,n1,w))}, {vr(E(tl,2*n1+1,w))}, {vr(E(tl,2*n1,w))}, vcc {DPP1}")
        e(f"s_mov_b64 vcc, {sr(mOD,2)}")
        for tl in range(2):
            for n1 in range(2):
                for w in range(4):
                    e(f"v_cndmask_b32_dpp {vr(E(tl,2*n1+1,w))}, {vr(E(tl,2*n1,w))}, {vr(E(tl,2*n1+1,w))}, vcc {DPP1}")
        c("stage 2")
        e(f"s_mov_b64 vcc, {sr(mB0,2)}")
        for tl in range(2):
            for w in range(4):
                e(f"v_cndmask_b32_dpp {vr(E(tl,0,w))}, {vr(T(tl,1,w))}, {vr(T(tl,0,w))}, vcc {DPP2}")
        for tl in range(2):
            for w in range(4):
                e(f"v_cndmask_b32_dpp {vr(E(tl,2,w))}, {vr(E(tl,3,w))}, {vr(E(tl,1,w))}, vcc {DPP2}")
        e(f"s_mov_b64 vcc, {sr(mB1,2)}")
        e(f"v_mfma_f32_16x16x32_bf16 {vr(vS,4)}, {vr(E(0,0,0),4)}, {vr(vQ,4)}, 0")
        e(f"v_mfma_f32_16x16x32_bf16 {vr(vS+4,4)}, {vr(E(1,0,0),4)}, {vr(vQ,4)}, 0")
        for tl in range(2):
            for w in range(4):
                e(f"v_cndmask_b32_dpp {vr(T(tl,1,w))}, {vr(T(tl,0,w))}, {vr(T(tl,1,w))}, vcc {DPP2}")
        e(f"v_mfma_f32_16x16x32_bf16 {vr(vS,4)}, {vr(E(0,2,0),4)}, {vr(vQ+4,4)}, {vr(vS,4)}")
        e(f"v_mfma_f32_16x16x32_bf16 {vr(vS+4,4)}, {vr(E(1,2,0),4)}, {vr(vQ+4,4)}, {vr(vS+4,4)}")
        for tl in range(2):
            for w in range(4):
                e(f"v_cndmask_b32_dpp {vr(E(tl,3,w))}, {vr(E(tl,1,w))}, {vr(E(tl,3,w))}, vcc {DPP2}")
        e(f"v_mfma_f32_16x16x32_bf16 {vr(vS,4)}, {vr(T(0,1,0),4)}, {vr(vQ+8,4)}, {vr(vS,4)}")
        e(f"v_mfma_f32_16x16x32_bf16 {vr(vS+4,4)}, {vr(T(1,1,0),4)}, {vr(vQ+8,4)}, {vr(vS+4,4)}")
        e(f"v_mfma_f32_16x16x32_bf16 {vr(vS,4)}, {vr(E(0,3,0),4)}, {vr(vQ+12,4)}, {vr(vS,4)}")
        e(f"v_mfma_f32_16x16x32_bf16 {vr(vS+4,4)}, {vr(E(1,3,0),4)}, {vr(vQ+12,4)}, {vr(vS+4,4)}")
        c("mask setup")
        e(f"v_subrev_u32 {vr(vLIM)}, {sr(d['pos'])}, {vr(vCG)}")
        e(f"v_cndmask_b32 {vr(vLIM)}, 0, {vr(vLIM)}, {sr(d['m'],2)}")
        e(f"v_cndmask_b32 {vr(vFILL)}, {vr(vFI)}, {vr(vFM)}, {sr(d['m'],2)}")
        for j in range(8):
            e(f"v_cmp_lt_i32 {sr(sCM+2*j,2)}, {(j>>2)*16+(j&3)*4}, {vr(vLIM)}")
        e(f"s_cmp_gt_u32 {sr(sREM)}, 2")
        e(f"s_cbranch_scc0 {l2}")
        fetch(X); issueK(X, pol_priv)
        lab(l2)
        c("softmax")
        for j in range(8):
            e(f"v_mul_f32 {vr(vS+j)}, {sr(sCS)}, {vr(vS+j)}")
        for j in range(8):
            e(f"v_cndmask_b32 {vr(vS+j)}, {vr(vFILL)}, {vr(vS+j)}, {sr(sCM+2*j,2)}")
        e(f"v_max3_f32 {vr(vMX)}, {vr(vS)}, {vr(vS+1)}, {vr(vS+2)}")
        e(f"v_max3_f32 {vr(vX0)}, {vr(vS+3)}, {vr(vS+4)}, {vr(vS+5)}")
        e(f"v_max3_f32 {vr(vMX)}, {vr(vMX)}, {vr(vS+6)}, {vr(vS+7)}")
        e(f"v_max3_f32 {vr(vMX)}, {vr(vMX)}, {vr(vX0)}, {vr(vM)}")
        e(f"v_mov_b32 {vr(vX0)}, {vr(vMX)}")
        e("s_nop 1")
        e(f"v_permlane32_swap_b32 {vr(vMX)}, {vr(vX0)}")
        e(f"v_max_f32 {vr(vMX)}, {vr(vMX)}, {vr(vX0)}")
        e(f"v_mov_b32 {vr(vX0)}, {vr(vMX)}")
        e("s_nop 1")
        e(f"v_permlane16_swap_b32 {vr(vMX)}, {vr(vX0)}")
        e(f"v_max_f32 {vr(vMX)}, {vr(vMX)}, {vr(vX0)}")
        e(f"v_sub_f32 {vr(vAL)}, {vr(vM)}, {vr(vMX)}")
        for j in range(8):
            e(f"v_sub_f32 {vr(vS+j)}, {vr(vS+j)}, {vr(vMX)}")
        e(f"v_exp_f32 {vr(vAL)}, {vr(vAL)}")
        for j in range(8):
            e(f"v_exp_f32 {vr(vS+j)}, {vr(vS+j)}")
        e(f"v_mov_b32 {vr(vM)}, {vr(vMX)}")
        e(f"v_mul_f32 {vr(vLs)}, {vr(vLs)}, {vr(vAL)}")
        for u in range(4):
            e(f"v_cvt_pk_bf16_f32 {vr(vP+u)}, {vr(vS+2*u)}, {vr(vS+2*u+1)}")
        e(f"v_add_f32 {vr(vX0)}, {vr(vS)}, {vr(vS+1)}")
        e(f"v_add_f32 {vr(vX1)}, {vr(vS+2)}, {vr(vS+3)}")
        e(f"v_add_f32 {vr(vX2)}, {vr(vS+4)}, {vr(vS+5)}")
        e(f"v_add_f32 {vr(vX3)}, {vr(vS+6)}, {vr(vS+7)}")
        e(f"v_add_f32 {vr(vX0)}, {vr(vX0)}, {vr(vX1)}")
        e(f"v_add_f32 {vr(vX2)}, {vr(vX2)}, {vr(vX3)}")
        e(f"v_add_f32 {vr(vLs)}, {vr(vLs)}, {vr(vX0)}")
        e(f"v_add_f32 {vr(vLs)}, {vr(vLs)}, {vr(vX2)}")
        for i in range(32):
            e(f"v_mul_f32 {vr(vO+i)}, {vr(vO+i)}, {vr(vAL)}")
        c("wait V")
        e(f"s_cmp_gt_u32 {sr(sREM)}, 2")
        e("s_waitcnt vmcnt(24)")
        e(f"s_cbranch_scc1 {l3}")
        e(f"s_cmp_gt_u32 {sr(sREM)}, 1")
        e("s_waitcnt vmcnt(16)")
        e(f"s_cbranch_scc1 {l3}")
        e("s_waitcnt vmcnt(0)")
        lab(l3)
        Vr = lambda n, w: vb + 4*n + w
        def perms(w4):
            tb = vT + 8*(w4 & 1)
            for u in range(4):
                e(f"v_perm_b32 {vr(tb+u)}, {vr(Vr(2*u+1,w4))}, {vr(Vr(2*u,w4))}, {sr(sPLO)}")
            for u in range(4):
                e(f"v_perm_b32 {vr(tb+4+u)}, {vr(Vr(2*u+1,w4))}, {vr(Vr(2*u,w4))}, {sr(sPHI)}")
        def pv(w4, h):
            tb = vT + 8*(w4 & 1) + 4*h
            ob = vO + 4*(2*w4+h)
            e(f"v_mfma_f32_16x16x32_bf16 {vr(ob,4)}, {vr(tb,4)}, {vr(vP,4)}, {vr(ob,4)}")
        perms(0)
        for w4 in range(4):
            pv(w4, 0)
            if w4 < 3:
                perms(w4+1)
            else:
                e("s_nop 0")
            pv(w4, 1)
        e(f"s_cmp_gt_u32 {sr(sREM)}, 2")
        e(f"s_cbranch_scc0 {l4}")
        issueV(X, pol_priv)
        lab(l4)

    lab("L_loop")
    compute("A")
    e(f"s_sub_u32 {sr(sREM)}, {sr(sREM)}, 1")
    e(f"s_cmp_eq_u32 {sr(sREM)}, 0")
    e("s_cbranch_scc1 L_epi")
    compute("B")
    e(f"s_sub_u32 {sr(sREM)}, {sr(sREM)}, 1")
    e(f"s_cmp_lg_u32 {sr(sREM)}, 0")
    e("s_cbranch_scc1 L_loop")

    lab("L_epi")
    stamp(2)
    c("reduce l over the 4 lane groups")
    e(f"v_mov_b32 {vr(vX0)}, {vr(vLs)}")
    e("s_nop 1")
    e(f"v_permlane32_swap_b32 {vr(vLs)}, {vr(vX0)}")
    e(f"v_add_f32 {vr(vLs)}, {vr(vLs)}, {vr(vX0)}")
    e(f"v_mov_b32 {vr(vX0)}, {vr(vLs)}")
    e("s_nop 1")
    e(f"v_permlane16_swap_b32 {vr(vLs)}, {vr(vX0)}")
    e(f"v_add_f32 {vr(vLs)}, {vr(vLs)}, {vr(vX0)}")
    e(f"s_mul_i32 {sr(t0)}, {sr(sW)}, {WSTR}")
    e(f"v_mul_u32_u24 {vr(vX1)}, {CSTR}, {vr(vC)}")
    e(f"v_lshl_add_u32 {vr(vX1)}, {vr(vG)}, 7, {vr(vX1)}")
    e(f"v_add_u32 {vr(vX1)}, {sr(t0)}, {vr(vX1)}")
    e(f"s_lshl_b32 {sr(t1)}, {sr(sW)}, 7")
    e(f"s_add_u32 {sr(t1)}, {sr(t1)}, {STAT}")
    e(f"v_lshl_add_u32 {vr(vX2)}, {vr(vC)}, 3, {sr(t1)}")
    e(f"ds_write_b64 {vr(vX2)}, {vr(vM,2)}")
    for ee in range(8):
        e(f"ds_write_b128 {vr(vX1)}, {vr(vO+4*ee,4)} offset:{16*ee}")
    vCC, vDQ, vA1, vA2, vWO = 4, 5, 6, 7, 8
    vSt = 104
    vOq = 120
    vGs = 152
    vGo = 160
    vR = 176
    vWt = 184
    e(f"v_lshrrev_b32 {vr(vCC)}, 5, v0")
    e(f"v_and_b32 {vr(vDQ)}, 31, v0")
    e(f"s_lshl_b32 {sr(t2)}, {sr(sH)}, 2")
    e(f"s_add_u32 {sr(t2)}, {sr(t2)}, {sr(sG)}")
    e(f"s_cmp_eq_u32 {sr(sFIN)}, 1")
    e("s_cbranch_scc1 L_fin")

    def lds_reduce(nglob):
        e(f"v_lshlrev_b32 {vr(vA1)}, 3, {vr(vCC)}")
        e(f"v_add_u32 {vr(vA1)}, {STAT}, {vr(vA1)}")
        e(f"v_mul_u32_u24 {vr(vA2)}, {CSTR}, {vr(vCC)}")
        e(f"v_lshl_add_u32 {vr(vA2)}, {vr(vDQ)}, 4, {vr(vA2)}")
        e("s_waitcnt lgkmcnt(0)")
        e("s_barrier")
        for w in range(8):
            e(f"ds_read_b64 {vr(vSt+2*w,2)}, {vr(vA1)} offset:{128*w}")
        for w in range(8):
            e(f"ds_read_b128 {vr(vOq+4*w,4)}, {vr(vA2)} offset:{WSTR*w}")
        e("s_waitcnt lgkmcnt(8)")
        ms = [vSt+2*w for w in range(8)]
        ls = [vSt+2*w+1 for w in range(8)]
        os_ = [vOq+4*w for w in range(8)]
        if nglob:
            e("s_waitcnt vmcnt(0)")
            ms += [vGs+2*h for h in range(4)]
            ls += [vGs+2*h+1 for h in range(4)]
            os_ += [vGo+4*h for h in range(4)]
        e(f"v_max3_f32 {vr(vMX)}, {vr(ms[0])}, {vr(ms[1])}, {vr(ms[2])}")
        i = 3
        while i < len(ms):
            if i + 1 < len(ms):
                e(f"v_max3_f32 {vr(vMX)}, {vr(vMX)}, {vr(ms[i])}, {vr(ms[i+1])}"); i += 2
            else:
                e(f"v_max_f32 {vr(vMX)}, {vr(vMX)}, {vr(ms[i])}"); i += 1
        for i in range(len(ms)):
            e(f"v_sub_f32 {vr(vWt+i)}, {vr(ms[i])}, {vr(vMX)}")
        for i in range(len(ms)):
            e(f"v_exp_f32 {vr(vWt+i)}, {vr(vWt+i)}")
        e("s_nop 0")
        e(f"v_mul_f32 {vr(vAL)}, {vr(vWt)}, {vr(ls[0])}")
        for i in range(1, len(ms)):
            e(f"v_fmac_f32 {vr(vAL)}, {vr(vWt+i)}, {vr(ls[i])}")
        e("s_waitcnt lgkmcnt(0)")
        for r in range(4):
            e(f"v_mul_f32 {vr(vR+r)}, {vr(vWt)}, {vr(os_[0]+r)}")
        for i in range(1, len(ms)):
            for r in range(4):
                e(f"v_fmac_f32 {vr(vR+r)}, {vr(vWt+i)}, {vr(os_[i]+r)}")

    c("---------- helper: publish the workgroup partial")
    lds_reduce(0)
    e(f"s_lshl_b32 {sr(t3)}, {sr(t2)}, 15")
    e(f"s_lshl_b32 {sr(t4)}, {sr(sHS)}, 9")
    e(f"s_add_u32 {sr(t3)}, {sr(t3)}, {sr(t4)}")
    e(f"v_lshl_add_u32 {vr(vWO)}, {vr(vCC)}, 11, {sr(t3)}")
    e(f"v_lshl_add_u32 {vr(vWO)}, {vr(vDQ)}, 4, {vr(vWO)}")
    e(f"global_store_dwordx4 {vr(vWO)}, {vr(vR,4)}, {sr(sWS,2)} sc1")
    e(f"s_lshl_b32 {sr(t3)}, {sr(t2)}, 9")
    e(f"s_lshl_b32 {sr(t4)}, {sr(sHS)}, 3")
    e(f"s_add_u32 {sr(t3)}, {sr(t3)}, {sr(t4)}")
    e(f"s_add_u32 {sr(t3)}, {sr(t3)}, 0x100000")
    e(f"v_lshl_add_u32 {vr(vA1)}, {vr(vCC)}, 5, {sr(t3)}")
    e(f"v_cmp_eq_u32 vcc, 0, {vr(vDQ)}")
    e(f"s_and_saveexec_b64 {sr(sCM,2)}, vcc")
    e(f"global_store_dwordx2 {vr(vA1)}, {vr(vMX,2)}, {sr(sWS,2)} sc1")
    e(f"s_mov_b64 exec, {sr(sCM,2)}")
    e("s_waitcnt vmcnt(0)")
    e("s_barrier")
    e(f"s_cmp_eq_u32 {sr(sW)}, 0")
    e("s_cbranch_scc0 L_done")
    e(f"s_lshl_b32 {sr(t3)}, {sr(t2)}, 2")
    e(f"v_mov_b32 {vr(vA1)}, {sr(t3)}")
    e(f"v_mov_b32 {vr(vA2)}, 1")
    e("s_mov_b64 exec, 1")
    e(f"global_atomic_add {vr(vA1)}, {vr(vA2)}, {sr(sDBG,2)}")
    e("s_mov_b64 exec, -1")
    e("s_branch L_done")

    c("---------- finisher")
    lab("L_fin")
    e(f"s_cmp_ge_u32 {sr(sW)}, 6")
    e("s_cbranch_scc1 L_merge")
    e("s_waitcnt lgkmcnt(0)")
    e("s_barrier")
    e("s_branch L_done")
    lab("L_merge")
    e(f"v_and_b32 {vr(vCC)}, 3, {vr(vCC)}")
    e(f"s_lshl_b32 {sr(t3)}, {sr(sHS)}, 2")
    e(f"v_add_u32 {vr(vCC)}, {sr(t3)}, {vr(vCC)}")
    e(f"s_lshl_b32 {sr(t3)}, {sr(t2)}, 2")
    e(f"v_mov_b32 {vr(vA1)}, {sr(t3)}")
    e(f"s_lshl_b32 {sr(t3)}, {sr(t2)}, 15")
    e(f"v_lshl_add_u32 {vr(vWO)}, {vr(vCC)}, 11, {sr(t3)}")
    e(f"v_lshl_add_u32 {vr(vWO)}, {vr(vDQ)}, 4, {vr(vWO)}")
    e(f"s_lshl_b32 {sr(t3)}, {sr(t2)}, 9")
    e(f"s_add_u32 {sr(t3)}, {sr(t3)}, 0x100000")
    e(f"v_lshl_add_u32 {vr(vWO+1)}, {vr(vCC)}, 5, {sr(t3)}")
    e(f"s_mov_b32 {sr(t5)}, 0")
    lab("L_poll")
    e(f"global_load_dword {vr(vA2)}, {vr(vA1)}, {sr(sDBG,2)} sc1")
    e("s_waitcnt vmcnt(0)")
    e(f"v_readfirstlane_b32 {sr(t4)}, {vr(vA2)}")
    e(f"s_cmp_ge_u32 {sr(t4)}, 4")
    e("s_cbranch_scc1 L_polled")
    e("s_sleep 2")
    e(f"s_add_u32 {sr(t5)}, {sr(t5)}, 1")
    e(f"s_cmp_lt_u32 {sr(t5)}, 0x40000")
    e("s_cbranch_scc1 L_poll")
    lab("L_polled")
    e(f"global_load_dwordx4 {vr(vGs,4)}, {vr(vWO+1)}, {sr(sWS,2)} sc1")
    e(f"global_load_dwordx4 {vr(vGs+4,4)}, {vr(vWO+1)}, {sr(sWS,2)} offset:16 sc1")
    for h in range(4):
        e(f"global_load_dwordx4 {vr(vGo+4*h,4)}, {vr(vWO)}, {sr(sWS,2)} offset:{512*h} sc1")
    lds_reduce(4)
    e(f"v_rcp_f32 {vr(vAL)}, {vr(vAL)}")
    e(f"s_lshl_b32 {sr(t3)}, {sr(sG)}, 2")
    e(f"s_add_u32 {sr(t3)}, {sr(t3)}, {sr(sHS)}")
    e(f"s_lshl_b32 {sr(t3)}, {sr(t3)}, 13")
    e(f"s_lshl_b32 {sr(t4)}, {sr(sH)}, 10")
    e(f"s_add_u32 {sr(t3)}, {sr(t3)}, {sr(t4)}")
    e(f"v_and_b32 {vr(vA1)}, 3, {vr(vCC)}")
    e(f"v_lshl_add_u32 {vr(vA1)}, {vr(vA1)}, 8, {sr(t3)}")
    e(f"v_lshrrev_b32 {vr(vA2)}, 3, {vr(vDQ)}")
    e(f"v_lshl_add_u32 {vr(vA1)}, {vr(vA2)}, 6, {vr(vA1)}")
    e(f"v_and_b32 {vr(vA2)}, 7, {vr(vDQ)}")
    e(f"v_lshl_add_u32 {vr(vA1)}, {vr(vA2)}, 1, {vr(vA1)}")
    for r in range(4):
        e(f"v_mul_f32 {vr(vR+r)}, {vr(vR+r)}, {vr(vAL)}")
    e(f"v_cvt_pk_bf16_f32 {vr(vR)}, {vr(vR)}, {vr(vR+1)}")
    e(f"v_cvt_pk_bf16_f32 {vr(vR+2)}, {vr(vR+2)}, {vr(vR+3)}")
    e(f"global_store_short {vr(vA1)}, {vr(vR)}, {sr(sOUT,2)}")
    e(f"global_store_short_d16_hi {vr(vA1)}, {vr(vR)}, {sr(sOUT,2)} offset:16")
    e(f"global_store_short {vr(vA1)}, {vr(vR+2)}, {sr(sOUT,2)} offset:32")
    e(f"global_store_short_d16_hi {vr(vA1)}, {vr(vR+2)}, {sr(sOUT,2)} offset:48")
    lab("L_done")
    if opt.stamps:
        e("s_waitcnt vmcnt(0)")
        stamp(3)
        e(f"s_getreg_b32 {sr(t5)}, hwreg(HW_REG_XCC_ID)")
        e(f"s_getreg_b32 {sr(t6)}, hwreg(HW_REG_HW_ID)")
        e("s_waitcnt lgkmcnt(0)")
        e(f"s_lshl_b32 {sr(t3)}, s2, 3")
        e(f"s_add_u32 {sr(t3)}, {sr(t3)}, {sr(sW)}")
        e(f"s_lshl_b32 {sr(t3)}, {sr(t3)}, 6")
        e(f"s_add_u32 {sr(t3)}, {sr(t3)}, 0x200000")
        e(f"v_mov_b32 v4, {sr(t3)}")
        for i in range(8):
            e(f"v_mov_b32 v{8+i}, {sr(sST+i)}")
        e(f"v_mov_b32 v16, {sr(t5)}")
        e(f"v_mov_b32 v17, {sr(t6)}")
        e("s_mov_b64 exec, 1")
        e(f"global_store_dwordx4 v4, v[8:11], {sr(sWS,2)}")
        e(f"global_store_dwordx4 v4, v[12:15], {sr(sWS,2)} offset:16")
        e(f"global_store_dwordx2 v4, v[16:17], {sr(sWS,2)} offset:32")
    if opt.amp:
        a, b = [int(x) for x in opt.amp.split(",")]
        e(f"s_sub_u32 {sr(t0)}, {sr(sST+2*b)}, {sr(sST+2*a)}")
        e(f"s_lshl_b32 {sr(t0)}, {sr(t0)}, 3")
        e(f"s_min_u32 {sr(t0)}, {sr(t0)}, 100000")
        lab("L_amp")
        e(f"s_memrealtime {sr(t2,2)}")
        e("s_waitcnt lgkmcnt(0)")
        e(f"s_sub_u32 {sr(t1)}, {sr(t2)}, {sr(sST+6)}")
        e(f"s_cmp_lt_u32 {sr(t1)}, {sr(t0)}")
        e("s_cbranch_scc1 L_amp")
    lab("L_end")
    e("s_endpgm")

    out = HEADER
    out += f"; @launch grid=(256,1,1) block=(512,1,1) lds={LDS}\n"
    out += '.amdgcn_target "amdgcn-amd-amdhsa--gfx950"\n.text\n'
    out += f".globl {NAME}_kernel\n.p2align 8\n.type {NAME}_kernel,@function\n{NAME}_kernel:\n"
    out += "\n".join(g.lines) + "\n"
    out += f""".section .rodata,"a"
.p2align 6
.amdhsa_kernel {NAME}_kernel
  .amdhsa_next_free_vgpr {NV}
  .amdhsa_next_free_sgpr 100
  .amdhsa_accum_offset {NV}
  .amdhsa_group_segment_fixed_size 0
  .amdhsa_kernarg_size 64
  .amdhsa_user_sgpr_count 2
  .amdhsa_user_sgpr_kernarg_segment_ptr 1
  .amdhsa_system_sgpr_workgroup_id_x 1
.end_amdhsa_kernel
"""
    return out

if __name__ == "__main__":
    ap = argparse.ArgumentParser()
    ap.add_argument("-o", default=f"cdna_kernels/{NAME}.s")
    ap.add_argument("--F", type=int, default=28)
    ap.add_argument("--pol", default="")
    ap.add_argument("--pol_shared", default="")
    ap.add_argument("--stamps", action="store_true")
    ap.add_argument("--amp", default="")
    ap.add_argument("--finrot", action="store_true")
    opt = ap.parse_args()
    opt.pol = (" " + opt.pol) if opt.pol else ""
    opt.pol_shared = (" " + opt.pol_shared) if opt.pol_shared else ""
    open(opt.o, "w").write(build(opt))
```

```python
import sys, struct, argparse

NAME = "standalone__paged_block_table_kv_radixattention__sampling"

HEADER = """; Kernarg layout for this problem (64 bytes, ptrs only, base s[0:1]):
"""

def f2u(x):
    return struct.unpack("<I", struct.pack("<f", x))[0]

class Gen:
    def __init__(self, opt):
        self.o = opt
        self.lines = []
        self.nlab = 0
    def e(self, s):
        self.lines.append("    " + s)
    def c(self, s):
        self.lines.append("    ; " + s)
    def lab(self, name):
        self.lines.append(name + ":")
    def newlab(self, p="L"):
        self.nlab += 1
        return f"{p}_{self.nlab}"

def vr(b, n=1):
    return f"v{b}" if n == 1 else f"v[{b}:{b+n-1}]"
def sr(b, n=1):
    return f"s{b}" if n == 1 else f"s[{b}:{b+n-1}]"

def build(opt):
    g = Gen(opt)
    e, c, lab = g.e, g.c, g.lab
    NW = 4
    Fc = [int(x) for x in opt.F.split(",")]
    NS = NF = 3
    NMAX = max(NS, NF); NMIN = min(NS, NF)
    FPACK = sum((64 + Fc[i]) << (8*i) for i in range(4))
    KVB = 2176 * 32768
    CSTR = 528
    WSTR = 16384
    STAT = 16 * CSTR
    LDS = max(65536, opt.lds)
    pol = opt.pol
    WSTAT = 0x200000
    STAMPS = 0x300000
    sQ, sK, sV, sBT, sCTX, sOUT, sDBG, sWS = 4, 6, 8, 10, 12, 14, 16, 18
    srdK, srdV = 20, 24
    sBHP, sKS, sX_, sIDX = 28, 29, 30, 31
    sW, sN, sS0, sSTR, sROLE = 32, 33, 34, 35, 36
    sLAM, sREM, sLB = 37, 38, 39
    sCS, sONCE, sZI, sZC = 40, 41, 42, 43
    mSL = 44
    sB0, sB1, sPOS, sH8 = 46, 47, 48, 49
    sMK = 50
    sSL = 52
    mIT = 54
    sFAST = 56
    sCM = 66
    t0, t1, t2, t3, t4, t5, t6, t7 = 82, 83, 84, 85, 86, 87, 88, 89
    sST = 90
    vL, vG, vC = 1, 2, 3
    vKO, vVO = 4, 8
    vQ = 12
    vO = 28
    vM, vLs, vCG = 60, 61, 62
    vMETA = 63
    vTB = 64
    vFM, vFI = 66, 67
    vS = 68
    vP = 76
    vF = 80
    vT = vF
    vLIM, vFILL, vMX, vAL, vX0, vX1, vX2, vX3 = 112, 113, 114, 115, 116, 117, 118, 119
    vKA, vVA = 120, 124
    vCNT, vZ = 132, 133
    vE = 134
    vU = 140
    NV = 220

    def stamp(i):
        if opt.stamps:
            e(f"s_memrealtime {sr(sST+2*i,2)}")
    def probe(name, which):
        if opt.stamps and opt.probe == name:
            e(f"{opt.clk} {sr(sST+8+2*which,2)}")
            e("s_waitcnt lgkmcnt(0)")

    def nsteps(dst, src):
        e(f"s_min_i32 {sr(dst)}, {sr(src)}, 4096")
        e(f"s_cmp_le_i32 {sr(src)}, 0")
        e(f"s_cselect_b32 {sr(dst)}, 4096, {sr(dst)}")
        e(f"s_add_u32 {sr(dst)}, {sr(dst)}, 31")
        e(f"s_lshr_b32 {sr(dst)}, {sr(dst)}, 5")

    def list_addr_bh():
        c("vX0=step vX1=slot vX3=b*8+h -> vX3 table offset, vMETA")
        e(f"v_min_u32 {vr(vX0)}, 127, {vr(vX0)}")
        e(f"v_lshlrev_b32 {vr(vMETA)}, 5, {vr(vX0)}")
        e(f"v_lshl_add_u32 {vr(vMETA)}, {vr(vX1)}, 18, {vr(vMETA)}")
        e(f"v_lshl_add_u32 {vr(vMETA)}, {vr(vX3)}, 29, {vr(vMETA)}")
        e(f"v_lshrrev_b32 {vr(vX3)}, 3, {vr(vX3)}")
        e(f"v_lshlrev_b32 {vr(vX3)}, 10, {vr(vX3)}")
        e(f"v_lshl_add_u32 {vr(vX3)}, {vr(vX0)}, 3, {vr(vX3)}")
    def list_addr():
        e(f"v_lshlrev_b32 {vr(vX3)}, 3, {vr(vX1)}")
        e(f"v_bfe_u32 {vr(vX3)}, {sr(sBHP)}, {vr(vX3)}, 8")
        list_addr_bh()
    def list_load():
        e(f"global_load_dwordx2 {vr(vTB,2)}, {vr(vX3)}, {sr(sBT,2)}")
    vQO, vCO = vT + 8, vT + 9
    def col_addr():
        c("per-lane column: Q offset and ctx offset")
        e(f"v_lshlrev_b32 {vr(vCO)}, 1, {vr(vC)}")
        e(f"v_and_b32 {vr(vCO)}, 24, {vr(vCO)}")
        e(f"v_bfe_u32 {vr(vCO)}, {sr(sBHP)}, {vr(vCO)}, 8")
        e(f"v_lshl_add_u32 {vr(vQO)}, {vr(vCO)}, 10, {vr(vT+10)}")
        e(f"v_lshrrev_b32 {vr(vCO)}, 1, {vr(vCO)}")
        e(f"v_and_b32 {vr(vCO)}, 60, {vr(vCO)}")
    def col_load():
        e(f"global_load_dword {vr(vCG)}, {vr(vCO)}, {sr(sCTX,2)}")
        for m in range(4):
            e(f"global_load_dwordx4 {vr(vQ+4*m,4)}, {vr(vQO)}, {sr(sQ,2)} offset:{64*m}")
    def part_addr(vcol, vo, vs, tmp):
        c("partial addresses for column vcol: row R=(b*8+h)*4+(col&3); O: R*4096 + k*512 ; stats: R*64 + k*8")
        e(f"v_lshlrev_b32 {vr(tmp)}, 1, {vr(vcol)}")
        e(f"v_and_b32 {vr(tmp)}, 24, {vr(tmp)}")
        e(f"v_bfe_u32 {vr(tmp)}, {sr(sBHP)}, {vr(tmp)}, 8")
        e(f"v_and_b32 {vr(vs)}, 3, {vr(vcol)}")
        e(f"v_lshl_add_u32 {vr(tmp)}, {vr(tmp)}, 2, {vr(vs)}")
        if vo is not None:
            e(f"s_lshl_b32 {sr(t3)}, {sr(sKS)}, 9")
            e(f"v_lshl_add_u32 {vr(vo)}, {vr(tmp)}, 12, {sr(t3)}")
        e(f"s_lshl_b32 {sr(t3)}, {sr(sKS)}, 3")
        e(f"s_add_u32 {sr(t3)}, {sr(t3)}, {WSTAT}")
        e(f"v_lshl_add_u32 {vr(vs)}, {vr(tmp)}, 6, {sr(t3)}")
    def slot_base(i, vdst, vlane):
        e(f"s_bfe_u32 {sr(t3)}, {sr(sBHP)}, 0x{0x80000+8*i:x}")
        e(f"s_lshl_b32 {sr(t3)}, {sr(t3)}, 14")
        e(f"s_add_u32 {sr(t3)}, {sr(t3)}, {sr(t6)}")
        e(f"v_add_u32 {vr(vdst)}, {sr(t3)}, {vr(vlane)}")
    def clear_body():
        c("clear the 16 partial columns with the canary")
        for i in range(4):
            e(f"v_mov_b32 {vr(vS+i)}, -1")
        part_addr(vC, None, vT+13, vT+14)
        e(f"global_store_dwordx2 {vr(vT+13)}, {vr(vS,2)}, {sr(sWS,2)} sc1")
        e(f"v_lshlrev_b32 {vr(vT+11)}, 12, {vr(vG)}")
        e(f"v_lshl_add_u32 {vr(vT+11)}, {vr(vC)}, 4, {vr(vT+11)}")
        e(f"s_lshl_b32 {sr(t6)}, {sr(sKS)}, 9")
        for i in range(4):
            slot_base(i, vT+12, vT+11)
            e(f"global_store_dwordx4 {vr(vT+12)}, {vr(vS,4)}, {sr(sWS,2)} sc1")
            e(f"global_store_dwordx4 {vr(vT+12)}, {vr(vS,4)}, {sr(sWS,2)} offset:256 sc1")
    def setup_kv():
        c("DMA source offsets (XOR-swizzled) and descriptors")
        e(f"v_xor_b32 {vr(vT+16)}, {vr(vC)}, {vr(vG)}")
        e(f"v_lshlrev_b32 {vr(vT+17)}, 11, {vr(vG)}")
        e(f"v_lshl_add_u32 {vr(vKO)}, {vr(vT+16)}, 4, {vr(vT+17)}")
        e(f"v_lshlrev_b32 {vr(vT+16)}, 1, {vr(vG)}")
        e(f"v_xor_b32 {vr(vT+16)}, {vr(vC)}, {vr(vT+16)}")
        e(f"v_lshl_add_u32 {vr(vVO)}, {vr(vT+16)}, 4, {vr(vT+17)}")
        for n in range(1, 4):
            e(f"v_xor_b32 {vr(vKO+n)}, {n<<6}, {vr(vKO)}")
            e(f"v_add_u32 {vr(vKO+n)}, {n*7168}, {vr(vKO+n)}")
        e(f"v_xor_b32 {vr(vVO+1)}, 128, {vr(vVO)}")
        e(f"v_add_u32 {vr(vVO+3)}, {3*7168}, {vr(vVO+1)}")
        e(f"v_add_u32 {vr(vVO+1)}, 7168, {vr(vVO+1)}")
        e(f"v_add_u32 {vr(vVO+2)}, {2*7168}, {vr(vVO)}")
        e(f"s_mov_b32 {sr(srdK)}, {sr(sK)}")
        e(f"s_and_b32 {sr(srdK+1)}, {sr(sK+1)}, 0xffff")
        e(f"s_mov_b32 {sr(srdK+2)}, {KVB}")
        e(f"s_mov_b32 {sr(srdK+3)}, 0x20000")
        e(f"s_mov_b32 {sr(srdV)}, {sr(sV)}")
        e(f"s_and_b32 {sr(srdV+1)}, {sr(sV+1)}, 0xffff")
        e(f"s_mov_b32 {sr(srdV+2)}, {KVB}")
        e(f"s_mov_b32 {sr(srdV+3)}, 0x20000")
        e(f"s_mov_b32 {sr(mSL)}, 0x000f000f")
        e(f"s_mov_b32 {sr(mSL+1)}, 0x000f000f")
        e(f"s_mov_b32 {sr(sLAM)}, 0")
        e(f"s_lshl_b32 {sr(sLB)}, {sr(sW)}, 14")

    e("s_cmp_ge_u32 s2, 256")
    e("s_cbranch_scc1 L_end")
    e(f"s_load_dwordx16 s[4:19], s[0:1], 0")
    stamp(0)
    e(f"v_and_b32 {vr(vL)}, 63, v0")
    e(f"v_lshrrev_b32 {vr(vX0)}, 6, v0")
    e(f"s_lshr_b32 {sr(sIDX)}, s2, 3")
    e(f"v_readfirstlane_b32 {sr(sW)}, {vr(vX0)}")
    e(f"s_and_b32 {sr(sX_)}, s2, 7")
    e(f"v_lshrrev_b32 {vr(vG)}, 4, {vr(vL)}")
    e(f"v_and_b32 {vr(vC)}, 15, {vr(vL)}")
    e(f"v_and_b32 {vr(vX2)}, 3, {vr(vL)}")
    e(f"v_lshlrev_b32 {vr(vT+10)}, 4, {vr(vG)}")
    e(f"v_lshl_add_u32 {vr(vT+10)}, {vr(vX2)}, 8, {vr(vT+10)}")
    c("head: bit1 = id&1, bits 0/2 rotate with idx")
    e(f"s_lshr_b32 {sr(t0)}, {sr(sX_)}, 1")
    e(f"s_add_u32 {sr(t0)}, {sr(t0)}, {sr(sIDX)}")
    e(f"s_and_b32 {sr(t1)}, {sr(t0)}, 2")
    e(f"s_and_b32 {sr(t0)}, {sr(t0)}, 1")
    e(f"s_and_b32 {sr(t2)}, s2, 1")
    if opt.flip:
        e(f"s_xor_b32 {sr(t2)}, {sr(t2)}, 1")
    e(f"s_or_b32 {sr(t1)}, {sr(t1)}, {sr(t2)}")
    e(f"s_lshl_b32 {sr(t1)}, {sr(t1)}, 1")
    e(f"s_or_b32 {sr(t0)}, {sr(t0)}, {sr(t1)}")
    e(f"s_cmp_lt_u32 {sr(sIDX)}, 16")
    e("s_cbranch_scc1 L_helper")
    c("======== finisher (b, h): steps 64+w+4*lane")
    e(f"s_mov_b32 {sr(sROLE)}, 1")
    e(f"s_and_b32 {sr(t1)}, s2, 0x78")
    e(f"s_or_b32 {sr(t1)}, {sr(t1)}, {sr(t0)}")
    e(f"s_mul_i32 {sr(sBHP)}, {sr(t1)}, 0x01010101")
    e(f"s_add_u32 {sr(t2)}, {sr(sW)}, 64")
    e(f"v_lshl_add_u32 {vr(vX0)}, {vr(vL)}, 2, {sr(t2)}")
    e(f"v_mov_b32 {vr(vX1)}, 0")
    e(f"v_mov_b32 {vr(vX3)}, {sr(t1)}")
    list_addr_bh()
    col_addr()
    e("s_waitcnt lgkmcnt(0)")
    list_load()
    col_load()
    setup_kv()
    e(f"s_and_b32 {sr(t0)}, {sr(t0)}, 3")
    e(f"s_lshl_b32 {sr(t0)}, {sr(t0)}, 3")
    e(f"s_lshr_b32 {sr(t4)}, 0x{FPACK:08x}, {sr(t0)}")
    e(f"s_and_b32 {sr(t4)}, {sr(t4)}, 0xff")
    e(f"s_mov_b32 {sr(sKS)}, 0")
    e(f"s_mov_b64 {sr(mIT,2)}, -1")
    e("s_waitcnt vmcnt(4)")
    e(f"v_readfirstlane_b32 {sr(t0)}, {vr(vCG)}")
    nsteps(t1, t0)
    e(f"s_min_u32 {sr(t1)}, {sr(t1)}, {sr(t4)}")
    e(f"s_sub_i32 {sr(t1)}, {sr(t1)}, {sr(t2)}")
    e(f"s_add_i32 {sr(t1)}, {sr(t1)}, 3")
    e(f"s_ashr_i32 {sr(t1)}, {sr(t1)}, 2")
    e(f"s_max_i32 {sr(sREM)}, {sr(t1)}, 0")

    def fetch():
        e(f"v_readlane_b32 {sr(t2)}, {vr(vMETA)}, {sr(sLAM)}")
        e(f"v_readlane_b32 {sr(t0)}, {vr(vTB)}, {sr(sLAM)}")
        e(f"v_readlane_b32 {sr(t1)}, {vr(vTB+1)}, {sr(sLAM)}")
        e(f"s_lshr_b32 {sr(t4)}, {sr(t2)}, 29")
        e(f"s_lshl_b32 {sr(t4)}, {sr(t4)}, 8")
        e(f"s_lshl_b32 {sr(t0)}, {sr(t0)}, 15")
        e(f"s_lshl_b32 {sr(t1)}, {sr(t1)}, 15")
        e(f"s_or_b32 {sr(sB0)}, {sr(t0)}, {sr(t4)}")
        e(f"s_or_b32 {sr(sB1)}, {sr(t1)}, {sr(t4)}")
    def fetch_meta():
        e(f"s_and_b32 {sr(sPOS)}, {sr(t2)}, 0xffff")
        e(f"s_bfe_u32 {sr(t3)}, {sr(t2)}, 0x40010")
        e(f"s_lshl_b64 {sr(sMK,2)}, {sr(mIT,2)}, {sr(t3)}")
        e(f"s_add_u32 {sr(sLAM)}, {sr(sLAM)}, 1")
    def dma4(off, srd, soff):
        for n in range(4):
            o = f" offset:{1024*n}" if n else ""
            e(f"buffer_load_dwordx4 {vr(off+n)}, {sr(srd,4)}, {sr(soff)} offen{o}{pol} lds")
    def issue(kv):
        off = vVO if kv == "V" else vKO
        srd = srdV if kv == "V" else srdK
        base = 8192 if kv == "V" else 0
        if base:
            e(f"s_add_u32 m0, {sr(sLB)}, {base}")
        else:
            e(f"s_mov_b32 m0, {sr(sLB)}")
        e("s_nop 0")
        dma4(off, srd, sB0)
        e(f"s_add_u32 m0, {sr(sLB)}, {base+4096}")
        e("s_nop 0")
        dma4(off, srd, sB1)

    lab("L_cnt_done")
    if not opt.nobar:
        e("s_barrier")
    stamp(1)
    e(f"s_cmp_eq_u32 {sr(sREM)}, 0")
    e("s_cbranch_scc1 L_init")
    fetch(); issue("K"); issue("V"); fetch_meta()
    lab("L_init")
    e(f"s_mov_b32 {sr(sCS)}, 0x{f2u(128**-0.5 * 1.4426950408889634):08x}")
    for i in range(32):
        e(f"v_mov_b32 {vr(vO+i)}, 0")
    e(f"v_mov_b32 {vr(vM)}, 0x{f2u(-1e30):08x}")
    e(f"v_mov_b32 {vr(vLs)}, 0")
    e(f"v_mov_b32 {vr(vFM)}, 0x{f2u(-1e9/(128**-0.5)):08x}")
    e(f"v_mov_b32 {vr(vFI)}, 0x{f2u(-3e38):08x}")
    e(f"v_mov_b32 {vr(vZ)}, 0")
    e(f"v_mov_b32 {vr(vCNT)}, 0")
    c("LDS fragment addresses")
    e(f"s_cmp_eq_u32 {sr(sROLE)}, 2")
    e(f"s_cselect_b32 {sr(t0)}, 0, {sr(sLB)}")
    e(f"v_xor_b32 {vr(vX0)}, {vr(vC)}, {vr(vG)}")
    e(f"v_lshl_add_u32 {vr(vX1)}, {vr(vC)}, 8, {sr(t0)}")
    e(f"v_lshl_add_u32 {vr(vKA)}, {vr(vX0)}, 4, {vr(vX1)}")
    for m in range(1, 4):
        e(f"v_xor_b32 {vr(vKA+m)}, {m<<6}, {vr(vKA)}")
    e(f"v_lshrrev_b32 {vr(vX0)}, 2, {vr(vL)}")
    e(f"v_lshl_add_u32 {vr(vX1)}, {vr(vX0)}, 8, {sr(t0)}")
    e(f"v_and_b32 {vr(vX0)}, 7, {vr(vX0)}")
    e(f"v_lshl_add_u32 {vr(vX1)}, {vr(vX0)}, 5, {vr(vX1)}")
    e(f"v_and_b32 {vr(vX0)}, 3, {vr(vL)}")
    e(f"v_lshl_add_u32 {vr(vVA)}, {vr(vX0)}, 3, {vr(vX1)}")
    for ee in range(1, 8):
        e(f"v_xor_b32 {vr(vVA+ee)}, {ee<<5}, {vr(vVA)}")
    c("once-hook: finisher wave 0 samples the cleared-counter when 2 items remain;")
    c("helper wave 0 signals 'cleared' after its first item")
    e(f"s_cmp_eq_u32 {sr(sROLE)}, 1")
    e(f"s_cselect_b32 {sr(sONCE)}, 2, {sr(sREM)}")
    e(f"s_cmp_eq_u32 {sr(sW)}, 0")
    e(f"s_cselect_b32 {sr(sONCE)}, {sr(sONCE)}, 0")
    e(f"s_cmp_eq_u32 {sr(sREM)}, 0")
    e("s_cbranch_scc1 L_noitems")
    c("ctx/Q/clears are older than every K/V load")
    e("s_waitcnt vmcnt(12)")
    e(f"v_lshlrev_b32 {vr(vX0)}, 2, {vr(vG)}")
    e(f"v_max_i32 {vr(vCG)}, 0, {vr(vCG)}")
    e(f"v_min_i32 {vr(vCG)}, 0x1000, {vr(vCG)}")
    e(f"v_sub_u32 {vr(vCG)}, {vr(vCG)}, {vr(vX0)}")
    e(f"s_cmp_eq_u32 {sr(sROLE)}, 2")
    e("s_cbranch_scc1 L_sh_loop")

    def signal():
        e(f"v_mov_b32 {vr(vCNT)}, 1")
        e("s_mov_b64 exec, 1")
        e(f"global_atomic_add {vr(vZ)}, {vr(vCNT)}, {sr(sDBG,2)}")
        e("s_mov_b64 exec, -1")
    def kreads():
        for m in range(4):
            e(f"ds_read_b128 {vr(vF+8*m,4)}, {vr(vKA+m)}")
            e(f"ds_read_b128 {vr(vF+8*m+4,4)}, {vr(vKA+m)} offset:4096")
    def qk():
        for m in range(4):
            e(f"s_waitcnt lgkmcnt({6-2*m})")
            c0 = "0" if m == 0 else vr(vS, 4)
            c1 = "0" if m == 0 else vr(vS+4, 4)
            e(f"v_mfma_f32_16x16x32_bf16 {vr(vS,4)}, {vr(vF+8*m,4)}, {vr(vQ+4*m,4)}, {c0}")
            e(f"v_mfma_f32_16x16x32_bf16 {vr(vS+4,4)}, {vr(vF+8*m+4,4)}, {vr(vQ+4*m,4)}, {c1}")
    def masks():
        e(f"v_subrev_u32 {vr(vLIM)}, {sr(sPOS)}, {vr(vCG)}")
        e(f"v_cndmask_b32 {vr(vLIM)}, 0, {vr(vLIM)}, {sr(sMK,2)}")
        e(f"v_cndmask_b32 {vr(vFILL)}, {vr(vFI)}, {vr(vFM)}, {sr(sMK,2)}")
        e(f"v_cmp_gt_i32 {sr(sFAST,2)}, 20, {vr(vLIM)}")
    def vreads():
        for ee in range(8):
            e(f"ds_read_b64_tr_b16 {vr(vF+4*ee,2)}, {vr(vVA+ee)} offset:8192")
            e(f"ds_read_b64_tr_b16 {vr(vF+4*ee+2,2)}, {vr(vVA+ee)} offset:12288")
    def softmax_a():
        la = g.newlab()
        e(f"s_cmp_eq_u64 {sr(sFAST,2)}, 0")
        e(f"s_cbranch_scc1 {la}")
        for j in range(8):
            e(f"v_cmp_lt_i32 {sr(sCM+2*j,2)}, {(j>>2)*16+(j&3)}, {vr(vLIM)}")
        for j in range(8):
            e(f"v_cndmask_b32 {vr(vS+j)}, {vr(vFILL)}, {vr(vS+j)}, {sr(sCM+2*j,2)}")
        lab(la)
        e(f"v_max3_f32 {vr(vMX)}, {vr(vS)}, {vr(vS+1)}, {vr(vS+2)}")
        e(f"v_max3_f32 {vr(vX0)}, {vr(vS+3)}, {vr(vS+4)}, {vr(vS+5)}")
        e(f"v_max3_f32 {vr(vMX)}, {vr(vMX)}, {vr(vS+6)}, {vr(vS+7)}")
        e(f"v_max3_f32 {vr(vMX)}, {vr(vMX)}, {vr(vX0)}, {vr(vM)}")
        e(f"v_mov_b32 {vr(vX0)}, {vr(vMX)}")
        e("s_nop 1")
        e(f"v_permlane32_swap_b32 {vr(vMX)}, {vr(vX0)}")
        e(f"v_max_f32 {vr(vMX)}, {vr(vMX)}, {vr(vX0)}")
        e(f"v_mov_b32 {vr(vX0)}, {vr(vMX)}")
        e("s_nop 1")
        e(f"v_permlane16_swap_b32 {vr(vMX)}, {vr(vX0)}")
        e(f"v_max_f32 {vr(vMX)}, {vr(vMX)}, {vr(vX0)}")
        e(f"v_mul_f32 {vr(vX1)}, {sr(sCS)}, {vr(vMX)}")
        e(f"v_sub_f32 {vr(vAL)}, {vr(vM)}, {vr(vMX)}")
        e(f"v_cmp_lt_f32 vcc, {vr(vM)}, {vr(vMX)}")
        for j in range(8):
            e(f"v_fma_f32 {vr(vS+j)}, {vr(vS+j)}, {sr(sCS)}, -{vr(vX1)}")
        e(f"v_mul_f32 {vr(vAL)}, {sr(sCS)}, {vr(vAL)}")
        for j in range(8):
            e(f"v_exp_f32 {vr(vS+j)}, {vr(vS+j)}")
        e(f"v_exp_f32 {vr(vAL)}, {vr(vAL)}")
        e(f"v_mov_b32 {vr(vM)}, {vr(vMX)}")
        for u in range(4):
            e(f"v_cvt_pk_bf16_f32 {vr(vP+u)}, {vr(vS+2*u)}, {vr(vS+2*u+1)}")
        e(f"v_pk_add_f32 {vr(vS,2)}, {vr(vS,2)}, {vr(vS+2,2)}")
        e(f"v_pk_add_f32 {vr(vS+4,2)}, {vr(vS+4,2)}, {vr(vS+6,2)}")
        e(f"v_pk_add_f32 {vr(vS,2)}, {vr(vS,2)}, {vr(vS+4,2)}")
        e(f"v_fma_f32 {vr(vLs)}, {vr(vLs)}, {vr(vAL)}, {vr(vS)}")
        e(f"v_add_f32 {vr(vLs)}, {vr(vLs)}, {vr(vS+1)}")
    def rescale():
        la = g.newlab()
        e(f"s_cbranch_vccz {la}")
        for i in range(0, 32, 2):
            e(f"v_pk_mul_f32 {vr(vO+i,2)}, {vr(vO+i,2)}, {vr(vMX,2)} op_sel:[0,1] op_sel_hi:[1,1]")
        lab(la)
    def pv(ee):
        ob = vO + 4*ee
        e(f"v_mfma_f32_16x16x32_bf16 {vr(ob,4)}, {vr(vF+4*ee,4)}, {vr(vP,4)}, {vr(ob,4)}")

    lab("L_loop")
    e("s_waitcnt vmcnt(8)")
    if opt.stamps and opt.probe == "first":
        e(f"s_cmp_eq_u32 {sr(sLAM)}, 1")
        e(f"s_cbranch_scc0 L_q1")
        stamp(4)
        e("s_waitcnt lgkmcnt(0)")
        lab("L_q1")
    probe("qk", 0)
    kreads()
    masks()
    qk()
    e(f"s_cmp_gt_u32 {sr(sREM)}, 1")
    e("s_cbranch_scc0 L_noK")
    fetch(); issue("K"); fetch_meta()
    e("s_branch L_sm")
    lab("L_noK")
    e("s_nop 7")
    lab("L_sm")
    softmax_a()
    rescale()
    probe("qk", 1)
    e(f"s_cmp_gt_u32 {sr(sREM)}, 1")
    e("s_waitcnt vmcnt(8)")
    e("s_cbranch_scc1 L_vok")
    e("s_waitcnt vmcnt(0)")
    lab("L_vok")
    probe("pv", 0)
    vreads()
    for ee in range(8):
        e(f"s_waitcnt lgkmcnt({14-2*ee})")
        pv(ee)
    probe("pv", 1)
    e(f"s_cmp_gt_u32 {sr(sREM)}, 1")
    e("s_cbranch_scc0 L_noV")
    issue("V")
    lab("L_noV")
    e(f"s_cmp_eq_u32 {sr(sREM)}, {sr(sONCE)}")
    e("s_cbranch_scc1 L_hook")
    lab("L_hook_done")
    if opt.stamps and opt.probe == "first":
        e(f"s_cmp_eq_u32 {sr(sLAM)}, 2")
        e(f"s_cbranch_scc0 L_q2")
        stamp(5)
        e("s_waitcnt lgkmcnt(0)")
        lab("L_q2")
    e(f"s_sub_u32 {sr(sREM)}, {sr(sREM)}, 1")
    e(f"s_cmp_lg_u32 {sr(sREM)}, 0")
    e("s_cbranch_scc1 L_loop")

    lab("L_epi")
    stamp(2)
    vCC, vOA, vA1, vA2, vWO, vWS_ = 4, 5, 6, 7, 8, 9
    NG = 4 + NMAX
    vSt = vS
    vOq = vF
    vGs = 140
    vGo = 156
    vR = 12
    vWt = 20
    NSIG = 128
    e(f"v_lshrrev_b32 {vr(vCC)}, 4, v0")
    part_addr(vCC, vWO, vWS_, vA1)
    e(f"v_lshl_add_u32 {vr(vWO)}, {vr(vC)}, 4, {vr(vWO)}")
    c("finisher wave 0: fetch helper partials first (they fly while LDS is written)")
    e(f"s_sub_u32 {sr(t7)}, {sr(sROLE)}, {sr(sW)}")
    e(f"s_cmp_eq_u32 {sr(t7)}, 1")
    e("s_cbranch_scc0 L_nofetch")
    e(f"s_mov_b32 {sr(t5)}, 0")
    e("s_waitcnt vmcnt(0)")
    lab("L_poll")
    e(f"v_readfirstlane_b32 {sr(t4)}, {vr(vCNT)}")
    e(f"s_cmp_ge_u32 {sr(t4)}, {NSIG}")
    e("s_cbranch_scc1 L_polled")
    e(f"global_load_dword {vr(vCNT)}, {vr(vZ)}, {sr(sDBG,2)} sc1")
    e("s_sleep 8")
    e(f"s_add_u32 {sr(t5)}, {sr(t5)}, 1")
    e(f"s_cmp_lt_u32 {sr(t5)}, 0x40000")
    e("s_waitcnt vmcnt(0)")
    e("s_cbranch_scc1 L_poll")
    lab("L_polled")
    if NS != NF:
        c("teams with fewer helpers: neutral values in the unused slots")
        for k in range(4 + NMIN, NG):
            e(f"v_mov_b32 {vr(vGs+2*k)}, 0x{f2u(-1e30):08x}")
            e(f"v_mov_b32 {vr(vGs+2*k+1)}, 0")
            for r in range(8):
                e(f"v_mov_b32 {vr(vGo+8*k+r)}, 0")
    def gload(k0=0):
        def one(k):
            for q in range(2):
                e(f"global_load_dwordx4 {vr(vGo+8*k+4*q,4)}, {vr(vWO)}, {sr(sWS,2)} offset:{512*k+256*q} sc1")
        def st(k0, k1):
            k = k0
            while k < k1:
                if k + 1 < k1 and k % 2 == 0:
                    e(f"global_load_dwordx4 {vr(vGs+2*k,4)}, {vr(vWS_)}, {sr(sWS,2)} offset:{8*k} sc1"); k += 2
                else:
                    e(f"global_load_dwordx2 {vr(vGs+2*k,2)}, {vr(vWS_)}, {sr(sWS,2)} offset:{8*k} sc1"); k += 1
        st(k0, 4 + NMIN)
        for k in range(k0, 4 + NMIN):
            one(k)
        if NS != NF:
            la = g.newlab()
            e(f"s_bitcmp1_b32 {sr(sBHP)}, 1")
            e(f"s_cbranch_scc{1 if NS > NF else 0} {la}")
            st(4 + NMIN, NG)
            for k in range(4 + NMIN, NG):
                one(k)
            lab(la)
    gload()
    lab("L_nofetch")
    def lsum():
        c("reduce l over the 4 lane groups")
        e(f"v_mov_b32 {vr(vX0)}, {vr(vLs)}")
        e("s_nop 1")
        e(f"v_permlane32_swap_b32 {vr(vLs)}, {vr(vX0)}")
        e(f"v_add_f32 {vr(vLs)}, {vr(vLs)}, {vr(vX0)}")
        e(f"v_mov_b32 {vr(vX0)}, {vr(vLs)}")
        e("s_nop 1")
        e(f"v_permlane16_swap_b32 {vr(vLs)}, {vr(vX0)}")
        e(f"v_add_f32 {vr(vLs)}, {vr(vLs)}, {vr(vX0)}")
        e(f"v_mul_u32_u24 {vr(vX1)}, {CSTR}, {vr(vC)}")
        e(f"v_lshl_add_u32 {vr(vX1)}, {vr(vG)}, 4, {vr(vX1)}")
        e(f"v_add_u32 {vr(vX1)}, {sr(sLB)}, {vr(vX1)}")
    lsum()
    e(f"v_lshl_add_u32 {vr(vX2)}, {vr(vC)}, 3, {sr(sLB)}")
    c("finishers only need columns 0..3")
    e(f"s_cmp_eq_u32 {sr(sROLE)}, 1")
    e(f"s_cselect_b64 exec, {sr(mSL,2)}, -1")
    e(f"ds_write_b64 {vr(vX2)}, {vr(vM,2)} offset:{STAT}")
    for ee in range(8):
        e(f"ds_write_b128 {vr(vX1)}, {vr(vO+4*ee,4)} offset:{64*ee}")
    e("s_mov_b64 exec, -1")
    e("s_cbranch_scc1 L_fin")

    def premerge():
        ms = [vGs+2*k for k in range(NG)]
        e(f"v_max3_f32 {vr(vMX)}, {vr(ms[0])}, {vr(ms[1])}, {vr(ms[2])}")
        i = 3
        while i < NG:
            if i + 1 < NG:
                e(f"v_max3_f32 {vr(vMX)}, {vr(vMX)}, {vr(ms[i])}, {vr(ms[i+1])}"); i += 2
            else:
                e(f"v_max_f32 {vr(vMX)}, {vr(vMX)}, {vr(ms[i])}"); i += 1
        for i in range(NG):
            e(f"v_sub_f32 {vr(vWt+i)}, {vr(ms[i])}, {vr(vMX)}")
        for i in range(NG):
            e(f"v_mul_f32 {vr(vWt+i)}, {sr(sCS)}, {vr(vWt+i)}")
        for i in range(NG):
            e(f"v_exp_f32 {vr(vWt+i)}, {vr(vWt+i)}")
        e(f"v_mov_b32 {vr(vGs)}, {vr(vMX)}")
        e(f"v_mul_f32 {vr(vGs+1)}, {vr(vWt)}, {vr(vGs+1)}")
        for r in range(8):
            e(f"v_mul_f32 {vr(vGo+r)}, {vr(vWt)}, {vr(vGo+r)}")
        for i in range(1, NG):
            e(f"v_fmac_f32 {vr(vGs+1)}, {vr(vWt+i)}, {vr(vGs+2*i+1)}")
            for r in range(8):
                e(f"v_fmac_f32 {vr(vGo+r)}, {vr(vWt+i)}, {vr(vGo+8*i+r)}")

    def lds_reduce(nglob):
        c("thread: column vCC, quads vC and vC+16")
        e(f"v_lshlrev_b32 {vr(vA1)}, 3, {vr(vCC)}")
        e(f"v_mul_u32_u24 {vr(vA2)}, {CSTR}, {vr(vCC)}")
        e(f"v_lshl_add_u32 {vr(vA2)}, {vr(vC)}, 4, {vr(vA2)}")
        e("s_waitcnt lgkmcnt(0)")
        e("s_barrier")
        for w in range(NW):
            e(f"ds_read_b64 {vr(vSt+2*w,2)}, {vr(vA1)} offset:{WSTR*w+STAT}")
        for w in range(NW):
            for q in range(2):
                e(f"ds_read_b128 {vr(vOq+8*w+4*q,4)}, {vr(vA2)} offset:{WSTR*w+256*q}")
        e(f"s_waitcnt lgkmcnt({2*NW})")
        ms = [vSt+2*w for w in range(NW)]
        ls = [vSt+2*w+1 for w in range(NW)]
        os_ = [vOq+8*w for w in range(NW)]
        if nglob:
            ms += [vGs]; ls += [vGs+1]; os_ += [vGo]
        e(f"v_max3_f32 {vr(vMX)}, {vr(ms[0])}, {vr(ms[1])}, {vr(ms[2])}")
        i = 3
        while i < len(ms):
            if i + 1 < len(ms):
                e(f"v_max3_f32 {vr(vMX)}, {vr(vMX)}, {vr(ms[i])}, {vr(ms[i+1])}"); i += 2
            else:
                e(f"v_max_f32 {vr(vMX)}, {vr(vMX)}, {vr(ms[i])}"); i += 1
        for i in range(len(ms)):
            e(f"v_sub_f32 {vr(vWt+i)}, {vr(ms[i])}, {vr(vMX)}")
        for i in range(len(ms)):
            e(f"v_mul_f32 {vr(vWt+i)}, {sr(sCS)}, {vr(vWt+i)}")
        for i in range(len(ms)):
            e(f"v_exp_f32 {vr(vWt+i)}, {vr(vWt+i)}")
        e("s_nop 0")
        e(f"v_mul_f32 {vr(vAL)}, {vr(vWt)}, {vr(ls[0])}")
        for i in range(1, len(ms)):
            e(f"v_fmac_f32 {vr(vAL)}, {vr(vWt+i)}, {vr(ls[i])}")
        if nglob:
            e(f"v_rcp_f32 {vr(vAL)}, {vr(vAL)}")
        order_ = list(range(NW, len(ms))) + list(range(NW))
        first = True
        for i in order_:
            if i < NW:
                e(f"s_waitcnt lgkmcnt({2*(NW-1-i)})")
            for r in range(8):
                if first:
                    e(f"v_mul_f32 {vr(vR+r)}, {vr(vWt+i)}, {vr(os_[i]+r)}")
                else:
                    e(f"v_fmac_f32 {vr(vR+r)}, {vr(vWt+i)}, {vr(os_[i]+r)}")
            first = False

    c("---------- mixed helper: publish the workgroup partial")
    lds_reduce(0)
    c("never publish the canary pattern")
    for r in range(8):
        e(f"v_min_u32 {vr(vR+r)}, -2, {vr(vR+r)}")
    e(f"v_min_u32 {vr(vMX)}, -2, {vr(vMX)}")
    e(f"v_min_u32 {vr(vAL)}, -2, {vr(vAL)}")
    e(f"global_store_dwordx4 {vr(vWO)}, {vr(vR,4)}, {sr(sWS,2)} sc1")
    e(f"global_store_dwordx4 {vr(vWO)}, {vr(vR+4,4)}, {sr(sWS,2)} offset:256 sc1")
    e(f"v_cmp_eq_u32 vcc, 0, {vr(vC)}")
    e(f"s_and_saveexec_b64 {sr(sCM,2)}, vcc")
    e(f"global_store_dwordx2 {vr(vWS_)}, {vr(vMX,2)}, {sr(sWS,2)} sc1")
    e(f"s_mov_b64 exec, {sr(sCM,2)}")
    e("s_branch L_done")

    c("---------- finisher")
    lab("L_fin")
    e(f"s_cmp_eq_u32 {sr(sW)}, 0")
    e("s_cbranch_scc1 L_merge")
    e("s_waitcnt lgkmcnt(0)")
    e("s_barrier")
    e("s_branch L_done")
    lab("L_merge")
    e(f"s_and_b32 {sr(t3)}, {sr(sBHP)}, 0xff")
    e(f"s_lshl_b32 {sr(t3)}, {sr(t3)}, 10")
    e(f"v_lshl_add_u32 {vr(vOA)}, {vr(vG)}, 8, {sr(t3)}")
    e(f"v_lshl_add_u32 {vr(vOA)}, {vr(vC)}, 3, {vr(vOA)}")
    e(f"s_mov_b32 {sr(t5)}, 0")
    lab("L_chk")
    e("s_waitcnt vmcnt(0)")
    e(f"v_max_u32 {vr(vX0)}, {vr(vGs+8)}, {vr(vGs+9)}")
    e(f"v_max_u32 {vr(vX1)}, {vr(vGs+10)}, {vr(vGs+11)}")
    regs = list(range(vGs+12, vGs+2*NG)) + list(range(vGo+32, vGo+8*NG))
    for i in range(0, len(regs), 2):
        a = vX0 + ((i >> 1) & 1)
        e(f"v_max3_u32 {vr(a)}, {vr(a)}, {vr(regs[i])}, {vr(regs[i+1])}")
    e(f"v_max_u32 {vr(vX0)}, {vr(vX0)}, {vr(vX1)}")
    e(f"v_cmp_eq_u32 vcc, -1, {vr(vX0)}")
    e(f"s_add_u32 {sr(t5)}, {sr(t5)}, 1")
    e("s_cbranch_vccz L_ready")
    e(f"s_cmp_lt_u32 {sr(t5)}, 0x40000")
    e("s_cbranch_scc0 L_ready")
    e("s_sleep 2")
    gload(4)
    e("s_branch L_chk")
    lab("L_ready")
    premerge()
    lds_reduce(1)
    for r in range(8):
        e(f"v_mul_f32 {vr(vR+r)}, {vr(vR+r)}, {vr(vAL)}")
    for r in range(4):
        e(f"v_cvt_pk_bf16_f32 {vr(vWt+r)}, {vr(vR+2*r)}, {vr(vR+2*r+1)}")
    po = opt.pol_out
    e(f"global_store_dwordx2 {vr(vOA)}, {vr(vWt,2)}, {sr(sOUT,2)}{po}")
    e(f"global_store_dwordx2 {vr(vOA)}, {vr(vWt+2,2)}, {sr(sOUT,2)} offset:128{po}")
    e("s_branch L_done")

    lab("L_hook")
    e(f"s_cmp_eq_u32 {sr(sROLE)}, 1")
    e("s_cbranch_scc1 L_hook_fin")
    signal()
    e("s_branch L_hook_done")
    lab("L_hook_fin")
    e(f"global_load_dword {vr(vCNT)}, {vr(vZ)}, {sr(sDBG,2)} sc1")
    e("s_branch L_hook_done")

    lab("L_noitems")
    e("s_waitcnt vmcnt(0)")
    e(f"s_or_b32 {sr(t0)}, {sr(sROLE)}, {sr(sW)}")
    e("s_cbranch_scc1 L_epi")
    signal()
    e("s_branch L_epi")

    lab("L_helper")
    e(f"s_cmp_lt_u32 {sr(sIDX)}, 4")
    e("s_cbranch_scc1 L_sh_pro")
    c("======== mixed helper: rank pair r=x, v=idx-4: quad=v/6, m=v%6")
    e(f"s_mov_b32 {sr(sROLE)}, 0")
    e(f"v_lshlrev_b32 {vr(vX0)}, 2, {vr(vC)}")
    e("s_waitcnt lgkmcnt(0)")
    e(f"global_load_dword {vr(vX1)}, {vr(vX0)}, {sr(sCTX,2)}")
    setup_kv()
    c("v=idx-4: j=v%3, u=v/3: rank pair r=(x>>1)+4*(u&1), quad=u>>1, pair=x&1")
    e(f"s_sub_u32 {sr(t7)}, {sr(sIDX)}, 4")
    e(f"s_mul_i32 {sr(t1)}, {sr(t7)}, 11")
    e(f"s_lshr_b32 {sr(t1)}, {sr(t1)}, 5")
    e(f"s_mul_i32 {sr(t6)}, {sr(t1)}, 3")
    e(f"s_sub_u32 {sr(t7)}, {sr(t7)}, {sr(t6)}")
    e(f"s_add_u32 {sr(sKS)}, {sr(t7)}, 4")
    e(f"s_and_b32 {sr(t0)}, {sr(t0)}, 2")
    e(f"s_and_b32 {sr(t6)}, {sr(t1)}, 2")
    e(f"s_lshl_b32 {sr(t6)}, {sr(t6)}, 1")
    e(f"s_or_b32 {sr(t6)}, {sr(t6)}, {sr(t0)}")
    e(f"s_and_b32 {sr(t1)}, {sr(t1)}, 1")
    e(f"s_lshl_b32 {sr(t1)}, {sr(t1)}, 2")
    e(f"s_lshr_b32 {sr(sX_)}, {sr(sX_)}, 1")
    e(f"s_add_u32 {sr(sX_)}, {sr(sX_)}, {sr(t1)}")
    e(f"s_mov_b64 {sr(mIT,2)}, {sr(mSL,2)}")
    e(f"s_lshl_b32 {sr(t0)}, {sr(t0)}, 3")
    e(f"s_lshr_b32 {sr(t4)}, 0x{FPACK:08x}, {sr(t0)}")
    e(f"s_bfe_u32 {sr(t5)}, {sr(t4)}, 0x80008")
    e(f"s_and_b32 {sr(t4)}, {sr(t4)}, 0xff")
    e(f"v_mov_b32 {vr(vX2)}, 0x1000")
    e("s_waitcnt vmcnt(0)")
    e(f"v_cmp_lt_i32 vcc, 0, {vr(vX1)}")
    e(f"v_min_i32 {vr(vX1)}, {vr(vX1)}, {vr(vX2)}")
    e(f"v_mov_b32 {vr(vX3)}, 0")
    e(f"v_cndmask_b32 {vr(vX1)}, {vr(vX2)}, {vr(vX1)}, vcc")
    e(f"v_add_u32 {vr(vX1)}, 31, {vr(vX1)}")
    e(f"v_lshrrev_b32 {vr(vX1)}, 5, {vr(vX1)}")
    e(f"v_lshl_add_u32 {vr(vX1)}, {vr(vX1)}, 4, {vr(vC)}")
    e("s_nop 1")
    for k in range(1, 16):
        e(f"v_sub_u32_dpp {vr(vT+(k&3))}, {vr(vX1)}, {vr(vX1)} row_ror:{k} row_mask:0xf bank_mask:0xf")
        e(f"v_lshrrev_b32 {vr(vT+(k&3))}, 31, {vr(vT+(k&3))}")
        e(f"v_add_u32 {vr(vX3)}, {vr(vX3)}, {vr(vT+(k&3))}")
    e(f"s_sub_u32 {sr(t1)}, 15, {sr(sX_)}")
    e(f"v_cmp_eq_u32 {sr(sCM,2)}, {sr(sX_)}, {vr(vX3)}")
    e(f"v_cmp_eq_u32 {sr(sCM+2,2)}, {sr(t1)}, {vr(vX3)}")
    e(f"s_ff1_i32_b32 {sr(t0)}, {sr(sCM)}")
    e(f"s_ff1_i32_b32 {sr(t1)}, {sr(sCM+2)}")
    e(f"v_readlane_b32 {sr(t2)}, {vr(vX1)}, {sr(t0)}")
    e(f"v_readlane_b32 {sr(t3)}, {vr(vX1)}, {sr(t1)}")
    e(f"s_lshl_b32 {sr(t0)}, {sr(t0)}, 3")
    e(f"s_lshl_b32 {sr(t1)}, {sr(t1)}, 19")
    e(f"s_or_b32 {sr(t0)}, {sr(t0)}, {sr(t1)}")
    e(f"s_mul_i32 {sr(t0)}, {sr(t0)}, 0x101")
    e(f"s_mul_i32 {sr(t6)}, {sr(t6)}, 0x01010101")
    e(f"s_add_u32 {sr(sBHP)}, {sr(t0)}, {sr(t6)}")
    e(f"s_add_u32 {sr(sBHP)}, {sr(sBHP)}, 0x01000100")
    e(f"s_lshr_b32 {sr(t2)}, {sr(t2)}, 4")
    e(f"s_lshr_b32 {sr(t3)}, {sr(t3)}, 4")
    e(f"s_sub_i32 {sr(t0)}, {sr(t2)}, {sr(t4)}")
    e(f"s_max_i32 {sr(t0)}, {sr(t0)}, 0")
    e(f"s_sub_i32 {sr(t1)}, {sr(t2)}, {sr(t5)}")
    e(f"s_max_i32 {sr(t1)}, {sr(t1)}, 0")
    e(f"s_add_u32 {sr(t1)}, {sr(t1)}, {sr(t0)}")
    e(f"s_sub_i32 {sr(t2)}, {sr(t3)}, {sr(t4)}")
    e(f"s_max_i32 {sr(t2)}, {sr(t2)}, 0")
    e(f"s_add_u32 {sr(t2)}, {sr(t2)}, {sr(t1)}")
    e(f"s_sub_i32 {sr(t3)}, {sr(t3)}, {sr(t5)}")
    e(f"s_max_i32 {sr(t3)}, {sr(t3)}, 0")
    e(f"s_add_u32 {sr(t3)}, {sr(t3)}, {sr(t2)}")
    c("x = j + n*(w + 4*lane)")
    e(f"v_lshl_add_u32 {vr(vX2)}, {vr(vL)}, 2, {sr(sW)}")
    e(f"v_mul_u32_u24 {vr(vX2)}, 3, {vr(vX2)}")
    e(f"v_add_u32 {vr(vX2)}, {sr(t7)}, {vr(vX2)}")
    for i in range(3):
        e(f"v_cmp_ge_u32 {sr(sCM+2*i,2)}, {vr(vX2)}, {sr(t0+i)}")
    e(f"v_cmp_gt_u32 {sr(sCM+6,2)}, {sr(t3)}, {vr(vX2)}")
    e(f"s_sub_i32 {sr(t0)}, {sr(t5)}, {sr(t0)}")
    e(f"s_sub_i32 {sr(t1)}, {sr(t4)}, {sr(t1)}")
    e(f"s_sub_i32 {sr(t2)}, {sr(t5)}, {sr(t2)}")
    e(f"v_mov_b32 {vr(vX0)}, {sr(t4)}")
    e(f"v_mov_b32 {vr(vX1)}, 0")
    for i in range(3):
        e(f"v_mov_b32 {vr(vT+i)}, {sr(t0+i)}")
    for i in range(3):
        e(f"v_cndmask_b32 {vr(vX1)}, {vr(vX1)}, {i+1}, {sr(sCM+2*i,2)}")
        e(f"v_cndmask_b32 {vr(vX0)}, {vr(vX0)}, {vr(vT+i)}, {sr(sCM+2*i,2)}")
    e(f"v_add_u32 {vr(vX0)}, {vr(vX0)}, {vr(vX2)}")
    list_addr()
    list_load()
    col_addr()
    col_load()
    e(f"s_bcnt1_i32_b64 {sr(sREM)}, {sr(sCM+6,2)}")
    e(f"s_cmp_eq_u32 {sr(sW)}, 0")
    e("s_cbranch_scc0 L_mx_noclear")
    clear_body()
    e("s_waitcnt vmcnt(14)")
    e("s_branch L_cnt_done")
    lab("L_mx_noclear")
    e("s_waitcnt vmcnt(5)")
    e("s_branch L_cnt_done")

    lab("L_sh_pro")
    c("======== shared-prefix workgroup (h, part=idx): steps 16*idx..+15, wave w owns rows 4w..4w+3")
    e(f"s_mov_b32 {sr(sROLE)}, 2")
    e(f"s_mov_b32 {sr(sKS)}, {sr(sIDX)}")
    e(f"s_lshl_b32 {sr(sS0)}, {sr(sIDX)}, 4")
    e(f"s_lshl_b32 {sr(t1)}, {sr(sW)}, 5")
    e(f"s_or_b32 {sr(t1)}, {sr(t1)}, {sr(t0)}")
    e(f"s_mul_i32 {sr(sBHP)}, {sr(t1)}, 0x01010101")
    e(f"s_add_u32 {sr(sBHP)}, {sr(sBHP)}, 0x18100800")
    e(f"s_lshl_b32 {sr(sH8)}, {sr(t0)}, 8")
    c("entries: lane (g,row=c) loads 4 steps: row*1024 + (s0+4g)*8")
    e(f"s_lshl_b32 {sr(t2)}, {sr(sS0)}, 3")
    e(f"v_lshl_add_u32 {vr(vT+3)}, {vr(vC)}, 10, {sr(t2)}")
    e(f"v_lshl_add_u32 {vr(vT+3)}, {vr(vG)}, 5, {vr(vT+3)}")
    col_addr()
    e("s_waitcnt lgkmcnt(0)")
    e(f"global_load_dwordx4 {vr(vU,4)}, {vr(vT+3)}, {sr(sBT,2)}")
    e(f"global_load_dwordx4 {vr(vU+4,4)}, {vr(vT+3)}, {sr(sBT,2)} offset:16")
    col_load()
    setup_kv()
    c("waves 2,3 load V: take over the K descriptor/offset registers")
    e(f"s_cmp_lt_u32 {sr(sW)}, 2")
    e("s_cbranch_scc1 L_sh_k")
    e(f"s_mov_b32 {sr(srdK)}, {sr(srdV)}")
    e(f"s_mov_b32 {sr(srdK+1)}, {sr(srdV+1)}")
    for n in range(4):
        e(f"v_mov_b32 {vr(vKO+n)}, {vr(vVO+n)}")
    lab("L_sh_k")
    e(f"s_mov_b32 {sr(sREM)}, 1")
    e(f"s_mov_b32 {sr(sZI)}, 0")
    e(f"s_mov_b32 {sr(sZC)}, 0")
    e(f"s_lshl_b32 {sr(sSL)}, {sr(sW)}, 12")
    e(f"s_bitcmp1_b32 {sr(sW)}, 0")
    e(f"s_cselect_b64 vcc, -1, 0")
    e("s_waitcnt vmcnt(5)")
    for q in range(4):
        e(f"v_cndmask_b32 {vr(vE+q)}, {vr(vU+2*q)}, {vr(vU+2*q+1)}, vcc")
    for i in range(8):
        e(f"v_xor_b32_dpp {vr(vU+8+i)}, {vr(vU+i)}, {vr(vU+i)} row_newbcast:0 row_mask:0xf bank_mask:0xf")
    e(f"v_or3_b32 {vr(vU+8)}, {vr(vU+8)}, {vr(vU+9)}, {vr(vU+10)}")
    e(f"v_or3_b32 {vr(vU+11)}, {vr(vU+11)}, {vr(vU+12)}, {vr(vU+13)}")
    e(f"v_or3_b32 {vr(vU+8)}, {vr(vU+8)}, {vr(vU+14)}, {vr(vU+15)}")
    e(f"v_or_b32 {vr(vU+8)}, {vr(vU+8)}, {vr(vU+11)}")
    e(f"v_cmp_ne_u32 vcc, 0, {vr(vU+8)}")
    e(f"s_cmp_eq_u64 vcc, 0")
    e(f"s_cselect_b32 {sr(sSTR)}, 16, 1")
    def sh_issue():
        la = g.newlab()
        e(f"s_and_b32 {sr(t1)}, {sr(sZI)}, 63")
        e(f"v_readlane_b32 {sr(t0)}, {vr(vE)}, {sr(t1)}")
        e(f"s_mov_b32 m0, {sr(sSL)}")
        e(f"s_add_u32 {sr(sSL)}, {sr(sSL)}, 0x4000")
        e(f"s_and_b32 {sr(sSL)}, {sr(sSL)}, 0xffff")
        e(f"s_lshl_b32 {sr(t0)}, {sr(t0)}, 15")
        e(f"s_or_b32 {sr(sB0)}, {sr(t0)}, {sr(sH8)}")
        dma4(vKO, srdK, sB0)
        e(f"s_add_u32 {sr(sZI)}, {sr(sZI)}, {sr(sSTR)}")
        e(f"s_and_b32 {sr(t1)}, {sr(sZI)}, 63")
        e(f"s_cbranch_scc1 {la}")
        for q in range(3):
            e(f"v_mov_b32 {vr(vE+q)}, {vr(vE+q+1)}")
        lab(la)
    if not opt.nobar:
        e("s_barrier")
    stamp(1)
    for i in range(3):
        sh_issue()
    e("s_branch L_init")

    lab("L_sh_loop")
    c("own 4 loads of the current item: 8/4/0 younger ones may stay in flight")
    e(f"s_lshl_b32 {sr(t0)}, {sr(sSTR)}, 1")
    e(f"s_add_u32 {sr(t0)}, {sr(t0)}, {sr(sZC)}")
    e(f"s_cmp_lt_u32 {sr(t0)}, 256")
    e("s_waitcnt vmcnt(8)")
    e("s_cbranch_scc1 L_sh_w")
    e(f"s_cmp_eq_u32 {sr(t0)}, 256")
    e("s_waitcnt vmcnt(4)")
    e("s_cbranch_scc1 L_sh_w")
    e("s_waitcnt vmcnt(0)")
    lab("L_sh_w")
    e("s_barrier")
    e(f"s_cmp_lt_u32 {sr(sZI)}, 256")
    e("s_cbranch_scc0 L_sh_noiss")
    sh_issue()
    lab("L_sh_noiss")
    c("step = s0 + 4*((z>>4)&3) + (z>>6), row = z&15")
    e(f"s_bfe_u32 {sr(t0)}, {sr(sZC)}, 0x20004")
    e(f"s_lshl_b32 {sr(t0)}, {sr(t0)}, 2")
    e(f"s_lshr_b32 {sr(t1)}, {sr(sZC)}, 6")
    e(f"s_add_u32 {sr(t0)}, {sr(t0)}, {sr(t1)}")
    e(f"s_add_u32 {sr(t0)}, {sr(t0)}, {sr(sS0)}")
    e(f"s_lshl_b32 {sr(sPOS)}, {sr(t0)}, 5")
    e(f"s_mov_b64 {sr(sMK,2)}, -1")
    e(f"s_cmp_eq_u32 {sr(sSTR)}, 16")
    e("s_cbranch_scc1 L_sh_go")
    e(f"s_and_b32 {sr(t0)}, {sr(sZC)}, 3")
    e(f"s_lshl_b32 {sr(t0)}, {sr(t0)}, 2")
    e(f"s_lshl_b64 {sr(sMK,2)}, {sr(mSL,2)}, {sr(t0)}")
    e(f"s_bfe_u32 {sr(t0)}, {sr(sZC)}, 0x20002")
    e(f"s_cmp_eq_u32 {sr(t0)}, {sr(sW)}")
    e("s_cbranch_scc0 L_sh_next")
    lab("L_sh_go")
    probe("cons", 0)
    kreads()
    masks()
    qk()
    e("s_nop 3")
    vreads()
    softmax_a()
    rescale()
    e("s_waitcnt lgkmcnt(0)")
    for ee in range(8):
        pv(ee)
    probe("cons", 1)
    lab("L_sh_next")
    c("advance the fragment addresses to the next ring slot")
    e(f"s_add_u32 {sr(sLAM)}, {sr(sLAM)}, 1")
    e(f"s_bitcmp1_b32 {sr(sLAM)}, 0")
    e(f"s_cselect_b32 {sr(t0)}, 1, 3")
    e(f"s_lshl_b32 {sr(t0)}, {sr(t0)}, 14")
    for i in range(12):
        e(f"v_xor_b32 {vr(vKA+i)}, {sr(t0)}, {vr(vKA+i)}")
    e(f"s_add_u32 {sr(sZC)}, {sr(sZC)}, {sr(sSTR)}")
    e(f"s_cmp_lt_u32 {sr(sZC)}, 256")
    e("s_cbranch_scc1 L_sh_loop")
    stamp(2)
    c("publish this wave's 16 columns (transpose through its own LDS region)")
    lsum()
    part_addr(vC, None, vWS_, vA1)
    e("s_barrier")
    for ee in range(8):
        e(f"ds_write_b128 {vr(vX1)}, {vr(vO+4*ee,4)} offset:{64*ee}")
    e(f"v_mul_u32_u24 {vr(vA2)}, {CSTR}, {vr(vG)}")
    e(f"v_lshl_add_u32 {vr(vA2)}, {vr(vC)}, 4, {vr(vA2)}")
    e(f"v_add_u32 {vr(vA2)}, {sr(sLB)}, {vr(vA2)}")
    e(f"v_lshlrev_b32 {vr(vCC)}, 12, {vr(vG)}")
    e(f"v_lshl_add_u32 {vr(vCC)}, {vr(vC)}, 4, {vr(vCC)}")
    e(f"s_lshl_b32 {sr(t6)}, {sr(sKS)}, 9")
    e("s_waitcnt lgkmcnt(0)")
    for i in range(4):
        for q in range(2):
            e(f"ds_read_b128 {vr(vOq+8*i+4*q,4)}, {vr(vA2)} offset:{4*CSTR*i+256*q}")
    e("s_mov_b64 exec, 0xffff")
    e(f"global_store_dwordx2 {vr(vWS_)}, {vr(vM,2)}, {sr(sWS,2)} sc1")
    e("s_mov_b64 exec, -1")
    for i in range(4):
        slot_base(i, vSt+i, vCC)
        e(f"s_waitcnt lgkmcnt({6-2*i})")
        e(f"global_store_dwordx4 {vr(vSt+i)}, {vr(vOq+8*i,4)}, {sr(sWS,2)} sc1")
        e(f"global_store_dwordx4 {vr(vSt+i)}, {vr(vOq+8*i+4,4)}, {sr(sWS,2)} offset:256 sc1")
    e("s_waitcnt vmcnt(0)")
    e("s_barrier")
    e(f"s_cmp_eq_u32 {sr(sW)}, 0")
    e("s_cbranch_scc0 L_done")
    signal()

    lab("L_done")
    if opt.stamps:
        e("s_waitcnt vmcnt(0)")
        stamp(3)
        e(f"s_getreg_b32 {sr(t5)}, hwreg(HW_REG_XCC_ID)")
        e(f"s_getreg_b32 {sr(t6)}, hwreg(HW_REG_HW_ID)")
        e("s_waitcnt lgkmcnt(0)")
        e(f"s_lshl_b32 {sr(t3)}, s2, 2")
        e(f"s_add_u32 {sr(t3)}, {sr(t3)}, {sr(sW)}")
        e(f"s_lshl_b32 {sr(t3)}, {sr(t3)}, 6")
        e(f"s_add_u32 {sr(t3)}, {sr(t3)}, {STAMPS}")
        e(f"v_mov_b32 v4, {sr(t3)}")
        for i in range(8):
            e(f"v_mov_b32 v{8+i}, {sr(sST+i)}")
        e(f"v_mov_b32 v16, {sr(t5)}")
        e(f"v_mov_b32 v17, {sr(t6)}")
        for i in range(4):
            e(f"v_mov_b32 v{18+i}, {sr(sST+8+i)}")
        e(f"v_mov_b32 v22, {sr(sBHP)}")
        e(f"v_mov_b32 v23, {sr(sLAM)}")
        e("s_mov_b64 exec, 1")
        e(f"global_store_dwordx4 v4, v[8:11], {sr(sWS,2)}")
        e(f"global_store_dwordx4 v4, v[12:15], {sr(sWS,2)} offset:16")
        e(f"global_store_dwordx4 v4, v[16:19], {sr(sWS,2)} offset:32")
        e(f"global_store_dwordx4 v4, v[20:23], {sr(sWS,2)} offset:48")
    if opt.amp:
        p = [int(x) for x in opt.amp.split(",")]
        a, b = p[0], p[1]
        if len(p) > 2:
            e(f"s_cmp_eq_u32 s2, {p[2]}")
            e("s_cbranch_scc0 L_end")
            e(f"s_cmp_eq_u32 {sr(sW)}, {p[3]}")
            e("s_cbranch_scc0 L_end")
        e(f"s_sub_u32 {sr(t0)}, {sr(sST+2*b)}, {sr(sST+2*a)}")
        e(f"s_lshl_b32 {sr(t0)}, {sr(t0)}, {5 if len(p)>2 else 3}")
        e(f"s_min_u32 {sr(t0)}, {sr(t0)}, 100000")
        lab("L_amp")
        e(f"s_memrealtime {sr(t2,2)}")
        e("s_waitcnt lgkmcnt(0)")
        e(f"s_sub_u32 {sr(t1)}, {sr(t2)}, {sr(sST+6)}")
        e(f"s_cmp_lt_u32 {sr(t1)}, {sr(t0)}")
        e("s_cbranch_scc1 L_amp")
    lab("L_end")
    e("s_endpgm")

    out = HEADER
    out += f"; @launch grid=(256,1,1) block=({NW*64},1,1) lds={LDS}\n"
    out += '.amdgcn_target "amdgcn-amd-amdhsa--gfx950"\n.text\n'
    out += f".globl {NAME}_kernel\n.p2align 8\n.type {NAME}_kernel,@function\n{NAME}_kernel:\n"
    out += "\n".join(g.lines) + "\n"
    out += f""".section .rodata,"a"
.p2align 6
.amdhsa_kernel {NAME}_kernel
  .amdhsa_next_free_vgpr {NV}
  .amdhsa_next_free_sgpr 102
  .amdhsa_accum_offset {NV}
  .amdhsa_group_segment_fixed_size 0
  .amdhsa_kernarg_size 64
  .amdhsa_user_sgpr_count 2
  .amdhsa_user_sgpr_kernarg_segment_ptr 1
  .amdhsa_system_sgpr_workgroup_id_x 1
.end_amdhsa_kernel
"""
    return out

if __name__ == "__main__":
    ap = argparse.ArgumentParser()
    ap.add_argument("-o", default=f"cdna_kernels/{NAME}.s")
    ap.add_argument("--F", default="33,26,30,30")
    ap.add_argument("--flip", action="store_true")
    ap.add_argument("--lds", type=int, default=0)
    ap.add_argument("--pol", default="nt")
    ap.add_argument("--pol_out", default="")
    ap.add_argument("--stamps", action="store_true")
    ap.add_argument("--nobar", action="store_true")
    ap.add_argument("--amp", default="")
    ap.add_argument("--probe", default="first")
    ap.add_argument("--clk", default="s_memrealtime")
    opt = ap.parse_args()
    for k in ("pol", "pol_out"):
        v = getattr(opt, k)
        setattr(opt, k, (" " + v.replace("+", " ")) if v else "")
    open(opt.o, "w").write(build(opt))
```

```python
import sys, struct, argparse

NAME = "standalone__paged_block_table_kv_radixattention__sampling"

HEADER = """; Kernarg layout for this problem (64 bytes, ptrs only, base s[0:1]):
"""

def f2u(x):
    return struct.unpack("<I", struct.pack("<f", x))[0]

class Gen:
    def __init__(self, opt):
        self.o = opt
        self.lines = []
        self.nlab = 0
    def e(self, s):
        self.lines.append("    " + s)
    def c(self, s):
        self.lines.append("    ; " + s)
    def lab(self, name):
        self.lines.append(name + ":")
    def newlab(self, p="L"):
        self.nlab += 1
        return f"{p}_{self.nlab}"

def vr(b, n=1):
    return f"v{b}" if n == 1 else f"v[{b}:{b+n-1}]"
def sr(b, n=1):
    return f"s{b}" if n == 1 else f"s[{b}:{b+n-1}]"

def build(opt):
    g = Gen(opt)
    e, c, lab = g.e, g.c, g.lab
    NW = 4
    Fc = [int(x) for x in opt.F.split(",")]
    FPACK = sum((64 + Fc[i]) << (8*i) for i in range(4))
    KVB = 2176 * 32768
    CSTR = 528
    WSTR = 16384
    STAT = 16 * CSTR
    LDS = max(65536, opt.lds)
    pol = opt.pol
    WSTAT = 0x200000
    STAMPS = 0x300000
    NG = 7
    NSIG = 128
    NL = 18
    sQ, sK, sV, sBT, sCTX, sOUT, sDBG, sWS = 4, 6, 8, 10, 12, 14, 16, 18
    srdK, srdV = 20, 24
    sBHP, sKS, sX_, sIDX = 28, 29, 30, 31
    sW, sHD, sS0, sSTR, sROLE = 32, 33, 34, 35, 36
    sIT, sREM, sLB = 37, 38, 39
    sCS, sONCE, sZI, sZC = 40, 41, 42, 43
    mSL = 44
    sB0, sB1, sPOS, sH8 = 46, 47, 48, 49
    sMK = 50
    sSL, sEND = 52, 53
    mIT = 54
    sFAST = 56
    sGL, sMW, sPHP = 61, 62, 60
    sCM = 66
    t0, t1, t2, t3, t4, t5, t6, t7 = 82, 83, 84, 85, 86, 87, 88, 89
    sST = 90
    vL, vG, vC = 1, 2, 3
    vKO, vVO = 4, 8
    vQ = 12
    vO = 28
    vM, vLs, vCG = 60, 61, 62
    vMETA = 63
    vTB = 64
    vFM, vFI = 66, 67
    vS = 68
    vP = 76
    vF = 80
    vT = vF
    vLIM, vFILL, vMX, vAL, vX0, vX1, vX2, vX3 = 112, 113, 114, 115, 116, 117, 118, 119
    vKA, vVA = 120, 124
    vCNT, vZ = 132, 133
    vE = 134
    vKY = 138
    vU = 140
    vGs, vGo = 140, 156
    vWO, vWS_, vOA, vLWa, vLWs, vA1, vA2, vCC = 220, 221, 222, 223, 224, 225, 226, 227
    vWO2, vWS2 = 228, 229
    NV = 232

    def stamp(i):
        if opt.stamps:
            e(f"s_memrealtime {sr(sST+2*i,2)}")
    def probe(name, which):
        if opt.stamps and opt.probe == name:
            e(f"{opt.clk} {sr(sST+8+2*which,2)}")
            e("s_waitcnt lgkmcnt(0)")

    def list_addr_bh():
        c("vX0=step vX1=slot vX3=b*8+h -> vX3 table offset, vMETA")
        e(f"v_med3_i32 {vr(vX0)}, {vr(vX0)}, 0, {vr(vT+6)}")
        e(f"v_lshlrev_b32 {vr(vMETA)}, 5, {vr(vX0)}")
        e(f"v_lshl_add_u32 {vr(vMETA)}, {vr(vX1)}, 18, {vr(vMETA)}")
        e(f"v_lshl_add_u32 {vr(vMETA)}, {vr(vX3)}, 29, {vr(vMETA)}")
        e(f"v_lshrrev_b32 {vr(vX3)}, 3, {vr(vX3)}")
        e(f"v_lshlrev_b32 {vr(vX3)}, 10, {vr(vX3)}")
        e(f"v_lshl_add_u32 {vr(vX3)}, {vr(vX0)}, 3, {vr(vX3)}")
    def list_load():
        e(f"global_load_dwordx2 {vr(vTB,2)}, {vr(vX3)}, {sr(sBT,2)}")
    def predict():
        c("guess for the first item (checked against the table below): block = 128*row + column")
        e(f"v_readfirstlane_b32 {sr(t0)}, {vr(vX3)}")
        e(f"v_readfirstlane_b32 {sr(t2)}, {vr(vMETA)}")
        e(f"s_lshr_b32 {sr(t1)}, {sr(t0)}, 10")
        e(f"s_lshl_b32 {sr(t1)}, {sr(t1)}, 22")
        e(f"s_and_b32 {sr(t0)}, {sr(t0)}, 0x3ff")
        e(f"s_lshl_b32 {sr(t0)}, {sr(t0)}, 13")
        e(f"s_add_u32 {sr(t0)}, {sr(t0)}, {sr(t1)}")
        e(f"s_lshr_b32 {sr(t2)}, {sr(t2)}, 29")
        e(f"s_lshl_b32 {sr(t2)}, {sr(t2)}, 8")
        e(f"s_or_b32 {sr(sB0)}, {sr(t0)}, {sr(t2)}")
        e(f"s_add_u32 {sr(sB1)}, {sr(sB0)}, 0x8000")
    vQO, vCO = vT + 8, vT + 9
    def col_addr():
        c("per-lane column: Q offset and ctx offset")
        e(f"v_lshlrev_b32 {vr(vCO)}, 1, {vr(vC)}")
        e(f"v_and_b32 {vr(vCO)}, 24, {vr(vCO)}")
        e(f"v_bfe_u32 {vr(vCO)}, {sr(sBHP)}, {vr(vCO)}, 8")
        e(f"v_lshl_add_u32 {vr(vQO)}, {vr(vCO)}, 10, {vr(vT+10)}")
        e(f"v_lshrrev_b32 {vr(vCO)}, 1, {vr(vCO)}")
        e(f"v_and_b32 {vr(vCO)}, 60, {vr(vCO)}")
    def col_load():
        e(f"global_load_dword {vr(vCG)}, {vr(vCO)}, {sr(sCTX,2)}")
        for m in range(4):
            e(f"global_load_dwordx4 {vr(vQ+4*m,4)}, {vr(vQO)}, {sr(sQ,2)} offset:{64*m}")
    def part_addr(vcol, vo, vs, tmp):
        c("partial addresses for column vcol: row R=(b*8+h)*4+(col&3); O: R*4096 + k*512 ; stats: R*64 + k*8")
        e(f"v_lshlrev_b32 {vr(tmp)}, 1, {vr(vcol)}")
        e(f"v_and_b32 {vr(tmp)}, 24, {vr(tmp)}")
        e(f"v_bfe_u32 {vr(tmp)}, {sr(sPHP)}, {vr(tmp)}, 8")
        e(f"v_and_b32 {vr(vs)}, 3, {vr(vcol)}")
        e(f"v_lshl_add_u32 {vr(tmp)}, {vr(tmp)}, 2, {vr(vs)}")
        if vo is not None:
            e(f"s_lshl_b32 {sr(t3)}, {sr(sKS)}, 9")
            e(f"v_lshl_add_u32 {vr(vo)}, {vr(tmp)}, 12, {sr(t3)}")
        e(f"s_lshl_b32 {sr(t3)}, {sr(sKS)}, 3")
        e(f"s_add_u32 {sr(t3)}, {sr(t3)}, {WSTAT}")
        e(f"v_lshl_add_u32 {vr(vs)}, {vr(tmp)}, 6, {sr(t3)}")
    def slot_base(i, vdst, vlane):
        e(f"s_bfe_u32 {sr(t3)}, {sr(sPHP)}, 0x{0x80000+8*i:x}")
        e(f"s_lshl_b32 {sr(t3)}, {sr(t3)}, 14")
        e(f"s_add_u32 {sr(t3)}, {sr(t3)}, {sr(t6)}")
        e(f"v_add_u32 {vr(vdst)}, {sr(t3)}, {vr(vlane)}")
    def clear_body():
        c("clear the 16 partial columns with the canary")
        for i in range(4):
            e(f"v_mov_b32 {vr(vS+i)}, -1")
        part_addr(vC, None, vT+13, vT+14)
        e(f"global_store_dwordx2 {vr(vT+13)}, {vr(vS,2)}, {sr(sWS,2)} sc1")
        e(f"v_lshlrev_b32 {vr(vT+11)}, 12, {vr(vG)}")
        e(f"v_lshl_add_u32 {vr(vT+11)}, {vr(vC)}, 4, {vr(vT+11)}")
        e(f"s_lshl_b32 {sr(t6)}, {sr(sKS)}, 9")
        for i in range(4):
            slot_base(i, vT+12, vT+11)
            e(f"global_store_dwordx4 {vr(vT+12)}, {vr(vS,4)}, {sr(sWS,2)} sc1")
            e(f"global_store_dwordx4 {vr(vT+12)}, {vr(vS,4)}, {sr(sWS,2)} offset:256 sc1")
    def setup_v():
        c("DMA source offsets (XOR-swizzled)")
        e(f"v_xor_b32 {vr(vT+16)}, {vr(vC)}, {vr(vG)}")
        e(f"v_lshlrev_b32 {vr(vT+17)}, 11, {vr(vG)}")
        e(f"v_lshl_add_u32 {vr(vKO)}, {vr(vT+16)}, 4, {vr(vT+17)}")
        e(f"v_lshlrev_b32 {vr(vT+16)}, 1, {vr(vG)}")
        e(f"v_xor_b32 {vr(vT+16)}, {vr(vC)}, {vr(vT+16)}")
        e(f"v_lshl_add_u32 {vr(vVO)}, {vr(vT+16)}, 4, {vr(vT+17)}")
        for n in range(1, 4):
            e(f"v_xor_b32 {vr(vKO+n)}, {n<<6}, {vr(vKO)}")
            e(f"v_add_u32 {vr(vKO+n)}, {n*7168}, {vr(vKO+n)}")
        e(f"v_xor_b32 {vr(vVO+1)}, 128, {vr(vVO)}")
        e(f"v_add_u32 {vr(vVO+3)}, {3*7168}, {vr(vVO+1)}")
        e(f"v_add_u32 {vr(vVO+1)}, 7168, {vr(vVO+1)}")
        e(f"v_add_u32 {vr(vVO+2)}, {2*7168}, {vr(vVO)}")
        e(f"s_mov_b32 {sr(mSL)}, 0x000f000f")
        e(f"s_mov_b32 {sr(mSL+1)}, 0x000f000f")
        e(f"s_mov_b32 {sr(sIT)}, 0")
        e(f"s_lshl_b32 {sr(sLB)}, {sr(sW)}, 14")
        e(f"s_mov_b32 {sr(srdK+2)}, {KVB}")
        e(f"s_mov_b32 {sr(srdK+3)}, 0x20000")
        e(f"s_mov_b32 {sr(srdV+2)}, {KVB}")
        e(f"s_mov_b32 {sr(srdV+3)}, 0x20000")
    def setup_srd():
        e(f"s_mov_b32 {sr(srdK)}, {sr(sK)}")
        e(f"s_and_b32 {sr(srdK+1)}, {sr(sK+1)}, 0xffff")
        e(f"s_mov_b32 {sr(srdV)}, {sr(sV)}")
        e(f"s_and_b32 {sr(srdV+1)}, {sr(sV+1)}, 0xffff")
    def ranks():
        c("vKY: ctx of row c -> key = nsteps*16 + row ; vX3 = rank of the key")
        e(f"v_mov_b32 {vr(vX2)}, 0x1000")
        e(f"v_cmp_lt_i32 vcc, 0, {vr(vKY)}")
        e(f"v_min_i32 {vr(vKY)}, {vr(vKY)}, {vr(vX2)}")
        e(f"v_mov_b32 {vr(vX3)}, 0")
        e(f"v_cndmask_b32 {vr(vKY)}, {vr(vX2)}, {vr(vKY)}, vcc")
        e(f"v_add_u32 {vr(vKY)}, 31, {vr(vKY)}")
        e(f"v_lshrrev_b32 {vr(vKY)}, 5, {vr(vKY)}")
        e(f"v_lshl_add_u32 {vr(vKY)}, {vr(vKY)}, 4, {vr(vC)}")
        e("s_nop 1")
        for k in range(1, 16):
            e(f"v_sub_u32_dpp {vr(vT+(k&3))}, {vr(vKY)}, {vr(vKY)} row_ror:{k} row_mask:0xf bank_mask:0xf")
            e(f"v_lshrrev_b32 {vr(vT+(k&3))}, 31, {vr(vT+(k&3))}")
            e(f"v_add_u32 {vr(vX3)}, {vr(vX3)}, {vr(vT+(k&3))}")
    def gload():
        e(f"global_load_dwordx4 {vr(vGs+8,4)}, {vr(vWS2)}, {sr(sWS,2)} offset:32 sc1")
        e(f"global_load_dwordx2 {vr(vGs+12,2)}, {vr(vWS2)}, {sr(sWS,2)} offset:48 sc1")
        for k in (0, 2):
            e(f"global_load_dwordx4 {vr(vGs+2*k,4)}, {vr(vWS_)}, {sr(sWS,2)} offset:{8*k} sc1")
        for k in range(NG):
            for q in range(2):
                e(f"global_load_dwordx4 {vr(vGo+8*k+4*q,4)}, {vr(vWO if k < 4 else vWO2)}, {sr(sWS,2)} offset:{512*k+256*q} sc1")
    def lsum():
        c("reduce l over the 4 lane groups")
        e(f"v_mov_b32 {vr(vX0)}, {vr(vLs)}")
        e("s_nop 1")
        e(f"v_permlane32_swap_b32 {vr(vLs)}, {vr(vX0)}")
        e(f"v_add_f32 {vr(vLs)}, {vr(vLs)}, {vr(vX0)}")
        e(f"v_mov_b32 {vr(vX0)}, {vr(vLs)}")
        e("s_nop 1")
        e(f"v_permlane16_swap_b32 {vr(vLs)}, {vr(vX0)}")
        e(f"v_add_f32 {vr(vLs)}, {vr(vLs)}, {vr(vX0)}")
    def fetch():
        e(f"v_readlane_b32 {sr(t2)}, {vr(vMETA)}, {sr(sIT)}")
        e(f"v_readlane_b32 {sr(t0)}, {vr(vTB)}, {sr(sIT)}")
        e(f"v_readlane_b32 {sr(t1)}, {vr(vTB+1)}, {sr(sIT)}")
        e(f"s_lshr_b32 {sr(t4)}, {sr(t2)}, 29")
        e(f"s_lshl_b32 {sr(t4)}, {sr(t4)}, 8")
        e(f"s_lshl_b32 {sr(t0)}, {sr(t0)}, 15")
        e(f"s_lshl_b32 {sr(t1)}, {sr(t1)}, 15")
        e(f"s_or_b32 {sr(sB0)}, {sr(t0)}, {sr(t4)}")
        e(f"s_or_b32 {sr(sB1)}, {sr(t1)}, {sr(t4)}")
        e(f"s_add_u32 {sr(sIT)}, {sr(sIT)}, 1")
    def decode():
        e(f"s_and_b32 {sr(sPOS)}, {sr(t2)}, 0xffff")
        e(f"s_bfe_u32 {sr(t3)}, {sr(t2)}, 0x40010")
        e(f"s_lshl_b64 {sr(sMK,2)}, {sr(mIT,2)}, {sr(t3)}")
    def dma4(off, srd, soff):
        for n in range(4):
            o = f" offset:{1024*n}" if n else ""
            e(f"buffer_load_dwordx4 {vr(off+n)}, {sr(srd,4)}, {sr(soff)} offen{o}{pol} lds")
    def issue(kv):
        off = vVO if kv == "V" else vKO
        srd = srdV if kv == "V" else srdK
        base = 8192 if kv == "V" else 0
        if base:
            e(f"s_add_u32 m0, {sr(sLB)}, {base}")
        else:
            e(f"s_mov_b32 m0, {sr(sLB)}")
        e("s_nop 0")
        dma4(off, srd, sB0)
        e(f"s_add_u32 m0, {sr(sLB)}, {base+4096}")
        e("s_nop 0")
        dma4(off, srd, sB1)
    def signal():
        e(f"v_mov_b32 {vr(vCNT)}, 1")
        e("s_mov_b64 exec, 1")
        e(f"global_atomic_add {vr(vZ)}, {vr(vCNT)}, {sr(sDBG,2)}")
        e("s_mov_b64 exec, -1")

    e("s_cmp_ge_u32 s2, 256")
    e("s_cbranch_scc1 L_end")
    e(f"s_load_dwordx16 s[4:19], s[0:1], 0")
    stamp(0)
    e(f"v_and_b32 {vr(vL)}, 63, v0")
    e(f"v_lshrrev_b32 {vr(vX0)}, 6, v0")
    e(f"s_lshr_b32 {sr(sIDX)}, s2, 3")
    e(f"v_readfirstlane_b32 {sr(sW)}, {vr(vX0)}")
    e(f"s_and_b32 {sr(sX_)}, s2, 7")
    e(f"v_lshrrev_b32 {vr(vG)}, 4, {vr(vL)}")
    e(f"v_and_b32 {vr(vC)}, 15, {vr(vL)}")
    e(f"v_and_b32 {vr(vX2)}, 3, {vr(vL)}")
    e(f"v_lshlrev_b32 {vr(vT+10)}, 4, {vr(vG)}")
    e(f"v_lshl_add_u32 {vr(vT+10)}, {vr(vX2)}, 8, {vr(vT+10)}")
    e(f"v_lshlrev_b32 {vr(vT+7)}, 2, {vr(vC)}")
    e(f"v_mov_b32 {vr(vT+6)}, 127")
    c("head: bit1 = id&1, bits 0/2 rotate with idx")
    e(f"s_lshr_b32 {sr(t0)}, {sr(sX_)}, 1")
    e(f"s_add_u32 {sr(t0)}, {sr(t0)}, {sr(sIDX)}")
    e(f"s_and_b32 {sr(t1)}, {sr(t0)}, 2")
    e(f"s_and_b32 {sr(t0)}, {sr(t0)}, 1")
    e(f"s_and_b32 {sr(t2)}, s2, 1")
    e(f"s_or_b32 {sr(t1)}, {sr(t1)}, {sr(t2)}")
    e(f"s_lshl_b32 {sr(t1)}, {sr(t1)}, 1")
    e(f"s_or_b32 {sr(sHD)}, {sr(t0)}, {sr(t1)}")
    setup_v()
    e(f"s_cmp_lt_u32 {sr(sIDX)}, 16")
    e("s_cbranch_scc1 L_helper")
    c("======== finisher (b, h): steps 64+w+4*lane")
    e(f"s_mov_b32 {sr(sROLE)}, 1")
    e(f"s_and_b32 {sr(t1)}, s2, 0x78")
    e(f"s_or_b32 {sr(t1)}, {sr(t1)}, {sr(sHD)}")
    e(f"s_mul_i32 {sr(sBHP)}, {sr(t1)}, 0x01010101")
    e(f"s_mov_b32 {sr(sPHP)}, {sr(sBHP)}")
    e(f"s_add_u32 {sr(t2)}, {sr(sW)}, 64")
    e(f"v_lshl_add_u32 {vr(vX0)}, {vr(vL)}, 2, {sr(t2)}")
    e(f"v_mov_b32 {vr(vX1)}, 0")
    e(f"v_mov_b32 {vr(vX3)}, {sr(t1)}")
    list_addr_bh()
    col_addr()
    e(f"s_and_b32 {sr(t0)}, {sr(sHD)}, 3")
    e(f"s_lshl_b32 {sr(t0)}, {sr(t0)}, 3")
    e(f"s_lshr_b32 {sr(sEND)}, 0x{FPACK:08x}, {sr(t0)}")
    e(f"s_and_b32 {sr(sEND)}, {sr(sEND)}, 0xff")
    e(f"s_mov_b32 {sr(sKS)}, 0")
    e(f"s_mov_b64 {sr(mIT,2)}, -1")
    if opt.spec:
        predict()
    e("s_waitcnt lgkmcnt(0)")
    list_load()
    e(f"global_load_dword {vr(vKY)}, {vr(vT+7)}, {sr(sCTX,2)}")
    col_load()
    setup_srd()
    if not opt.spec:
        e("s_waitcnt vmcnt(6)")

    lab("L_go")
    if not opt.spec:
        e("s_barrier")
        fetch()
        decode()
    stamp(1)
    issue("K"); issue("V")
    lab("L_init")
    e(f"s_mov_b32 {sr(sCS)}, 0x{f2u(128**-0.5 * 1.4426950408889634):08x}")
    for i in range(32):
        e(f"v_mov_b32 {vr(vO+i)}, 0")
    e(f"v_mov_b32 {vr(vM)}, 0x{f2u(-1e30):08x}")
    e(f"v_mov_b32 {vr(vLs)}, 0")
    e(f"v_mov_b32 {vr(vFM)}, 0x{f2u(-1e9/(128**-0.5)):08x}")
    e(f"v_mov_b32 {vr(vFI)}, 0x{f2u(-3e38):08x}")
    e(f"v_mov_b32 {vr(vZ)}, 0")
    e(f"v_mov_b32 {vr(vCNT)}, 0")
    c("LDS fragment addresses")
    e(f"s_cmp_eq_u32 {sr(sROLE)}, 2")
    e(f"s_cselect_b32 {sr(t0)}, 0, {sr(sLB)}")
    e(f"v_xor_b32 {vr(vX0)}, {vr(vC)}, {vr(vG)}")
    e(f"v_lshl_add_u32 {vr(vX1)}, {vr(vC)}, 8, {sr(t0)}")
    e(f"v_lshl_add_u32 {vr(vKA)}, {vr(vX0)}, 4, {vr(vX1)}")
    for m in range(1, 4):
        e(f"v_xor_b32 {vr(vKA+m)}, {m<<6}, {vr(vKA)}")
    e(f"v_lshrrev_b32 {vr(vX0)}, 2, {vr(vL)}")
    e(f"v_lshl_add_u32 {vr(vX1)}, {vr(vX0)}, 8, {sr(t0)}")
    e(f"v_and_b32 {vr(vX0)}, 7, {vr(vX0)}")
    e(f"v_lshl_add_u32 {vr(vX1)}, {vr(vX0)}, 5, {vr(vX1)}")
    e(f"v_and_b32 {vr(vX0)}, 3, {vr(vL)}")
    e(f"v_lshl_add_u32 {vr(vVA)}, {vr(vX0)}, 3, {vr(vX1)}")
    for ee in range(1, 8):
        e(f"v_xor_b32 {vr(vVA+ee)}, {ee<<5}, {vr(vVA)}")
    c("epilogue addresses")
    e(f"v_lshrrev_b32 {vr(vCC)}, 4, v0")
    part_addr(vCC, vWO, vWS_, vX0)
    e(f"v_lshl_add_u32 {vr(vWO)}, {vr(vC)}, 4, {vr(vWO)}")
    e(f"v_mov_b32 {vr(vWO2)}, {vr(vWO)}")
    e(f"v_mov_b32 {vr(vWS2)}, {vr(vWS_)}")
    e(f"v_mul_u32_u24 {vr(vLWa)}, {CSTR}, {vr(vC)}")
    e(f"v_lshl_add_u32 {vr(vLWa)}, {vr(vG)}, 4, {vr(vLWa)}")
    e(f"v_add_u32 {vr(vLWa)}, {sr(sLB)}, {vr(vLWa)}")
    e(f"v_lshl_add_u32 {vr(vLWs)}, {vr(vC)}, 3, {sr(sLB)}")
    e(f"v_lshlrev_b32 {vr(vA1)}, 3, {vr(vCC)}")
    e(f"v_mul_u32_u24 {vr(vA2)}, {CSTR}, {vr(vCC)}")
    e(f"v_lshl_add_u32 {vr(vA2)}, {vr(vC)}, 4, {vr(vA2)}")
    e(f"s_and_b32 {sr(t3)}, {sr(sBHP)}, 0xff")
    e(f"s_lshl_b32 {sr(t3)}, {sr(t3)}, 10")
    e(f"v_lshl_add_u32 {vr(vOA)}, {vr(vG)}, 8, {sr(t3)}")
    e(f"v_lshl_add_u32 {vr(vOA)}, {vr(vC)}, 3, {vr(vOA)}")
    e(f"s_mov_b32 {sr(sGL)}, 0")
    e(f"s_sub_u32 {sr(sMW)}, {sr(sROLE)}, {sr(sW)}")
    c("table/ctx/Q/clears are older than every K/V load")
    e(f"s_cmp_eq_u32 {sr(sROLE)}, 2")
    e("s_waitcnt vmcnt(16)")
    e("s_cbranch_scc0 L_ctx")
    e("s_waitcnt vmcnt(12)")
    lab("L_ctx")
    e(f"v_readfirstlane_b32 {sr(t7)}, {vr(vCG)}")
    e(f"v_lshlrev_b32 {vr(vX0)}, 2, {vr(vG)}")
    e(f"v_max_i32 {vr(vCG)}, 0, {vr(vCG)}")
    e(f"v_min_i32 {vr(vCG)}, 0x1000, {vr(vCG)}")
    e(f"v_sub_u32 {vr(vCG)}, {vr(vCG)}, {vr(vX0)}")
    e("s_cbranch_scc1 L_sh_verify")
    if opt.spec:
        e(f"s_mov_b32 {sr(t5)}, {sr(sB0)}")
        e(f"s_mov_b32 {sr(t6)}, {sr(sB1)}")
        fetch()
        decode()
        e(f"s_xor_b32 {sr(t5)}, {sr(t5)}, {sr(sB0)}")
        e(f"s_xor_b32 {sr(t6)}, {sr(t6)}, {sr(sB1)}")
        e(f"s_or_b32 {sr(t5)}, {sr(t5)}, {sr(t6)}")
        e("s_cbranch_scc1 L_respec")
        lab("L_specok")
    e(f"s_cmp_eq_u32 {sr(sROLE)}, 1")
    e("s_cbranch_scc0 L_cnt")
    c("finisher item count (at least one: a step past the context is fully masked)")
    e(f"s_min_i32 {sr(t1)}, {sr(t7)}, 4096")
    e(f"s_cmp_le_i32 {sr(t7)}, 0")
    e(f"s_cselect_b32 {sr(t1)}, 4096, {sr(t1)}")
    e(f"s_add_u32 {sr(t1)}, {sr(t1)}, 31")
    e(f"s_lshr_b32 {sr(t1)}, {sr(t1)}, 5")
    e(f"s_min_u32 {sr(t1)}, {sr(t1)}, {sr(sEND)}")
    e(f"s_sub_i32 {sr(t1)}, {sr(t1)}, {sr(sW)}")
    e(f"s_sub_i32 {sr(t1)}, {sr(t1)}, 61")
    e(f"s_ashr_i32 {sr(t1)}, {sr(t1)}, 2")
    e(f"s_max_i32 {sr(sREM)}, {sr(t1)}, 1")
    e(f"s_cmp_eq_u32 {sr(sW)}, 0")
    e("s_cbranch_scc0 L_cnt")
    c("the mixed helpers' partials are filed under the rank of the row")
    ranks()
    e(f"s_sub_u32 {sr(t0)}, {sr(sIDX)}, 16")
    e("s_nop 0")
    e(f"v_readlane_b32 {sr(t1)}, {vr(vX3)}, {sr(t0)}")
    e(f"s_sub_i32 {sr(t1)}, {sr(t1)}, {sr(t0)}")
    e(f"s_lshl_b32 {sr(t0)}, {sr(t1)}, 17")
    e(f"s_lshl_b32 {sr(t1)}, {sr(t1)}, 11")
    e(f"v_add_u32 {vr(vWO2)}, {sr(t0)}, {vr(vWO)}")
    e(f"v_add_u32 {vr(vWS2)}, {sr(t1)}, {vr(vWS_)}")
    lab("L_cnt")
    c("once-hook (wave 0): finishers sample the cleared-counter when 3 items remain, helpers signal after item 0")
    e(f"s_cmp_eq_u32 {sr(sROLE)}, 1")
    e(f"s_cselect_b32 {sr(sONCE)}, 3, {sr(sREM)}")
    e(f"s_cmp_eq_u32 {sr(sW)}, 0")
    e(f"s_cselect_b32 {sr(sONCE)}, {sr(sONCE)}, 0")

    def kreads():
        for m in range(4):
            e(f"ds_read_b128 {vr(vF+8*m,4)}, {vr(vKA+m)}")
            e(f"ds_read_b128 {vr(vF+8*m+4,4)}, {vr(vKA+m)} offset:4096")
    def qk():
        for m in range(4):
            e(f"s_waitcnt lgkmcnt({6-2*m})")
            c0 = "0" if m == 0 else vr(vS, 4)
            c1 = "0" if m == 0 else vr(vS+4, 4)
            e(f"v_mfma_f32_16x16x32_bf16 {vr(vS,4)}, {vr(vF+8*m,4)}, {vr(vQ+4*m,4)}, {c0}")
            e(f"v_mfma_f32_16x16x32_bf16 {vr(vS+4,4)}, {vr(vF+8*m+4,4)}, {vr(vQ+4*m,4)}, {c1}")
    def masks():
        e(f"v_subrev_u32 {vr(vLIM)}, {sr(sPOS)}, {vr(vCG)}")
        e(f"v_cndmask_b32 {vr(vLIM)}, 0, {vr(vLIM)}, {sr(sMK,2)}")
        e(f"v_cndmask_b32 {vr(vFILL)}, {vr(vFI)}, {vr(vFM)}, {sr(sMK,2)}")
        e(f"v_cmp_gt_i32 {sr(sFAST,2)}, 20, {vr(vLIM)}")
    def vreads():
        for ee in range(8):
            e(f"ds_read_b64_tr_b16 {vr(vF+4*ee,2)}, {vr(vVA+ee)} offset:8192")
            e(f"ds_read_b64_tr_b16 {vr(vF+4*ee+2,2)}, {vr(vVA+ee)} offset:12288")
    def softmax_a():
        la = g.newlab()
        e(f"s_cmp_eq_u64 {sr(sFAST,2)}, 0")
        e(f"s_cbranch_scc1 {la}")
        for j in range(8):
            e(f"v_cmp_lt_i32 {sr(sCM+2*j,2)}, {(j>>2)*16+(j&3)}, {vr(vLIM)}")
        for j in range(8):
            e(f"v_cndmask_b32 {vr(vS+j)}, {vr(vFILL)}, {vr(vS+j)}, {sr(sCM+2*j,2)}")
        lab(la)
        e(f"v_max3_f32 {vr(vMX)}, {vr(vS)}, {vr(vS+1)}, {vr(vS+2)}")
        e(f"v_max3_f32 {vr(vX0)}, {vr(vS+3)}, {vr(vS+4)}, {vr(vS+5)}")
        e(f"v_max3_f32 {vr(vMX)}, {vr(vMX)}, {vr(vS+6)}, {vr(vS+7)}")
        e(f"v_max3_f32 {vr(vMX)}, {vr(vMX)}, {vr(vX0)}, {vr(vM)}")
        e(f"v_mov_b32 {vr(vX0)}, {vr(vMX)}")
        e("s_nop 1")
        e(f"v_permlane32_swap_b32 {vr(vMX)}, {vr(vX0)}")
        e(f"v_max_f32 {vr(vMX)}, {vr(vMX)}, {vr(vX0)}")
        e(f"v_mov_b32 {vr(vX0)}, {vr(vMX)}")
        e("s_nop 1")
        e(f"v_permlane16_swap_b32 {vr(vMX)}, {vr(vX0)}")
        e(f"v_max_f32 {vr(vMX)}, {vr(vMX)}, {vr(vX0)}")
        e(f"v_mul_f32 {vr(vX1)}, {sr(sCS)}, {vr(vMX)}")
        e(f"v_sub_f32 {vr(vAL)}, {vr(vM)}, {vr(vMX)}")
        e(f"v_cmp_lt_f32 vcc, {vr(vM)}, {vr(vMX)}")
        for j in range(8):
            e(f"v_fma_f32 {vr(vS+j)}, {vr(vS+j)}, {sr(sCS)}, -{vr(vX1)}")
        e(f"v_mul_f32 {vr(vAL)}, {sr(sCS)}, {vr(vAL)}")
        for j in range(8):
            e(f"v_exp_f32 {vr(vS+j)}, {vr(vS+j)}")
        e(f"v_exp_f32 {vr(vAL)}, {vr(vAL)}")
        e(f"v_mov_b32 {vr(vM)}, {vr(vMX)}")
        for u in range(4):
            e(f"v_cvt_pk_bf16_f32 {vr(vP+u)}, {vr(vS+2*u)}, {vr(vS+2*u+1)}")
        e(f"v_pk_add_f32 {vr(vS,2)}, {vr(vS,2)}, {vr(vS+2,2)}")
        e(f"v_pk_add_f32 {vr(vS+4,2)}, {vr(vS+4,2)}, {vr(vS+6,2)}")
        e(f"v_pk_add_f32 {vr(vS,2)}, {vr(vS,2)}, {vr(vS+4,2)}")
        e(f"v_fma_f32 {vr(vLs)}, {vr(vLs)}, {vr(vAL)}, {vr(vS)}")
        e(f"v_add_f32 {vr(vLs)}, {vr(vLs)}, {vr(vS+1)}")
    def rescale():
        la = g.newlab()
        e(f"s_cbranch_vccz {la}")
        for i in range(0, 32, 2):
            e(f"v_pk_mul_f32 {vr(vO+i,2)}, {vr(vO+i,2)}, {vr(vMX,2)} op_sel:[0,1] op_sel_hi:[1,1]")
        lab(la)
    def pv(ee):
        ob = vO + 4*ee
        e(f"v_mfma_f32_16x16x32_bf16 {vr(ob,4)}, {vr(vF+4*ee,4)}, {vr(vP,4)}, {vr(ob,4)}")

    lab("L_loop")
    e("s_waitcnt vmcnt(8)")
    if opt.stamps and opt.probe == "first":
        e(f"s_cmp_eq_u32 {sr(sIT)}, 1")
        e(f"s_cbranch_scc0 L_q1")
        stamp(4)
        e("s_waitcnt lgkmcnt(0)")
        lab("L_q1")
    kreads()
    masks()
    fetch()
    qk()
    e(f"s_cmp_eq_u32 {sr(sREM)}, 1")
    e("s_cbranch_scc1 L_noK")
    issue("K")
    decode()
    e("s_branch L_sm")
    lab("L_noK")
    e(f"s_cmp_eq_u32 {sr(sMW)}, 1")
    e("s_cbranch_scc1 L_early")
    e("s_nop 6")
    lab("L_sm")
    softmax_a()
    rescale()
    e(f"s_cmp_eq_u32 {sr(sREM)}, 1")
    e("s_cbranch_scc1 L_last")
    e("s_waitcnt vmcnt(8)")
    e("s_branch L_vok")
    lab("L_last")
    lsum()
    e(f"s_cmp_eq_u32 {sr(sGL)}, 1")
    e(f"s_waitcnt vmcnt({NL})")
    e("s_cbranch_scc1 L_vok")
    e("s_waitcnt vmcnt(0)")
    lab("L_vok")
    vreads()
    for ee in range(8):
        e(f"s_waitcnt lgkmcnt({14-2*ee})")
        pv(ee)
    e(f"s_cmp_eq_u32 {sr(sREM)}, 1")
    e("s_cbranch_scc1 L_noV")
    issue("V")
    lab("L_noV")
    e(f"s_cmp_eq_u32 {sr(sREM)}, {sr(sONCE)}")
    e("s_cbranch_scc1 L_hook")
    lab("L_hook_done")
    if opt.stamps and opt.probe == "first":
        e(f"s_cmp_eq_u32 {sr(sIT)}, {opt.mid+1}")
        e(f"s_cbranch_scc0 L_q2")
        stamp(5)
        e("s_waitcnt lgkmcnt(0)")
        lab("L_q2")
    e(f"s_sub_u32 {sr(sREM)}, {sr(sREM)}, 1")
    e(f"s_cmp_lg_u32 {sr(sREM)}, 0")
    e("s_cbranch_scc1 L_loop")

    lab("L_epi")
    stamp(2)
    vSt = vS
    vOq = vF
    vR = 12
    vWt = 20
    c("finishers only need columns 0..3")
    e(f"s_cmp_eq_u32 {sr(sROLE)}, 1")
    e(f"s_cselect_b64 exec, {sr(mSL,2)}, -1")
    e(f"ds_write_b64 {vr(vLWs)}, {vr(vM,2)} offset:{STAT}")
    e("s_nop 1")
    for ee in range(8):
        e(f"ds_write_b128 {vr(vLWa)}, {vr(vO+4*ee,4)} offset:{64*ee}")
    e("s_mov_b64 exec, -1")
    e("s_cbranch_scc1 L_fin")

    def maxchain(ms):
        e(f"v_max3_f32 {vr(vMX)}, {vr(ms[0])}, {vr(ms[1])}, {vr(ms[2])}")
        i = 3
        while i < len(ms):
            if i + 1 < len(ms):
                e(f"v_max3_f32 {vr(vMX)}, {vr(vMX)}, {vr(ms[i])}, {vr(ms[i+1])}"); i += 2
            else:
                e(f"v_max_f32 {vr(vMX)}, {vr(vMX)}, {vr(ms[i])}"); i += 1
        for i in range(len(ms)):
            e(f"v_sub_f32 {vr(vWt+i)}, {vr(ms[i])}, {vr(vMX)}")
        for i in range(len(ms)):
            e(f"v_mul_f32 {vr(vWt+i)}, {sr(sCS)}, {vr(vWt+i)}")
        for i in range(len(ms)):
            e(f"v_exp_f32 {vr(vWt+i)}, {vr(vWt+i)}")
    def premerge():
        maxchain([vGs+2*k for k in range(NG)])
        e(f"v_mov_b32 {vr(vGs)}, {vr(vMX)}")
        e(f"v_mul_f32 {vr(vGs+1)}, {vr(vWt)}, {vr(vGs+1)}")
        for r in range(8):
            e(f"v_mul_f32 {vr(vGo+r)}, {vr(vWt)}, {vr(vGo+r)}")
        for i in range(1, NG):
            e(f"v_fmac_f32 {vr(vGs+1)}, {vr(vWt+i)}, {vr(vGs+2*i+1)}")
            for r in range(8):
                e(f"v_fmac_f32 {vr(vGo+r)}, {vr(vWt+i)}, {vr(vGo+8*i+r)}")
    def lds_reduce(nglob):
        c("thread: column vCC, quads vC and vC+16")
        e("s_waitcnt lgkmcnt(0)")
        e("s_barrier")
        if nglob:
            probe("tail", 1)
        for w in range(NW):
            e(f"ds_read_b64 {vr(vSt+2*w,2)}, {vr(vA1)} offset:{WSTR*w+STAT}")
        for w in range(NW):
            for q in range(2):
                e(f"ds_read_b128 {vr(vOq+8*w+4*q,4)}, {vr(vA2)} offset:{WSTR*w+256*q}")
        e(f"s_waitcnt lgkmcnt({2*NW})")
        ms = [vSt+2*w for w in range(NW)]
        ls = [vSt+2*w+1 for w in range(NW)]
        os_ = [vOq+8*w for w in range(NW)]
        if nglob:
            ms += [vGs]; ls += [vGs+1]; os_ += [vGo]
        maxchain(ms)
        e("s_nop 0")
        e(f"v_mul_f32 {vr(vAL)}, {vr(vWt)}, {vr(ls[0])}")
        for i in range(1, len(ms)):
            e(f"v_fmac_f32 {vr(vAL)}, {vr(vWt+i)}, {vr(ls[i])}")
        if nglob:
            e(f"v_rcp_f32 {vr(vAL)}, {vr(vAL)}")
        order_ = list(range(NW, len(ms))) + list(range(NW))
        first = True
        for i in order_:
            if i < NW:
                e(f"s_waitcnt lgkmcnt({2*(NW-1-i)})")
            for r in range(8):
                if first:
                    e(f"v_mul_f32 {vr(vR+r)}, {vr(vWt+i)}, {vr(os_[i]+r)}")
                else:
                    e(f"v_fmac_f32 {vr(vR+r)}, {vr(vWt+i)}, {vr(os_[i]+r)}")
            first = False

    c("---------- mixed helper: publish the workgroup partial")
    lds_reduce(0)
    c("never publish the canary pattern")
    for r in range(8):
        e(f"v_min_u32 {vr(vR+r)}, -2, {vr(vR+r)}")
    e(f"v_min_u32 {vr(vMX)}, -2, {vr(vMX)}")
    e(f"v_min_u32 {vr(vAL)}, -2, {vr(vAL)}")
    e(f"global_store_dwordx4 {vr(vWO)}, {vr(vR,4)}, {sr(sWS,2)} sc1")
    e(f"global_store_dwordx4 {vr(vWO)}, {vr(vR+4,4)}, {sr(sWS,2)} offset:256 sc1")
    e(f"v_cmp_eq_u32 vcc, 0, {vr(vC)}")
    e(f"s_and_saveexec_b64 {sr(sCM,2)}, vcc")
    e(f"global_store_dwordx2 {vr(vWS_)}, {vr(vMX,2)}, {sr(sWS,2)} sc1")
    e(f"s_mov_b64 exec, {sr(sCM,2)}")
    e("s_branch L_done")

    c("---------- finisher")
    lab("L_fin")
    e(f"s_cmp_eq_u32 {sr(sW)}, 0")
    e("s_cbranch_scc1 L_merge")
    e("s_waitcnt lgkmcnt(0)")
    e("s_barrier")
    e("s_branch L_done")
    lab("L_merge")
    e(f"s_mov_b32 {sr(t5)}, 0")
    e(f"s_cmp_eq_u32 {sr(sGL)}, 1")
    e("s_cbranch_scc1 L_chk")
    lab("L_poll")
    e(f"v_readfirstlane_b32 {sr(t4)}, {vr(vCNT)}")
    e(f"s_cmp_ge_u32 {sr(t4)}, {NSIG}")
    e("s_cbranch_scc1 L_reload")
    e(f"global_load_dword {vr(vCNT)}, {vr(vZ)}, {sr(sDBG,2)} sc1")
    e("s_sleep 8")
    e(f"s_add_u32 {sr(t5)}, {sr(t5)}, 1")
    e(f"s_cmp_lt_u32 {sr(t5)}, 0x40000")
    e("s_waitcnt vmcnt(0)")
    e("s_cbranch_scc1 L_poll")
    lab("L_reload")
    gload()
    lab("L_chk")
    e("s_waitcnt vmcnt(0)")
    e(f"v_max_u32 {vr(vX0)}, {vr(vGs)}, {vr(vGs+1)}")
    e(f"v_max_u32 {vr(vX1)}, {vr(vGs+2)}, {vr(vGs+3)}")
    regs = list(range(vGs+4, vGs+2*NG)) + list(range(vGo, vGo+8*NG))
    for i in range(0, len(regs), 2):
        a = vX0 + ((i >> 1) & 1)
        e(f"v_max3_u32 {vr(a)}, {vr(a)}, {vr(regs[i])}, {vr(regs[i+1])}")
    e(f"v_max_u32 {vr(vX0)}, {vr(vX0)}, {vr(vX1)}")
    e(f"v_cmp_eq_u32 vcc, -1, {vr(vX0)}")
    e(f"s_add_u32 {sr(t5)}, {sr(t5)}, 1")
    e("s_cbranch_vccz L_ready")
    e(f"s_sleep {opt.rsleep}")
    e(f"s_cmp_lt_u32 {sr(t5)}, 0x80000")
    e("s_cbranch_scc1 L_reload")
    lab("L_ready")
    probe("tail", 0)
    premerge()
    lds_reduce(1)
    for r in range(8):
        e(f"v_mul_f32 {vr(vR+r)}, {vr(vR+r)}, {vr(vAL)}")
    for r in range(4):
        e(f"v_cvt_pk_bf16_f32 {vr(vWt+r)}, {vr(vR+2*r)}, {vr(vR+2*r+1)}")
    po = opt.pol_out
    e(f"global_store_dwordx2 {vr(vOA)}, {vr(vWt,2)}, {sr(sOUT,2)}{po}")
    e(f"global_store_dwordx2 {vr(vOA)}, {vr(vWt+2,2)}, {sr(sOUT,2)} offset:128{po}")
    e("s_branch L_done")

    if opt.spec:
        lab("L_respec")
        c("the guess was wrong: reload the first item")
        e("s_waitcnt vmcnt(0)")
        issue("K"); issue("V")
        e("s_branch L_specok")

    lab("L_early")
    c("finisher wave 0, last item: fetch the helper partials under the V wait")
    e(f"v_readfirstlane_b32 {sr(t4)}, {vr(vCNT)}")
    e(f"s_cmp_ge_u32 {sr(t4)}, {NSIG}")
    e("s_nop 3")
    e("s_cbranch_scc0 L_sm")
    gload()
    e(f"s_mov_b32 {sr(sGL)}, 1")
    e("s_branch L_sm")

    lab("L_hook")
    e(f"s_cmp_eq_u32 {sr(sROLE)}, 1")
    e("s_cbranch_scc1 L_hook_fin")
    signal()
    e("s_branch L_hook_done")
    lab("L_hook_fin")
    e(f"global_load_dword {vr(vCNT)}, {vr(vZ)}, {sr(sDBG,2)} sc1")
    e("s_branch L_hook_done")

    lab("L_helper")
    e(f"s_cmp_lt_u32 {sr(sIDX)}, 4")
    e("s_cbranch_scc1 L_sh_pro")
    c("======== mixed helper. v=idx-4: j=v%3, u=v/3: r=((x>>1)+j)&3 + 4*(u&1), quad=u>>1, pair=x&1")
    e(f"s_mov_b32 {sr(sROLE)}, 0")
    e(f"s_sub_u32 {sr(t7)}, {sr(sIDX)}, 4")
    e(f"s_mul_i32 {sr(t1)}, {sr(t7)}, 11")
    e(f"s_lshr_b32 {sr(t1)}, {sr(t1)}, 5")
    e(f"s_mul_i32 {sr(t6)}, {sr(t1)}, 3")
    e(f"s_sub_u32 {sr(t7)}, {sr(t7)}, {sr(t6)}")
    e(f"s_add_u32 {sr(sKS)}, {sr(t7)}, 4")
    e(f"s_and_b32 {sr(t0)}, {sr(sHD)}, 2")
    e(f"s_and_b32 {sr(t6)}, {sr(t1)}, 2")
    e(f"s_lshl_b32 {sr(t6)}, {sr(t6)}, 1")
    e(f"s_or_b32 {sr(sHD)}, {sr(t6)}, {sr(t0)}")
    e(f"s_and_b32 {sr(t1)}, {sr(t1)}, 1")
    e(f"s_lshl_b32 {sr(t1)}, {sr(t1)}, 2")
    e(f"s_lshr_b32 {sr(sX_)}, {sr(sX_)}, 1")
    if opt.spread:
        e(f"s_add_u32 {sr(sX_)}, {sr(sX_)}, {sr(t7)}")
        e(f"s_and_b32 {sr(sX_)}, {sr(sX_)}, 3")
    e(f"s_add_u32 {sr(sX_)}, {sr(sX_)}, {sr(t1)}")
    e("s_waitcnt lgkmcnt(0)")
    e(f"global_load_dword {vr(vKY)}, {vr(vT+7)}, {sr(sCTX,2)}")
    setup_srd()
    e(f"s_lshl_b32 {sr(t0)}, {sr(t0)}, 3")
    e(f"s_lshr_b32 {sr(t4)}, 0x{FPACK:08x}, {sr(t0)}")
    e(f"s_bfe_u32 {sr(t5)}, {sr(t4)}, 0x80008")
    e(f"s_and_b32 {sr(t4)}, {sr(t4)}, 0xff")
    e(f"s_cmp_lt_u32 {sr(t5)}, {sr(t4)}")
    e(f"s_cselect_b32 {sr(sS0)}, 1, 0")
    e(f"s_max_u32 {sr(sEND)}, {sr(t4)}, {sr(t5)}")
    e(f"s_min_u32 {sr(t5)}, {sr(t4)}, {sr(t5)}")
    c("x = j + 3*(w + 4*lane)")
    e(f"v_lshl_add_u32 {vr(vT+5)}, {vr(vL)}, 2, {sr(sW)}")
    e(f"v_mul_u32_u24 {vr(vT+5)}, 3, {vr(vT+5)}")
    e(f"v_add_u32 {vr(vT+5)}, {sr(t7)}, {vr(vT+5)}")
    e(f"s_sub_u32 {sr(t1)}, 15, {sr(sX_)}")
    e(f"s_lshl_b32 {sr(t0)}, {sr(sX_)}, 3")
    e(f"s_lshl_b32 {sr(t1)}, {sr(t1)}, 19")
    e(f"s_or_b32 {sr(t0)}, {sr(t0)}, {sr(t1)}")
    e(f"s_mul_i32 {sr(t0)}, {sr(t0)}, 0x101")
    e(f"s_mul_i32 {sr(t1)}, {sr(sHD)}, 0x01010101")
    e(f"s_add_u32 {sr(sPHP)}, {sr(t0)}, {sr(t1)}")
    e(f"s_add_u32 {sr(sPHP)}, {sr(sPHP)}, 0x01000100")
    e(f"s_cmp_eq_u32 {sr(sW)}, 0")
    e("s_cbranch_scc0 L_mx_noclear")
    clear_body()
    e("s_waitcnt vmcnt(9)")
    e("s_branch L_mx_ctx")
    lab("L_mx_noclear")
    e("s_waitcnt vmcnt(0)")
    lab("L_mx_ctx")
    ranks()
    e(f"s_sub_u32 {sr(t1)}, 15, {sr(sX_)}")
    e(f"v_cmp_eq_u32 {sr(sCM,2)}, {sr(sX_)}, {vr(vX3)}")
    e(f"v_cmp_eq_u32 {sr(sCM+2,2)}, {sr(t1)}, {vr(vX3)}")
    e(f"s_ff1_i32_b32 {sr(t0)}, {sr(sCM)}")
    e(f"s_ff1_i32_b32 {sr(t1)}, {sr(sCM+2)}")
    e(f"v_readlane_b32 {sr(t2)}, {vr(vKY)}, {sr(t0)}")
    e(f"v_readlane_b32 {sr(t3)}, {vr(vKY)}, {sr(t1)}")
    e(f"s_lshl_b32 {sr(t0)}, {sr(t0)}, 3")
    e(f"s_lshl_b32 {sr(t1)}, {sr(t1)}, 19")
    e(f"s_or_b32 {sr(t0)}, {sr(t0)}, {sr(t1)}")
    e(f"s_mul_i32 {sr(t0)}, {sr(t0)}, 0x101")
    e(f"s_mul_i32 {sr(t6)}, {sr(sHD)}, 0x01010101")
    e(f"s_add_u32 {sr(sBHP)}, {sr(t0)}, {sr(t6)}")
    e(f"s_add_u32 {sr(sBHP)}, {sr(sBHP)}, 0x01000100")
    e(f"s_lshr_b32 {sr(t2)}, {sr(t2)}, 4")
    e(f"s_lshr_b32 {sr(t3)}, {sr(t3)}, 4")
    c("segments: [long both heads][long extra][short both heads][short extra], steps descending")
    P = sCM + 8
    TOP = sCM + 12
    e(f"s_sub_i32 {sr(t0)}, {sr(t3)}, {sr(sEND)}")
    e(f"s_max_i32 {sr(t0)}, {sr(t0)}, 0")
    e(f"s_lshl_b32 {sr(P)}, {sr(t0)}, 1")
    e(f"s_min_u32 {sr(TOP)}, {sr(t3)}, {sr(sEND)}")
    e(f"s_sub_i32 {sr(t0)}, {sr(TOP)}, {sr(t5)}")
    e(f"s_max_i32 {sr(t0)}, {sr(t0)}, 0")
    e(f"s_add_u32 {sr(P+1)}, {sr(P)}, {sr(t0)}")
    e(f"s_sub_i32 {sr(t0)}, {sr(t2)}, {sr(sEND)}")
    e(f"s_max_i32 {sr(t0)}, {sr(t0)}, 0")
    e(f"s_lshl_b32 {sr(t0)}, {sr(t0)}, 1")
    e(f"s_add_u32 {sr(P+2)}, {sr(P+1)}, {sr(t0)}")
    e(f"s_mov_b32 {sr(TOP+1)}, {sr(t2)}")
    e(f"s_min_u32 {sr(TOP+2)}, {sr(t2)}, {sr(sEND)}")
    e(f"s_sub_i32 {sr(t0)}, {sr(TOP+2)}, {sr(t5)}")
    e(f"s_max_i32 {sr(t0)}, {sr(t0)}, 0")
    e(f"s_add_u32 {sr(P+3)}, {sr(P+2)}, {sr(t0)}")
    for i in range(3):
        e(f"v_cmp_ge_u32 {sr(sCM+2*i,2)}, {vr(vT+5)}, {sr(P+i)}")
    e(f"v_cmp_gt_u32 {sr(sCM+6,2)}, {sr(P+3)}, {vr(vT+5)}")
    e(f"v_mov_b32 {vr(vX0)}, {sr(t3)}")
    e(f"v_mov_b32 {vr(vX2)}, 0")
    for i in range(3):
        e(f"v_mov_b32 {vr(vT+i)}, {sr(P+i)}")
        e(f"v_mov_b32 {vr(vT+11+i)}, {sr(TOP+i)}")
    for i in range(3):
        e(f"v_cndmask_b32 {vr(vX2)}, {vr(vX2)}, {vr(vT+i)}, {sr(sCM+2*i,2)}")
        e(f"v_cndmask_b32 {vr(vX0)}, {vr(vX0)}, {vr(vT+11+i)}, {sr(sCM+2*i,2)}")
    e(f"s_xor_b64 vcc, {sr(sCM,2)}, {sr(sCM+2,2)}")
    e(f"s_xor_b64 vcc, vcc, {sr(sCM+4,2)}")
    e(f"v_sub_u32 {vr(vX2)}, {vr(vT+5)}, {vr(vX2)}")
    e(f"v_lshrrev_b32 {vr(vT)}, 1, {vr(vX2)}")
    e(f"v_and_b32 {vr(vX1)}, 1, {vr(vX2)}")
    e(f"v_mov_b32 {vr(vT+1)}, {sr(sS0)}")
    e(f"v_cndmask_b32 {vr(vT)}, {vr(vT)}, {vr(vX2)}, vcc")
    e(f"v_cndmask_b32 {vr(vX1)}, {vr(vX1)}, {vr(vT+1)}, vcc")
    e(f"v_sub_u32 {vr(vX0)}, {vr(vX0)}, {vr(vT)}")
    e(f"v_add_u32 {vr(vX0)}, -1, {vr(vX0)}")
    e(f"v_cndmask_b32 {vr(vT+1)}, 2, 0, {sr(sCM+2,2)}")
    e(f"v_add_u32 {vr(vX1)}, {vr(vX1)}, {vr(vT+1)}")
    e(f"v_lshlrev_b32 {vr(vX3)}, 3, {vr(vX1)}")
    e(f"v_bfe_u32 {vr(vX3)}, {sr(sBHP)}, {vr(vX3)}, 8")
    list_addr_bh()
    list_load()
    col_addr()
    col_load()
    c("a wave without items runs one item with no active column")
    e(f"s_bcnt1_i32_b64 {sr(sREM)}, {sr(sCM+6,2)}")
    e(f"s_cselect_b64 {sr(mIT,2)}, {sr(mSL,2)}, 0")
    e(f"s_max_u32 {sr(sREM)}, {sr(sREM)}, 1")
    if opt.spec:
        predict()
    else:
        e("s_waitcnt vmcnt(5)")
    e("s_branch L_go")

    lab("L_sh_pro")
    c("======== shared-prefix workgroup (h, part=idx): steps 16*idx..+15, wave w owns rows 4w..4w+3")
    e(f"s_mov_b32 {sr(sROLE)}, 2")
    e(f"s_mov_b32 {sr(sKS)}, {sr(sIDX)}")
    e(f"s_lshl_b32 {sr(sS0)}, {sr(sIDX)}, 4")
    e(f"s_lshl_b32 {sr(t1)}, {sr(sW)}, 5")
    e(f"s_or_b32 {sr(t1)}, {sr(t1)}, {sr(sHD)}")
    e(f"s_mul_i32 {sr(sBHP)}, {sr(t1)}, 0x01010101")
    e(f"s_add_u32 {sr(sBHP)}, {sr(sBHP)}, 0x18100800")
    e(f"s_mov_b32 {sr(sPHP)}, {sr(sBHP)}")
    e(f"s_lshl_b32 {sr(sH8)}, {sr(sHD)}, 8")
    c("entries: lane (g,row=c) loads 4 steps: row*1024 + (s0+4g)*8")
    e(f"s_lshl_b32 {sr(t2)}, {sr(sS0)}, 3")
    e(f"v_lshl_add_u32 {vr(vT+3)}, {vr(vC)}, 10, {sr(t2)}")
    e(f"v_lshl_add_u32 {vr(vT+3)}, {vr(vG)}, 5, {vr(vT+3)}")
    e(f"s_and_b32 {sr(t1)}, {sr(sW)}, 1")
    e(f"s_lshl_b32 {sr(t2)}, {sr(sS0)}, 1")
    e(f"s_add_u32 {sr(t1)}, {sr(t1)}, {sr(t2)}")
    e(f"v_lshl_add_u32 {vr(vE)}, {vr(vG)}, 3, {sr(t1)}")
    col_addr()
    e("s_waitcnt lgkmcnt(0)")
    e(f"global_load_dwordx4 {vr(vU,4)}, {vr(vT+3)}, {sr(sBT,2)}")
    e(f"global_load_dwordx4 {vr(vU+4,4)}, {vr(vT+3)}, {sr(sBT,2)} offset:16")
    col_load()
    setup_srd()
    c("waves 2,3 load V: take over the K descriptor/offset registers")
    e(f"s_cmp_lt_u32 {sr(sW)}, 2")
    e("s_cbranch_scc1 L_sh_k")
    e(f"s_mov_b32 {sr(srdK)}, {sr(srdV)}")
    e(f"s_mov_b32 {sr(srdK+1)}, {sr(srdV+1)}")
    for n in range(4):
        e(f"v_mov_b32 {vr(vKO+n)}, {vr(vVO+n)}")
    lab("L_sh_k")
    clear_body()
    def sh_issue():
        la = g.newlab()
        e(f"s_and_b32 {sr(t1)}, {sr(sZI)}, 63")
        e(f"v_readlane_b32 {sr(t0)}, {vr(vE)}, {sr(t1)}")
        e(f"s_mov_b32 m0, {sr(sSL)}")
        e(f"s_add_u32 {sr(sSL)}, {sr(sSL)}, 0x4000")
        e(f"s_and_b32 {sr(sSL)}, {sr(sSL)}, 0xffff")
        e(f"s_lshl_b32 {sr(t0)}, {sr(t0)}, 15")
        e(f"s_or_b32 {sr(sB0)}, {sr(t0)}, {sr(sH8)}")
        dma4(vKO, srdK, sB0)
        e(f"s_add_u32 {sr(sZI)}, {sr(sZI)}, {sr(sSTR)}")
        e(f"s_and_b32 {sr(t1)}, {sr(sZI)}, 63")
        e(f"s_cbranch_scc1 {la}")
        for q in range(3):
            e(f"v_mov_b32 {vr(vE+q)}, {vr(vE+q+1)}")
        lab(la)
    e(f"s_mov_b32 {sr(sZI)}, 0")
    e(f"s_mov_b32 {sr(sZC)}, 0")
    e(f"s_lshl_b32 {sr(sSL)}, {sr(sW)}, 12")
    e(f"s_cmp_eq_u32 {sr(sW)}, 0")
    e(f"s_cselect_b32 {sr(sONCE)}, 0, -1")
    def sh_check():
        e(f"s_bitcmp1_b32 {sr(sW)}, 0")
        e(f"s_cselect_b64 vcc, -1, 0")
        for q in range(4):
            e(f"v_cndmask_b32 {vr(vE+q)}, {vr(vU+2*q)}, {vr(vU+2*q+1)}, vcc")
        for i in range(8):
            e(f"v_xor_b32_dpp {vr(vU+8+i)}, {vr(vU+i)}, {vr(vU+i)} row_newbcast:0 row_mask:0xf bank_mask:0xf")
        e(f"v_or3_b32 {vr(vU+8)}, {vr(vU+8)}, {vr(vU+9)}, {vr(vU+10)}")
        e(f"v_or3_b32 {vr(vU+11)}, {vr(vU+11)}, {vr(vU+12)}, {vr(vU+13)}")
        e(f"v_or3_b32 {vr(vU+8)}, {vr(vU+8)}, {vr(vU+14)}, {vr(vU+15)}")
        e(f"v_or_b32 {vr(vU+8)}, {vr(vU+8)}, {vr(vU+11)}")
        e(f"v_cmp_ne_u32 vcc, 0, {vr(vU+8)}")
        e(f"s_cmp_eq_u64 vcc, 0")
        e(f"s_cselect_b32 {sr(sSTR)}, 16, 1")
    if opt.spec:
        c("guess: all rows share block = column (checked below)")
        e(f"s_mov_b32 {sr(sSTR)}, 16")
        stamp(1)
        for i in range(3):
            sh_issue()
        e("s_branch L_init")
        lab("L_sh_verify")
        e(f"v_mov_b32 {vr(vKY)}, {vr(vE)}")
        sh_check()
        e(f"v_cmp_ne_u32 {sr(sCM,2)}, {vr(vKY)}, {vr(vE)}")
        e(f"s_or_b64 vcc, vcc, {sr(sCM,2)}")
        e("s_cbranch_scc0 L_sh_loop")
        e("s_waitcnt vmcnt(0)")
        e(f"s_mov_b32 {sr(sZI)}, 0")
        e(f"s_lshl_b32 {sr(sSL)}, {sr(sW)}, 12")
        for i in range(3):
            sh_issue()
    else:
        e("s_waitcnt vmcnt(14)")
        sh_check()
        e("s_barrier")
        stamp(1)
        for i in range(3):
            sh_issue()
        e("s_branch L_init")
        lab("L_sh_verify")

    lab("L_sh_loop")
    e(f"s_lshl_b32 {sr(t0)}, {sr(sSTR)}, 1")
    e(f"s_add_u32 {sr(t0)}, {sr(t0)}, {sr(sZC)}")
    e(f"s_cmp_lt_u32 {sr(t0)}, 256")
    e("s_waitcnt vmcnt(8)")
    e("s_cbranch_scc1 L_sh_w")
    e(f"s_cmp_eq_u32 {sr(t0)}, 256")
    e("s_waitcnt vmcnt(4)")
    e("s_cbranch_scc1 L_sh_w")
    e("s_waitcnt vmcnt(0)")
    lab("L_sh_w")
    e("s_barrier")
    e(f"s_cmp_lt_u32 {sr(sZI)}, 256")
    e("s_cbranch_scc0 L_sh_noiss")
    sh_issue()
    lab("L_sh_noiss")
    e(f"s_cmp_eq_u32 {sr(sONCE)}, {sr(sIT)}")
    e("s_cbranch_scc0 L_sh_nosig")
    signal()
    lab("L_sh_nosig")
    c("step = s0 + 4*((z>>4)&3) + (z>>6), row = z&15")
    e(f"s_bfe_u32 {sr(t0)}, {sr(sZC)}, 0x20004")
    e(f"s_lshl_b32 {sr(t0)}, {sr(t0)}, 2")
    e(f"s_lshr_b32 {sr(t1)}, {sr(sZC)}, 6")
    e(f"s_add_u32 {sr(t0)}, {sr(t0)}, {sr(t1)}")
    e(f"s_add_u32 {sr(t0)}, {sr(t0)}, {sr(sS0)}")
    e(f"s_lshl_b32 {sr(sPOS)}, {sr(t0)}, 5")
    e(f"s_mov_b64 {sr(sMK,2)}, -1")
    e(f"s_cmp_eq_u32 {sr(sSTR)}, 16")
    e("s_cbranch_scc1 L_sh_go")
    e(f"s_and_b32 {sr(t0)}, {sr(sZC)}, 3")
    e(f"s_lshl_b32 {sr(t0)}, {sr(t0)}, 2")
    e(f"s_lshl_b64 {sr(sMK,2)}, {sr(mSL,2)}, {sr(t0)}")
    e(f"s_bfe_u32 {sr(t0)}, {sr(sZC)}, 0x20002")
    e(f"s_cmp_eq_u32 {sr(t0)}, {sr(sW)}")
    e("s_cbranch_scc0 L_sh_next")
    lab("L_sh_go")
    probe("cons", 0)
    kreads()
    masks()
    qk()
    e("s_nop 3")
    vreads()
    softmax_a()
    rescale()
    e("s_waitcnt lgkmcnt(0)")
    for ee in range(8):
        pv(ee)
    probe("cons", 1)
    lab("L_sh_next")
    c("advance the fragment addresses to the next ring slot")
    e(f"s_add_u32 {sr(sIT)}, {sr(sIT)}, 1")
    e(f"s_bitcmp1_b32 {sr(sIT)}, 0")
    e(f"s_cselect_b32 {sr(t0)}, 1, 3")
    e(f"s_lshl_b32 {sr(t0)}, {sr(t0)}, 14")
    for i in range(12):
        e(f"v_xor_b32 {vr(vKA+i)}, {sr(t0)}, {vr(vKA+i)}")
    e(f"s_add_u32 {sr(sZC)}, {sr(sZC)}, {sr(sSTR)}")
    e(f"s_cmp_lt_u32 {sr(sZC)}, 256")
    e("s_cbranch_scc1 L_sh_loop")
    stamp(2)
    c("publish this wave's 16 columns (transpose through its own LDS region)")
    lsum()
    part_addr(vC, None, vWS_, vA1)
    e(f"v_min_u32 {vr(vM)}, -2, {vr(vM)}")
    e(f"v_min_u32 {vr(vLs)}, -2, {vr(vLs)}")
    for i in range(32):
        e(f"v_min_u32 {vr(vO+i)}, -2, {vr(vO+i)}")
    e("s_barrier")
    for ee in range(8):
        e(f"ds_write_b128 {vr(vLWa)}, {vr(vO+4*ee,4)} offset:{64*ee}")
    e(f"v_mul_u32_u24 {vr(vA2)}, {CSTR}, {vr(vG)}")
    e(f"v_lshl_add_u32 {vr(vA2)}, {vr(vC)}, 4, {vr(vA2)}")
    e(f"v_add_u32 {vr(vA2)}, {sr(sLB)}, {vr(vA2)}")
    e(f"v_lshlrev_b32 {vr(vCC)}, 12, {vr(vG)}")
    e(f"v_lshl_add_u32 {vr(vCC)}, {vr(vC)}, 4, {vr(vCC)}")
    e(f"s_lshl_b32 {sr(t6)}, {sr(sKS)}, 9")
    e("s_waitcnt lgkmcnt(0)")
    for i in range(4):
        for q in range(2):
            e(f"ds_read_b128 {vr(vOq+8*i+4*q,4)}, {vr(vA2)} offset:{4*CSTR*i+256*q}")
    e("s_mov_b64 exec, 0xffff")
    e(f"global_store_dwordx2 {vr(vWS_)}, {vr(vM,2)}, {sr(sWS,2)} sc1")
    e("s_mov_b64 exec, -1")
    for i in range(4):
        slot_base(i, vSt+i, vCC)
        e(f"s_waitcnt lgkmcnt({6-2*i})")
        e(f"global_store_dwordx4 {vr(vSt+i)}, {vr(vOq+8*i,4)}, {sr(sWS,2)} sc1")
        e(f"global_store_dwordx4 {vr(vSt+i)}, {vr(vOq+8*i+4,4)}, {sr(sWS,2)} offset:256 sc1")

    lab("L_done")
    if opt.stamps:
        e("s_waitcnt vmcnt(0)")
        stamp(3)
        e(f"s_getreg_b32 {sr(t5)}, hwreg(HW_REG_XCC_ID)")
        e(f"s_getreg_b32 {sr(t6)}, hwreg(HW_REG_HW_ID)")
        e("s_waitcnt lgkmcnt(0)")
        e(f"s_lshl_b32 {sr(t3)}, s2, 2")
        e(f"s_add_u32 {sr(t3)}, {sr(t3)}, {sr(sW)}")
        e(f"s_lshl_b32 {sr(t3)}, {sr(t3)}, 6")
        e(f"s_add_u32 {sr(t3)}, {sr(t3)}, {STAMPS}")
        e(f"s_sub_u32 {sr(sIT)}, {sr(sIT)}, 1")
        e(f"v_mov_b32 v4, {sr(t3)}")
        for i in range(8):
            e(f"v_mov_b32 v{8+i}, {sr(sST+i)}")
        e(f"v_mov_b32 v16, {sr(t5)}")
        e(f"v_mov_b32 v17, {sr(t6)}")
        for i in range(4):
            e(f"v_mov_b32 v{18+i}, {sr(sST+8+i)}")
        e(f"v_mov_b32 v22, {sr(sBHP)}")
        e(f"v_mov_b32 v23, {sr(sIT)}")
        e("s_mov_b64 exec, 1")
        e(f"global_store_dwordx4 v4, v[8:11], {sr(sWS,2)}")
        e(f"global_store_dwordx4 v4, v[12:15], {sr(sWS,2)} offset:16")
        e(f"global_store_dwordx4 v4, v[16:19], {sr(sWS,2)} offset:32")
        e(f"global_store_dwordx4 v4, v[20:23], {sr(sWS,2)} offset:48")
    if opt.amp:
        p = [int(x) for x in opt.amp.split(",")]
        a, b = p[0], p[1]
        if len(p) > 2:
            e(f"s_cmp_eq_u32 s2, {p[2]}")
            e("s_cbranch_scc0 L_end")
            e(f"s_cmp_eq_u32 {sr(sW)}, {p[3]}")
            e("s_cbranch_scc0 L_end")
        e(f"s_sub_u32 {sr(t0)}, {sr(sST+2*b)}, {sr(sST+2*a)}")
        e(f"s_lshl_b32 {sr(t0)}, {sr(t0)}, {5 if len(p)>2 else 3}")
        e(f"s_min_u32 {sr(t0)}, {sr(t0)}, 100000")
        lab("L_amp")
        e(f"s_memrealtime {sr(t2,2)}")
        e("s_waitcnt lgkmcnt(0)")
        e(f"s_sub_u32 {sr(t1)}, {sr(t2)}, {sr(sST+6)}")
        e(f"s_cmp_lt_u32 {sr(t1)}, {sr(t0)}")
        e("s_cbranch_scc1 L_amp")
    lab("L_end")
    e("s_endpgm")

    out = HEADER
    out += f"; @launch grid=(256,1,1) block=({NW*64},1,1) lds={LDS}\n"
    out += '.amdgcn_target "amdgcn-amd-amdhsa--gfx950"\n.text\n'
    out += f".globl {NAME}_kernel\n.p2align 8\n.type {NAME}_kernel,@function\n{NAME}_kernel:\n"
    out += "\n".join(g.lines) + "\n"
    out += f""".section .rodata,"a"
.p2align 6
.amdhsa_kernel {NAME}_kernel
  .amdhsa_next_free_vgpr {NV}
  .amdhsa_next_free_sgpr 102
  .amdhsa_accum_offset {NV}
  .amdhsa_group_segment_fixed_size 0
  .amdhsa_kernarg_size 64
  .amdhsa_user_sgpr_count 2
  .amdhsa_user_sgpr_kernarg_segment_ptr 1
  .amdhsa_system_sgpr_workgroup_id_x 1
.end_amdhsa_kernel
"""
    return out

if __name__ == "__main__":
    ap = argparse.ArgumentParser()
    ap.add_argument("-o", default=f"cdna_kernels/{NAME}.s")
    ap.add_argument("--F", default="35,27,32,32")
    ap.add_argument("--spec", type=int, default=1)
    ap.add_argument("--spread", type=int, default=1)
    ap.add_argument("--rsleep", type=int, default=2)
    ap.add_argument("--lds", type=int, default=0)
    ap.add_argument("--pol", default="nt")
    ap.add_argument("--pol_out", default="")
    ap.add_argument("--stamps", action="store_true")
    ap.add_argument("--nobar", action="store_true")
    ap.add_argument("--amp", default="")
    ap.add_argument("--mid", type=int, default=1)
    ap.add_argument("--probe", default="first")
    ap.add_argument("--clk", default="s_memrealtime")
    opt = ap.parse_args()
    for k in ("pol", "pol_out"):
        v = getattr(opt, k)
        setattr(opt, k, (" " + v.replace("+", " ")) if v else "")
    open(opt.o, "w").write(build(opt))
```

```python
import sys, struct, argparse

NAME = "standalone__paged_block_table_kv_radixattention__sampling"

HEADER = """; Kernarg layout for this problem (64 bytes, ptrs only, base s[0:1]):
"""

def f2u(x):
    return struct.unpack("<I", struct.pack("<f", x))[0]

class Gen:
    def __init__(self, opt):
        self.o = opt
        self.lines = []
        self.nlab = 0
    def e(self, s):
        self.lines.append("    " + s)
    def c(self, s):
        self.lines.append("    ; " + s)
    def lab(self, name):
        self.lines.append(name + ":")
    def newlab(self, p="L"):
        self.nlab += 1
        return f"{p}_{self.nlab}"

def vr(b, n=1):
    return f"v{b}" if n == 1 else f"v[{b}:{b+n-1}]"
def sr(b, n=1):
    return f"s{b}" if n == 1 else f"s[{b}:{b+n-1}]"

def build(opt):
    g = Gen(opt)
    e, c, lab = g.e, g.c, g.lab
    NW = 4
    Fc = [int(x) for x in opt.F.split(",")]
    FPACK = sum((64 + Fc[i]) << (8*i) for i in range(4))
    KVB = 2176 * 32768
    CSTR = 528
    WSTR = 16384
    STAT = 16 * CSTR
    LDS = max(65536, opt.lds)
    pol = opt.pol
    WSTAT = 0x200000
    STAMPS = 0x300000
    NG = 7
    NSIG = 128
    NL = 18
    sQ, sK, sV, sBT, sCTX, sOUT, sDBG, sWS = 4, 6, 8, 10, 12, 14, 16, 18
    srdK, srdV = 20, 24
    sBHP, sKS, sX_, sIDX = 28, 29, 30, 31
    sW, sHD, sS0, sSTR, sROLE = 32, 33, 34, 35, 36
    sIT, sREM, sLB = 37, 38, 39
    sCS, sONCE, sZI, sZC = 40, 41, 42, 43
    mSL = 44
    sB0, sB1, sPOS, sH8 = 46, 47, 48, 49
    sMK = 50
    sSL, sEND = 52, 53
    mIT = 54
    sFAST = 56
    sGL, sMW, sPHP = 61, 62, 60
    sCM = 66
    t0, t1, t2, t3, t4, t5, t6, t7 = 82, 83, 84, 85, 86, 87, 88, 89
    sST = 90
    vL, vG, vC = 1, 2, 3
    vKO, vVO = 4, 8
    vQ = 12
    vO = 28
    vM, vLs, vCG = 60, 61, 62
    vMETA = 63
    vTB = 64
    vFM, vFI = 66, 67
    vS = 68
    vP = 76
    vF = 80
    vT = vF
    vLIM, vFILL, vMX, vAL, vX0, vX1, vX2, vX3 = 112, 113, 114, 115, 116, 117, 118, 119
    vKA, vVA = 120, 124
    vCNT, vZ = 132, 133
    vE = 134
    vKY = 138
    vU = 140
    vGs, vGo = 140, 156
    vWO, vWS_, vOA, vLWa, vLWs, vA1, vA2, vCC = 220, 221, 222, 223, 224, 225, 226, 227
    vWO2, vWS2 = 228, 229
    NV = 232

    def stamp(i):
        if opt.stamps:
            e(f"s_memrealtime {sr(sST+2*i,2)}")
    def probe(name, which):
        if opt.stamps and opt.probe == name:
            e(f"{opt.clk} {sr(sST+8+2*which,2)}")
            e("s_waitcnt lgkmcnt(0)")

    def list_addr_bh():
        c("vX0=step vX1=slot vX3=b*8+h -> vX3 table offset, vMETA")
        e(f"v_med3_i32 {vr(vX0)}, {vr(vX0)}, 0, {vr(vT+6)}")
        e(f"v_lshlrev_b32 {vr(vMETA)}, 5, {vr(vX0)}")
        e(f"v_lshl_add_u32 {vr(vMETA)}, {vr(vX1)}, 18, {vr(vMETA)}")
        e(f"v_lshl_add_u32 {vr(vMETA)}, {vr(vX3)}, 29, {vr(vMETA)}")
        e(f"v_lshrrev_b32 {vr(vX3)}, 3, {vr(vX3)}")
        e(f"v_lshlrev_b32 {vr(vX3)}, 10, {vr(vX3)}")
        e(f"v_lshl_add_u32 {vr(vX3)}, {vr(vX0)}, 3, {vr(vX3)}")
    def list_load():
        e(f"global_load_dwordx2 {vr(vTB,2)}, {vr(vX3)}, {sr(sBT,2)}")
    def predict():
        c("guess for the first item (checked against the table below): block = 128*row + column")
        e(f"v_readfirstlane_b32 {sr(t0)}, {vr(vX3)}")
        e(f"v_readfirstlane_b32 {sr(t2)}, {vr(vMETA)}")
        e(f"s_lshr_b32 {sr(t1)}, {sr(t0)}, 10")
        e(f"s_lshl_b32 {sr(t1)}, {sr(t1)}, 22")
        e(f"s_and_b32 {sr(t0)}, {sr(t0)}, 0x3ff")
        e(f"s_lshl_b32 {sr(t0)}, {sr(t0)}, 13")
        e(f"s_add_u32 {sr(t0)}, {sr(t0)}, {sr(t1)}")
        e(f"s_lshr_b32 {sr(t2)}, {sr(t2)}, 29")
        e(f"s_lshl_b32 {sr(t2)}, {sr(t2)}, 8")
        e(f"s_or_b32 {sr(sB0)}, {sr(t0)}, {sr(t2)}")
        e(f"s_add_u32 {sr(sB1)}, {sr(sB0)}, 0x8000")
    vQO, vCO = vT + 8, vT + 9
    def col_addr():
        c("per-lane column: Q offset and ctx offset")
        e(f"v_lshlrev_b32 {vr(vCO)}, 1, {vr(vC)}")
        e(f"v_and_b32 {vr(vCO)}, 24, {vr(vCO)}")
        e(f"v_bfe_u32 {vr(vCO)}, {sr(sBHP)}, {vr(vCO)}, 8")
        e(f"v_lshl_add_u32 {vr(vQO)}, {vr(vCO)}, 10, {vr(vT+10)}")
        e(f"v_lshrrev_b32 {vr(vCO)}, 1, {vr(vCO)}")
        e(f"v_and_b32 {vr(vCO)}, 60, {vr(vCO)}")
    def col_load():
        e(f"global_load_dword {vr(vCG)}, {vr(vCO)}, {sr(sCTX,2)}")
        for m in range(4):
            e(f"global_load_dwordx4 {vr(vQ+4*m,4)}, {vr(vQO)}, {sr(sQ,2)} offset:{64*m}")
    def part_addr(vcol, vo, vs, tmp):
        c("partial addresses for column vcol: row R=(b*8+h)*4+(col&3); O: R*4096 + k*512 ; stats: R*64 + k*8")
        e(f"v_lshlrev_b32 {vr(tmp)}, 1, {vr(vcol)}")
        e(f"v_and_b32 {vr(tmp)}, 24, {vr(tmp)}")
        e(f"v_bfe_u32 {vr(tmp)}, {sr(sPHP)}, {vr(tmp)}, 8")
        e(f"v_and_b32 {vr(vs)}, 3, {vr(vcol)}")
        e(f"v_lshl_add_u32 {vr(tmp)}, {vr(tmp)}, 2, {vr(vs)}")
        if vo is not None:
            e(f"s_lshl_b32 {sr(t3)}, {sr(sKS)}, 9")
            e(f"v_lshl_add_u32 {vr(vo)}, {vr(tmp)}, 12, {sr(t3)}")
        e(f"s_lshl_b32 {sr(t3)}, {sr(sKS)}, 3")
        e(f"s_add_u32 {sr(t3)}, {sr(t3)}, {WSTAT}")
        e(f"v_lshl_add_u32 {vr(vs)}, {vr(tmp)}, 6, {sr(t3)}")
    def slot_base(i, vdst, vlane):
        e(f"s_bfe_u32 {sr(t3)}, {sr(sPHP)}, 0x{0x80000+8*i:x}")
        e(f"s_lshl_b32 {sr(t3)}, {sr(t3)}, 14")
        e(f"s_add_u32 {sr(t3)}, {sr(t3)}, {sr(t6)}")
        e(f"v_add_u32 {vr(vdst)}, {sr(t3)}, {vr(vlane)}")
    def clear_body():
        c("clear the 16 partial columns with the canary")
        for i in range(4):
            e(f"v_mov_b32 {vr(vS+i)}, -1")
        part_addr(vC, None, vT+13, vT+14)
        e(f"global_store_dwordx2 {vr(vT+13)}, {vr(vS,2)}, {sr(sWS,2)} sc1")
        e(f"v_lshlrev_b32 {vr(vT+11)}, 12, {vr(vG)}")
        e(f"v_lshl_add_u32 {vr(vT+11)}, {vr(vC)}, 4, {vr(vT+11)}")
        e(f"s_lshl_b32 {sr(t6)}, {sr(sKS)}, 9")
        for i in range(4):
            slot_base(i, vT+12, vT+11)
            e(f"global_store_dwordx4 {vr(vT+12)}, {vr(vS,4)}, {sr(sWS,2)} sc1")
            e(f"global_store_dwordx4 {vr(vT+12)}, {vr(vS,4)}, {sr(sWS,2)} offset:256 sc1")
    def setup_v():
        c("DMA source offsets (XOR-swizzled)")
        e(f"v_xor_b32 {vr(vT+16)}, {vr(vC)}, {vr(vG)}")
        e(f"v_lshlrev_b32 {vr(vT+17)}, 11, {vr(vG)}")
        e(f"v_lshl_add_u32 {vr(vKO)}, {vr(vT+16)}, 4, {vr(vT+17)}")
        e(f"v_lshlrev_b32 {vr(vT+16)}, 1, {vr(vG)}")
        e(f"v_xor_b32 {vr(vT+16)}, {vr(vC)}, {vr(vT+16)}")
        e(f"v_lshl_add_u32 {vr(vVO)}, {vr(vT+16)}, 4, {vr(vT+17)}")
        for n in range(1, 4):
            e(f"v_xor_b32 {vr(vKO+n)}, {n<<6}, {vr(vKO)}")
            e(f"v_add_u32 {vr(vKO+n)}, {n*7168}, {vr(vKO+n)}")
        e(f"v_xor_b32 {vr(vVO+1)}, 128, {vr(vVO)}")
        e(f"v_add_u32 {vr(vVO+3)}, {3*7168}, {vr(vVO+1)}")
        e(f"v_add_u32 {vr(vVO+1)}, 7168, {vr(vVO+1)}")
        e(f"v_add_u32 {vr(vVO+2)}, {2*7168}, {vr(vVO)}")
        e(f"s_mov_b32 {sr(mSL)}, 0x000f000f")
        e(f"s_mov_b32 {sr(mSL+1)}, 0x000f000f")
        e(f"s_mov_b32 {sr(sIT)}, 0")
        e(f"s_lshl_b32 {sr(sLB)}, {sr(sW)}, 14")
        e(f"s_mov_b32 {sr(srdK+2)}, {KVB}")
        e(f"s_mov_b32 {sr(srdK+3)}, 0x20000")
        e(f"s_mov_b32 {sr(srdV+2)}, {KVB}")
        e(f"s_mov_b32 {sr(srdV+3)}, 0x20000")
    def setup_srd():
        e(f"s_mov_b32 {sr(srdK)}, {sr(sK)}")
        e(f"s_and_b32 {sr(srdK+1)}, {sr(sK+1)}, 0xffff")
        e(f"s_mov_b32 {sr(srdV)}, {sr(sV)}")
        e(f"s_and_b32 {sr(srdV+1)}, {sr(sV+1)}, 0xffff")
    def ranks():
        c("vKY: ctx of row c -> key = nsteps*16 + row ; vX3 = rank of the key")
        e(f"v_mov_b32 {vr(vX2)}, 0x1000")
        e(f"v_cmp_lt_i32 vcc, 0, {vr(vKY)}")
        e(f"v_min_i32 {vr(vKY)}, {vr(vKY)}, {vr(vX2)}")
        e(f"v_mov_b32 {vr(vX3)}, 0")
        e(f"v_cndmask_b32 {vr(vKY)}, {vr(vX2)}, {vr(vKY)}, vcc")
        e(f"v_add_u32 {vr(vKY)}, 31, {vr(vKY)}")
        e(f"v_lshrrev_b32 {vr(vKY)}, 5, {vr(vKY)}")
        e(f"v_lshl_add_u32 {vr(vKY)}, {vr(vKY)}, 4, {vr(vC)}")
        e("s_nop 1")
        for k in range(1, 16):
            e(f"v_sub_u32_dpp {vr(vT+(k&3))}, {vr(vKY)}, {vr(vKY)} row_ror:{k} row_mask:0xf bank_mask:0xf")
            e(f"v_lshrrev_b32 {vr(vT+(k&3))}, 31, {vr(vT+(k&3))}")
            e(f"v_add_u32 {vr(vX3)}, {vr(vX3)}, {vr(vT+(k&3))}")
    def gload():
        e(f"global_load_dwordx4 {vr(vGs+8,4)}, {vr(vWS2)}, {sr(sWS,2)} offset:32 sc1")
        e(f"global_load_dwordx2 {vr(vGs+12,2)}, {vr(vWS2)}, {sr(sWS,2)} offset:48 sc1")
        for k in (0, 2):
            e(f"global_load_dwordx4 {vr(vGs+2*k,4)}, {vr(vWS_)}, {sr(sWS,2)} offset:{8*k} sc1")
        for k in range(NG):
            for q in range(2):
                e(f"global_load_dwordx4 {vr(vGo+8*k+4*q,4)}, {vr(vWO if k < 4 else vWO2)}, {sr(sWS,2)} offset:{512*k+256*q} sc1")
    def lsum():
        c("reduce l over the 4 lane groups")
        e(f"v_mov_b32 {vr(vX0)}, {vr(vLs)}")
        e("s_nop 1")
        e(f"v_permlane32_swap_b32 {vr(vLs)}, {vr(vX0)}")
        e(f"v_add_f32 {vr(vLs)}, {vr(vLs)}, {vr(vX0)}")
        e(f"v_mov_b32 {vr(vX0)}, {vr(vLs)}")
        e("s_nop 1")
        e(f"v_permlane16_swap_b32 {vr(vLs)}, {vr(vX0)}")
        e(f"v_add_f32 {vr(vLs)}, {vr(vLs)}, {vr(vX0)}")
    def fetch():
        e(f"v_readlane_b32 {sr(t2)}, {vr(vMETA)}, {sr(sIT)}")
        e(f"v_readlane_b32 {sr(t0)}, {vr(vTB)}, {sr(sIT)}")
        e(f"v_readlane_b32 {sr(t1)}, {vr(vTB+1)}, {sr(sIT)}")
        e(f"s_lshr_b32 {sr(t4)}, {sr(t2)}, 29")
        e(f"s_lshl_b32 {sr(t4)}, {sr(t4)}, 8")
        e(f"s_lshl_b32 {sr(t0)}, {sr(t0)}, 15")
        e(f"s_lshl_b32 {sr(t1)}, {sr(t1)}, 15")
        e(f"s_or_b32 {sr(sB0)}, {sr(t0)}, {sr(t4)}")
        e(f"s_or_b32 {sr(sB1)}, {sr(t1)}, {sr(t4)}")
        e(f"s_add_u32 {sr(sIT)}, {sr(sIT)}, 1")
    def decode():
        e(f"s_and_b32 {sr(sPOS)}, {sr(t2)}, 0xffff")
        e(f"s_bfe_u32 {sr(t3)}, {sr(t2)}, 0x40010")
        e(f"s_lshl_b64 {sr(sMK,2)}, {sr(mIT,2)}, {sr(t3)}")
    def dma4(off, srd, soff):
        for n in range(4):
            o = f" offset:{1024*n}" if n else ""
            e(f"buffer_load_dwordx4 {vr(off+n)}, {sr(srd,4)}, {sr(soff)} offen{o}{pol} lds")
    def issue(kv):
        off = vVO if kv == "V" else vKO
        srd = srdV if kv == "V" else srdK
        base = 8192 if kv == "V" else 0
        if base:
            e(f"s_add_u32 m0, {sr(sLB)}, {base}")
        else:
            e(f"s_mov_b32 m0, {sr(sLB)}")
        e("s_nop 0")
        dma4(off, srd, sB0)
        e(f"s_add_u32 m0, {sr(sLB)}, {base+4096}")
        e("s_nop 0")
        dma4(off, srd, sB1)
    def signal():
        e(f"v_mov_b32 {vr(vCNT)}, 1")
        e("s_mov_b64 exec, 1")
        e(f"global_atomic_add {vr(vZ)}, {vr(vCNT)}, {sr(sDBG,2)}")
        e("s_mov_b64 exec, -1")

    e("s_cmp_ge_u32 s2, 256")
    e("s_cbranch_scc1 L_end")
    e(f"s_load_dwordx16 s[4:19], s[0:1], 0")
    stamp(0)
    e(f"v_and_b32 {vr(vL)}, 63, v0")
    e(f"v_lshrrev_b32 {vr(vX0)}, 6, v0")
    e(f"s_lshr_b32 {sr(sIDX)}, s2, 3")
    e(f"v_readfirstlane_b32 {sr(sW)}, {vr(vX0)}")
    e(f"s_and_b32 {sr(sX_)}, s2, 7")
    e(f"v_lshrrev_b32 {vr(vG)}, 4, {vr(vL)}")
    e(f"v_and_b32 {vr(vC)}, 15, {vr(vL)}")
    e(f"v_and_b32 {vr(vX2)}, 3, {vr(vL)}")
    e(f"v_lshlrev_b32 {vr(vT+10)}, 4, {vr(vG)}")
    e(f"v_lshl_add_u32 {vr(vT+10)}, {vr(vX2)}, 8, {vr(vT+10)}")
    e(f"v_lshlrev_b32 {vr(vT+7)}, 2, {vr(vC)}")
    e(f"v_mov_b32 {vr(vT+6)}, 127")
    c("head: bit1 = id&1, bits 0/2 rotate with idx")
    e(f"s_lshr_b32 {sr(t0)}, {sr(sX_)}, 1")
    e(f"s_add_u32 {sr(t0)}, {sr(t0)}, {sr(sIDX)}")
    e(f"s_and_b32 {sr(t1)}, {sr(t0)}, 2")
    e(f"s_and_b32 {sr(t0)}, {sr(t0)}, 1")
    e(f"s_and_b32 {sr(t2)}, s2, 1")
    e(f"s_or_b32 {sr(t1)}, {sr(t1)}, {sr(t2)}")
    e(f"s_lshl_b32 {sr(t1)}, {sr(t1)}, 1")
    e(f"s_or_b32 {sr(sHD)}, {sr(t0)}, {sr(t1)}")
    setup_v()
    e(f"s_cmp_lt_u32 {sr(sIDX)}, 16")
    e("s_cbranch_scc1 L_helper")
    c("======== finisher (b, h): steps 64+w+4*lane")
    e(f"s_mov_b32 {sr(sROLE)}, 1")
    e(f"s_and_b32 {sr(t1)}, s2, 0x78")
    e(f"s_or_b32 {sr(t1)}, {sr(t1)}, {sr(sHD)}")
    e(f"s_mul_i32 {sr(sBHP)}, {sr(t1)}, 0x01010101")
    e(f"s_mov_b32 {sr(sPHP)}, {sr(sBHP)}")
    e(f"s_add_u32 {sr(t2)}, {sr(sW)}, 64")
    e(f"v_lshl_add_u32 {vr(vX0)}, {vr(vL)}, 2, {sr(t2)}")
    e(f"v_mov_b32 {vr(vX1)}, 0")
    e(f"v_mov_b32 {vr(vX3)}, {sr(t1)}")
    list_addr_bh()
    col_addr()
    e(f"s_and_b32 {sr(t0)}, {sr(sHD)}, 3")
    e(f"s_lshl_b32 {sr(t0)}, {sr(t0)}, 3")
    e(f"s_lshr_b32 {sr(sEND)}, 0x{FPACK:08x}, {sr(t0)}")
    e(f"s_and_b32 {sr(sEND)}, {sr(sEND)}, 0xff")
    e(f"s_mov_b32 {sr(sKS)}, 0")
    e(f"s_mov_b64 {sr(mIT,2)}, -1")
    if opt.spec:
        predict()
    e("s_waitcnt lgkmcnt(0)")
    list_load()
    e(f"global_load_dword {vr(vKY)}, {vr(vT+7)}, {sr(sCTX,2)}")
    col_load()
    setup_srd()
    if not opt.spec:
        e("s_waitcnt vmcnt(6)")

    lab("L_go")
    if not opt.spec:
        e("s_barrier")
        fetch()
        decode()
    stamp(1)
    issue("K"); issue("V")
    lab("L_init")
    if opt.amp2:
        e(f"s_or_b32 {sr(t0)}, s2, {sr(sW)}")
        e("s_cbranch_scc1 L_noref")
        e(f"v_mov_b32 {vr(vX0)}, 0x2f0000")
        e(f"v_mov_b32 {vr(vX1)}, {sr(sST)}")
        e(f"global_store_dword {vr(vX0)}, {vr(vX1)}, {sr(sWS,2)} sc1")
        lab("L_noref")
    e(f"s_mov_b32 {sr(sCS)}, 0x{f2u(128**-0.5 * 1.4426950408889634):08x}")
    for i in range(32):
        e(f"v_mov_b32 {vr(vO+i)}, 0")
    e(f"v_mov_b32 {vr(vM)}, 0x{f2u(-1e30):08x}")
    e(f"v_mov_b32 {vr(vLs)}, 0")
    e(f"v_mov_b32 {vr(vFM)}, 0x{f2u(-1e9/(128**-0.5)):08x}")
    e(f"v_mov_b32 {vr(vFI)}, 0x{f2u(-3e38):08x}")
    e(f"v_mov_b32 {vr(vZ)}, 0")
    e(f"v_mov_b32 {vr(vCNT)}, 0")
    c("LDS fragment addresses")
    e(f"s_cmp_eq_u32 {sr(sROLE)}, 2")
    e(f"s_cselect_b32 {sr(t0)}, 0, {sr(sLB)}")
    e(f"v_xor_b32 {vr(vX0)}, {vr(vC)}, {vr(vG)}")
    e(f"v_lshl_add_u32 {vr(vX1)}, {vr(vC)}, 8, {sr(t0)}")
    e(f"v_lshl_add_u32 {vr(vKA)}, {vr(vX0)}, 4, {vr(vX1)}")
    for m in range(1, 4):
        e(f"v_xor_b32 {vr(vKA+m)}, {m<<6}, {vr(vKA)}")
    e(f"v_lshrrev_b32 {vr(vX0)}, 2, {vr(vL)}")
    e(f"v_lshl_add_u32 {vr(vX1)}, {vr(vX0)}, 8, {sr(t0)}")
    e(f"v_and_b32 {vr(vX0)}, 7, {vr(vX0)}")
    e(f"v_lshl_add_u32 {vr(vX1)}, {vr(vX0)}, 5, {vr(vX1)}")
    e(f"v_and_b32 {vr(vX0)}, 3, {vr(vL)}")
    e(f"v_lshl_add_u32 {vr(vVA)}, {vr(vX0)}, 3, {vr(vX1)}")
    for ee in range(1, 8):
        e(f"v_xor_b32 {vr(vVA+ee)}, {ee<<5}, {vr(vVA)}")
    c("epilogue addresses")
    e(f"v_lshrrev_b32 {vr(vCC)}, 4, v0")
    part_addr(vCC, vWO, vWS_, vX0)
    e(f"v_lshl_add_u32 {vr(vWO)}, {vr(vC)}, 4, {vr(vWO)}")
    e(f"v_mov_b32 {vr(vWO2)}, {vr(vWO)}")
    e(f"v_mov_b32 {vr(vWS2)}, {vr(vWS_)}")
    e(f"v_mul_u32_u24 {vr(vLWa)}, {CSTR}, {vr(vC)}")
    e(f"v_lshl_add_u32 {vr(vLWa)}, {vr(vG)}, 4, {vr(vLWa)}")
    e(f"v_add_u32 {vr(vLWa)}, {sr(sLB)}, {vr(vLWa)}")
    e(f"v_lshl_add_u32 {vr(vLWs)}, {vr(vC)}, 3, {sr(sLB)}")
    e(f"v_lshlrev_b32 {vr(vA1)}, 3, {vr(vCC)}")
    e(f"v_mul_u32_u24 {vr(vA2)}, {CSTR}, {vr(vCC)}")
    e(f"v_lshl_add_u32 {vr(vA2)}, {vr(vC)}, 4, {vr(vA2)}")
    e(f"s_and_b32 {sr(t3)}, {sr(sBHP)}, 0xff")
    e(f"s_lshl_b32 {sr(t3)}, {sr(t3)}, 10")
    e(f"v_lshl_add_u32 {vr(vOA)}, {vr(vG)}, 8, {sr(t3)}")
    e(f"v_lshl_add_u32 {vr(vOA)}, {vr(vC)}, 3, {vr(vOA)}")
    e(f"s_mov_b32 {sr(sGL)}, 0")
    e(f"s_sub_u32 {sr(sMW)}, {sr(sROLE)}, {sr(sW)}")
    c("table/ctx/Q/clears are older than every K/V load")
    e(f"s_cmp_eq_u32 {sr(sROLE)}, 2")
    e("s_waitcnt vmcnt(16)")
    e("s_cbranch_scc0 L_ctx")
    e("s_waitcnt vmcnt(12)")
    lab("L_ctx")
    e(f"v_readfirstlane_b32 {sr(t7)}, {vr(vCG)}")
    e(f"v_lshlrev_b32 {vr(vX0)}, 2, {vr(vG)}")
    e(f"v_max_i32 {vr(vCG)}, 0, {vr(vCG)}")
    e(f"v_min_i32 {vr(vCG)}, 0x1000, {vr(vCG)}")
    e(f"v_sub_u32 {vr(vCG)}, {vr(vCG)}, {vr(vX0)}")
    e("s_cbranch_scc1 L_sh_verify")
    if opt.spec:
        e(f"s_mov_b32 {sr(t5)}, {sr(sB0)}")
        e(f"s_mov_b32 {sr(t6)}, {sr(sB1)}")
        fetch()
        decode()
        e(f"s_xor_b32 {sr(t5)}, {sr(t5)}, {sr(sB0)}")
        e(f"s_xor_b32 {sr(t6)}, {sr(t6)}, {sr(sB1)}")
        e(f"s_or_b32 {sr(t5)}, {sr(t5)}, {sr(t6)}")
        e("s_cbranch_scc1 L_respec")
        lab("L_specok")
    e(f"s_cmp_eq_u32 {sr(sROLE)}, 1")
    e("s_cbranch_scc0 L_cnt")
    c("finisher item count (at least one: a step past the context is fully masked)")
    e(f"s_min_i32 {sr(t1)}, {sr(t7)}, 4096")
    e(f"s_cmp_le_i32 {sr(t7)}, 0")
    e(f"s_cselect_b32 {sr(t1)}, 4096, {sr(t1)}")
    e(f"s_add_u32 {sr(t1)}, {sr(t1)}, 31")
    e(f"s_lshr_b32 {sr(t1)}, {sr(t1)}, 5")
    e(f"s_min_u32 {sr(t1)}, {sr(t1)}, {sr(sEND)}")
    e(f"s_sub_i32 {sr(t1)}, {sr(t1)}, {sr(sW)}")
    e(f"s_sub_i32 {sr(t1)}, {sr(t1)}, 61")
    e(f"s_ashr_i32 {sr(t1)}, {sr(t1)}, 2")
    e(f"s_max_i32 {sr(sREM)}, {sr(t1)}, 1")
    e(f"s_cmp_eq_u32 {sr(sW)}, 0")
    e("s_cbranch_scc0 L_cnt")
    c("the mixed helpers' partials are filed under the rank of the row")
    ranks()
    e(f"s_sub_u32 {sr(t0)}, {sr(sIDX)}, 16")
    e("s_nop 0")
    e(f"v_readlane_b32 {sr(t1)}, {vr(vX3)}, {sr(t0)}")
    e(f"s_sub_i32 {sr(t1)}, {sr(t1)}, {sr(t0)}")
    e(f"s_lshl_b32 {sr(t0)}, {sr(t1)}, 17")
    e(f"s_lshl_b32 {sr(t1)}, {sr(t1)}, 11")
    e(f"v_add_u32 {vr(vWO2)}, {sr(t0)}, {vr(vWO)}")
    e(f"v_add_u32 {vr(vWS2)}, {sr(t1)}, {vr(vWS_)}")
    lab("L_cnt")
    c("once-hook (wave 0): finishers sample the cleared-counter when 3 items remain, helpers signal after item 0")
    e(f"s_cmp_eq_u32 {sr(sROLE)}, 1")
    e(f"s_cselect_b32 {sr(sONCE)}, 3, {sr(sREM)}")
    e(f"s_cmp_eq_u32 {sr(sW)}, 0")
    e(f"s_cselect_b32 {sr(sONCE)}, {sr(sONCE)}, 0")

    def kreads():
        for m in range(4):
            e(f"ds_read_b128 {vr(vF+8*m,4)}, {vr(vKA+m)}")
            e(f"ds_read_b128 {vr(vF+8*m+4,4)}, {vr(vKA+m)} offset:4096")
    def qk():
        for m in range(4):
            e(f"s_waitcnt lgkmcnt({6-2*m})")
            c0 = "0" if m == 0 else vr(vS, 4)
            c1 = "0" if m == 0 else vr(vS+4, 4)
            e(f"v_mfma_f32_16x16x32_bf16 {vr(vS,4)}, {vr(vF+8*m,4)}, {vr(vQ+4*m,4)}, {c0}")
            e(f"v_mfma_f32_16x16x32_bf16 {vr(vS+4,4)}, {vr(vF+8*m+4,4)}, {vr(vQ+4*m,4)}, {c1}")
    def masks():
        e(f"v_subrev_u32 {vr(vLIM)}, {sr(sPOS)}, {vr(vCG)}")
        e(f"v_cndmask_b32 {vr(vLIM)}, 0, {vr(vLIM)}, {sr(sMK,2)}")
        e(f"v_cndmask_b32 {vr(vFILL)}, {vr(vFI)}, {vr(vFM)}, {sr(sMK,2)}")
        e(f"v_cmp_gt_i32 {sr(sFAST,2)}, 20, {vr(vLIM)}")
    def vreads():
        for ee in range(8):
            e(f"ds_read_b64_tr_b16 {vr(vF+4*ee,2)}, {vr(vVA+ee)} offset:8192")
            e(f"ds_read_b64_tr_b16 {vr(vF+4*ee+2,2)}, {vr(vVA+ee)} offset:12288")
    def softmax_a():
        la = g.newlab()
        e(f"s_cmp_eq_u64 {sr(sFAST,2)}, 0")
        e(f"s_cbranch_scc1 {la}")
        for j in range(8):
            e(f"v_cmp_lt_i32 {sr(sCM+2*j,2)}, {(j>>2)*16+(j&3)}, {vr(vLIM)}")
        for j in range(8):
            e(f"v_cndmask_b32 {vr(vS+j)}, {vr(vFILL)}, {vr(vS+j)}, {sr(sCM+2*j,2)}")
        lab(la)
        e(f"v_max3_f32 {vr(vMX)}, {vr(vS)}, {vr(vS+1)}, {vr(vS+2)}")
        e(f"v_max3_f32 {vr(vX0)}, {vr(vS+3)}, {vr(vS+4)}, {vr(vS+5)}")
        e(f"v_max3_f32 {vr(vMX)}, {vr(vMX)}, {vr(vS+6)}, {vr(vS+7)}")
        e(f"v_max3_f32 {vr(vMX)}, {vr(vMX)}, {vr(vX0)}, {vr(vM)}")
        e(f"v_mov_b32 {vr(vX0)}, {vr(vMX)}")
        e("s_nop 1")
        e(f"v_permlane32_swap_b32 {vr(vMX)}, {vr(vX0)}")
        e(f"v_max_f32 {vr(vMX)}, {vr(vMX)}, {vr(vX0)}")
        e(f"v_mov_b32 {vr(vX0)}, {vr(vMX)}")
        e("s_nop 1")
        e(f"v_permlane16_swap_b32 {vr(vMX)}, {vr(vX0)}")
        e(f"v_max_f32 {vr(vMX)}, {vr(vMX)}, {vr(vX0)}")
        e(f"v_mul_f32 {vr(vX1)}, {sr(sCS)}, {vr(vMX)}")
        e(f"v_sub_f32 {vr(vAL)}, {vr(vM)}, {vr(vMX)}")
        e(f"v_cmp_lt_f32 vcc, {vr(vM)}, {vr(vMX)}")
        for j in range(8):
            e(f"v_fma_f32 {vr(vS+j)}, {vr(vS+j)}, {sr(sCS)}, -{vr(vX1)}")
        e(f"v_mul_f32 {vr(vAL)}, {sr(sCS)}, {vr(vAL)}")
        for j in range(8):
            e(f"v_exp_f32 {vr(vS+j)}, {vr(vS+j)}")
        e(f"v_exp_f32 {vr(vAL)}, {vr(vAL)}")
        e(f"v_mov_b32 {vr(vM)}, {vr(vMX)}")
        for u in range(4):
            e(f"v_cvt_pk_bf16_f32 {vr(vP+u)}, {vr(vS+2*u)}, {vr(vS+2*u+1)}")
        e(f"v_pk_add_f32 {vr(vS,2)}, {vr(vS,2)}, {vr(vS+2,2)}")
        e(f"v_pk_add_f32 {vr(vS+4,2)}, {vr(vS+4,2)}, {vr(vS+6,2)}")
        e(f"v_pk_add_f32 {vr(vS,2)}, {vr(vS,2)}, {vr(vS+4,2)}")
        e(f"v_fma_f32 {vr(vLs)}, {vr(vLs)}, {vr(vAL)}, {vr(vS)}")
        e(f"v_add_f32 {vr(vLs)}, {vr(vLs)}, {vr(vS+1)}")
    def rescale():
        la = g.newlab()
        e(f"s_cbranch_vccz {la}")
        for i in range(0, 32, 2):
            e(f"v_pk_mul_f32 {vr(vO+i,2)}, {vr(vO+i,2)}, {vr(vMX,2)} op_sel:[0,1] op_sel_hi:[1,1]")
        lab(la)
    def pv(ee):
        ob = vO + 4*ee
        e(f"v_mfma_f32_16x16x32_bf16 {vr(ob,4)}, {vr(vF+4*ee,4)}, {vr(vP,4)}, {vr(ob,4)}")

    lab("L_loop")
    e("s_waitcnt vmcnt(8)")
    if opt.stamps and opt.probe == "first":
        e(f"s_cmp_eq_u32 {sr(sIT)}, 1")
        e(f"s_cbranch_scc0 L_q1")
        stamp(4)
        e("s_waitcnt lgkmcnt(0)")
        lab("L_q1")
    kreads()
    masks()
    fetch()
    qk()
    e(f"s_cmp_eq_u32 {sr(sREM)}, 1")
    e("s_cbranch_scc1 L_noK")
    issue("K")
    decode()
    e("s_branch L_sm")
    lab("L_noK")
    e(f"s_cmp_eq_u32 {sr(sMW)}, 1")
    e("s_cbranch_scc1 L_early")
    e("s_nop 6")
    lab("L_sm")
    softmax_a()
    rescale()
    e(f"s_cmp_eq_u32 {sr(sREM)}, 1")
    e("s_cbranch_scc1 L_last")
    e("s_waitcnt vmcnt(8)")
    e("s_branch L_vok")
    lab("L_last")
    lsum()
    e(f"s_cmp_eq_u32 {sr(sGL)}, 1")
    e(f"s_waitcnt vmcnt({NL})")
    e("s_cbranch_scc1 L_vok")
    e("s_waitcnt vmcnt(0)")
    lab("L_vok")
    vreads()
    for ee in range(8):
        e(f"s_waitcnt lgkmcnt({14-2*ee})")
        pv(ee)
    e(f"s_cmp_eq_u32 {sr(sREM)}, 1")
    e("s_cbranch_scc1 L_noV")
    issue("V")
    lab("L_noV")
    e(f"s_cmp_eq_u32 {sr(sREM)}, {sr(sONCE)}")
    e("s_cbranch_scc1 L_hook")
    lab("L_hook_done")
    if opt.stamps and opt.probe == "first":
        e(f"s_cmp_eq_u32 {sr(sIT)}, {opt.mid+1}")
        e(f"s_cbranch_scc0 L_q2")
        stamp(5)
        e("s_waitcnt lgkmcnt(0)")
        lab("L_q2")
    e(f"s_sub_u32 {sr(sREM)}, {sr(sREM)}, 1")
    e(f"s_cmp_lg_u32 {sr(sREM)}, 0")
    e("s_cbranch_scc1 L_loop")

    lab("L_epi")
    stamp(2)
    vSt = vS
    vOq = vF
    vR = 12
    vWt = 20
    c("finishers only need columns 0..3")
    e(f"s_cmp_eq_u32 {sr(sROLE)}, 1")
    e(f"s_cselect_b64 exec, {sr(mSL,2)}, -1")
    e(f"ds_write_b64 {vr(vLWs)}, {vr(vM,2)} offset:{STAT}")
    e("s_nop 1")
    for ee in range(8):
        e(f"ds_write_b128 {vr(vLWa)}, {vr(vO+4*ee,4)} offset:{64*ee}")
    e("s_mov_b64 exec, -1")
    e("s_cbranch_scc1 L_fin")

    def maxchain(ms):
        e(f"v_max3_f32 {vr(vMX)}, {vr(ms[0])}, {vr(ms[1])}, {vr(ms[2])}")
        i = 3
        while i < len(ms):
            if i + 1 < len(ms):
                e(f"v_max3_f32 {vr(vMX)}, {vr(vMX)}, {vr(ms[i])}, {vr(ms[i+1])}"); i += 2
            else:
                e(f"v_max_f32 {vr(vMX)}, {vr(vMX)}, {vr(ms[i])}"); i += 1
        for i in range(len(ms)):
            e(f"v_sub_f32 {vr(vWt+i)}, {vr(ms[i])}, {vr(vMX)}")
        for i in range(len(ms)):
            e(f"v_mul_f32 {vr(vWt+i)}, {sr(sCS)}, {vr(vWt+i)}")
        for i in range(len(ms)):
            e(f"v_exp_f32 {vr(vWt+i)}, {vr(vWt+i)}")
    def premerge():
        maxchain([vGs+2*k for k in range(NG)])
        e(f"v_mov_b32 {vr(vGs)}, {vr(vMX)}")
        e(f"v_mul_f32 {vr(vGs+1)}, {vr(vWt)}, {vr(vGs+1)}")
        for r in range(8):
            e(f"v_mul_f32 {vr(vGo+r)}, {vr(vWt)}, {vr(vGo+r)}")
        for i in range(1, NG):
            e(f"v_fmac_f32 {vr(vGs+1)}, {vr(vWt+i)}, {vr(vGs+2*i+1)}")
            for r in range(8):
                e(f"v_fmac_f32 {vr(vGo+r)}, {vr(vWt+i)}, {vr(vGo+8*i+r)}")
    def lds_reduce(nglob):
        c("thread: column vCC, quads vC and vC+16")
        e("s_waitcnt lgkmcnt(0)")
        e("s_barrier")
        if nglob:
            probe("tail", 1)
        for w in range(NW):
            e(f"ds_read_b64 {vr(vSt+2*w,2)}, {vr(vA1)} offset:{WSTR*w+STAT}")
        for w in range(NW):
            for q in range(2):
                e(f"ds_read_b128 {vr(vOq+8*w+4*q,4)}, {vr(vA2)} offset:{WSTR*w+256*q}")
        e(f"s_waitcnt lgkmcnt({2*NW})")
        ms = [vSt+2*w for w in range(NW)]
        ls = [vSt+2*w+1 for w in range(NW)]
        os_ = [vOq+8*w for w in range(NW)]
        if nglob:
            ms += [vGs]; ls += [vGs+1]; os_ += [vGo]
        maxchain(ms)
        e("s_nop 0")
        e(f"v_mul_f32 {vr(vAL)}, {vr(vWt)}, {vr(ls[0])}")
        for i in range(1, len(ms)):
            e(f"v_fmac_f32 {vr(vAL)}, {vr(vWt+i)}, {vr(ls[i])}")
        if nglob:
            e(f"v_rcp_f32 {vr(vAL)}, {vr(vAL)}")
        order_ = list(range(NW, len(ms))) + list(range(NW))
        first = True
        for i in order_:
            if i < NW:
                e(f"s_waitcnt lgkmcnt({2*(NW-1-i)})")
            for r in range(8):
                if first:
                    e(f"v_mul_f32 {vr(vR+r)}, {vr(vWt+i)}, {vr(os_[i]+r)}")
                else:
                    e(f"v_fmac_f32 {vr(vR+r)}, {vr(vWt+i)}, {vr(os_[i]+r)}")
            first = False

    c("---------- mixed helper: publish the workgroup partial")
    lds_reduce(0)
    c("never publish the canary pattern")
    for r in range(8):
        e(f"v_min_u32 {vr(vR+r)}, -2, {vr(vR+r)}")
    e(f"v_min_u32 {vr(vMX)}, -2, {vr(vMX)}")
    e(f"v_min_u32 {vr(vAL)}, -2, {vr(vAL)}")
    e(f"global_store_dwordx4 {vr(vWO)}, {vr(vR,4)}, {sr(sWS,2)} sc1")
    e(f"global_store_dwordx4 {vr(vWO)}, {vr(vR+4,4)}, {sr(sWS,2)} offset:256 sc1")
    e(f"v_cmp_eq_u32 vcc, 0, {vr(vC)}")
    e(f"s_and_saveexec_b64 {sr(sCM,2)}, vcc")
    e(f"global_store_dwordx2 {vr(vWS_)}, {vr(vMX,2)}, {sr(sWS,2)} sc1")
    e(f"s_mov_b64 exec, {sr(sCM,2)}")
    e("s_branch L_done")

    c("---------- finisher")
    lab("L_fin")
    e(f"s_cmp_eq_u32 {sr(sW)}, 0")
    e("s_cbranch_scc1 L_merge")
    e("s_waitcnt lgkmcnt(0)")
    e("s_barrier")
    e("s_branch L_done")
    lab("L_merge")
    e(f"s_mov_b32 {sr(t5)}, 0")
    e(f"s_cmp_eq_u32 {sr(sGL)}, 1")
    e("s_cbranch_scc1 L_chk")
    lab("L_poll")
    e(f"v_readfirstlane_b32 {sr(t4)}, {vr(vCNT)}")
    e(f"s_cmp_ge_u32 {sr(t4)}, {NSIG}")
    e("s_cbranch_scc1 L_reload")
    e(f"global_load_dword {vr(vCNT)}, {vr(vZ)}, {sr(sDBG,2)} sc1")
    e("s_sleep 8")
    e(f"s_add_u32 {sr(t5)}, {sr(t5)}, 1")
    e(f"s_cmp_lt_u32 {sr(t5)}, 0x40000")
    e("s_waitcnt vmcnt(0)")
    e("s_cbranch_scc1 L_poll")
    lab("L_reload")
    gload()
    lab("L_chk")
    e("s_waitcnt vmcnt(0)")
    e(f"v_max_u32 {vr(vX0)}, {vr(vGs)}, {vr(vGs+1)}")
    e(f"v_max_u32 {vr(vX1)}, {vr(vGs+2)}, {vr(vGs+3)}")
    regs = list(range(vGs+4, vGs+2*NG)) + list(range(vGo, vGo+8*NG))
    for i in range(0, len(regs), 2):
        a = vX0 + ((i >> 1) & 1)
        e(f"v_max3_u32 {vr(a)}, {vr(a)}, {vr(regs[i])}, {vr(regs[i+1])}")
    e(f"v_max_u32 {vr(vX0)}, {vr(vX0)}, {vr(vX1)}")
    e(f"v_cmp_eq_u32 vcc, -1, {vr(vX0)}")
    e(f"s_add_u32 {sr(t5)}, {sr(t5)}, 1")
    e("s_cbranch_vccz L_ready")
    e(f"s_sleep {opt.rsleep}")
    e(f"s_cmp_lt_u32 {sr(t5)}, 0x80000")
    e("s_cbranch_scc1 L_reload")
    lab("L_ready")
    probe("tail", 0)
    premerge()
    lds_reduce(1)
    for r in range(8):
        e(f"v_mul_f32 {vr(vR+r)}, {vr(vR+r)}, {vr(vAL)}")
    for r in range(4):
        e(f"v_cvt_pk_bf16_f32 {vr(vWt+r)}, {vr(vR+2*r)}, {vr(vR+2*r+1)}")
    po = opt.pol_out
    e(f"global_store_dwordx2 {vr(vOA)}, {vr(vWt,2)}, {sr(sOUT,2)}{po}")
    e(f"global_store_dwordx2 {vr(vOA)}, {vr(vWt+2,2)}, {sr(sOUT,2)} offset:128{po}")
    e("s_branch L_done")

    if opt.spec:
        lab("L_respec")
        c("the guess was wrong: reload the first item")
        e("s_waitcnt vmcnt(0)")
        issue("K"); issue("V")
        e("s_branch L_specok")

    lab("L_early")
    c("finisher wave 0, last item: fetch the helper partials under the V wait")
    e(f"v_readfirstlane_b32 {sr(t4)}, {vr(vCNT)}")
    e(f"s_cmp_ge_u32 {sr(t4)}, {NSIG}")
    e("s_nop 3")
    e("s_cbranch_scc0 L_sm")
    gload()
    e(f"s_mov_b32 {sr(sGL)}, 1")
    e("s_branch L_sm")

    lab("L_hook")
    e(f"s_cmp_eq_u32 {sr(sROLE)}, 1")
    e("s_cbranch_scc1 L_hook_fin")
    signal()
    e("s_branch L_hook_done")
    lab("L_hook_fin")
    e(f"global_load_dword {vr(vCNT)}, {vr(vZ)}, {sr(sDBG,2)} sc1")
    e("s_branch L_hook_done")

    lab("L_helper")
    e(f"s_cmp_lt_u32 {sr(sIDX)}, 4")
    e("s_cbranch_scc1 L_sh_pro")
    c("======== mixed helper. v=idx-4: j=v%3, u=v/3: r=((x>>1)+j)&3 + 4*(u&1), quad=u>>1, pair=x&1")
    e(f"s_mov_b32 {sr(sROLE)}, 0")
    e(f"s_sub_u32 {sr(t7)}, {sr(sIDX)}, 4")
    e(f"s_mul_i32 {sr(t1)}, {sr(t7)}, 11")
    e(f"s_lshr_b32 {sr(t1)}, {sr(t1)}, 5")
    e(f"s_mul_i32 {sr(t6)}, {sr(t1)}, 3")
    e(f"s_sub_u32 {sr(t7)}, {sr(t7)}, {sr(t6)}")
    e(f"s_add_u32 {sr(sKS)}, {sr(t7)}, 4")
    e(f"s_and_b32 {sr(t0)}, {sr(sHD)}, 2")
    e(f"s_and_b32 {sr(t6)}, {sr(t1)}, 2")
    e(f"s_lshl_b32 {sr(t6)}, {sr(t6)}, 1")
    e(f"s_or_b32 {sr(sHD)}, {sr(t6)}, {sr(t0)}")
    e(f"s_and_b32 {sr(t1)}, {sr(t1)}, 1")
    e(f"s_lshl_b32 {sr(t1)}, {sr(t1)}, 2")
    e(f"s_lshr_b32 {sr(sX_)}, {sr(sX_)}, 1")
    if opt.spread:
        e(f"s_add_u32 {sr(sX_)}, {sr(sX_)}, {sr(t7)}")
        e(f"s_and_b32 {sr(sX_)}, {sr(sX_)}, 3")
    e(f"s_add_u32 {sr(sX_)}, {sr(sX_)}, {sr(t1)}")
    e("s_waitcnt lgkmcnt(0)")
    e(f"global_load_dword {vr(vKY)}, {vr(vT+7)}, {sr(sCTX,2)}")
    setup_srd()
    e(f"s_lshl_b32 {sr(t0)}, {sr(t0)}, 3")
    e(f"s_lshr_b32 {sr(t4)}, 0x{FPACK:08x}, {sr(t0)}")
    e(f"s_bfe_u32 {sr(t5)}, {sr(t4)}, 0x80008")
    e(f"s_and_b32 {sr(t4)}, {sr(t4)}, 0xff")
    e(f"s_cmp_lt_u32 {sr(t5)}, {sr(t4)}")
    e(f"s_cselect_b32 {sr(sS0)}, 1, 0")
    e(f"s_max_u32 {sr(sEND)}, {sr(t4)}, {sr(t5)}")
    e(f"s_min_u32 {sr(t5)}, {sr(t4)}, {sr(t5)}")
    c("x = j + 3*(w + 4*lane)")
    e(f"v_lshl_add_u32 {vr(vT+5)}, {vr(vL)}, 2, {sr(sW)}")
    e(f"v_mul_u32_u24 {vr(vT+5)}, 3, {vr(vT+5)}")
    e(f"v_add_u32 {vr(vT+5)}, {sr(t7)}, {vr(vT+5)}")
    e(f"s_sub_u32 {sr(t1)}, 15, {sr(sX_)}")
    e(f"s_lshl_b32 {sr(t0)}, {sr(sX_)}, 3")
    e(f"s_lshl_b32 {sr(t1)}, {sr(t1)}, 19")
    e(f"s_or_b32 {sr(t0)}, {sr(t0)}, {sr(t1)}")
    e(f"s_mul_i32 {sr(t0)}, {sr(t0)}, 0x101")
    e(f"s_mul_i32 {sr(t1)}, {sr(sHD)}, 0x01010101")
    e(f"s_add_u32 {sr(sPHP)}, {sr(t0)}, {sr(t1)}")
    e(f"s_add_u32 {sr(sPHP)}, {sr(sPHP)}, 0x01000100")
    e(f"s_cmp_eq_u32 {sr(sW)}, 0")
    e("s_cbranch_scc0 L_mx_noclear")
    clear_body()
    e("s_waitcnt vmcnt(9)")
    e("s_branch L_mx_ctx")
    lab("L_mx_noclear")
    e("s_waitcnt vmcnt(0)")
    lab("L_mx_ctx")
    ranks()
    e(f"s_sub_u32 {sr(t1)}, 15, {sr(sX_)}")
    e(f"v_cmp_eq_u32 {sr(sCM,2)}, {sr(sX_)}, {vr(vX3)}")
    e(f"v_cmp_eq_u32 {sr(sCM+2,2)}, {sr(t1)}, {vr(vX3)}")
    e(f"s_ff1_i32_b32 {sr(t0)}, {sr(sCM)}")
    e(f"s_ff1_i32_b32 {sr(t1)}, {sr(sCM+2)}")
    e(f"v_readlane_b32 {sr(t2)}, {vr(vKY)}, {sr(t0)}")
    e(f"v_readlane_b32 {sr(t3)}, {vr(vKY)}, {sr(t1)}")
    e(f"s_lshl_b32 {sr(t0)}, {sr(t0)}, 3")
    e(f"s_lshl_b32 {sr(t1)}, {sr(t1)}, 19")
    e(f"s_or_b32 {sr(t0)}, {sr(t0)}, {sr(t1)}")
    e(f"s_mul_i32 {sr(t0)}, {sr(t0)}, 0x101")
    e(f"s_mul_i32 {sr(t6)}, {sr(sHD)}, 0x01010101")
    e(f"s_add_u32 {sr(sBHP)}, {sr(t0)}, {sr(t6)}")
    e(f"s_add_u32 {sr(sBHP)}, {sr(sBHP)}, 0x01000100")
    e(f"s_lshr_b32 {sr(t2)}, {sr(t2)}, 4")
    e(f"s_lshr_b32 {sr(t3)}, {sr(t3)}, 4")
    c("segments: [long both heads][long extra][short both heads][short extra], steps descending")
    P = sCM + 8
    TOP = sCM + 12
    e(f"s_sub_i32 {sr(t0)}, {sr(t3)}, {sr(sEND)}")
    e(f"s_max_i32 {sr(t0)}, {sr(t0)}, 0")
    e(f"s_lshl_b32 {sr(P)}, {sr(t0)}, 1")
    e(f"s_min_u32 {sr(TOP)}, {sr(t3)}, {sr(sEND)}")
    e(f"s_sub_i32 {sr(t0)}, {sr(TOP)}, {sr(t5)}")
    e(f"s_max_i32 {sr(t0)}, {sr(t0)}, 0")
    e(f"s_add_u32 {sr(P+1)}, {sr(P)}, {sr(t0)}")
    e(f"s_sub_i32 {sr(t0)}, {sr(t2)}, {sr(sEND)}")
    e(f"s_max_i32 {sr(t0)}, {sr(t0)}, 0")
    e(f"s_lshl_b32 {sr(t0)}, {sr(t0)}, 1")
    e(f"s_add_u32 {sr(P+2)}, {sr(P+1)}, {sr(t0)}")
    e(f"s_mov_b32 {sr(TOP+1)}, {sr(t2)}")
    e(f"s_min_u32 {sr(TOP+2)}, {sr(t2)}, {sr(sEND)}")
    e(f"s_sub_i32 {sr(t0)}, {sr(TOP+2)}, {sr(t5)}")
    e(f"s_max_i32 {sr(t0)}, {sr(t0)}, 0")
    e(f"s_add_u32 {sr(P+3)}, {sr(P+2)}, {sr(t0)}")
    for i in range(3):
        e(f"v_cmp_ge_u32 {sr(sCM+2*i,2)}, {vr(vT+5)}, {sr(P+i)}")
    e(f"v_cmp_gt_u32 {sr(sCM+6,2)}, {sr(P+3)}, {vr(vT+5)}")
    e(f"v_mov_b32 {vr(vX0)}, {sr(t3)}")
    e(f"v_mov_b32 {vr(vX2)}, 0")
    for i in range(3):
        e(f"v_mov_b32 {vr(vT+i)}, {sr(P+i)}")
        e(f"v_mov_b32 {vr(vT+11+i)}, {sr(TOP+i)}")
    for i in range(3):
        e(f"v_cndmask_b32 {vr(vX2)}, {vr(vX2)}, {vr(vT+i)}, {sr(sCM+2*i,2)}")
        e(f"v_cndmask_b32 {vr(vX0)}, {vr(vX0)}, {vr(vT+11+i)}, {sr(sCM+2*i,2)}")
    e(f"s_xor_b64 vcc, {sr(sCM,2)}, {sr(sCM+2,2)}")
    e(f"s_xor_b64 vcc, vcc, {sr(sCM+4,2)}")
    e(f"v_sub_u32 {vr(vX2)}, {vr(vT+5)}, {vr(vX2)}")
    e(f"v_lshrrev_b32 {vr(vT)}, 1, {vr(vX2)}")
    e(f"v_and_b32 {vr(vX1)}, 1, {vr(vX2)}")
    e(f"v_mov_b32 {vr(vT+1)}, {sr(sS0)}")
    e(f"v_cndmask_b32 {vr(vT)}, {vr(vT)}, {vr(vX2)}, vcc")
    e(f"v_cndmask_b32 {vr(vX1)}, {vr(vX1)}, {vr(vT+1)}, vcc")
    e(f"v_sub_u32 {vr(vX0)}, {vr(vX0)}, {vr(vT)}")
    e(f"v_add_u32 {vr(vX0)}, -1, {vr(vX0)}")
    e(f"v_cndmask_b32 {vr(vT+1)}, 2, 0, {sr(sCM+2,2)}")
    e(f"v_add_u32 {vr(vX1)}, {vr(vX1)}, {vr(vT+1)}")
    e(f"v_lshlrev_b32 {vr(vX3)}, 3, {vr(vX1)}")
    e(f"v_bfe_u32 {vr(vX3)}, {sr(sBHP)}, {vr(vX3)}, 8")
    list_addr_bh()
    list_load()
    col_addr()
    col_load()
    c("a wave without items runs one item with no active column")
    e(f"s_bcnt1_i32_b64 {sr(sREM)}, {sr(sCM+6,2)}")
    e(f"s_cselect_b64 {sr(mIT,2)}, {sr(mSL,2)}, 0")
    e(f"s_max_u32 {sr(sREM)}, {sr(sREM)}, 1")
    if opt.spec:
        predict()
    else:
        e("s_waitcnt vmcnt(5)")
    e("s_branch L_go")

    lab("L_sh_pro")
    c("======== shared-prefix workgroup (h, part=idx): steps 16*idx..+15, wave w owns rows 4w..4w+3")
    e(f"s_mov_b32 {sr(sROLE)}, 2")
    e(f"s_mov_b32 {sr(sKS)}, {sr(sIDX)}")
    e(f"s_lshl_b32 {sr(sS0)}, {sr(sIDX)}, 4")
    e(f"s_lshl_b32 {sr(t1)}, {sr(sW)}, 5")
    e(f"s_or_b32 {sr(t1)}, {sr(t1)}, {sr(sHD)}")
    e(f"s_mul_i32 {sr(sBHP)}, {sr(t1)}, 0x01010101")
    e(f"s_add_u32 {sr(sBHP)}, {sr(sBHP)}, 0x18100800")
    e(f"s_mov_b32 {sr(sPHP)}, {sr(sBHP)}")
    e(f"s_lshl_b32 {sr(sH8)}, {sr(sHD)}, 8")
    c("entries: lane (g,row=c) loads 4 steps: row*1024 + (s0+4g)*8")
    e(f"s_lshl_b32 {sr(t2)}, {sr(sS0)}, 3")
    e(f"v_lshl_add_u32 {vr(vT+3)}, {vr(vC)}, 10, {sr(t2)}")
    e(f"v_lshl_add_u32 {vr(vT+3)}, {vr(vG)}, 5, {vr(vT+3)}")
    e(f"s_and_b32 {sr(t1)}, {sr(sW)}, 1")
    e(f"s_lshl_b32 {sr(t2)}, {sr(sS0)}, 1")
    e(f"s_add_u32 {sr(t1)}, {sr(t1)}, {sr(t2)}")
    e(f"v_lshl_add_u32 {vr(vE)}, {vr(vG)}, 3, {sr(t1)}")
    col_addr()
    e("s_waitcnt lgkmcnt(0)")
    e(f"global_load_dwordx4 {vr(vU,4)}, {vr(vT+3)}, {sr(sBT,2)}")
    e(f"global_load_dwordx4 {vr(vU+4,4)}, {vr(vT+3)}, {sr(sBT,2)} offset:16")
    col_load()
    setup_srd()
    c("waves 2,3 load V: take over the K descriptor/offset registers")
    e(f"s_cmp_lt_u32 {sr(sW)}, 2")
    e("s_cbranch_scc1 L_sh_k")
    e(f"s_mov_b32 {sr(srdK)}, {sr(srdV)}")
    e(f"s_mov_b32 {sr(srdK+1)}, {sr(srdV+1)}")
    for n in range(4):
        e(f"v_mov_b32 {vr(vKO+n)}, {vr(vVO+n)}")
    lab("L_sh_k")
    clear_body()
    def sh_issue():
        la = g.newlab()
        e(f"s_and_b32 {sr(t1)}, {sr(sZI)}, 63")
        e(f"v_readlane_b32 {sr(t0)}, {vr(vE)}, {sr(t1)}")
        e(f"s_mov_b32 m0, {sr(sSL)}")
        e(f"s_add_u32 {sr(sSL)}, {sr(sSL)}, 0x4000")
        e(f"s_and_b32 {sr(sSL)}, {sr(sSL)}, 0xffff")
        e(f"s_lshl_b32 {sr(t0)}, {sr(t0)}, 15")
        e(f"s_or_b32 {sr(sB0)}, {sr(t0)}, {sr(sH8)}")
        dma4(vKO, srdK, sB0)
        e(f"s_add_u32 {sr(sZI)}, {sr(sZI)}, {sr(sSTR)}")
        e(f"s_and_b32 {sr(t1)}, {sr(sZI)}, 63")
        e(f"s_cbranch_scc1 {la}")
        for q in range(3):
            e(f"v_mov_b32 {vr(vE+q)}, {vr(vE+q+1)}")
        lab(la)
    e(f"s_mov_b32 {sr(sZI)}, 0")
    e(f"s_mov_b32 {sr(sZC)}, 0")
    e(f"s_lshl_b32 {sr(sSL)}, {sr(sW)}, 12")
    e(f"s_cmp_eq_u32 {sr(sW)}, 0")
    e(f"s_cselect_b32 {sr(sONCE)}, 0, -1")
    def sh_check():
        e(f"s_bitcmp1_b32 {sr(sW)}, 0")
        e(f"s_cselect_b64 vcc, -1, 0")
        for q in range(4):
            e(f"v_cndmask_b32 {vr(vE+q)}, {vr(vU+2*q)}, {vr(vU+2*q+1)}, vcc")
        for i in range(8):
            e(f"v_xor_b32_dpp {vr(vU+8+i)}, {vr(vU+i)}, {vr(vU+i)} row_newbcast:0 row_mask:0xf bank_mask:0xf")
        e(f"v_or3_b32 {vr(vU+8)}, {vr(vU+8)}, {vr(vU+9)}, {vr(vU+10)}")
        e(f"v_or3_b32 {vr(vU+11)}, {vr(vU+11)}, {vr(vU+12)}, {vr(vU+13)}")
        e(f"v_or3_b32 {vr(vU+8)}, {vr(vU+8)}, {vr(vU+14)}, {vr(vU+15)}")
        e(f"v_or_b32 {vr(vU+8)}, {vr(vU+8)}, {vr(vU+11)}")
        e(f"v_cmp_ne_u32 vcc, 0, {vr(vU+8)}")
        e(f"s_cmp_eq_u64 vcc, 0")
        e(f"s_cselect_b32 {sr(sSTR)}, 16, 1")
    if opt.spec:
        c("guess: all rows share block = column (checked below)")
        e(f"s_mov_b32 {sr(sSTR)}, 16")
        stamp(1)
        for i in range(3):
            sh_issue()
        e("s_branch L_init")
        lab("L_sh_verify")
        e(f"v_mov_b32 {vr(vKY)}, {vr(vE)}")
        sh_check()
        e(f"v_cmp_ne_u32 {sr(sCM,2)}, {vr(vKY)}, {vr(vE)}")
        e(f"s_or_b64 vcc, vcc, {sr(sCM,2)}")
        e("s_cbranch_scc0 L_sh_loop")
        e("s_waitcnt vmcnt(0)")
        e(f"s_mov_b32 {sr(sZI)}, 0")
        e(f"s_lshl_b32 {sr(sSL)}, {sr(sW)}, 12")
        for i in range(3):
            sh_issue()
    else:
        e("s_waitcnt vmcnt(14)")
        sh_check()
        e("s_barrier")
        stamp(1)
        for i in range(3):
            sh_issue()
        e("s_branch L_init")
        lab("L_sh_verify")

    lab("L_sh_loop")
    e(f"s_lshl_b32 {sr(t0)}, {sr(sSTR)}, 1")
    e(f"s_add_u32 {sr(t0)}, {sr(t0)}, {sr(sZC)}")
    e(f"s_cmp_lt_u32 {sr(t0)}, 256")
    e("s_waitcnt vmcnt(8)")
    e("s_cbranch_scc1 L_sh_w")
    e(f"s_cmp_eq_u32 {sr(t0)}, 256")
    e("s_waitcnt vmcnt(4)")
    e("s_cbranch_scc1 L_sh_w")
    e("s_waitcnt vmcnt(0)")
    lab("L_sh_w")
    e("s_barrier")
    e(f"s_cmp_lt_u32 {sr(sZI)}, 256")
    e("s_cbranch_scc0 L_sh_noiss")
    sh_issue()
    lab("L_sh_noiss")
    e(f"s_cmp_eq_u32 {sr(sONCE)}, {sr(sIT)}")
    e("s_cbranch_scc0 L_sh_nosig")
    signal()
    lab("L_sh_nosig")
    c("step = s0 + 4*((z>>4)&3) + (z>>6), row = z&15")
    e(f"s_bfe_u32 {sr(t0)}, {sr(sZC)}, 0x20004")
    e(f"s_lshl_b32 {sr(t0)}, {sr(t0)}, 2")
    e(f"s_lshr_b32 {sr(t1)}, {sr(sZC)}, 6")
    e(f"s_add_u32 {sr(t0)}, {sr(t0)}, {sr(t1)}")
    e(f"s_add_u32 {sr(t0)}, {sr(t0)}, {sr(sS0)}")
    e(f"s_lshl_b32 {sr(sPOS)}, {sr(t0)}, 5")
    e(f"s_mov_b64 {sr(sMK,2)}, -1")
    e(f"s_cmp_eq_u32 {sr(sSTR)}, 16")
    e("s_cbranch_scc1 L_sh_go")
    e(f"s_and_b32 {sr(t0)}, {sr(sZC)}, 3")
    e(f"s_lshl_b32 {sr(t0)}, {sr(t0)}, 2")
    e(f"s_lshl_b64 {sr(sMK,2)}, {sr(mSL,2)}, {sr(t0)}")
    e(f"s_bfe_u32 {sr(t0)}, {sr(sZC)}, 0x20002")
    e(f"s_cmp_eq_u32 {sr(t0)}, {sr(sW)}")
    e("s_cbranch_scc0 L_sh_next")
    lab("L_sh_go")
    probe("cons", 0)
    kreads()
    masks()
    qk()
    e("s_nop 3")
    vreads()
    softmax_a()
    rescale()
    e("s_waitcnt lgkmcnt(0)")
    for ee in range(8):
        pv(ee)
    probe("cons", 1)
    lab("L_sh_next")
    c("advance the fragment addresses to the next ring slot")
    e(f"s_add_u32 {sr(sIT)}, {sr(sIT)}, 1")
    e(f"s_bitcmp1_b32 {sr(sIT)}, 0")
    e(f"s_cselect_b32 {sr(t0)}, 1, 3")
    e(f"s_lshl_b32 {sr(t0)}, {sr(t0)}, 14")
    for i in range(12):
        e(f"v_xor_b32 {vr(vKA+i)}, {sr(t0)}, {vr(vKA+i)}")
    e(f"s_add_u32 {sr(sZC)}, {sr(sZC)}, {sr(sSTR)}")
    e(f"s_cmp_lt_u32 {sr(sZC)}, 256")
    e("s_cbranch_scc1 L_sh_loop")
    stamp(2)
    c("publish this wave's 16 columns (transpose through its own LDS region)")
    lsum()
    part_addr(vC, None, vWS_, vA1)
    e(f"v_min_u32 {vr(vM)}, -2, {vr(vM)}")
    e(f"v_min_u32 {vr(vLs)}, -2, {vr(vLs)}")
    for i in range(32):
        e(f"v_min_u32 {vr(vO+i)}, -2, {vr(vO+i)}")
    e("s_barrier")
    for ee in range(8):
        e(f"ds_write_b128 {vr(vLWa)}, {vr(vO+4*ee,4)} offset:{64*ee}")
    e(f"v_mul_u32_u24 {vr(vA2)}, {CSTR}, {vr(vG)}")
    e(f"v_lshl_add_u32 {vr(vA2)}, {vr(vC)}, 4, {vr(vA2)}")
    e(f"v_add_u32 {vr(vA2)}, {sr(sLB)}, {vr(vA2)}")
    e(f"v_lshlrev_b32 {vr(vCC)}, 12, {vr(vG)}")
    e(f"v_lshl_add_u32 {vr(vCC)}, {vr(vC)}, 4, {vr(vCC)}")
    e(f"s_lshl_b32 {sr(t6)}, {sr(sKS)}, 9")
    e("s_waitcnt lgkmcnt(0)")
    for i in range(4):
        for q in range(2):
            e(f"ds_read_b128 {vr(vOq+8*i+4*q,4)}, {vr(vA2)} offset:{4*CSTR*i+256*q}")
    e("s_mov_b64 exec, 0xffff")
    e(f"global_store_dwordx2 {vr(vWS_)}, {vr(vM,2)}, {sr(sWS,2)} sc1")
    e("s_mov_b64 exec, -1")
    for i in range(4):
        slot_base(i, vSt+i, vCC)
        e(f"s_waitcnt lgkmcnt({6-2*i})")
        e(f"global_store_dwordx4 {vr(vSt+i)}, {vr(vOq+8*i,4)}, {sr(sWS,2)} sc1")
        e(f"global_store_dwordx4 {vr(vSt+i)}, {vr(vOq+8*i+4,4)}, {sr(sWS,2)} offset:256 sc1")

    lab("L_done")
    if opt.stamps:
        e("s_waitcnt vmcnt(0)")
        stamp(3)
        e(f"s_getreg_b32 {sr(t5)}, hwreg(HW_REG_XCC_ID)")
        e(f"s_getreg_b32 {sr(t6)}, hwreg(HW_REG_HW_ID)")
        e("s_waitcnt lgkmcnt(0)")
        e(f"s_lshl_b32 {sr(t3)}, s2, 2")
        e(f"s_add_u32 {sr(t3)}, {sr(t3)}, {sr(sW)}")
        e(f"s_lshl_b32 {sr(t3)}, {sr(t3)}, 6")
        e(f"s_add_u32 {sr(t3)}, {sr(t3)}, {STAMPS}")
        e(f"s_sub_u32 {sr(sIT)}, {sr(sIT)}, 1")
        e(f"v_mov_b32 v4, {sr(t3)}")
        for i in range(8):
            e(f"v_mov_b32 v{8+i}, {sr(sST+i)}")
        e(f"v_mov_b32 v16, {sr(t5)}")
        e(f"v_mov_b32 v17, {sr(t6)}")
        for i in range(4):
            e(f"v_mov_b32 v{18+i}, {sr(sST+8+i)}")
        e(f"v_mov_b32 v22, {sr(sBHP)}")
        e(f"v_mov_b32 v23, {sr(sIT)}")
        e("s_mov_b64 exec, 1")
        e(f"global_store_dwordx4 v4, v[8:11], {sr(sWS,2)}")
        e(f"global_store_dwordx4 v4, v[12:15], {sr(sWS,2)} offset:16")
        e(f"global_store_dwordx4 v4, v[16:19], {sr(sWS,2)} offset:32")
        e(f"global_store_dwordx4 v4, v[20:23], {sr(sWS,2)} offset:48")
    if opt.amp:
        p = [int(x) for x in opt.amp.split(",")]
        a, b = p[0], p[1]
        if len(p) > 2:
            e(f"s_cmp_eq_u32 s2, {p[2]}")
            e("s_cbranch_scc0 L_end")
            e(f"s_cmp_eq_u32 {sr(sW)}, {p[3]}")
            e("s_cbranch_scc0 L_end")
        e(f"s_sub_u32 {sr(t0)}, {sr(sST+2*b)}, {sr(sST+2*a)}")
        e(f"s_lshl_b32 {sr(t0)}, {sr(t0)}, {5 if len(p)>2 else 3}")
        e(f"s_min_u32 {sr(t0)}, {sr(t0)}, 100000")
        lab("L_amp")
        e(f"s_memrealtime {sr(t2,2)}")
        e("s_waitcnt lgkmcnt(0)")
        e(f"s_sub_u32 {sr(t1)}, {sr(t2)}, {sr(sST+6)}")
        e(f"s_cmp_lt_u32 {sr(t1)}, {sr(t0)}")
        e("s_cbranch_scc1 L_amp")
    if opt.amp2:
        b, lo, hi, sh = [int(x) for x in opt.amp2.split(",")]
        neg = b >= 100
        b %= 100
        e(f"s_cmp_lt_u32 s2, {lo}")
        e("s_cbranch_scc1 L_end")
        e(f"s_cmp_ge_u32 s2, {hi}")
        e("s_cbranch_scc1 L_end")
        e("s_mov_b64 exec, -1")
        e(f"v_mov_b32 v4, 0x2f0000")
        e(f"global_load_dword v5, v4, {sr(sWS,2)} sc1")
        e("s_waitcnt vmcnt(0)")
        e(f"v_readfirstlane_b32 {sr(t4)}, v5")
        if neg:
            e(f"s_sub_u32 {sr(t0)}, {sr(t4)}, {sr(sST+2*b)}")
        else:
            e(f"s_sub_u32 {sr(t0)}, {sr(sST+2*b)}, {sr(t4)}")
        e(f"s_add_u32 {sr(t0)}, {sr(t0)}, 200")
        e(f"s_max_i32 {sr(t0)}, {sr(t0)}, 0")
        e(f"s_lshl_b32 {sr(t0)}, {sr(t0)}, {sh}")
        e(f"s_min_u32 {sr(t0)}, {sr(t0)}, 100000")
        lab("L_amp2")
        e(f"s_memrealtime {sr(t2,2)}")
        e("s_waitcnt lgkmcnt(0)")
        e(f"s_sub_u32 {sr(t1)}, {sr(t2)}, {sr(t4)}")
        e(f"s_cmp_lt_u32 {sr(t1)}, {sr(t0)}")
        e("s_cbranch_scc1 L_amp2")
    lab("L_end")
    e("s_endpgm")

    out = HEADER
    out += f"; @launch grid=(256,1,1) block=({NW*64},1,1) lds={LDS}\n"
    out += '.amdgcn_target "amdgcn-amd-amdhsa--gfx950"\n.text\n'
    out += f".globl {NAME}_kernel\n.p2align 8\n.type {NAME}_kernel,@function\n{NAME}_kernel:\n"
    out += "\n".join(g.lines) + "\n"
    out += f""".section .rodata,"a"
.p2align 6
.amdhsa_kernel {NAME}_kernel
  .amdhsa_next_free_vgpr {NV}
  .amdhsa_next_free_sgpr 102
  .amdhsa_accum_offset {NV}
  .amdhsa_group_segment_fixed_size 0
  .amdhsa_kernarg_size 64
  .amdhsa_user_sgpr_count 2
  .amdhsa_user_sgpr_kernarg_segment_ptr 1
  .amdhsa_system_sgpr_workgroup_id_x 1
.end_amdhsa_kernel
"""
    return out

if __name__ == "__main__":
    ap = argparse.ArgumentParser()
    ap.add_argument("-o", default=f"cdna_kernels/{NAME}.s")
    ap.add_argument("--F", default="35,27,32,32")
    ap.add_argument("--spec", type=int, default=1)
    ap.add_argument("--spread", type=int, default=1)
    ap.add_argument("--rsleep", type=int, default=2)
    ap.add_argument("--lds", type=int, default=0)
    ap.add_argument("--pol", default="nt")
    ap.add_argument("--pol_out", default="")
    ap.add_argument("--stamps", action="store_true")
    ap.add_argument("--nobar", action="store_true")
    ap.add_argument("--amp", default="")
    ap.add_argument("--amp2", default="")
    ap.add_argument("--mid", type=int, default=1)
    ap.add_argument("--probe", default="first")
    ap.add_argument("--clk", default="s_memrealtime")
    opt = ap.parse_args()
    for k in ("pol", "pol_out"):
        v = getattr(opt, k)
        setattr(opt, k, (" " + v.replace("+", " ")) if v else "")
    open(opt.o, "w").write(build(opt))
```

```python
import sys, struct, argparse

NAME = "standalone__paged_block_table_kv_radixattention__sampling"

HEADER = """; Kernarg layout for this problem (64 bytes, ptrs only, base s[0:1]):
"""

def f2u(x):
    return struct.unpack("<I", struct.pack("<f", x))[0]

class Gen:
    def __init__(self, opt):
        self.o = opt
        self.lines = []
        self.nlab = 0
    def e(self, s):
        self.lines.append("    " + s)
    def c(self, s):
        self.lines.append("    ; " + s)
    def lab(self, name):
        self.lines.append(name + ":")
    def newlab(self, p="L"):
        self.nlab += 1
        return f"{p}_{self.nlab}"

def vr(b, n=1):
    return f"v{b}" if n == 1 else f"v[{b}:{b+n-1}]"
def sr(b, n=1):
    return f"s{b}" if n == 1 else f"s[{b}:{b+n-1}]"

def build(opt):
    g = Gen(opt)
    e, c, lab = g.e, g.c, g.lab
    NW = 4
    Fc = [int(x) for x in opt.F.split(",")]
    FPACK = sum((64 + Fc[i]) << (8*i) for i in range(4))
    KVB = 2176 * 32768
    CSTR = 528
    WSTR = 16384
    STAT = 16 * CSTR
    LDS = max(65536, opt.lds)
    pol = opt.pol
    WSTAT = 0x200000
    STAMPS = 0x300000
    NG = 7
    NSIG = 128
    NL = 18
    sQ, sK, sV, sBT, sCTX, sOUT, sDBG, sWS = 4, 6, 8, 10, 12, 14, 16, 18
    srdK, srdV = 20, 24
    sBHP, sKS, sX_, sIDX = 28, 29, 30, 31
    sW, sHD, sS0, sSTR, sROLE = 32, 33, 34, 35, 36
    sIT, sREM, sLB = 37, 38, 39
    sCS, sONCE, sZI, sZC = 40, 41, 42, 43
    mSL = 44
    sB0, sB1, sPOS, sH8 = 46, 47, 48, 49
    sMK = 50
    sSL, sEND = 52, 53
    mIT = 54
    sFAST = 56
    sGL, sMW, sPHP = 61, 62, 60
    sCM = 66
    t0, t1, t2, t3, t4, t5, t6, t7 = 82, 83, 84, 85, 86, 87, 88, 89
    sST = 90
    vL, vG, vC = 1, 2, 3
    vKO, vVO = 4, 8
    vQ = 12
    vO = 28
    vM, vLs, vCG = 60, 61, 62
    vMETA = 63
    vTB = 64
    vFM, vFI = 66, 67
    vS = 68
    vP = 76
    vF = 80
    vT = vF
    vLIM, vFILL, vMX, vAL, vX0, vX1, vX2, vX3 = 112, 113, 114, 115, 116, 117, 118, 119
    vKA, vVA = 120, 124
    vCNT, vZ = 132, 133
    vE = 134
    vKY = 138
    vU = 140
    vGs, vGo = 140, 156
    vWO, vWS_, vOA, vLWa, vLWs, vA1, vA2, vCC = 220, 221, 222, 223, 224, 225, 226, 227
    vWO2, vWS2 = 228, 229
    NV = 232

    def stamp(i):
        if opt.stamps:
            e(f"s_memrealtime {sr(sST+2*i,2)}")
    def probe(name, which):
        if opt.stamps and opt.probe == name:
            e(f"{opt.clk} {sr(sST+8+2*which,2)}")
            e("s_waitcnt lgkmcnt(0)")

    def list_addr_bh():
        c("vX0=step vX1=slot vX3=b*8+h -> vX3 table offset, vMETA")
        e(f"v_med3_i32 {vr(vX0)}, {vr(vX0)}, 0, {vr(vT+6)}")
        e(f"v_lshlrev_b32 {vr(vMETA)}, 5, {vr(vX0)}")
        e(f"v_lshl_add_u32 {vr(vMETA)}, {vr(vX1)}, 18, {vr(vMETA)}")
        e(f"v_lshl_add_u32 {vr(vMETA)}, {vr(vX3)}, 29, {vr(vMETA)}")
        e(f"v_lshrrev_b32 {vr(vX3)}, 3, {vr(vX3)}")
        e(f"v_lshlrev_b32 {vr(vX3)}, 10, {vr(vX3)}")
        e(f"v_lshl_add_u32 {vr(vX3)}, {vr(vX0)}, 3, {vr(vX3)}")
    def list_load():
        e(f"global_load_dwordx2 {vr(vTB,2)}, {vr(vX3)}, {sr(sBT,2)}")
    def predict():
        c("guess for the first item (checked against the table below): block = 128*row + column")
        e(f"v_readfirstlane_b32 {sr(t0)}, {vr(vX3)}")
        e(f"v_readfirstlane_b32 {sr(t2)}, {vr(vMETA)}")
        e(f"s_lshr_b32 {sr(t1)}, {sr(t0)}, 10")
        e(f"s_lshl_b32 {sr(t1)}, {sr(t1)}, 22")
        e(f"s_and_b32 {sr(t0)}, {sr(t0)}, 0x3ff")
        e(f"s_lshl_b32 {sr(t0)}, {sr(t0)}, 13")
        e(f"s_add_u32 {sr(t0)}, {sr(t0)}, {sr(t1)}")
        e(f"s_lshr_b32 {sr(t2)}, {sr(t2)}, 29")
        e(f"s_lshl_b32 {sr(t2)}, {sr(t2)}, 8")
        e(f"s_or_b32 {sr(sB0)}, {sr(t0)}, {sr(t2)}")
        e(f"s_add_u32 {sr(sB1)}, {sr(sB0)}, 0x8000")
    vQO, vCO = vT + 8, vT + 9
    def col_addr():
        c("per-lane column: Q offset and ctx offset")
        e(f"v_lshlrev_b32 {vr(vCO)}, 1, {vr(vC)}")
        e(f"v_and_b32 {vr(vCO)}, 24, {vr(vCO)}")
        e(f"v_bfe_u32 {vr(vCO)}, {sr(sBHP)}, {vr(vCO)}, 8")
        e(f"v_lshl_add_u32 {vr(vQO)}, {vr(vCO)}, 10, {vr(vT+10)}")
        e(f"v_lshrrev_b32 {vr(vCO)}, 1, {vr(vCO)}")
        e(f"v_and_b32 {vr(vCO)}, 60, {vr(vCO)}")
    def col_load():
        e(f"global_load_dword {vr(vCG)}, {vr(vCO)}, {sr(sCTX,2)}")
        for m in range(4):
            e(f"global_load_dwordx4 {vr(vQ+4*m,4)}, {vr(vQO)}, {sr(sQ,2)} offset:{64*m}")
    def part_addr(vcol, vo, vs, tmp):
        c("partial addresses for column vcol: row R=(b*8+h)*4+(col&3); O: R*4096 + k*512 ; stats: R*64 + k*8")
        e(f"v_lshlrev_b32 {vr(tmp)}, 1, {vr(vcol)}")
        e(f"v_and_b32 {vr(tmp)}, 24, {vr(tmp)}")
        e(f"v_bfe_u32 {vr(tmp)}, {sr(sPHP)}, {vr(tmp)}, 8")
        e(f"v_and_b32 {vr(vs)}, 3, {vr(vcol)}")
        e(f"v_lshl_add_u32 {vr(tmp)}, {vr(tmp)}, 2, {vr(vs)}")
        if vo is not None:
            e(f"s_lshl_b32 {sr(t3)}, {sr(sKS)}, 9")
            e(f"v_lshl_add_u32 {vr(vo)}, {vr(tmp)}, 12, {sr(t3)}")
        e(f"s_lshl_b32 {sr(t3)}, {sr(sKS)}, 3")
        e(f"s_add_u32 {sr(t3)}, {sr(t3)}, {WSTAT}")
        e(f"v_lshl_add_u32 {vr(vs)}, {vr(tmp)}, 6, {sr(t3)}")
    def slot_base(i, vdst, vlane):
        e(f"s_bfe_u32 {sr(t3)}, {sr(sPHP)}, 0x{0x80000+8*i:x}")
        e(f"s_lshl_b32 {sr(t3)}, {sr(t3)}, 14")
        e(f"s_add_u32 {sr(t3)}, {sr(t3)}, {sr(t6)}")
        e(f"v_add_u32 {vr(vdst)}, {sr(t3)}, {vr(vlane)}")
    def clear_body():
        c("clear the 16 partial columns with the canary")
        for i in range(4):
            e(f"v_mov_b32 {vr(vS+i)}, -1")
        part_addr(vC, None, vT+13, vT+14)
        e(f"global_store_dwordx2 {vr(vT+13)}, {vr(vS,2)}, {sr(sWS,2)} sc1")
        e(f"v_lshlrev_b32 {vr(vT+11)}, 12, {vr(vG)}")
        e(f"v_lshl_add_u32 {vr(vT+11)}, {vr(vC)}, 4, {vr(vT+11)}")
        e(f"s_lshl_b32 {sr(t6)}, {sr(sKS)}, 9")
        for i in range(4):
            slot_base(i, vT+12, vT+11)
            e(f"global_store_dwordx4 {vr(vT+12)}, {vr(vS,4)}, {sr(sWS,2)} sc1")
            e(f"global_store_dwordx4 {vr(vT+12)}, {vr(vS,4)}, {sr(sWS,2)} offset:256 sc1")
    def setup_k():
        c("K DMA source offsets (XOR-swizzled)")
        e(f"v_xor_b32 {vr(vT+16)}, {vr(vC)}, {vr(vG)}")
        e(f"v_lshlrev_b32 {vr(vT+17)}, 11, {vr(vG)}")
        e(f"v_lshl_add_u32 {vr(vKO)}, {vr(vT+16)}, 4, {vr(vT+17)}")
        for n in range(1, 4):
            e(f"v_xor_b32 {vr(vKO+n)}, {n<<6}, {vr(vKO)}")
            e(f"v_add_u32 {vr(vKO+n)}, {n*7168}, {vr(vKO+n)}")
        e(f"s_lshl_b32 {sr(sLB)}, {sr(sW)}, 14")
        e(f"s_mov_b32 {sr(srdK+2)}, {KVB}")
        e(f"s_mov_b32 {sr(srdK+3)}, 0x20000")
    def setup_v(dst=None):
        c("V DMA source offsets")
        d = vVO if dst is None else dst
        e(f"v_lshlrev_b32 {vr(vT+16)}, 1, {vr(vG)}")
        e(f"v_xor_b32 {vr(vT+16)}, {vr(vC)}, {vr(vT+16)}")
        e(f"v_lshl_add_u32 {vr(d)}, {vr(vT+16)}, 4, {vr(vT+17)}")
        e(f"v_xor_b32 {vr(d+1)}, 128, {vr(d)}")
        e(f"v_add_u32 {vr(d+3)}, {3*7168}, {vr(d+1)}")
        e(f"v_add_u32 {vr(d+1)}, 7168, {vr(d+1)}")
        e(f"v_add_u32 {vr(d+2)}, {2*7168}, {vr(d)}")
    def srd_k():
        e(f"s_mov_b32 {sr(srdK)}, {sr(sK)}")
        e(f"s_and_b32 {sr(srdK+1)}, {sr(sK+1)}, 0xffff")
    def srd_v():
        e(f"s_mov_b32 {sr(srdV)}, {sr(sV)}")
        e(f"s_and_b32 {sr(srdV+1)}, {sr(sV+1)}, 0xffff")
        e(f"s_mov_b32 {sr(srdV+2)}, {sr(srdK+2)}")
        e(f"s_mov_b32 {sr(srdV+3)}, 0x20000")
    def misc():
        e(f"v_and_b32 {vr(vL)}, 63, v0")
        e(f"v_and_b32 {vr(vX2)}, 3, v0")
        e(f"v_lshlrev_b32 {vr(vT+10)}, 4, {vr(vG)}")
        e(f"v_lshl_add_u32 {vr(vT+10)}, {vr(vX2)}, 8, {vr(vT+10)}")
        e(f"v_mov_b32 {vr(vT+6)}, 127")
        e(f"s_mov_b32 {sr(mSL)}, 0x000f000f")
        e(f"s_mov_b32 {sr(mSL+1)}, {sr(mSL)}")
        e(f"s_mov_b32 {sr(sIT)}, 0")
    def cpf():
        if opt.cpf:
            c("pull the kernel's code into L2: one dword per 64 bytes")
            e(f"v_lshlrev_b32 {vr(vF+30)}, 6, v0")
            e(f"v_min_u32 {vr(vF+30)}, {opt.code_bytes}, {vr(vF+30)}")
            e(f"global_load_dword {vr(vF+31)}, {vr(vF+30)}, {sr(sCM,2)}")
    def ranks():
        c("vKY: ctx of row c -> key = nsteps*16 + row ; vX3 = rank of the key")
        e(f"v_mov_b32 {vr(vX2)}, 0x1000")
        e(f"v_cmp_lt_i32 vcc, 0, {vr(vKY)}")
        e(f"v_min_i32 {vr(vKY)}, {vr(vKY)}, {vr(vX2)}")
        e(f"v_mov_b32 {vr(vX3)}, 0")
        e(f"v_cndmask_b32 {vr(vKY)}, {vr(vX2)}, {vr(vKY)}, vcc")
        e(f"v_add_u32 {vr(vKY)}, 31, {vr(vKY)}")
        e(f"v_lshrrev_b32 {vr(vKY)}, 5, {vr(vKY)}")
        e(f"v_lshl_add_u32 {vr(vKY)}, {vr(vKY)}, 4, {vr(vC)}")
        e("s_nop 1")
        for k in range(1, 16):
            e(f"v_sub_u32_dpp {vr(vT+(k&3))}, {vr(vKY)}, {vr(vKY)} row_ror:{k} row_mask:0xf bank_mask:0xf")
            e(f"v_lshrrev_b32 {vr(vT+(k&3))}, 31, {vr(vT+(k&3))}")
            e(f"v_add_u32 {vr(vX3)}, {vr(vX3)}, {vr(vT+(k&3))}")
    def gload():
        e(f"global_load_dwordx4 {vr(vGs+8,4)}, {vr(vWS2)}, {sr(sWS,2)} offset:32 sc1")
        e(f"global_load_dwordx2 {vr(vGs+12,2)}, {vr(vWS2)}, {sr(sWS,2)} offset:48 sc1")
        for k in (0, 2):
            e(f"global_load_dwordx4 {vr(vGs+2*k,4)}, {vr(vWS_)}, {sr(sWS,2)} offset:{8*k} sc1")
        for k in range(NG):
            for q in range(2):
                e(f"global_load_dwordx4 {vr(vGo+8*k+4*q,4)}, {vr(vWO if k < 4 else vWO2)}, {sr(sWS,2)} offset:{512*k+256*q} sc1")
    def lsum():
        c("reduce l over the 4 lane groups")
        e(f"v_mov_b32 {vr(vX0)}, {vr(vLs)}")
        e("s_nop 1")
        e(f"v_permlane32_swap_b32 {vr(vLs)}, {vr(vX0)}")
        e(f"v_add_f32 {vr(vLs)}, {vr(vLs)}, {vr(vX0)}")
        e(f"v_mov_b32 {vr(vX0)}, {vr(vLs)}")
        e("s_nop 1")
        e(f"v_permlane16_swap_b32 {vr(vLs)}, {vr(vX0)}")
        e(f"v_add_f32 {vr(vLs)}, {vr(vLs)}, {vr(vX0)}")
    def fetch():
        e(f"v_readlane_b32 {sr(t2)}, {vr(vMETA)}, {sr(sIT)}")
        e(f"v_readlane_b32 {sr(t0)}, {vr(vTB)}, {sr(sIT)}")
        e(f"v_readlane_b32 {sr(t1)}, {vr(vTB+1)}, {sr(sIT)}")
        e(f"s_lshr_b32 {sr(t4)}, {sr(t2)}, 29")
        e(f"s_lshl_b32 {sr(t4)}, {sr(t4)}, 8")
        e(f"s_lshl_b32 {sr(t0)}, {sr(t0)}, 15")
        e(f"s_lshl_b32 {sr(t1)}, {sr(t1)}, 15")
        e(f"s_or_b32 {sr(sB0)}, {sr(t0)}, {sr(t4)}")
        e(f"s_or_b32 {sr(sB1)}, {sr(t1)}, {sr(t4)}")
        e(f"s_add_u32 {sr(sIT)}, {sr(sIT)}, 1")
    def decode():
        e(f"s_and_b32 {sr(sPOS)}, {sr(t2)}, 0xffff")
        e(f"s_bfe_u32 {sr(t3)}, {sr(t2)}, 0x40010")
        e(f"s_lshl_b64 {sr(sMK,2)}, {sr(mIT,2)}, {sr(t3)}")
    def dma4(off, srd, soff):
        for n in range(4):
            o = f" offset:{1024*n}" if n else ""
            e(f"buffer_load_dwordx4 {vr(off+n)}, {sr(srd,4)}, {sr(soff)} offen{o}{pol} lds")
    def issue(kv):
        off = vVO if kv == "V" else vKO
        srd = srdV if kv == "V" else srdK
        base = 8192 if kv == "V" else 0
        if base:
            e(f"s_add_u32 m0, {sr(sLB)}, {base}")
        else:
            e(f"s_mov_b32 m0, {sr(sLB)}")
        e("s_nop 0")
        dma4(off, srd, sB0)
        e(f"s_add_u32 m0, {sr(sLB)}, {base+4096}")
        e("s_nop 0")
        dma4(off, srd, sB1)
    def signal():
        e(f"v_mov_b32 {vr(vCNT)}, 1")
        e("s_mov_b64 exec, 1")
        e(f"global_atomic_add {vr(vZ)}, {vr(vCNT)}, {sr(sDBG,2)}")
        e("s_mov_b64 exec, -1")

    e("s_cmp_ge_u32 s2, 256")
    e("s_cbranch_scc1 L_end")
    e(f"s_load_dwordx16 s[4:19], s[0:1], 0")
    stamp(0)
    if opt.cpf:
        e(f"s_getpc_b64 {sr(sCM,2)}")
    e(f"v_lshrrev_b32 {vr(vX0)}, 6, v0")
    e(f"v_and_b32 {vr(vC)}, 15, v0")
    e(f"v_bfe_u32 {vr(vG)}, v0, 4, 2")
    e(f"v_readfirstlane_b32 {sr(sW)}, {vr(vX0)}")
    e(f"s_lshr_b32 {sr(sIDX)}, s2, 3")
    c("head: bit1 = id&1, bits 0/2 rotate with idx")
    e(f"s_lshr_b32 {sr(t0)}, s2, 1")
    e(f"s_add_u32 {sr(t0)}, {sr(t0)}, {sr(sIDX)}")
    e(f"s_and_b32 {sr(t1)}, {sr(t0)}, 2")
    e(f"s_and_b32 {sr(t0)}, {sr(t0)}, 1")
    e(f"s_and_b32 {sr(t2)}, s2, 1")
    e(f"s_or_b32 {sr(t1)}, {sr(t1)}, {sr(t2)}")
    e(f"s_lshl1_add_u32 {sr(sHD)}, {sr(t1)}, {sr(t0)}")
    setup_k()
    e(f"s_cmp_lt_u32 {sr(sIDX)}, 16")
    e("s_cbranch_scc1 L_helper")
    c("======== finisher (b, h): steps 64+w+4*lane")
    c("guess for the first item (checked against the table below): block = 128*row + column")
    e(f"s_sub_u32 {sr(t0)}, {sr(sIDX)}, 15")
    e(f"s_lshl_b32 {sr(t0)}, {sr(t0)}, 6")
    e(f"s_add_u32 {sr(t0)}, {sr(t0)}, {sr(sW)}")
    e(f"s_lshl_b32 {sr(t0)}, {sr(t0)}, 8")
    e(f"s_add_u32 {sr(t0)}, {sr(t0)}, {sr(sHD)}")
    e(f"s_lshl_b32 {sr(sB0)}, {sr(t0)}, 8")
    e(f"s_add_u32 {sr(sB1)}, {sr(sB0)}, 0x8000")
    e("s_waitcnt lgkmcnt(0)")
    srd_k()
    stamp(1)
    issue("K")
    misc()
    e(f"s_mov_b32 {sr(sROLE)}, 1")
    e(f"s_and_b32 {sr(t1)}, s2, 0x78")
    e(f"s_or_b32 {sr(t1)}, {sr(t1)}, {sr(sHD)}")
    e(f"s_mul_i32 {sr(sBHP)}, {sr(t1)}, 0x01010101")
    e(f"s_mov_b32 {sr(sPHP)}, {sr(sBHP)}")
    e(f"s_add_u32 {sr(t2)}, {sr(sW)}, 64")
    e(f"v_lshl_add_u32 {vr(vX0)}, {vr(vL)}, 2, {sr(t2)}")
    e(f"v_mov_b32 {vr(vX1)}, 0")
    e(f"v_mov_b32 {vr(vX3)}, {sr(t1)}")
    list_addr_bh()
    e(f"v_lshlrev_b32 {vr(vT+7)}, 2, {vr(vC)}")
    e(f"global_load_dword {vr(vKY)}, {vr(vT+7)}, {sr(sCTX,2)}")
    e(f"s_and_b32 {sr(t0)}, {sr(sHD)}, 3")
    e(f"s_lshl_b32 {sr(t0)}, {sr(t0)}, 3")
    e(f"s_lshr_b32 {sr(sEND)}, 0x{FPACK:08x}, {sr(t0)}")
    e(f"s_and_b32 {sr(sEND)}, {sr(sEND)}, 0xff")
    e(f"s_mov_b32 {sr(sKS)}, 0")
    e(f"s_mov_b64 {sr(mIT,2)}, -1")
    lab("L_go")
    list_load()
    col_addr()
    col_load()
    setup_v()
    srd_v()
    issue("V")
    lab("L_init")
    if opt.amp2:
        e(f"s_or_b32 {sr(t0)}, s2, {sr(sW)}")
        e("s_cbranch_scc1 L_noref")
        e(f"v_mov_b32 {vr(vX0)}, 0x2f0000")
        e(f"v_mov_b32 {vr(vX1)}, {sr(sST)}")
        e(f"global_store_dword {vr(vX0)}, {vr(vX1)}, {sr(sWS,2)} sc1")
        lab("L_noref")
    e(f"s_mov_b32 {sr(sCS)}, 0x{f2u(128**-0.5 * 1.4426950408889634):08x}")
    for i in range(32):
        e(f"v_mov_b32 {vr(vO+i)}, 0")
    e(f"v_mov_b32 {vr(vM)}, 0x{f2u(-1e30):08x}")
    e(f"v_mov_b32 {vr(vLs)}, 0")
    e(f"v_mov_b32 {vr(vFM)}, 0x{f2u(-1e9/(128**-0.5)):08x}")
    e(f"v_mov_b32 {vr(vFI)}, 0x{f2u(-3e38):08x}")
    e(f"v_mov_b32 {vr(vZ)}, 0")
    e(f"v_mov_b32 {vr(vCNT)}, 0")
    c("LDS fragment addresses")
    e(f"s_cmp_eq_u32 {sr(sROLE)}, 2")
    e(f"s_cselect_b32 {sr(t0)}, 0, {sr(sLB)}")
    e(f"v_xor_b32 {vr(vX0)}, {vr(vC)}, {vr(vG)}")
    e(f"v_lshl_add_u32 {vr(vX1)}, {vr(vC)}, 8, {sr(t0)}")
    e(f"v_lshl_add_u32 {vr(vKA)}, {vr(vX0)}, 4, {vr(vX1)}")
    for m in range(1, 4):
        e(f"v_xor_b32 {vr(vKA+m)}, {m<<6}, {vr(vKA)}")
    e(f"v_lshrrev_b32 {vr(vX0)}, 2, {vr(vL)}")
    e(f"v_lshl_add_u32 {vr(vX1)}, {vr(vX0)}, 8, {sr(t0)}")
    e(f"v_and_b32 {vr(vX0)}, 7, {vr(vX0)}")
    e(f"v_lshl_add_u32 {vr(vX1)}, {vr(vX0)}, 5, {vr(vX1)}")
    e(f"v_and_b32 {vr(vX0)}, 3, {vr(vL)}")
    e(f"v_lshl_add_u32 {vr(vVA)}, {vr(vX0)}, 3, {vr(vX1)}")
    for ee in range(1, 8):
        e(f"v_xor_b32 {vr(vVA+ee)}, {ee<<5}, {vr(vVA)}")
    c("epilogue addresses")
    e(f"v_lshrrev_b32 {vr(vCC)}, 4, v0")
    part_addr(vCC, vWO, vWS_, vX0)
    e(f"v_lshl_add_u32 {vr(vWO)}, {vr(vC)}, 4, {vr(vWO)}")
    e(f"v_mov_b32 {vr(vWO2)}, {vr(vWO)}")
    e(f"v_mov_b32 {vr(vWS2)}, {vr(vWS_)}")
    e(f"v_mul_u32_u24 {vr(vLWa)}, {CSTR}, {vr(vC)}")
    e(f"v_lshl_add_u32 {vr(vLWa)}, {vr(vG)}, 4, {vr(vLWa)}")
    e(f"v_add_u32 {vr(vLWa)}, {sr(sLB)}, {vr(vLWa)}")
    e(f"v_lshl_add_u32 {vr(vLWs)}, {vr(vC)}, 3, {sr(sLB)}")
    e(f"v_lshlrev_b32 {vr(vA1)}, 3, {vr(vCC)}")
    e(f"v_mul_u32_u24 {vr(vA2)}, {CSTR}, {vr(vCC)}")
    e(f"v_lshl_add_u32 {vr(vA2)}, {vr(vC)}, 4, {vr(vA2)}")
    e(f"s_and_b32 {sr(t3)}, {sr(sBHP)}, 0xff")
    e(f"s_lshl_b32 {sr(t3)}, {sr(t3)}, 10")
    e(f"v_lshl_add_u32 {vr(vOA)}, {vr(vG)}, 8, {sr(t3)}")
    e(f"v_lshl_add_u32 {vr(vOA)}, {vr(vC)}, 3, {vr(vOA)}")
    e(f"s_mov_b32 {sr(sGL)}, 0")
    e(f"s_sub_u32 {sr(sMW)}, {sr(sROLE)}, {sr(sW)}")
    c("table/ctx/Q were issued before the first V loads (shared role: before items 1,2 and the clears)")
    e(f"s_cmp_eq_u32 {sr(sROLE)}, 2")
    e("s_waitcnt vmcnt(17)")
    e("s_cbranch_scc1 L_ctx")
    e("s_waitcnt vmcnt(8)")
    lab("L_ctx")
    e(f"v_readfirstlane_b32 {sr(t7)}, {vr(vCG)}")
    e(f"v_lshlrev_b32 {vr(vX0)}, 2, {vr(vG)}")
    e(f"v_max_i32 {vr(vCG)}, 0, {vr(vCG)}")
    e(f"v_min_i32 {vr(vCG)}, 0x1000, {vr(vCG)}")
    e(f"v_sub_u32 {vr(vCG)}, {vr(vCG)}, {vr(vX0)}")
    e("s_cbranch_scc1 L_sh_verify")
    if opt.spec:
        e(f"s_mov_b32 {sr(t5)}, {sr(sB0)}")
        e(f"s_mov_b32 {sr(t6)}, {sr(sB1)}")
        fetch()
        decode()
        e(f"s_xor_b32 {sr(t5)}, {sr(t5)}, {sr(sB0)}")
        e(f"s_xor_b32 {sr(t6)}, {sr(t6)}, {sr(sB1)}")
        e(f"s_or_b32 {sr(t5)}, {sr(t5)}, {sr(t6)}")
        e("s_cbranch_scc1 L_respec")
        lab("L_specok")
    e(f"s_cmp_eq_u32 {sr(sROLE)}, 1")
    e("s_cbranch_scc0 L_cnt")
    c("finisher item count (at least one: a step past the context is fully masked)")
    e(f"s_min_i32 {sr(t1)}, {sr(t7)}, 4096")
    e(f"s_cmp_le_i32 {sr(t7)}, 0")
    e(f"s_cselect_b32 {sr(t1)}, 4096, {sr(t1)}")
    e(f"s_add_u32 {sr(t1)}, {sr(t1)}, 31")
    e(f"s_lshr_b32 {sr(t1)}, {sr(t1)}, 5")
    e(f"s_min_u32 {sr(t1)}, {sr(t1)}, {sr(sEND)}")
    e(f"s_sub_i32 {sr(t1)}, {sr(t1)}, {sr(sW)}")
    e(f"s_sub_i32 {sr(t1)}, {sr(t1)}, 61")
    e(f"s_ashr_i32 {sr(t1)}, {sr(t1)}, 2")
    e(f"s_max_i32 {sr(sREM)}, {sr(t1)}, 1")
    e(f"s_cmp_eq_u32 {sr(sW)}, 0")
    e("s_cbranch_scc0 L_cnt")
    c("the mixed helpers' partials are filed under the rank of the row")
    ranks()
    e(f"s_sub_u32 {sr(t0)}, {sr(sIDX)}, 16")
    e("s_nop 0")
    e(f"v_readlane_b32 {sr(t1)}, {vr(vX3)}, {sr(t0)}")
    e(f"s_sub_i32 {sr(t1)}, {sr(t1)}, {sr(t0)}")
    e(f"s_lshl_b32 {sr(t0)}, {sr(t1)}, 17")
    e(f"s_lshl_b32 {sr(t1)}, {sr(t1)}, 11")
    e(f"v_add_u32 {vr(vWO2)}, {sr(t0)}, {vr(vWO)}")
    e(f"v_add_u32 {vr(vWS2)}, {sr(t1)}, {vr(vWS_)}")
    lab("L_cnt")
    c("once-hook (wave 0): finishers sample the cleared-counter when 3 items remain, helpers signal after item 0")
    e(f"s_cmp_eq_u32 {sr(sROLE)}, 1")
    e(f"s_cselect_b32 {sr(sONCE)}, 3, {sr(sREM)}")
    e(f"s_cmp_eq_u32 {sr(sW)}, 0")
    e(f"s_cselect_b32 {sr(sONCE)}, {sr(sONCE)}, 0")

    def kreads():
        for m in range(4):
            e(f"ds_read_b128 {vr(vF+8*m,4)}, {vr(vKA+m)}")
            e(f"ds_read_b128 {vr(vF+8*m+4,4)}, {vr(vKA+m)} offset:4096")
    def qk():
        for m in range(4):
            e(f"s_waitcnt lgkmcnt({6-2*m})")
            c0 = "0" if m == 0 else vr(vS, 4)
            c1 = "0" if m == 0 else vr(vS+4, 4)
            e(f"v_mfma_f32_16x16x32_bf16 {vr(vS,4)}, {vr(vF+8*m,4)}, {vr(vQ+4*m,4)}, {c0}")
            e(f"v_mfma_f32_16x16x32_bf16 {vr(vS+4,4)}, {vr(vF+8*m+4,4)}, {vr(vQ+4*m,4)}, {c1}")
    def masks():
        e(f"v_subrev_u32 {vr(vLIM)}, {sr(sPOS)}, {vr(vCG)}")
        e(f"v_cndmask_b32 {vr(vLIM)}, 0, {vr(vLIM)}, {sr(sMK,2)}")
        e(f"v_cndmask_b32 {vr(vFILL)}, {vr(vFI)}, {vr(vFM)}, {sr(sMK,2)}")
        e(f"v_cmp_gt_i32 {sr(sFAST,2)}, 20, {vr(vLIM)}")
    def vreads():
        for ee in range(8):
            e(f"ds_read_b64_tr_b16 {vr(vF+4*ee,2)}, {vr(vVA+ee)} offset:8192")
            e(f"ds_read_b64_tr_b16 {vr(vF+4*ee+2,2)}, {vr(vVA+ee)} offset:12288")
    def softmax_a():
        la = g.newlab()
        e(f"s_cmp_eq_u64 {sr(sFAST,2)}, 0")
        e(f"s_cbranch_scc1 {la}")
        for j in range(8):
            e(f"v_cmp_lt_i32 {sr(sCM+2*j,2)}, {(j>>2)*16+(j&3)}, {vr(vLIM)}")
        for j in range(8):
            e(f"v_cndmask_b32 {vr(vS+j)}, {vr(vFILL)}, {vr(vS+j)}, {sr(sCM+2*j,2)}")
        lab(la)
        e(f"v_max3_f32 {vr(vMX)}, {vr(vS)}, {vr(vS+1)}, {vr(vS+2)}")
        e(f"v_max3_f32 {vr(vX0)}, {vr(vS+3)}, {vr(vS+4)}, {vr(vS+5)}")
        e(f"v_max3_f32 {vr(vMX)}, {vr(vMX)}, {vr(vS+6)}, {vr(vS+7)}")
        e(f"v_max3_f32 {vr(vMX)}, {vr(vMX)}, {vr(vX0)}, {vr(vM)}")
        e(f"v_mov_b32 {vr(vX0)}, {vr(vMX)}")
        e("s_nop 1")
        e(f"v_permlane32_swap_b32 {vr(vMX)}, {vr(vX0)}")
        e(f"v_max_f32 {vr(vMX)}, {vr(vMX)}, {vr(vX0)}")
        e(f"v_mov_b32 {vr(vX0)}, {vr(vMX)}")
        e("s_nop 1")
        e(f"v_permlane16_swap_b32 {vr(vMX)}, {vr(vX0)}")
        e(f"v_max_f32 {vr(vMX)}, {vr(vMX)}, {vr(vX0)}")
        e(f"v_mul_f32 {vr(vX1)}, {sr(sCS)}, {vr(vMX)}")
        e(f"v_sub_f32 {vr(vAL)}, {vr(vM)}, {vr(vMX)}")
        e(f"v_cmp_lt_f32 vcc, {vr(vM)}, {vr(vMX)}")
        for j in range(8):
            e(f"v_fma_f32 {vr(vS+j)}, {vr(vS+j)}, {sr(sCS)}, -{vr(vX1)}")
        e(f"v_mul_f32 {vr(vAL)}, {sr(sCS)}, {vr(vAL)}")
        for j in range(8):
            e(f"v_exp_f32 {vr(vS+j)}, {vr(vS+j)}")
        e(f"v_exp_f32 {vr(vAL)}, {vr(vAL)}")
        e(f"v_mov_b32 {vr(vM)}, {vr(vMX)}")
        for u in range(4):
            e(f"v_cvt_pk_bf16_f32 {vr(vP+u)}, {vr(vS+2*u)}, {vr(vS+2*u+1)}")
        e(f"v_pk_add_f32 {vr(vS,2)}, {vr(vS,2)}, {vr(vS+2,2)}")
        e(f"v_pk_add_f32 {vr(vS+4,2)}, {vr(vS+4,2)}, {vr(vS+6,2)}")
        e(f"v_pk_add_f32 {vr(vS,2)}, {vr(vS,2)}, {vr(vS+4,2)}")
        e(f"v_fma_f32 {vr(vLs)}, {vr(vLs)}, {vr(vAL)}, {vr(vS)}")
        e(f"v_add_f32 {vr(vLs)}, {vr(vLs)}, {vr(vS+1)}")
    def rescale():
        la = g.newlab()
        e(f"s_cbranch_vccz {la}")
        for i in range(0, 32, 2):
            e(f"v_pk_mul_f32 {vr(vO+i,2)}, {vr(vO+i,2)}, {vr(vMX,2)} op_sel:[0,1] op_sel_hi:[1,1]")
        lab(la)
    def pv(ee):
        ob = vO + 4*ee
        e(f"v_mfma_f32_16x16x32_bf16 {vr(ob,4)}, {vr(vF+4*ee,4)}, {vr(vP,4)}, {vr(ob,4)}")

    lab("L_loop")
    e("s_waitcnt vmcnt(8)")
    if opt.stamps and opt.probe == "first":
        e(f"s_cmp_eq_u32 {sr(sIT)}, 1")
        e(f"s_cbranch_scc0 L_q1")
        stamp(4)
        e("s_waitcnt lgkmcnt(0)")
        lab("L_q1")
    kreads()
    masks()
    fetch()
    qk()
    e(f"s_cmp_eq_u32 {sr(sREM)}, 1")
    e("s_cbranch_scc1 L_noK")
    issue("K")
    decode()
    e("s_branch L_sm")
    lab("L_noK")
    e(f"s_cmp_eq_u32 {sr(sMW)}, 1")
    e("s_cbranch_scc1 L_early")
    e("s_nop 6")
    lab("L_sm")
    softmax_a()
    rescale()
    e(f"s_cmp_eq_u32 {sr(sREM)}, 1")
    e("s_cbranch_scc1 L_last")
    e("s_waitcnt vmcnt(8)")
    e("s_branch L_vok")
    lab("L_last")
    lsum()
    e(f"s_cmp_eq_u32 {sr(sGL)}, 1")
    e(f"s_waitcnt vmcnt({NL})")
    e("s_cbranch_scc1 L_vok")
    e("s_waitcnt vmcnt(0)")
    lab("L_vok")
    vreads()
    for ee in range(8):
        e(f"s_waitcnt lgkmcnt({14-2*ee})")
        pv(ee)
    e(f"s_cmp_eq_u32 {sr(sREM)}, 1")
    e("s_cbranch_scc1 L_noV")
    issue("V")
    lab("L_noV")
    e(f"s_cmp_eq_u32 {sr(sREM)}, {sr(sONCE)}")
    e("s_cbranch_scc1 L_hook")
    lab("L_hook_done")
    if opt.stamps and opt.probe == "first":
        e(f"s_cmp_eq_u32 {sr(sIT)}, {opt.mid+1}")
        e(f"s_cbranch_scc0 L_q2")
        stamp(5)
        e("s_waitcnt lgkmcnt(0)")
        lab("L_q2")
    e(f"s_sub_u32 {sr(sREM)}, {sr(sREM)}, 1")
    e(f"s_cmp_lg_u32 {sr(sREM)}, 0")
    e("s_cbranch_scc1 L_loop")

    lab("L_epi")
    stamp(2)
    vSt = vS
    vOq = vF
    vR = 12
    vWt = 20
    c("finishers only need columns 0..3")
    e(f"s_cmp_eq_u32 {sr(sROLE)}, 1")
    e(f"s_cselect_b64 exec, {sr(mSL,2)}, -1")
    e(f"ds_write_b64 {vr(vLWs)}, {vr(vM,2)} offset:{STAT}")
    e("s_nop 1")
    for ee in range(8):
        e(f"ds_write_b128 {vr(vLWa)}, {vr(vO+4*ee,4)} offset:{64*ee}")
    e("s_mov_b64 exec, -1")
    e("s_cbranch_scc1 L_fin")

    def maxchain(ms):
        e(f"v_max3_f32 {vr(vMX)}, {vr(ms[0])}, {vr(ms[1])}, {vr(ms[2])}")
        i = 3
        while i < len(ms):
            if i + 1 < len(ms):
                e(f"v_max3_f32 {vr(vMX)}, {vr(vMX)}, {vr(ms[i])}, {vr(ms[i+1])}"); i += 2
            else:
                e(f"v_max_f32 {vr(vMX)}, {vr(vMX)}, {vr(ms[i])}"); i += 1
        for i in range(len(ms)):
            e(f"v_sub_f32 {vr(vWt+i)}, {vr(ms[i])}, {vr(vMX)}")
        for i in range(len(ms)):
            e(f"v_mul_f32 {vr(vWt+i)}, {sr(sCS)}, {vr(vWt+i)}")
        for i in range(len(ms)):
            e(f"v_exp_f32 {vr(vWt+i)}, {vr(vWt+i)}")
    def premerge():
        maxchain([vGs+2*k for k in range(NG)])
        e(f"v_mov_b32 {vr(vGs)}, {vr(vMX)}")
        e(f"v_mul_f32 {vr(vGs+1)}, {vr(vWt)}, {vr(vGs+1)}")
        for r in range(8):
            e(f"v_mul_f32 {vr(vGo+r)}, {vr(vWt)}, {vr(vGo+r)}")
        for i in range(1, NG):
            e(f"v_fmac_f32 {vr(vGs+1)}, {vr(vWt+i)}, {vr(vGs+2*i+1)}")
            for r in range(8):
                e(f"v_fmac_f32 {vr(vGo+r)}, {vr(vWt+i)}, {vr(vGo+8*i+r)}")
    def lds_reduce(nglob):
        c("thread: column vCC, quads vC and vC+16")
        e("s_waitcnt lgkmcnt(0)")
        e("s_barrier")
        if nglob:
            probe("tail", 1)
        for w in range(NW):
            e(f"ds_read_b64 {vr(vSt+2*w,2)}, {vr(vA1)} offset:{WSTR*w+STAT}")
        for w in range(NW):
            for q in range(2):
                e(f"ds_read_b128 {vr(vOq+8*w+4*q,4)}, {vr(vA2)} offset:{WSTR*w+256*q}")
        e(f"s_waitcnt lgkmcnt({2*NW})")
        ms = [vSt+2*w for w in range(NW)]
        ls = [vSt+2*w+1 for w in range(NW)]
        os_ = [vOq+8*w for w in range(NW)]
        if nglob:
            ms += [vGs]; ls += [vGs+1]; os_ += [vGo]
        maxchain(ms)
        e("s_nop 0")
        e(f"v_mul_f32 {vr(vAL)}, {vr(vWt)}, {vr(ls[0])}")
        for i in range(1, len(ms)):
            e(f"v_fmac_f32 {vr(vAL)}, {vr(vWt+i)}, {vr(ls[i])}")
        if nglob:
            e(f"v_rcp_f32 {vr(vAL)}, {vr(vAL)}")
        order_ = list(range(NW, len(ms))) + list(range(NW))
        first = True
        for i in order_:
            if i < NW:
                e(f"s_waitcnt lgkmcnt({2*(NW-1-i)})")
            for r in range(8):
                if first:
                    e(f"v_mul_f32 {vr(vR+r)}, {vr(vWt+i)}, {vr(os_[i]+r)}")
                else:
                    e(f"v_fmac_f32 {vr(vR+r)}, {vr(vWt+i)}, {vr(os_[i]+r)}")
            first = False

    c("---------- mixed helper: publish the workgroup partial")
    lds_reduce(0)
    c("never publish the canary pattern")
    for r in range(8):
        e(f"v_min_u32 {vr(vR+r)}, -2, {vr(vR+r)}")
    e(f"v_min_u32 {vr(vMX)}, -2, {vr(vMX)}")
    e(f"v_min_u32 {vr(vAL)}, -2, {vr(vAL)}")
    e(f"global_store_dwordx4 {vr(vWO)}, {vr(vR,4)}, {sr(sWS,2)} sc1")
    e(f"global_store_dwordx4 {vr(vWO)}, {vr(vR+4,4)}, {sr(sWS,2)} offset:256 sc1")
    e(f"v_cmp_eq_u32 vcc, 0, {vr(vC)}")
    e(f"s_and_saveexec_b64 {sr(sCM,2)}, vcc")
    e(f"global_store_dwordx2 {vr(vWS_)}, {vr(vMX,2)}, {sr(sWS,2)} sc1")
    e(f"s_mov_b64 exec, {sr(sCM,2)}")
    e("s_branch L_done")

    c("---------- finisher")
    lab("L_fin")
    e(f"s_cmp_eq_u32 {sr(sW)}, 0")
    e("s_cbranch_scc1 L_merge")
    e("s_waitcnt lgkmcnt(0)")
    e("s_barrier")
    e("s_branch L_done")
    lab("L_merge")
    e(f"s_mov_b32 {sr(t5)}, 0")
    e(f"s_cmp_eq_u32 {sr(sGL)}, 1")
    e("s_cbranch_scc1 L_chk")
    lab("L_poll")
    e(f"v_readfirstlane_b32 {sr(t4)}, {vr(vCNT)}")
    e(f"s_cmp_ge_u32 {sr(t4)}, {NSIG}")
    e("s_cbranch_scc1 L_reload")
    e(f"global_load_dword {vr(vCNT)}, {vr(vZ)}, {sr(sDBG,2)} sc1")
    e("s_sleep 8")
    e(f"s_add_u32 {sr(t5)}, {sr(t5)}, 1")
    e(f"s_cmp_lt_u32 {sr(t5)}, 0x40000")
    e("s_waitcnt vmcnt(0)")
    e("s_cbranch_scc1 L_poll")
    lab("L_reload")
    gload()
    lab("L_chk")
    e("s_waitcnt vmcnt(0)")
    e(f"v_max_u32 {vr(vX0)}, {vr(vGs)}, {vr(vGs+1)}")
    e(f"v_max_u32 {vr(vX1)}, {vr(vGs+2)}, {vr(vGs+3)}")
    regs = list(range(vGs+4, vGs+2*NG)) + list(range(vGo, vGo+8*NG))
    for i in range(0, len(regs), 2):
        a = vX0 + ((i >> 1) & 1)
        e(f"v_max3_u32 {vr(a)}, {vr(a)}, {vr(regs[i])}, {vr(regs[i+1])}")
    e(f"v_max_u32 {vr(vX0)}, {vr(vX0)}, {vr(vX1)}")
    e(f"v_cmp_eq_u32 vcc, -1, {vr(vX0)}")
    e(f"s_add_u32 {sr(t5)}, {sr(t5)}, 1")
    e("s_cbranch_vccz L_ready")
    e(f"s_sleep {opt.rsleep}")
    e(f"s_cmp_lt_u32 {sr(t5)}, 0x80000")
    e("s_cbranch_scc1 L_reload")
    lab("L_ready")
    probe("tail", 0)
    premerge()
    lds_reduce(1)
    for r in range(8):
        e(f"v_mul_f32 {vr(vR+r)}, {vr(vR+r)}, {vr(vAL)}")
    for r in range(4):
        e(f"v_cvt_pk_bf16_f32 {vr(vWt+r)}, {vr(vR+2*r)}, {vr(vR+2*r+1)}")
    po = opt.pol_out
    e(f"global_store_dwordx2 {vr(vOA)}, {vr(vWt,2)}, {sr(sOUT,2)}{po}")
    e(f"global_store_dwordx2 {vr(vOA)}, {vr(vWt+2,2)}, {sr(sOUT,2)} offset:128{po}")
    e("s_branch L_done")

    if opt.spec:
        lab("L_respec")
        c("the guess was wrong: reload the first item")
        e("s_waitcnt vmcnt(0)")
        issue("K"); issue("V")
        e("s_branch L_specok")

    lab("L_early")
    c("finisher wave 0, last item: fetch the helper partials under the V wait")
    e(f"v_readfirstlane_b32 {sr(t4)}, {vr(vCNT)}")
    e(f"s_cmp_ge_u32 {sr(t4)}, {NSIG}")
    e("s_nop 3")
    e("s_cbranch_scc0 L_sm")
    gload()
    e(f"s_mov_b32 {sr(sGL)}, 1")
    e("s_branch L_sm")

    lab("L_hook")
    e(f"s_cmp_eq_u32 {sr(sROLE)}, 1")
    e("s_cbranch_scc1 L_hook_fin")
    signal()
    e("s_branch L_hook_done")
    lab("L_hook_fin")
    e(f"global_load_dword {vr(vCNT)}, {vr(vZ)}, {sr(sDBG,2)} sc1")
    e("s_branch L_hook_done")

    lab("L_helper")
    e(f"s_cmp_lt_u32 {sr(sIDX)}, 4")
    e("s_cbranch_scc1 L_sh_pro")
    c("======== mixed helper. v=idx-4: j=v%3, u=v/3: r=((x>>1)+j)&3 + 4*(u&1), quad=u>>1, pair=x&1")
    cpf()
    e(f"v_lshlrev_b32 {vr(vT+7)}, 2, {vr(vC)}")
    e("s_waitcnt lgkmcnt(0)")
    e(f"global_load_dword {vr(vKY)}, {vr(vT+7)}, {sr(sCTX,2)}")
    misc()
    srd_k()
    e(f"s_mov_b32 {sr(sROLE)}, 0")
    e(f"s_sub_u32 {sr(t7)}, {sr(sIDX)}, 4")
    e(f"s_mul_i32 {sr(t1)}, {sr(t7)}, 11")
    e(f"s_lshr_b32 {sr(t1)}, {sr(t1)}, 5")
    e(f"s_mul_i32 {sr(t6)}, {sr(t1)}, 3")
    e(f"s_sub_u32 {sr(t7)}, {sr(t7)}, {sr(t6)}")
    e(f"s_add_u32 {sr(sKS)}, {sr(t7)}, 4")
    e(f"s_and_b32 {sr(t0)}, {sr(sHD)}, 2")
    e(f"s_and_b32 {sr(t6)}, {sr(t1)}, 2")
    e(f"s_lshl_b32 {sr(t6)}, {sr(t6)}, 1")
    e(f"s_or_b32 {sr(sHD)}, {sr(t6)}, {sr(t0)}")
    e(f"s_and_b32 {sr(t1)}, {sr(t1)}, 1")
    e(f"s_lshl_b32 {sr(t1)}, {sr(t1)}, 2")
    e(f"s_lshr_b32 {sr(sX_)}, s2, 1")
    if opt.spread:
        e(f"s_add_u32 {sr(sX_)}, {sr(sX_)}, {sr(t7)}")
    e(f"s_and_b32 {sr(sX_)}, {sr(sX_)}, 3")
    e(f"s_add_u32 {sr(sX_)}, {sr(sX_)}, {sr(t1)}")
    e(f"s_lshl_b32 {sr(t0)}, {sr(t0)}, 3")
    e(f"s_lshr_b32 {sr(t4)}, 0x{FPACK:08x}, {sr(t0)}")
    e(f"s_bfe_u32 {sr(t5)}, {sr(t4)}, 0x80008")
    e(f"s_and_b32 {sr(t4)}, {sr(t4)}, 0xff")
    e(f"s_cmp_lt_u32 {sr(t5)}, {sr(t4)}")
    e(f"s_cselect_b32 {sr(sS0)}, 1, 0")
    e(f"s_max_u32 {sr(sEND)}, {sr(t4)}, {sr(t5)}")
    e(f"s_min_u32 {sr(t5)}, {sr(t4)}, {sr(t5)}")
    c("x = j + 3*(w + 4*lane)")
    e(f"v_lshl_add_u32 {vr(vT+5)}, {vr(vL)}, 2, {sr(sW)}")
    e(f"v_mul_u32_u24 {vr(vT+5)}, 3, {vr(vT+5)}")
    e(f"v_add_u32 {vr(vT+5)}, {sr(t7)}, {vr(vT+5)}")
    e(f"s_sub_u32 {sr(t1)}, 15, {sr(sX_)}")
    e(f"s_lshl_b32 {sr(t0)}, {sr(sX_)}, 3")
    e(f"s_lshl_b32 {sr(t1)}, {sr(t1)}, 19")
    e(f"s_or_b32 {sr(t0)}, {sr(t0)}, {sr(t1)}")
    e(f"s_mul_i32 {sr(t0)}, {sr(t0)}, 0x101")
    e(f"s_mul_i32 {sr(t1)}, {sr(sHD)}, 0x01010101")
    e(f"s_add_u32 {sr(sPHP)}, {sr(t0)}, {sr(t1)}")
    e(f"s_add_u32 {sr(sPHP)}, {sr(sPHP)}, 0x01000100")
    e(f"s_cmp_eq_u32 {sr(sW)}, 0")
    e("s_cbranch_scc0 L_mx_noclear")
    clear_body()
    e("s_waitcnt vmcnt(9)")
    e("s_branch L_mx_ctx")
    lab("L_mx_noclear")
    e("s_waitcnt vmcnt(0)")
    lab("L_mx_ctx")
    ranks()
    e(f"s_sub_u32 {sr(t1)}, 15, {sr(sX_)}")
    e(f"v_cmp_eq_u32 {sr(sCM,2)}, {sr(sX_)}, {vr(vX3)}")
    e(f"v_cmp_eq_u32 {sr(sCM+2,2)}, {sr(t1)}, {vr(vX3)}")
    e(f"s_ff1_i32_b32 {sr(t0)}, {sr(sCM)}")
    e(f"s_ff1_i32_b32 {sr(t1)}, {sr(sCM+2)}")
    e(f"v_readlane_b32 {sr(t2)}, {vr(vKY)}, {sr(t0)}")
    e(f"v_readlane_b32 {sr(t3)}, {vr(vKY)}, {sr(t1)}")
    e(f"s_lshl_b32 {sr(t0)}, {sr(t0)}, 3")
    e(f"s_lshl_b32 {sr(t1)}, {sr(t1)}, 19")
    e(f"s_or_b32 {sr(t0)}, {sr(t0)}, {sr(t1)}")
    e(f"s_mul_i32 {sr(t0)}, {sr(t0)}, 0x101")
    e(f"s_mul_i32 {sr(t6)}, {sr(sHD)}, 0x01010101")
    e(f"s_add_u32 {sr(sBHP)}, {sr(t0)}, {sr(t6)}")
    e(f"s_add_u32 {sr(sBHP)}, {sr(sBHP)}, 0x01000100")
    e(f"s_lshr_b32 {sr(t2)}, {sr(t2)}, 4")
    e(f"s_lshr_b32 {sr(t3)}, {sr(t3)}, 4")
    c("segments: [long both heads][long extra][short both heads][short extra], steps descending")
    P = sCM + 8
    TOP = sCM + 12
    e(f"s_sub_i32 {sr(t0)}, {sr(t3)}, {sr(sEND)}")
    e(f"s_max_i32 {sr(t0)}, {sr(t0)}, 0")
    e(f"s_lshl_b32 {sr(P)}, {sr(t0)}, 1")
    e(f"s_min_u32 {sr(TOP)}, {sr(t3)}, {sr(sEND)}")
    e(f"s_sub_i32 {sr(t0)}, {sr(TOP)}, {sr(t5)}")
    e(f"s_max_i32 {sr(t0)}, {sr(t0)}, 0")
    e(f"s_add_u32 {sr(P+1)}, {sr(P)}, {sr(t0)}")
    e(f"s_sub_i32 {sr(t0)}, {sr(t2)}, {sr(sEND)}")
    e(f"s_max_i32 {sr(t0)}, {sr(t0)}, 0")
    e(f"s_lshl_b32 {sr(t0)}, {sr(t0)}, 1")
    e(f"s_add_u32 {sr(P+2)}, {sr(P+1)}, {sr(t0)}")
    e(f"s_mov_b32 {sr(TOP+1)}, {sr(t2)}")
    e(f"s_min_u32 {sr(TOP+2)}, {sr(t2)}, {sr(sEND)}")
    e(f"s_sub_i32 {sr(t0)}, {sr(TOP+2)}, {sr(t5)}")
    e(f"s_max_i32 {sr(t0)}, {sr(t0)}, 0")
    e(f"s_add_u32 {sr(P+3)}, {sr(P+2)}, {sr(t0)}")
    for i in range(3):
        e(f"v_cmp_ge_u32 {sr(sCM+2*i,2)}, {vr(vT+5)}, {sr(P+i)}")
    e(f"v_cmp_gt_u32 {sr(sCM+6,2)}, {sr(P+3)}, {vr(vT+5)}")
    e(f"v_mov_b32 {vr(vX0)}, {sr(t3)}")
    e(f"v_mov_b32 {vr(vX2)}, 0")
    for i in range(3):
        e(f"v_mov_b32 {vr(vT+i)}, {sr(P+i)}")
        e(f"v_mov_b32 {vr(vT+11+i)}, {sr(TOP+i)}")
    for i in range(3):
        e(f"v_cndmask_b32 {vr(vX2)}, {vr(vX2)}, {vr(vT+i)}, {sr(sCM+2*i,2)}")
        e(f"v_cndmask_b32 {vr(vX0)}, {vr(vX0)}, {vr(vT+11+i)}, {sr(sCM+2*i,2)}")
    e(f"s_xor_b64 vcc, {sr(sCM,2)}, {sr(sCM+2,2)}")
    e(f"s_xor_b64 vcc, vcc, {sr(sCM+4,2)}")
    e(f"v_sub_u32 {vr(vX2)}, {vr(vT+5)}, {vr(vX2)}")
    e(f"v_lshrrev_b32 {vr(vT)}, 1, {vr(vX2)}")
    e(f"v_and_b32 {vr(vX1)}, 1, {vr(vX2)}")
    e(f"v_mov_b32 {vr(vT+1)}, {sr(sS0)}")
    e(f"v_cndmask_b32 {vr(vT)}, {vr(vT)}, {vr(vX2)}, vcc")
    e(f"v_cndmask_b32 {vr(vX1)}, {vr(vX1)}, {vr(vT+1)}, vcc")
    e(f"v_sub_u32 {vr(vX0)}, {vr(vX0)}, {vr(vT)}")
    e(f"v_add_u32 {vr(vX0)}, -1, {vr(vX0)}")
    e(f"v_cndmask_b32 {vr(vT+1)}, 2, 0, {sr(sCM+2,2)}")
    e(f"v_add_u32 {vr(vX1)}, {vr(vX1)}, {vr(vT+1)}")
    e(f"v_lshlrev_b32 {vr(vX3)}, 3, {vr(vX1)}")
    e(f"v_bfe_u32 {vr(vX3)}, {sr(sBHP)}, {vr(vX3)}, 8")
    list_addr_bh()
    e("s_nop 0")
    predict()
    stamp(1)
    issue("K")
    c("a wave without items runs one item with no active column")
    e(f"s_bcnt1_i32_b64 {sr(sREM)}, {sr(sCM+6,2)}")
    e(f"s_cselect_b64 {sr(mIT,2)}, {sr(mSL,2)}, 0")
    e(f"s_max_u32 {sr(sREM)}, {sr(sREM)}, 1")
    e("s_branch L_go")

    def sh_issue():
        la = g.newlab()
        e(f"s_and_b32 {sr(t1)}, {sr(sZI)}, 63")
        e(f"v_readlane_b32 {sr(t0)}, {vr(vE)}, {sr(t1)}")
        e(f"s_mov_b32 m0, {sr(sSL)}")
        e(f"s_add_u32 {sr(sSL)}, {sr(sSL)}, 0x4000")
        e(f"s_and_b32 {sr(sSL)}, {sr(sSL)}, 0xffff")
        e(f"s_lshl_b32 {sr(t0)}, {sr(t0)}, 15")
        e(f"s_or_b32 {sr(sB0)}, {sr(t0)}, {sr(sH8)}")
        dma4(vKO, srdK, sB0)
        e(f"s_add_u32 {sr(sZI)}, {sr(sZI)}, {sr(sSTR)}")
        e(f"s_and_b32 {sr(t1)}, {sr(sZI)}, 63")
        e(f"s_cbranch_scc1 {la}")
        for q in range(3):
            e(f"v_mov_b32 {vr(vE+q)}, {vr(vE+q+1)}")
        lab(la)
    def sh_check():
        e(f"s_bitcmp1_b32 {sr(sW)}, 0")
        e(f"s_cselect_b64 vcc, -1, 0")
        for q in range(4):
            e(f"v_cndmask_b32 {vr(vE+q)}, {vr(vU+2*q)}, {vr(vU+2*q+1)}, vcc")
        for i in range(8):
            e(f"v_xor_b32_dpp {vr(vU+8+i)}, {vr(vU+i)}, {vr(vU+i)} row_newbcast:0 row_mask:0xf bank_mask:0xf")
        e(f"v_or3_b32 {vr(vU+8)}, {vr(vU+8)}, {vr(vU+9)}, {vr(vU+10)}")
        e(f"v_or3_b32 {vr(vU+11)}, {vr(vU+11)}, {vr(vU+12)}, {vr(vU+13)}")
        e(f"v_or3_b32 {vr(vU+8)}, {vr(vU+8)}, {vr(vU+14)}, {vr(vU+15)}")
        e(f"v_or_b32 {vr(vU+8)}, {vr(vU+8)}, {vr(vU+11)}")
        e(f"v_cmp_ne_u32 vcc, 0, {vr(vU+8)}")
        e(f"s_cmp_eq_u64 vcc, 0")
        e(f"s_cselect_b32 {sr(sSTR)}, 16, 1")
    lab("L_sh_pro")
    c("======== shared-prefix workgroup (h, part=idx): steps 16*idx..+15, wave w owns rows 4w..4w+3")
    c("guess: all rows share block = column (checked below). waves 0,1 load K, waves 2,3 load V")
    e(f"s_lshl_b32 {sr(sS0)}, {sr(sIDX)}, 4")
    e(f"s_and_b32 {sr(t1)}, {sr(sW)}, 1")
    e(f"s_lshl1_add_u32 {sr(t1)}, {sr(sS0)}, {sr(t1)}")
    e(f"v_lshl_add_u32 {vr(vE)}, {vr(vG)}, 3, {sr(t1)}")
    e(f"s_lshl_b32 {sr(sH8)}, {sr(sHD)}, 8")
    e(f"s_mov_b32 {sr(sZI)}, 0")
    e(f"s_mov_b32 {sr(sSTR)}, 16")
    e(f"s_lshl_b32 {sr(sSL)}, {sr(sW)}, 12")
    e(f"s_cmp_lt_u32 {sr(sW)}, 2")
    e("s_waitcnt lgkmcnt(0)")
    e("s_cbranch_scc1 L_sh_k")
    setup_v(vKO)
    e(f"s_mov_b64 {sr(sK,2)}, {sr(sV,2)}")
    lab("L_sh_k")
    srd_k()
    stamp(1)
    sh_issue()
    misc()
    e(f"s_mov_b32 {sr(sROLE)}, 2")
    e(f"s_mov_b32 {sr(sKS)}, {sr(sIDX)}")
    e(f"s_lshl_b32 {sr(t1)}, {sr(sW)}, 5")
    e(f"s_or_b32 {sr(t1)}, {sr(t1)}, {sr(sHD)}")
    e(f"s_mul_i32 {sr(sBHP)}, {sr(t1)}, 0x01010101")
    e(f"s_add_u32 {sr(sBHP)}, {sr(sBHP)}, 0x18100800")
    e(f"s_mov_b32 {sr(sPHP)}, {sr(sBHP)}")
    c("entries: lane (g,row=c) loads 4 steps: row*1024 + (s0+4g)*8")
    e(f"s_lshl_b32 {sr(t2)}, {sr(sS0)}, 3")
    e(f"v_lshl_add_u32 {vr(vT+3)}, {vr(vC)}, 10, {sr(t2)}")
    e(f"v_lshl_add_u32 {vr(vT+3)}, {vr(vG)}, 5, {vr(vT+3)}")
    e(f"global_load_dwordx4 {vr(vU,4)}, {vr(vT+3)}, {sr(sBT,2)}")
    e(f"global_load_dwordx4 {vr(vU+4,4)}, {vr(vT+3)}, {sr(sBT,2)} offset:16")
    col_addr()
    col_load()
    sh_issue()
    sh_issue()
    clear_body()
    e(f"s_mov_b32 {sr(sZC)}, 0")
    e(f"s_cmp_eq_u32 {sr(sW)}, 0")
    e(f"s_cselect_b32 {sr(sONCE)}, 2, -1")
    e("s_branch L_init")
    lab("L_sh_verify")
    e(f"v_mov_b32 {vr(vKY)}, {vr(vE)}")
    sh_check()
    e(f"v_cmp_ne_u32 {sr(sCM,2)}, {vr(vKY)}, {vr(vE)}")
    e(f"s_or_b64 vcc, vcc, {sr(sCM,2)}")
    e("s_cbranch_scc0 L_sh_w")
    e("s_waitcnt vmcnt(0)")
    e(f"s_mov_b32 {sr(sZI)}, 0")
    e(f"s_lshl_b32 {sr(sSL)}, {sr(sW)}, 12")
    e(f"s_mov_b32 {sr(t7)}, 3")
    lab("L_sh_redo")
    sh_issue()
    e(f"s_sub_u32 {sr(t7)}, {sr(t7)}, 1")
    e(f"s_cmp_lg_u32 {sr(t7)}, 0")
    e("s_cbranch_scc1 L_sh_redo")

    lab("L_sh_loop")
    e(f"s_lshl_b32 {sr(t0)}, {sr(sSTR)}, 1")
    e(f"s_add_u32 {sr(t0)}, {sr(t0)}, {sr(sZC)}")
    e(f"s_cmp_lt_u32 {sr(t0)}, 256")
    e("s_waitcnt vmcnt(8)")
    e("s_cbranch_scc1 L_sh_w")
    e(f"s_cmp_eq_u32 {sr(t0)}, 256")
    e("s_waitcnt vmcnt(4)")
    e("s_cbranch_scc1 L_sh_w")
    e("s_waitcnt vmcnt(0)")
    lab("L_sh_w")
    e("s_barrier")
    e(f"s_cmp_lt_u32 {sr(sZI)}, 256")
    e("s_cbranch_scc0 L_sh_noiss")
    sh_issue()
    lab("L_sh_noiss")
    e(f"s_cmp_eq_u32 {sr(sONCE)}, {sr(sIT)}")
    e("s_cbranch_scc0 L_sh_nosig")
    signal()
    lab("L_sh_nosig")
    c("step = s0 + 4*((z>>4)&3) + (z>>6), row = z&15")
    e(f"s_bfe_u32 {sr(t0)}, {sr(sZC)}, 0x20004")
    e(f"s_lshl_b32 {sr(t0)}, {sr(t0)}, 2")
    e(f"s_lshr_b32 {sr(t1)}, {sr(sZC)}, 6")
    e(f"s_add_u32 {sr(t0)}, {sr(t0)}, {sr(t1)}")
    e(f"s_add_u32 {sr(t0)}, {sr(t0)}, {sr(sS0)}")
    e(f"s_lshl_b32 {sr(sPOS)}, {sr(t0)}, 5")
    e(f"s_mov_b64 {sr(sMK,2)}, -1")
    e(f"s_cmp_eq_u32 {sr(sSTR)}, 16")
    e("s_cbranch_scc1 L_sh_go")
    e(f"s_and_b32 {sr(t0)}, {sr(sZC)}, 3")
    e(f"s_lshl_b32 {sr(t0)}, {sr(t0)}, 2")
    e(f"s_lshl_b64 {sr(sMK,2)}, {sr(mSL,2)}, {sr(t0)}")
    e(f"s_bfe_u32 {sr(t0)}, {sr(sZC)}, 0x20002")
    e(f"s_cmp_eq_u32 {sr(t0)}, {sr(sW)}")
    e("s_cbranch_scc0 L_sh_next")
    lab("L_sh_go")
    probe("cons", 0)
    kreads()
    masks()
    qk()
    e("s_nop 3")
    vreads()
    softmax_a()
    rescale()
    e("s_waitcnt lgkmcnt(0)")
    for ee in range(8):
        pv(ee)
    probe("cons", 1)
    lab("L_sh_next")
    c("advance the fragment addresses to the next ring slot")
    e(f"s_add_u32 {sr(sIT)}, {sr(sIT)}, 1")
    e(f"s_bitcmp1_b32 {sr(sIT)}, 0")
    e(f"s_cselect_b32 {sr(t0)}, 1, 3")
    e(f"s_lshl_b32 {sr(t0)}, {sr(t0)}, 14")
    for i in range(12):
        e(f"v_xor_b32 {vr(vKA+i)}, {sr(t0)}, {vr(vKA+i)}")
    e(f"s_add_u32 {sr(sZC)}, {sr(sZC)}, {sr(sSTR)}")
    e(f"s_cmp_lt_u32 {sr(sZC)}, 256")
    e("s_cbranch_scc1 L_sh_loop")
    stamp(2)
    c("publish this wave's 16 columns (transpose through its own LDS region)")
    lsum()
    part_addr(vC, None, vWS_, vA1)
    e(f"v_min_u32 {vr(vM)}, -2, {vr(vM)}")
    e(f"v_min_u32 {vr(vLs)}, -2, {vr(vLs)}")
    for i in range(32):
        e(f"v_min_u32 {vr(vO+i)}, -2, {vr(vO+i)}")
    e("s_barrier")
    for ee in range(8):
        e(f"ds_write_b128 {vr(vLWa)}, {vr(vO+4*ee,4)} offset:{64*ee}")
    e(f"v_mul_u32_u24 {vr(vA2)}, {CSTR}, {vr(vG)}")
    e(f"v_lshl_add_u32 {vr(vA2)}, {vr(vC)}, 4, {vr(vA2)}")
    e(f"v_add_u32 {vr(vA2)}, {sr(sLB)}, {vr(vA2)}")
    e(f"v_lshlrev_b32 {vr(vCC)}, 12, {vr(vG)}")
    e(f"v_lshl_add_u32 {vr(vCC)}, {vr(vC)}, 4, {vr(vCC)}")
    e(f"s_lshl_b32 {sr(t6)}, {sr(sKS)}, 9")
    e("s_waitcnt lgkmcnt(0)")
    for i in range(4):
        for q in range(2):
            e(f"ds_read_b128 {vr(vOq+8*i+4*q,4)}, {vr(vA2)} offset:{4*CSTR*i+256*q}")
    e("s_mov_b64 exec, 0xffff")
    e(f"global_store_dwordx2 {vr(vWS_)}, {vr(vM,2)}, {sr(sWS,2)} sc1")
    e("s_mov_b64 exec, -1")
    for i in range(4):
        slot_base(i, vSt+i, vCC)
        e(f"s_waitcnt lgkmcnt({6-2*i})")
        e(f"global_store_dwordx4 {vr(vSt+i)}, {vr(vOq+8*i,4)}, {sr(sWS,2)} sc1")
        e(f"global_store_dwordx4 {vr(vSt+i)}, {vr(vOq+8*i+4,4)}, {sr(sWS,2)} offset:256 sc1")

    lab("L_done")
    if opt.stamps:
        e("s_waitcnt vmcnt(0)")
        stamp(3)
        e(f"s_getreg_b32 {sr(t5)}, hwreg(HW_REG_XCC_ID)")
        e(f"s_getreg_b32 {sr(t6)}, hwreg(HW_REG_HW_ID)")
        e("s_waitcnt lgkmcnt(0)")
        e(f"s_lshl_b32 {sr(t3)}, s2, 2")
        e(f"s_add_u32 {sr(t3)}, {sr(t3)}, {sr(sW)}")
        e(f"s_lshl_b32 {sr(t3)}, {sr(t3)}, 6")
        e(f"s_add_u32 {sr(t3)}, {sr(t3)}, {STAMPS}")
        e(f"s_sub_u32 {sr(sIT)}, {sr(sIT)}, 1")
        e(f"v_mov_b32 v4, {sr(t3)}")
        for i in range(8):
            e(f"v_mov_b32 v{8+i}, {sr(sST+i)}")
        e(f"v_mov_b32 v16, {sr(t5)}")
        e(f"v_mov_b32 v17, {sr(t6)}")
        for i in range(4):
            e(f"v_mov_b32 v{18+i}, {sr(sST+8+i)}")
        e(f"v_mov_b32 v22, {sr(sBHP)}")
        e(f"v_mov_b32 v23, {sr(sIT)}")
        e("s_mov_b64 exec, 1")
        e(f"global_store_dwordx4 v4, v[8:11], {sr(sWS,2)}")
        e(f"global_store_dwordx4 v4, v[12:15], {sr(sWS,2)} offset:16")
        e(f"global_store_dwordx4 v4, v[16:19], {sr(sWS,2)} offset:32")
        e(f"global_store_dwordx4 v4, v[20:23], {sr(sWS,2)} offset:48")
    if opt.amp:
        p = [int(x) for x in opt.amp.split(",")]
        a, b = p[0], p[1]
        if len(p) > 2:
            e(f"s_cmp_eq_u32 s2, {p[2]}")
            e("s_cbranch_scc0 L_end")
            e(f"s_cmp_eq_u32 {sr(sW)}, {p[3]}")
            e("s_cbranch_scc0 L_end")
        e(f"s_sub_u32 {sr(t0)}, {sr(sST+2*b)}, {sr(sST+2*a)}")
        e(f"s_lshl_b32 {sr(t0)}, {sr(t0)}, {5 if len(p)>2 else 3}")
        e(f"s_min_u32 {sr(t0)}, {sr(t0)}, 100000")
        lab("L_amp")
        e(f"s_memrealtime {sr(t2,2)}")
        e("s_waitcnt lgkmcnt(0)")
        e(f"s_sub_u32 {sr(t1)}, {sr(t2)}, {sr(sST+6)}")
        e(f"s_cmp_lt_u32 {sr(t1)}, {sr(t0)}")
        e("s_cbranch_scc1 L_amp")
    if opt.amp2:
        b, lo, hi, sh = [int(x) for x in opt.amp2.split(",")]
        neg = b >= 100
        b %= 100
        e(f"s_cmp_lt_u32 s2, {lo}")
        e("s_cbranch_scc1 L_end")
        e(f"s_cmp_ge_u32 s2, {hi}")
        e("s_cbranch_scc1 L_end")
        e("s_mov_b64 exec, -1")
        e(f"v_mov_b32 v4, 0x2f0000")
        e(f"global_load_dword v5, v4, {sr(sWS,2)} sc1")
        e("s_waitcnt vmcnt(0)")
        e(f"v_readfirstlane_b32 {sr(t4)}, v5")
        if neg:
            e(f"s_sub_u32 {sr(t0)}, {sr(t4)}, {sr(sST+2*b)}")
        else:
            e(f"s_sub_u32 {sr(t0)}, {sr(sST+2*b)}, {sr(t4)}")
        e(f"s_add_u32 {sr(t0)}, {sr(t0)}, 200")
        e(f"s_max_i32 {sr(t0)}, {sr(t0)}, 0")
        e(f"s_lshl_b32 {sr(t0)}, {sr(t0)}, {sh}")
        e(f"s_min_u32 {sr(t0)}, {sr(t0)}, 100000")
        lab("L_amp2")
        e(f"s_memrealtime {sr(t2,2)}")
        e("s_waitcnt lgkmcnt(0)")
        e(f"s_sub_u32 {sr(t1)}, {sr(t2)}, {sr(t4)}")
        e(f"s_cmp_lt_u32 {sr(t1)}, {sr(t0)}")
        e("s_cbranch_scc1 L_amp2")
    lab("L_end")
    e("s_endpgm")

    out = HEADER
    out += f"; @launch grid=(256,1,1) block=({NW*64},1,1) lds={LDS}\n"
    out += '.amdgcn_target "amdgcn-amd-amdhsa--gfx950"\n.text\n'
    out += f".globl {NAME}_kernel\n.p2align 8\n.type {NAME}_kernel,@function\n{NAME}_kernel:\n"
    out += "\n".join(g.lines) + "\n"
    out += f""".section .rodata,"a"
.p2align 6
.amdhsa_kernel {NAME}_kernel
  .amdhsa_next_free_vgpr {NV}
  .amdhsa_next_free_sgpr 102
  .amdhsa_accum_offset {NV}
  .amdhsa_group_segment_fixed_size 0
  .amdhsa_kernarg_size 64
  .amdhsa_user_sgpr_count 2
  .amdhsa_user_sgpr_kernarg_segment_ptr 1
  .amdhsa_system_sgpr_workgroup_id_x 1
.end_amdhsa_kernel
"""
    return out

if __name__ == "__main__":
    ap = argparse.ArgumentParser()
    ap.add_argument("-o", default=f"cdna_kernels/{NAME}.s")
    ap.add_argument("--F", default="34,26,31,31")
    ap.add_argument("--spec", type=int, default=1)
    ap.add_argument("--spread", type=int, default=1)
    ap.add_argument("--rsleep", type=int, default=2)
    ap.add_argument("--lds", type=int, default=0)
    ap.add_argument("--pol", default="nt")
    ap.add_argument("--pol_out", default="")
    ap.add_argument("--stamps", action="store_true")
    ap.add_argument("--nobar", action="store_true")
    ap.add_argument("--amp", default="")
    ap.add_argument("--cpf", type=int, default=1)
    ap.add_argument("--amp2", default="")
    ap.add_argument("--mid", type=int, default=1)
    ap.add_argument("--probe", default="first")
    ap.add_argument("--clk", default="s_memrealtime")
    opt = ap.parse_args()
    for k in ("pol", "pol_out"):
        v = getattr(opt, k)
        setattr(opt, k, (" " + v.replace("+", " ")) if v else "")
    opt.code_bytes = 4096
    txt = build(opt)
    if opt.cpf:
        import subprocess, re, tempfile, os
        d = tempfile.mkdtemp()
        open(d + "/a.s", "w").write(txt)
        subprocess.check_call(["clang", "-target", "amdgcn-amd-amdhsa", "-mcpu=gfx950", "-c", d + "/a.s", "-o", d + "/a.o"])
        o = subprocess.check_output(["llvm-objdump", "-d", "--mcpu=gfx950", d + "/a.o"]).decode()
        end = int(re.search(r"^([0-9a-f]+) <L_end>:", o, re.M).group(1), 16)
        opt.code_bytes = end - 32
        txt = build(opt)
    open(opt.o, "w").write(txt)
```

```python
import sys, struct, argparse

NAME = "standalone__paged_block_table_kv_radixattention__sampling"

HEADER = """; Kernarg layout for this problem (64 bytes, ptrs only, base s[0:1]):
"""

def f2u(x):
    return struct.unpack("<I", struct.pack("<f", x))[0]

class Gen:
    def __init__(self, opt):
        self.o = opt
        self.lines = []
        self.nlab = 0
    def e(self, s):
        self.lines.append("    " + s)
    def c(self, s):
        self.lines.append("    ; " + s)
    def lab(self, name):
        self.lines.append(name + ":")
    def newlab(self, p="L"):
        self.nlab += 1
        return f"{p}_{self.nlab}"

def vr(b, n=1):
    return f"v{b}" if n == 1 else f"v[{b}:{b+n-1}]"
def sr(b, n=1):
    return f"s{b}" if n == 1 else f"s[{b}:{b+n-1}]"

def build(opt):
    g = Gen(opt)
    e, c, lab = g.e, g.c, g.lab
    NW = 4
    Fc = [int(x) for x in opt.F.split(",")]
    FPACK = sum((64 + Fc[i]) << (8*i) for i in range(4))
    KVB = 2176 * 32768
    CSTR = 528
    WSTR = 16384
    STAT = 16 * CSTR
    LDS = max(65536, opt.lds)
    pol = opt.pol
    WSTAT = 0x200000
    STAMPS = 0x300000
    NG = 7
    NSIG = 128
    NL = 18
    sQ, sK, sV, sBT, sCTX, sOUT, sDBG, sWS = 4, 6, 8, 10, 12, 14, 16, 18
    srdK, srdV = 20, 24
    sBHP, sKS, sX_, sIDX = 28, 29, 30, 31
    sW, sHD, sS0, sSTR, sROLE = 32, 33, 34, 35, 36
    sIT, sREM, sLB = 37, 38, 39
    sCS, sONCE, sZI, sZC = 40, 41, 42, 43
    mSL = 44
    sB0, sB1, sPOS, sH8 = 46, 47, 48, 49
    sMK = 50
    sSL, sEND = 52, 53
    mIT = 54
    sFAST = 56
    sGL, sMW, sPHP = 61, 62, 60
    sCM = 66
    t0, t1, t2, t3, t4, t5, t6, t7 = 82, 83, 84, 85, 86, 87, 88, 89
    sST = 90
    vL, vG, vC = 1, 2, 3
    vKO, vVO = 4, 8
    vQ = 12
    vO = 28
    vM, vLs, vCG = 60, 61, 62
    vMETA = 63
    vTB = 64
    vFM, vFI = 66, 67
    vS = 68
    vP = 76
    vF = 80
    vT = vF
    vLIM, vFILL, vMX, vAL, vX0, vX1, vX2, vX3 = 112, 113, 114, 115, 116, 117, 118, 119
    vKA, vVA = 120, 124
    vCNT, vZ = 132, 133
    vE = 134
    vKY = 138
    vU = 140
    vGs, vGo = 140, 156
    vWO, vWS_, vOA, vLWa, vLWs, vA1, vA2, vCC = 220, 221, 222, 223, 224, 225, 226, 227
    vWO2, vWS2 = 228, 229
    NV = 232

    def stamp(i):
        if opt.stamps:
            e(f"s_memrealtime {sr(sST+2*i,2)}")
    def probe(name, which):
        if opt.stamps and opt.probe == name:
            e(f"{opt.clk} {sr(sST+8+2*which,2)}")
            e("s_waitcnt lgkmcnt(0)")

    def list_addr_bh():
        c("vX0=step vX1=slot vX3=b*8+h -> vX3 table offset, vMETA")
        e(f"v_med3_i32 {vr(vX0)}, {vr(vX0)}, 0, {vr(vT+6)}")
        e(f"v_lshlrev_b32 {vr(vMETA)}, 5, {vr(vX0)}")
        e(f"v_lshl_add_u32 {vr(vMETA)}, {vr(vX1)}, 18, {vr(vMETA)}")
        e(f"v_lshl_add_u32 {vr(vMETA)}, {vr(vX3)}, 29, {vr(vMETA)}")
        e(f"v_lshrrev_b32 {vr(vX3)}, 3, {vr(vX3)}")
        e(f"v_lshlrev_b32 {vr(vX3)}, 10, {vr(vX3)}")
        e(f"v_lshl_add_u32 {vr(vX3)}, {vr(vX0)}, 3, {vr(vX3)}")
    def list_load():
        e(f"global_load_dwordx2 {vr(vTB,2)}, {vr(vX3)}, {sr(sBT,2)}")
    def predict():
        c("guess for the first item (checked against the table below): block = 128*row + column")
        e(f"v_readfirstlane_b32 {sr(t0)}, {vr(vX3)}")
        e(f"v_readfirstlane_b32 {sr(t2)}, {vr(vMETA)}")
        e(f"s_lshr_b32 {sr(t1)}, {sr(t0)}, 10")
        e(f"s_lshl_b32 {sr(t1)}, {sr(t1)}, 22")
        e(f"s_and_b32 {sr(t0)}, {sr(t0)}, 0x3ff")
        e(f"s_lshl_b32 {sr(t0)}, {sr(t0)}, 13")
        e(f"s_add_u32 {sr(t0)}, {sr(t0)}, {sr(t1)}")
        e(f"s_lshr_b32 {sr(t2)}, {sr(t2)}, 29")
        e(f"s_lshl_b32 {sr(t2)}, {sr(t2)}, 8")
        e(f"s_or_b32 {sr(sB0)}, {sr(t0)}, {sr(t2)}")
        e(f"s_add_u32 {sr(sB1)}, {sr(sB0)}, 0x8000")
    vQO, vCO = vT + 8, vT + 9
    def col_addr():
        c("per-lane column: Q offset and ctx offset")
        e(f"v_lshlrev_b32 {vr(vCO)}, 1, {vr(vC)}")
        e(f"v_and_b32 {vr(vCO)}, 24, {vr(vCO)}")
        e(f"v_bfe_u32 {vr(vCO)}, {sr(sBHP)}, {vr(vCO)}, 8")
        e(f"v_lshl_add_u32 {vr(vQO)}, {vr(vCO)}, 10, {vr(vT+10)}")
        e(f"v_lshrrev_b32 {vr(vCO)}, 1, {vr(vCO)}")
        e(f"v_and_b32 {vr(vCO)}, 60, {vr(vCO)}")
    def col_load():
        e(f"global_load_dword {vr(vCG)}, {vr(vCO)}, {sr(sCTX,2)}")
        for m in range(4):
            e(f"global_load_dwordx4 {vr(vQ+4*m,4)}, {vr(vQO)}, {sr(sQ,2)} offset:{64*m}")
    def part_addr(vcol, vo, vs, tmp):
        c("partial addresses for column vcol: row R=(b*8+h)*4+(col&3); O: R*4096 + k*512 ; stats: R*64 + k*8")
        e(f"v_lshlrev_b32 {vr(tmp)}, 1, {vr(vcol)}")
        e(f"v_and_b32 {vr(tmp)}, 24, {vr(tmp)}")
        e(f"v_bfe_u32 {vr(tmp)}, {sr(sPHP)}, {vr(tmp)}, 8")
        e(f"v_and_b32 {vr(vs)}, 3, {vr(vcol)}")
        e(f"v_lshl_add_u32 {vr(tmp)}, {vr(tmp)}, 2, {vr(vs)}")
        if vo is not None:
            e(f"s_lshl_b32 {sr(t3)}, {sr(sKS)}, 9")
            e(f"v_lshl_add_u32 {vr(vo)}, {vr(tmp)}, 12, {sr(t3)}")
        e(f"s_lshl_b32 {sr(t3)}, {sr(sKS)}, 3")
        e(f"s_add_u32 {sr(t3)}, {sr(t3)}, {WSTAT}")
        e(f"v_lshl_add_u32 {vr(vs)}, {vr(tmp)}, 6, {sr(t3)}")
    def slot_base(i, vdst, vlane):
        e(f"s_bfe_u32 {sr(t3)}, {sr(sPHP)}, 0x{0x80000+8*i:x}")
        e(f"s_lshl_b32 {sr(t3)}, {sr(t3)}, 14")
        e(f"s_add_u32 {sr(t3)}, {sr(t3)}, {sr(t6)}")
        e(f"v_add_u32 {vr(vdst)}, {sr(t3)}, {vr(vlane)}")
    def clear_body():
        c("clear the 16 partial columns with the canary")
        for i in range(4):
            e(f"v_mov_b32 {vr(vS+i)}, -1")
        part_addr(vC, None, vT+13, vT+14)
        e(f"global_store_dwordx2 {vr(vT+13)}, {vr(vS,2)}, {sr(sWS,2)} sc1")
        e(f"v_lshlrev_b32 {vr(vT+11)}, 12, {vr(vG)}")
        e(f"v_lshl_add_u32 {vr(vT+11)}, {vr(vC)}, 4, {vr(vT+11)}")
        e(f"s_lshl_b32 {sr(t6)}, {sr(sKS)}, 9")
        for i in range(4):
            slot_base(i, vT+12, vT+11)
            e(f"global_store_dwordx4 {vr(vT+12)}, {vr(vS,4)}, {sr(sWS,2)} sc1")
            e(f"global_store_dwordx4 {vr(vT+12)}, {vr(vS,4)}, {sr(sWS,2)} offset:256 sc1")
    def setup_k():
        c("K DMA source offsets (XOR-swizzled)")
        e(f"v_xor_b32 {vr(vT+16)}, {vr(vC)}, {vr(vG)}")
        e(f"v_lshlrev_b32 {vr(vT+17)}, 11, {vr(vG)}")
        e(f"v_lshl_add_u32 {vr(vKO)}, {vr(vT+16)}, 4, {vr(vT+17)}")
        for n in range(1, 4):
            e(f"v_xor_b32 {vr(vKO+n)}, {n<<6}, {vr(vKO)}")
            e(f"v_add_u32 {vr(vKO+n)}, {n*7168}, {vr(vKO+n)}")
        e(f"s_lshl_b32 {sr(sLB)}, {sr(sW)}, 14")
        e(f"s_mov_b32 {sr(srdK+2)}, {KVB}")
        e(f"s_mov_b32 {sr(srdK+3)}, 0x20000")
    def setup_v(dst=None):
        c("V DMA source offsets")
        d = vVO if dst is None else dst
        e(f"v_lshlrev_b32 {vr(vT+16)}, 1, {vr(vG)}")
        e(f"v_xor_b32 {vr(vT+16)}, {vr(vC)}, {vr(vT+16)}")
        e(f"v_lshl_add_u32 {vr(d)}, {vr(vT+16)}, 4, {vr(vT+17)}")
        e(f"v_xor_b32 {vr(d+1)}, 128, {vr(d)}")
        e(f"v_add_u32 {vr(d+3)}, {3*7168}, {vr(d+1)}")
        e(f"v_add_u32 {vr(d+1)}, 7168, {vr(d+1)}")
        e(f"v_add_u32 {vr(d+2)}, {2*7168}, {vr(d)}")
    def srd_k():
        e(f"s_mov_b32 {sr(srdK)}, {sr(sK)}")
        e(f"s_and_b32 {sr(srdK+1)}, {sr(sK+1)}, 0xffff")
    def srd_v():
        e(f"s_mov_b32 {sr(srdV)}, {sr(sV)}")
        e(f"s_and_b32 {sr(srdV+1)}, {sr(sV+1)}, 0xffff")
        e(f"s_mov_b32 {sr(srdV+2)}, {sr(srdK+2)}")
        e(f"s_mov_b32 {sr(srdV+3)}, 0x20000")
    def misc():
        e(f"v_and_b32 {vr(vL)}, 63, v0")
        e(f"v_and_b32 {vr(vX2)}, 3, v0")
        e(f"v_lshlrev_b32 {vr(vT+10)}, 4, {vr(vG)}")
        e(f"v_lshl_add_u32 {vr(vT+10)}, {vr(vX2)}, 8, {vr(vT+10)}")
        e(f"v_mov_b32 {vr(vT+6)}, 127")
        e(f"s_mov_b32 {sr(mSL)}, 0x000f000f")
        e(f"s_mov_b32 {sr(mSL+1)}, {sr(mSL)}")
        e(f"s_mov_b32 {sr(sIT)}, 0")
    def cpf():
        if opt.cpf:
            c("pull the kernel's code into L2: one dword per 64 bytes")
            e(f"v_lshlrev_b32 {vr(vF+30)}, 6, v0")
            e(f"v_min_u32 {vr(vF+30)}, {opt.code_bytes}, {vr(vF+30)}")
            e(f"global_load_dword {vr(vF+31)}, {vr(vF+30)}, {sr(sCM,2)}")
    def ranks():
        c("vKY: ctx of row c -> key = nsteps*16 + row ; vX3 = rank of the key")
        e(f"v_mov_b32 {vr(vX2)}, 0x1000")
        e(f"v_cmp_lt_i32 vcc, 0, {vr(vKY)}")
        e(f"v_min_i32 {vr(vKY)}, {vr(vKY)}, {vr(vX2)}")
        e(f"v_mov_b32 {vr(vX3)}, 0")
        e(f"v_cndmask_b32 {vr(vKY)}, {vr(vX2)}, {vr(vKY)}, vcc")
        e(f"v_add_u32 {vr(vKY)}, 31, {vr(vKY)}")
        e(f"v_lshrrev_b32 {vr(vKY)}, 5, {vr(vKY)}")
        e(f"v_lshl_add_u32 {vr(vKY)}, {vr(vKY)}, 4, {vr(vC)}")
        e("s_nop 1")
        for k in range(1, 16):
            e(f"v_sub_u32_dpp {vr(vT+(k&3))}, {vr(vKY)}, {vr(vKY)} row_ror:{k} row_mask:0xf bank_mask:0xf")
            e(f"v_lshrrev_b32 {vr(vT+(k&3))}, 31, {vr(vT+(k&3))}")
            e(f"v_add_u32 {vr(vX3)}, {vr(vX3)}, {vr(vT+(k&3))}")
    def gload():
        e(f"global_load_dwordx4 {vr(vGs+8,4)}, {vr(vWS2)}, {sr(sWS,2)} offset:32 sc1")
        e(f"global_load_dwordx2 {vr(vGs+12,2)}, {vr(vWS2)}, {sr(sWS,2)} offset:48 sc1")
        for k in (0, 2):
            e(f"global_load_dwordx4 {vr(vGs+2*k,4)}, {vr(vWS_)}, {sr(sWS,2)} offset:{8*k} sc1")
        for k in range(NG):
            for q in range(2):
                e(f"global_load_dwordx4 {vr(vGo+8*k+4*q,4)}, {vr(vWO if k < 4 else vWO2)}, {sr(sWS,2)} offset:{512*k+256*q} sc1")
    def lsum():
        c("reduce l over the 4 lane groups")
        e(f"v_mov_b32 {vr(vX0)}, {vr(vLs)}")
        e("s_nop 1")
        e(f"v_permlane32_swap_b32 {vr(vLs)}, {vr(vX0)}")
        e(f"v_add_f32 {vr(vLs)}, {vr(vLs)}, {vr(vX0)}")
        e(f"v_mov_b32 {vr(vX0)}, {vr(vLs)}")
        e("s_nop 1")
        e(f"v_permlane16_swap_b32 {vr(vLs)}, {vr(vX0)}")
        e(f"v_add_f32 {vr(vLs)}, {vr(vLs)}, {vr(vX0)}")
    def fetch():
        e(f"v_readlane_b32 {sr(t2)}, {vr(vMETA)}, {sr(sIT)}")
        e(f"v_readlane_b32 {sr(t0)}, {vr(vTB)}, {sr(sIT)}")
        e(f"v_readlane_b32 {sr(t1)}, {vr(vTB+1)}, {sr(sIT)}")
        e(f"s_lshr_b32 {sr(t4)}, {sr(t2)}, 29")
        e(f"s_lshl_b32 {sr(t4)}, {sr(t4)}, 8")
        e(f"s_lshl_b32 {sr(t0)}, {sr(t0)}, 15")
        e(f"s_lshl_b32 {sr(t1)}, {sr(t1)}, 15")
        e(f"s_or_b32 {sr(sB0)}, {sr(t0)}, {sr(t4)}")
        e(f"s_or_b32 {sr(sB1)}, {sr(t1)}, {sr(t4)}")
        e(f"s_add_u32 {sr(sIT)}, {sr(sIT)}, 1")
    def decode():
        e(f"s_and_b32 {sr(sPOS)}, {sr(t2)}, 0xffff")
        e(f"s_bfe_u32 {sr(t3)}, {sr(t2)}, 0x40010")
        e(f"s_lshl_b64 {sr(sMK,2)}, {sr(mIT,2)}, {sr(t3)}")
    def dma4(off, srd, soff):
        for n in range(4):
            o = f" offset:{1024*n}" if n else ""
            e(f"buffer_load_dwordx4 {vr(off+n)}, {sr(srd,4)}, {sr(soff)} offen{o}{pol} lds")
    def issue(kv):
        off = vVO if kv == "V" else vKO
        srd = srdV if kv == "V" else srdK
        base = 8192 if kv == "V" else 0
        if base:
            e(f"s_add_u32 m0, {sr(sLB)}, {base}")
        else:
            e(f"s_mov_b32 m0, {sr(sLB)}")
        e("s_nop 0")
        dma4(off, srd, sB0)
        e(f"s_add_u32 m0, {sr(sLB)}, {base+4096}")
        e("s_nop 0")
        dma4(off, srd, sB1)
    def signal():
        e(f"v_mov_b32 {vr(vCNT)}, 1")
        e("s_mov_b64 exec, 1")
        e(f"global_atomic_add {vr(vZ)}, {vr(vCNT)}, {sr(sDBG,2)}")
        e("s_mov_b64 exec, -1")

    e("s_cmp_ge_u32 s2, 256")
    e("s_cbranch_scc1 L_end")
    e(f"s_load_dwordx16 s[4:19], s[0:1], 0")
    stamp(0)
    if opt.cpf:
        e(f"s_getpc_b64 {sr(sCM,2)}")
    e(f"v_lshrrev_b32 {vr(vX0)}, 6, v0")
    e(f"v_and_b32 {vr(vC)}, 15, v0")
    e(f"v_bfe_u32 {vr(vG)}, v0, 4, 2")
    e(f"v_readfirstlane_b32 {sr(sW)}, {vr(vX0)}")
    e(f"s_lshr_b32 {sr(sIDX)}, s2, 3")
    c("head: bit1 = id&1, bits 0/2 rotate with idx")
    e(f"s_lshr_b32 {sr(t0)}, s2, 1")
    e(f"s_add_u32 {sr(t0)}, {sr(t0)}, {sr(sIDX)}")
    e(f"s_and_b32 {sr(t1)}, {sr(t0)}, 2")
    e(f"s_and_b32 {sr(t0)}, {sr(t0)}, 1")
    e(f"s_and_b32 {sr(t2)}, s2, 1")
    e(f"s_or_b32 {sr(t1)}, {sr(t1)}, {sr(t2)}")
    e(f"s_lshl1_add_u32 {sr(sHD)}, {sr(t1)}, {sr(t0)}")
    setup_k()
    e(f"s_cmp_lt_u32 {sr(sIDX)}, 16")
    e("s_cbranch_scc1 L_helper")
    c("======== finisher (b, h): steps 64+w+4*lane")
    c("guess for the first item (checked against the table below): block = 128*row + column")
    e(f"s_sub_u32 {sr(t0)}, {sr(sIDX)}, 15")
    e(f"s_lshl_b32 {sr(t0)}, {sr(t0)}, 6")
    e(f"s_add_u32 {sr(t0)}, {sr(t0)}, {sr(sW)}")
    e(f"s_lshl_b32 {sr(t0)}, {sr(t0)}, 8")
    e(f"s_add_u32 {sr(t0)}, {sr(t0)}, {sr(sHD)}")
    e(f"s_lshl_b32 {sr(sB0)}, {sr(t0)}, 8")
    e(f"s_add_u32 {sr(sB1)}, {sr(sB0)}, 0x8000")
    e("s_waitcnt lgkmcnt(0)")
    srd_k()
    stamp(1)
    issue("K")
    misc()
    e(f"s_mov_b32 {sr(sROLE)}, 1")
    e(f"s_and_b32 {sr(t1)}, s2, 0x78")
    e(f"s_or_b32 {sr(t1)}, {sr(t1)}, {sr(sHD)}")
    e(f"s_mul_i32 {sr(sBHP)}, {sr(t1)}, 0x01010101")
    e(f"s_mov_b32 {sr(sPHP)}, {sr(sBHP)}")
    e(f"s_add_u32 {sr(t2)}, {sr(sW)}, 64")
    e(f"v_lshl_add_u32 {vr(vX0)}, {vr(vL)}, 2, {sr(t2)}")
    e(f"v_mov_b32 {vr(vX1)}, 0")
    e(f"v_mov_b32 {vr(vX3)}, {sr(t1)}")
    list_addr_bh()
    e(f"v_lshlrev_b32 {vr(vT+7)}, 2, {vr(vC)}")
    e(f"global_load_dword {vr(vKY)}, {vr(vT+7)}, {sr(sCTX,2)}")
    e(f"s_and_b32 {sr(t0)}, {sr(sHD)}, 3")
    e(f"s_lshl_b32 {sr(t0)}, {sr(t0)}, 3")
    e(f"s_lshr_b32 {sr(sEND)}, 0x{FPACK:08x}, {sr(t0)}")
    e(f"s_and_b32 {sr(sEND)}, {sr(sEND)}, 0xff")
    e(f"s_mov_b32 {sr(sKS)}, 0")
    e(f"s_mov_b64 {sr(mIT,2)}, -1")
    lab("L_go")
    list_load()
    col_addr()
    col_load()
    setup_v()
    srd_v()
    issue("V")
    lab("L_init")
    if opt.amp2:
        e(f"s_or_b32 {sr(t0)}, s2, {sr(sW)}")
        e("s_cbranch_scc1 L_noref")
        e(f"v_mov_b32 {vr(vX0)}, 0x2f0000")
        e(f"v_mov_b32 {vr(vX1)}, {sr(sST)}")
        e(f"global_store_dword {vr(vX0)}, {vr(vX1)}, {sr(sWS,2)} sc1")
        lab("L_noref")
    e(f"s_mov_b32 {sr(sCS)}, 0x{f2u(128**-0.5 * 1.4426950408889634):08x}")
    for i in range(32):
        e(f"v_mov_b32 {vr(vO+i)}, 0")
    e(f"v_mov_b32 {vr(vM)}, 0x{f2u(-1e30):08x}")
    e(f"v_mov_b32 {vr(vLs)}, 0")
    e(f"v_mov_b32 {vr(vFM)}, 0x{f2u(-1e9/(128**-0.5)):08x}")
    e(f"v_mov_b32 {vr(vFI)}, 0x{f2u(-3e38):08x}")
    e(f"v_mov_b32 {vr(vZ)}, 0")
    e(f"v_mov_b32 {vr(vCNT)}, 0")
    c("LDS fragment addresses")
    e(f"s_cmp_eq_u32 {sr(sROLE)}, 2")
    e(f"s_cselect_b32 {sr(t0)}, 0, {sr(sLB)}")
    e(f"v_xor_b32 {vr(vX0)}, {vr(vC)}, {vr(vG)}")
    e(f"v_lshl_add_u32 {vr(vX1)}, {vr(vC)}, 8, {sr(t0)}")
    e(f"v_lshl_add_u32 {vr(vKA)}, {vr(vX0)}, 4, {vr(vX1)}")
    for m in range(1, 4):
        e(f"v_xor_b32 {vr(vKA+m)}, {m<<6}, {vr(vKA)}")
    e(f"v_lshrrev_b32 {vr(vX0)}, 2, {vr(vL)}")
    e(f"v_lshl_add_u32 {vr(vX1)}, {vr(vX0)}, 8, {sr(t0)}")
    e(f"v_and_b32 {vr(vX0)}, 7, {vr(vX0)}")
    e(f"v_lshl_add_u32 {vr(vX1)}, {vr(vX0)}, 5, {vr(vX1)}")
    e(f"v_and_b32 {vr(vX0)}, 3, {vr(vL)}")
    e(f"v_lshl_add_u32 {vr(vVA)}, {vr(vX0)}, 3, {vr(vX1)}")
    for ee in range(1, 8):
        e(f"v_xor_b32 {vr(vVA+ee)}, {ee<<5}, {vr(vVA)}")
    c("epilogue addresses")
    e(f"v_lshrrev_b32 {vr(vCC)}, 4, v0")
    part_addr(vCC, vWO, vWS_, vX0)
    e(f"v_lshl_add_u32 {vr(vWO)}, {vr(vC)}, 4, {vr(vWO)}")
    e(f"v_mov_b32 {vr(vWO2)}, {vr(vWO)}")
    e(f"v_mov_b32 {vr(vWS2)}, {vr(vWS_)}")
    e(f"v_mul_u32_u24 {vr(vLWa)}, {CSTR}, {vr(vC)}")
    e(f"v_lshl_add_u32 {vr(vLWa)}, {vr(vG)}, 4, {vr(vLWa)}")
    e(f"v_add_u32 {vr(vLWa)}, {sr(sLB)}, {vr(vLWa)}")
    e(f"v_lshl_add_u32 {vr(vLWs)}, {vr(vC)}, 3, {sr(sLB)}")
    e(f"v_lshlrev_b32 {vr(vA1)}, 3, {vr(vCC)}")
    e(f"v_mul_u32_u24 {vr(vA2)}, {CSTR}, {vr(vCC)}")
    e(f"v_lshl_add_u32 {vr(vA2)}, {vr(vC)}, 4, {vr(vA2)}")
    e(f"s_and_b32 {sr(t3)}, {sr(sBHP)}, 0xff")
    e(f"s_lshl_b32 {sr(t3)}, {sr(t3)}, 10")
    e(f"v_lshl_add_u32 {vr(vOA)}, {vr(vG)}, 8, {sr(t3)}")
    e(f"v_lshl_add_u32 {vr(vOA)}, {vr(vC)}, 3, {vr(vOA)}")
    e(f"s_mov_b32 {sr(sGL)}, 0")
    e(f"s_sub_u32 {sr(sMW)}, {sr(sROLE)}, {sr(sW)}")
    c("table/ctx/Q were issued before the first V loads (shared role: before items 1,2 and the clears)")
    e(f"s_cmp_eq_u32 {sr(sROLE)}, 2")
    e("s_waitcnt vmcnt(17)")
    e("s_cbranch_scc1 L_ctx")
    e("s_waitcnt vmcnt(8)")
    lab("L_ctx")
    e(f"v_readfirstlane_b32 {sr(t7)}, {vr(vCG)}")
    e(f"v_lshlrev_b32 {vr(vX0)}, 2, {vr(vG)}")
    e(f"v_max_i32 {vr(vCG)}, 0, {vr(vCG)}")
    e(f"v_min_i32 {vr(vCG)}, 0x1000, {vr(vCG)}")
    e(f"v_sub_u32 {vr(vCG)}, {vr(vCG)}, {vr(vX0)}")
    e("s_cbranch_scc1 L_sh_verify")
    if opt.spec:
        e(f"s_mov_b32 {sr(t5)}, {sr(sB0)}")
        e(f"s_mov_b32 {sr(t6)}, {sr(sB1)}")
        fetch()
        decode()
        e(f"s_xor_b32 {sr(t5)}, {sr(t5)}, {sr(sB0)}")
        e(f"s_xor_b32 {sr(t6)}, {sr(t6)}, {sr(sB1)}")
        e(f"s_or_b32 {sr(t5)}, {sr(t5)}, {sr(t6)}")
        e("s_cbranch_scc1 L_respec")
        lab("L_specok")
    e(f"s_cmp_eq_u32 {sr(sROLE)}, 1")
    e("s_cbranch_scc0 L_cnt")
    c("finisher item count (at least one: a step past the context is fully masked)")
    e(f"s_min_i32 {sr(t1)}, {sr(t7)}, 4096")
    e(f"s_cmp_le_i32 {sr(t7)}, 0")
    e(f"s_cselect_b32 {sr(t1)}, 4096, {sr(t1)}")
    e(f"s_add_u32 {sr(t1)}, {sr(t1)}, 31")
    e(f"s_lshr_b32 {sr(t1)}, {sr(t1)}, 5")
    e(f"s_min_u32 {sr(t1)}, {sr(t1)}, {sr(sEND)}")
    e(f"s_sub_i32 {sr(t1)}, {sr(t1)}, {sr(sW)}")
    e(f"s_sub_i32 {sr(t1)}, {sr(t1)}, 61")
    e(f"s_ashr_i32 {sr(t1)}, {sr(t1)}, 2")
    e(f"s_max_i32 {sr(sREM)}, {sr(t1)}, 1")
    e(f"s_cmp_eq_u32 {sr(sW)}, 0")
    e("s_cbranch_scc0 L_cnt")
    c("the mixed helpers' partials are filed under the rank of the row")
    ranks()
    e(f"s_sub_u32 {sr(t0)}, {sr(sIDX)}, 16")
    e("s_nop 0")
    e(f"v_readlane_b32 {sr(t1)}, {vr(vX3)}, {sr(t0)}")
    e(f"s_sub_i32 {sr(t1)}, {sr(t1)}, {sr(t0)}")
    e(f"s_lshl_b32 {sr(t0)}, {sr(t1)}, 17")
    e(f"s_lshl_b32 {sr(t1)}, {sr(t1)}, 11")
    e(f"v_add_u32 {vr(vWO2)}, {sr(t0)}, {vr(vWO)}")
    e(f"v_add_u32 {vr(vWS2)}, {sr(t1)}, {vr(vWS_)}")
    lab("L_cnt")
    c("once-hook (wave 0): finishers sample the cleared-counter when 3 items remain, helpers signal after item 0")
    e(f"s_cmp_eq_u32 {sr(sROLE)}, 1")
    e(f"s_cselect_b32 {sr(sONCE)}, 3, {sr(sREM)}")
    e(f"s_cmp_eq_u32 {sr(sW)}, 0")
    e(f"s_cselect_b32 {sr(sONCE)}, {sr(sONCE)}, 0")

    def kreads():
        for m in range(4):
            e(f"ds_read_b128 {vr(vF+8*m,4)}, {vr(vKA+m)}")
            e(f"ds_read_b128 {vr(vF+8*m+4,4)}, {vr(vKA+m)} offset:4096")
    def qk():
        for m in range(4):
            e(f"s_waitcnt lgkmcnt({6-2*m})")
            c0 = "0" if m == 0 else vr(vS, 4)
            c1 = "0" if m == 0 else vr(vS+4, 4)
            e(f"v_mfma_f32_16x16x32_bf16 {vr(vS,4)}, {vr(vF+8*m,4)}, {vr(vQ+4*m,4)}, {c0}")
            e(f"v_mfma_f32_16x16x32_bf16 {vr(vS+4,4)}, {vr(vF+8*m+4,4)}, {vr(vQ+4*m,4)}, {c1}")
    def masks():
        e(f"v_subrev_u32 {vr(vLIM)}, {sr(sPOS)}, {vr(vCG)}")
        e(f"v_cndmask_b32 {vr(vLIM)}, 0, {vr(vLIM)}, {sr(sMK,2)}")
        e(f"v_cndmask_b32 {vr(vFILL)}, {vr(vFI)}, {vr(vFM)}, {sr(sMK,2)}")
        e(f"v_cmp_gt_i32 {sr(sFAST,2)}, 20, {vr(vLIM)}")
    def vreads():
        for ee in range(8):
            e(f"ds_read_b64_tr_b16 {vr(vF+4*ee,2)}, {vr(vVA+ee)} offset:8192")
            e(f"ds_read_b64_tr_b16 {vr(vF+4*ee+2,2)}, {vr(vVA+ee)} offset:12288")
    def softmax_a():
        la = g.newlab()
        e(f"s_cmp_eq_u64 {sr(sFAST,2)}, 0")
        e(f"s_cbranch_scc1 {la}")
        for j in range(8):
            e(f"v_cmp_lt_i32 {sr(sCM+2*j,2)}, {(j>>2)*16+(j&3)}, {vr(vLIM)}")
        for j in range(8):
            e(f"v_cndmask_b32 {vr(vS+j)}, {vr(vFILL)}, {vr(vS+j)}, {sr(sCM+2*j,2)}")
        lab(la)
        e(f"v_max3_f32 {vr(vMX)}, {vr(vS)}, {vr(vS+1)}, {vr(vS+2)}")
        e(f"v_max3_f32 {vr(vX0)}, {vr(vS+3)}, {vr(vS+4)}, {vr(vS+5)}")
        e(f"v_max3_f32 {vr(vMX)}, {vr(vMX)}, {vr(vS+6)}, {vr(vS+7)}")
        e(f"v_max3_f32 {vr(vMX)}, {vr(vMX)}, {vr(vX0)}, {vr(vM)}")
        e(f"v_mov_b32 {vr(vX0)}, {vr(vMX)}")
        e("s_nop 1")
        e(f"v_permlane32_swap_b32 {vr(vMX)}, {vr(vX0)}")
        e(f"v_max_f32 {vr(vMX)}, {vr(vMX)}, {vr(vX0)}")
        e(f"v_mov_b32 {vr(vX0)}, {vr(vMX)}")
        e("s_nop 1")
        e(f"v_permlane16_swap_b32 {vr(vMX)}, {vr(vX0)}")
        e(f"v_max_f32 {vr(vMX)}, {vr(vMX)}, {vr(vX0)}")
        e(f"v_mul_f32 {vr(vX1)}, {sr(sCS)}, {vr(vMX)}")
        e(f"v_sub_f32 {vr(vAL)}, {vr(vM)}, {vr(vMX)}")
        e(f"v_cmp_lt_f32 vcc, {vr(vM)}, {vr(vMX)}")
        for j in range(8):
            e(f"v_fma_f32 {vr(vS+j)}, {vr(vS+j)}, {sr(sCS)}, -{vr(vX1)}")
        e(f"v_mul_f32 {vr(vAL)}, {sr(sCS)}, {vr(vAL)}")
        for j in range(8):
            e(f"v_exp_f32 {vr(vS+j)}, {vr(vS+j)}")
        e(f"v_exp_f32 {vr(vAL)}, {vr(vAL)}")
        e(f"v_mov_b32 {vr(vM)}, {vr(vMX)}")
        for u in range(4):
            e(f"v_cvt_pk_bf16_f32 {vr(vP+u)}, {vr(vS+2*u)}, {vr(vS+2*u+1)}")
        e(f"v_pk_add_f32 {vr(vS,2)}, {vr(vS,2)}, {vr(vS+2,2)}")
        e(f"v_pk_add_f32 {vr(vS+4,2)}, {vr(vS+4,2)}, {vr(vS+6,2)}")
        e(f"v_pk_add_f32 {vr(vS,2)}, {vr(vS,2)}, {vr(vS+4,2)}")
        e(f"v_fma_f32 {vr(vLs)}, {vr(vLs)}, {vr(vAL)}, {vr(vS)}")
        e(f"v_add_f32 {vr(vLs)}, {vr(vLs)}, {vr(vS+1)}")
    def rescale():
        la = g.newlab()
        e(f"s_cbranch_vccz {la}")
        for i in range(0, 32, 2):
            e(f"v_pk_mul_f32 {vr(vO+i,2)}, {vr(vO+i,2)}, {vr(vMX,2)} op_sel:[0,1] op_sel_hi:[1,1]")
        lab(la)
    def pv(ee):
        ob = vO + 4*ee
        e(f"v_mfma_f32_16x16x32_bf16 {vr(ob,4)}, {vr(vF+4*ee,4)}, {vr(vP,4)}, {vr(ob,4)}")

    lab("L_loop")
    e("s_waitcnt vmcnt(8)")
    if opt.stamps and opt.probe == "first":
        e(f"s_cmp_eq_u32 {sr(sIT)}, 1")
        e(f"s_cbranch_scc0 L_q1")
        stamp(4)
        e("s_waitcnt lgkmcnt(0)")
        lab("L_q1")
    kreads()
    masks()
    fetch()
    qk()
    e(f"s_cmp_eq_u32 {sr(sREM)}, 1")
    e("s_cbranch_scc1 L_noK")
    issue("K")
    decode()
    e("s_branch L_sm")
    lab("L_noK")
    e(f"s_cmp_eq_u32 {sr(sMW)}, 1")
    e("s_cbranch_scc1 L_early")
    e("s_nop 6")
    lab("L_sm")
    softmax_a()
    rescale()
    e(f"s_cmp_eq_u32 {sr(sREM)}, 1")
    e("s_cbranch_scc1 L_last")
    e("s_waitcnt vmcnt(8)")
    e("s_branch L_vok")
    lab("L_last")
    lsum()
    e(f"s_cmp_eq_u32 {sr(sGL)}, 1")
    e(f"s_waitcnt vmcnt({NL})")
    e("s_cbranch_scc1 L_vok")
    e("s_waitcnt vmcnt(0)")
    lab("L_vok")
    vreads()
    for ee in range(8):
        e(f"s_waitcnt lgkmcnt({14-2*ee})")
        pv(ee)
    e(f"s_cmp_eq_u32 {sr(sREM)}, 1")
    e("s_cbranch_scc1 L_noV")
    issue("V")
    lab("L_noV")
    e(f"s_cmp_eq_u32 {sr(sREM)}, {sr(sONCE)}")
    e("s_cbranch_scc1 L_hook")
    lab("L_hook_done")
    if opt.stamps and opt.probe == "first":
        e(f"s_cmp_eq_u32 {sr(sIT)}, {opt.mid+1}")
        e(f"s_cbranch_scc0 L_q2")
        stamp(5)
        e("s_waitcnt lgkmcnt(0)")
        lab("L_q2")
    e(f"s_sub_u32 {sr(sREM)}, {sr(sREM)}, 1")
    e(f"s_cmp_lg_u32 {sr(sREM)}, 0")
    e("s_cbranch_scc1 L_loop")

    lab("L_epi")
    stamp(2)
    vSt = vS
    vOq = vF
    vR = 12
    vWt = 20
    c("finishers only need columns 0..3")
    e(f"s_cmp_eq_u32 {sr(sROLE)}, 1")
    e(f"s_cselect_b64 exec, {sr(mSL,2)}, -1")
    e(f"ds_write_b64 {vr(vLWs)}, {vr(vM,2)} offset:{STAT}")
    e("s_nop 1")
    for ee in range(8):
        e(f"ds_write_b128 {vr(vLWa)}, {vr(vO+4*ee,4)} offset:{64*ee}")
    e("s_mov_b64 exec, -1")
    e("s_cbranch_scc1 L_fin")

    def maxchain(ms):
        e(f"v_max3_f32 {vr(vMX)}, {vr(ms[0])}, {vr(ms[1])}, {vr(ms[2])}")
        i = 3
        while i < len(ms):
            if i + 1 < len(ms):
                e(f"v_max3_f32 {vr(vMX)}, {vr(vMX)}, {vr(ms[i])}, {vr(ms[i+1])}"); i += 2
            else:
                e(f"v_max_f32 {vr(vMX)}, {vr(vMX)}, {vr(ms[i])}"); i += 1
        for i in range(len(ms)):
            e(f"v_sub_f32 {vr(vWt+i)}, {vr(ms[i])}, {vr(vMX)}")
        for i in range(len(ms)):
            e(f"v_mul_f32 {vr(vWt+i)}, {sr(sCS)}, {vr(vWt+i)}")
        for i in range(len(ms)):
            e(f"v_exp_f32 {vr(vWt+i)}, {vr(vWt+i)}")
    def premerge():
        maxchain([vGs+2*k for k in range(NG)])
        e(f"v_mov_b32 {vr(vGs)}, {vr(vMX)}")
        e(f"v_mul_f32 {vr(vGs+1)}, {vr(vWt)}, {vr(vGs+1)}")
        for r in range(8):
            e(f"v_mul_f32 {vr(vGo+r)}, {vr(vWt)}, {vr(vGo+r)}")
        for i in range(1, NG):
            e(f"v_fmac_f32 {vr(vGs+1)}, {vr(vWt+i)}, {vr(vGs+2*i+1)}")
            for r in range(8):
                e(f"v_fmac_f32 {vr(vGo+r)}, {vr(vWt+i)}, {vr(vGo+8*i+r)}")
    def lds_reduce(nglob):
        c("thread: column vCC, quads vC and vC+16")
        e("s_waitcnt lgkmcnt(0)")
        e("s_barrier")
        if nglob:
            probe("tail", 1)
        for w in range(NW):
            e(f"ds_read_b64 {vr(vSt+2*w,2)}, {vr(vA1)} offset:{WSTR*w+STAT}")
        for w in range(NW):
            for q in range(2):
                e(f"ds_read_b128 {vr(vOq+8*w+4*q,4)}, {vr(vA2)} offset:{WSTR*w+256*q}")
        e(f"s_waitcnt lgkmcnt({2*NW})")
        ms = [vSt+2*w for w in range(NW)]
        ls = [vSt+2*w+1 for w in range(NW)]
        os_ = [vOq+8*w for w in range(NW)]
        if nglob:
            ms += [vGs]; ls += [vGs+1]; os_ += [vGo]
        maxchain(ms)
        e("s_nop 0")
        e(f"v_mul_f32 {vr(vAL)}, {vr(vWt)}, {vr(ls[0])}")
        for i in range(1, len(ms)):
            e(f"v_fmac_f32 {vr(vAL)}, {vr(vWt+i)}, {vr(ls[i])}")
        if nglob:
            e(f"v_rcp_f32 {vr(vAL)}, {vr(vAL)}")
        order_ = list(range(NW, len(ms))) + list(range(NW))
        first = True
        for i in order_:
            if i < NW:
                e(f"s_waitcnt lgkmcnt({2*(NW-1-i)})")
            for r in range(8):
                if first:
                    e(f"v_mul_f32 {vr(vR+r)}, {vr(vWt+i)}, {vr(os_[i]+r)}")
                else:
                    e(f"v_fmac_f32 {vr(vR+r)}, {vr(vWt+i)}, {vr(os_[i]+r)}")
            first = False

    c("---------- mixed helper: publish the workgroup partial")
    lds_reduce(0)
    c("never publish the canary pattern")
    for r in range(8):
        e(f"v_min_u32 {vr(vR+r)}, -2, {vr(vR+r)}")
    e(f"v_min_u32 {vr(vMX)}, -2, {vr(vMX)}")
    e(f"v_min_u32 {vr(vAL)}, -2, {vr(vAL)}")
    e(f"global_store_dwordx4 {vr(vWO)}, {vr(vR,4)}, {sr(sWS,2)} sc1")
    e(f"global_store_dwordx4 {vr(vWO)}, {vr(vR+4,4)}, {sr(sWS,2)} offset:256 sc1")
    e(f"v_cmp_eq_u32 vcc, 0, {vr(vC)}")
    e(f"s_and_saveexec_b64 {sr(sCM,2)}, vcc")
    e(f"global_store_dwordx2 {vr(vWS_)}, {vr(vMX,2)}, {sr(sWS,2)} sc1")
    e(f"s_mov_b64 exec, {sr(sCM,2)}")
    e("s_branch L_done")

    c("---------- finisher")
    lab("L_fin")
    e(f"s_cmp_eq_u32 {sr(sW)}, 0")
    e("s_cbranch_scc1 L_merge")
    e("s_waitcnt lgkmcnt(0)")
    e("s_barrier")
    e("s_branch L_done")
    lab("L_merge")
    e(f"s_mov_b32 {sr(t5)}, 0")
    e(f"s_cmp_eq_u32 {sr(sGL)}, 1")
    e("s_cbranch_scc1 L_chk")
    lab("L_poll")
    e(f"v_readfirstlane_b32 {sr(t4)}, {vr(vCNT)}")
    e(f"s_cmp_ge_u32 {sr(t4)}, {NSIG}")
    e("s_cbranch_scc1 L_reload")
    e(f"global_load_dword {vr(vCNT)}, {vr(vZ)}, {sr(sDBG,2)} sc1")
    e("s_sleep 8")
    e(f"s_add_u32 {sr(t5)}, {sr(t5)}, 1")
    e(f"s_cmp_lt_u32 {sr(t5)}, 0x40000")
    e("s_waitcnt vmcnt(0)")
    e("s_cbranch_scc1 L_poll")
    lab("L_reload")
    gload()
    lab("L_chk")
    e("s_waitcnt vmcnt(0)")
    e(f"v_max_u32 {vr(vX0)}, {vr(vGs)}, {vr(vGs+1)}")
    e(f"v_max_u32 {vr(vX1)}, {vr(vGs+2)}, {vr(vGs+3)}")
    regs = list(range(vGs+4, vGs+2*NG)) + list(range(vGo, vGo+8*NG))
    for i in range(0, len(regs), 2):
        a = vX0 + ((i >> 1) & 1)
        e(f"v_max3_u32 {vr(a)}, {vr(a)}, {vr(regs[i])}, {vr(regs[i+1])}")
    e(f"v_max_u32 {vr(vX0)}, {vr(vX0)}, {vr(vX1)}")
    e(f"v_cmp_eq_u32 vcc, -1, {vr(vX0)}")
    e(f"s_add_u32 {sr(t5)}, {sr(t5)}, 1")
    e("s_cbranch_vccz L_ready")
    e(f"s_sleep {opt.rsleep}")
    e(f"s_cmp_lt_u32 {sr(t5)}, 0x80000")
    e("s_cbranch_scc1 L_reload")
    lab("L_ready")
    probe("tail", 0)
    premerge()
    lds_reduce(1)
    for r in range(8):
        e(f"v_mul_f32 {vr(vR+r)}, {vr(vR+r)}, {vr(vAL)}")
    for r in range(4):
        e(f"v_cvt_pk_bf16_f32 {vr(vWt+r)}, {vr(vR+2*r)}, {vr(vR+2*r+1)}")
    po = opt.pol_out
    e(f"global_store_dwordx2 {vr(vOA)}, {vr(vWt,2)}, {sr(sOUT,2)}{po}")
    e(f"global_store_dwordx2 {vr(vOA)}, {vr(vWt+2,2)}, {sr(sOUT,2)} offset:128{po}")
    e("s_branch L_done")

    if opt.spec:
        lab("L_respec")
        c("the guess was wrong: reload the first item")
        e("s_waitcnt vmcnt(0)")
        issue("K"); issue("V")
        e("s_branch L_specok")

    lab("L_early")
    c("finisher wave 0, last item: fetch the helper partials under the V wait")
    e(f"v_readfirstlane_b32 {sr(t4)}, {vr(vCNT)}")
    e(f"s_cmp_ge_u32 {sr(t4)}, {NSIG}")
    e("s_nop 3")
    e("s_cbranch_scc0 L_sm")
    gload()
    e(f"s_mov_b32 {sr(sGL)}, 1")
    e("s_branch L_sm")

    lab("L_hook")
    e(f"s_cmp_eq_u32 {sr(sROLE)}, 1")
    e("s_cbranch_scc1 L_hook_fin")
    signal()
    e("s_branch L_hook_done")
    lab("L_hook_fin")
    e(f"global_load_dword {vr(vCNT)}, {vr(vZ)}, {sr(sDBG,2)} sc1")
    e("s_branch L_hook_done")

    lab("L_helper")
    e(f"s_cmp_lt_u32 {sr(sIDX)}, 4")
    e("s_cbranch_scc1 L_sh_pro")
    c("======== mixed helper. v=idx-4: j=v%3, u=v/3: r=((x>>1)+j)&3 + 4*(u&1), quad=u>>1, pair=x&1")
    cpf()
    e(f"v_lshlrev_b32 {vr(vT+7)}, 2, {vr(vC)}")
    e("s_waitcnt lgkmcnt(0)")
    e(f"global_load_dword {vr(vKY)}, {vr(vT+7)}, {sr(sCTX,2)}")
    misc()
    srd_k()
    e(f"s_mov_b32 {sr(sROLE)}, 0")
    e(f"s_sub_u32 {sr(t7)}, {sr(sIDX)}, 4")
    e(f"s_mul_i32 {sr(t1)}, {sr(t7)}, 11")
    e(f"s_lshr_b32 {sr(t1)}, {sr(t1)}, 5")
    e(f"s_mul_i32 {sr(t6)}, {sr(t1)}, 3")
    e(f"s_sub_u32 {sr(t7)}, {sr(t7)}, {sr(t6)}")
    e(f"s_add_u32 {sr(sKS)}, {sr(t7)}, 4")
    e(f"s_and_b32 {sr(t0)}, {sr(sHD)}, 2")
    e(f"s_and_b32 {sr(t6)}, {sr(t1)}, 2")
    e(f"s_lshl_b32 {sr(t6)}, {sr(t6)}, 1")
    e(f"s_or_b32 {sr(sHD)}, {sr(t6)}, {sr(t0)}")
    e(f"s_and_b32 {sr(t1)}, {sr(t1)}, 1")
    e(f"s_lshl_b32 {sr(t1)}, {sr(t1)}, 2")
    e(f"s_lshr_b32 {sr(sX_)}, s2, 1")
    if opt.spread:
        e(f"s_add_u32 {sr(sX_)}, {sr(sX_)}, {sr(t7)}")
    e(f"s_and_b32 {sr(sX_)}, {sr(sX_)}, 3")
    e(f"s_add_u32 {sr(sX_)}, {sr(sX_)}, {sr(t1)}")
    e(f"s_lshl_b32 {sr(t0)}, {sr(t0)}, 3")
    e(f"s_lshr_b32 {sr(t4)}, 0x{FPACK:08x}, {sr(t0)}")
    e(f"s_bfe_u32 {sr(t5)}, {sr(t4)}, 0x80008")
    e(f"s_and_b32 {sr(t4)}, {sr(t4)}, 0xff")
    e(f"s_cmp_lt_u32 {sr(t5)}, {sr(t4)}")
    e(f"s_cselect_b32 {sr(sS0)}, 1, 0")
    e(f"s_max_u32 {sr(sEND)}, {sr(t4)}, {sr(t5)}")
    e(f"s_min_u32 {sr(t5)}, {sr(t4)}, {sr(t5)}")
    c("x = j + 3*(w + 4*lane)")
    e(f"v_lshl_add_u32 {vr(vT+5)}, {vr(vL)}, 2, {sr(sW)}")
    e(f"v_mul_u32_u24 {vr(vT+5)}, 3, {vr(vT+5)}")
    e(f"v_add_u32 {vr(vT+5)}, {sr(t7)}, {vr(vT+5)}")
    e(f"s_sub_u32 {sr(t1)}, 15, {sr(sX_)}")
    e(f"s_lshl_b32 {sr(t0)}, {sr(sX_)}, 3")
    e(f"s_lshl_b32 {sr(t1)}, {sr(t1)}, 19")
    e(f"s_or_b32 {sr(t0)}, {sr(t0)}, {sr(t1)}")
    e(f"s_mul_i32 {sr(t0)}, {sr(t0)}, 0x101")
    e(f"s_mul_i32 {sr(t1)}, {sr(sHD)}, 0x01010101")
    e(f"s_add_u32 {sr(sPHP)}, {sr(t0)}, {sr(t1)}")
    e(f"s_add_u32 {sr(sPHP)}, {sr(sPHP)}, 0x01000100")
    e(f"s_cmp_eq_u32 {sr(sW)}, 0")
    e("s_cbranch_scc0 L_mx_noclear")
    clear_body()
    e("s_waitcnt vmcnt(9)")
    e("s_branch L_mx_ctx")
    lab("L_mx_noclear")
    e("s_waitcnt vmcnt(0)")
    lab("L_mx_ctx")
    ranks()
    e(f"s_sub_u32 {sr(t1)}, 15, {sr(sX_)}")
    e(f"v_cmp_eq_u32 {sr(sCM,2)}, {sr(sX_)}, {vr(vX3)}")
    e(f"v_cmp_eq_u32 {sr(sCM+2,2)}, {sr(t1)}, {vr(vX3)}")
    e(f"s_ff1_i32_b32 {sr(t0)}, {sr(sCM)}")
    e(f"s_ff1_i32_b32 {sr(t1)}, {sr(sCM+2)}")
    e(f"v_readlane_b32 {sr(t2)}, {vr(vKY)}, {sr(t0)}")
    e(f"v_readlane_b32 {sr(t3)}, {vr(vKY)}, {sr(t1)}")
    e(f"s_lshl_b32 {sr(t0)}, {sr(t0)}, 3")
    e(f"s_lshl_b32 {sr(t1)}, {sr(t1)}, 19")
    e(f"s_or_b32 {sr(t0)}, {sr(t0)}, {sr(t1)}")
    e(f"s_mul_i32 {sr(t0)}, {sr(t0)}, 0x101")
    e(f"s_mul_i32 {sr(t6)}, {sr(sHD)}, 0x01010101")
    e(f"s_add_u32 {sr(sBHP)}, {sr(t0)}, {sr(t6)}")
    e(f"s_add_u32 {sr(sBHP)}, {sr(sBHP)}, 0x01000100")
    e(f"s_lshr_b32 {sr(t2)}, {sr(t2)}, 4")
    e(f"s_lshr_b32 {sr(t3)}, {sr(t3)}, 4")
    c("segments: [long both heads][long extra][short both heads][short extra], steps descending")
    P = sCM + 8
    TOP = sCM + 12
    e(f"s_sub_i32 {sr(t0)}, {sr(t3)}, {sr(sEND)}")
    e(f"s_max_i32 {sr(t0)}, {sr(t0)}, 0")
    e(f"s_lshl_b32 {sr(P)}, {sr(t0)}, 1")
    e(f"s_min_u32 {sr(TOP)}, {sr(t3)}, {sr(sEND)}")
    e(f"s_sub_i32 {sr(t0)}, {sr(TOP)}, {sr(t5)}")
    e(f"s_max_i32 {sr(t0)}, {sr(t0)}, 0")
    e(f"s_add_u32 {sr(P+1)}, {sr(P)}, {sr(t0)}")
    e(f"s_sub_i32 {sr(t0)}, {sr(t2)}, {sr(sEND)}")
    e(f"s_max_i32 {sr(t0)}, {sr(t0)}, 0")
    e(f"s_lshl_b32 {sr(t0)}, {sr(t0)}, 1")
    e(f"s_add_u32 {sr(P+2)}, {sr(P+1)}, {sr(t0)}")
    e(f"s_mov_b32 {sr(TOP+1)}, {sr(t2)}")
    e(f"s_min_u32 {sr(TOP+2)}, {sr(t2)}, {sr(sEND)}")
    e(f"s_sub_i32 {sr(t0)}, {sr(TOP+2)}, {sr(t5)}")
    e(f"s_max_i32 {sr(t0)}, {sr(t0)}, 0")
    e(f"s_add_u32 {sr(P+3)}, {sr(P+2)}, {sr(t0)}")
    for i in range(3):
        e(f"v_cmp_ge_u32 {sr(sCM+2*i,2)}, {vr(vT+5)}, {sr(P+i)}")
    e(f"v_cmp_gt_u32 {sr(sCM+6,2)}, {sr(P+3)}, {vr(vT+5)}")
    e(f"v_mov_b32 {vr(vX0)}, {sr(t3)}")
    e(f"v_mov_b32 {vr(vX2)}, 0")
    for i in range(3):
        e(f"v_mov_b32 {vr(vT+i)}, {sr(P+i)}")
        e(f"v_mov_b32 {vr(vT+11+i)}, {sr(TOP+i)}")
    for i in range(3):
        e(f"v_cndmask_b32 {vr(vX2)}, {vr(vX2)}, {vr(vT+i)}, {sr(sCM+2*i,2)}")
        e(f"v_cndmask_b32 {vr(vX0)}, {vr(vX0)}, {vr(vT+11+i)}, {sr(sCM+2*i,2)}")
    e(f"s_xor_b64 vcc, {sr(sCM,2)}, {sr(sCM+2,2)}")
    e(f"s_xor_b64 vcc, vcc, {sr(sCM+4,2)}")
    e(f"v_sub_u32 {vr(vX2)}, {vr(vT+5)}, {vr(vX2)}")
    e(f"v_lshrrev_b32 {vr(vT)}, 1, {vr(vX2)}")
    e(f"v_and_b32 {vr(vX1)}, 1, {vr(vX2)}")
    e(f"v_mov_b32 {vr(vT+1)}, {sr(sS0)}")
    e(f"v_cndmask_b32 {vr(vT)}, {vr(vT)}, {vr(vX2)}, vcc")
    e(f"v_cndmask_b32 {vr(vX1)}, {vr(vX1)}, {vr(vT+1)}, vcc")
    e(f"v_sub_u32 {vr(vX0)}, {vr(vX0)}, {vr(vT)}")
    e(f"v_add_u32 {vr(vX0)}, -1, {vr(vX0)}")
    e(f"v_cndmask_b32 {vr(vT+1)}, 2, 0, {sr(sCM+2,2)}")
    e(f"v_add_u32 {vr(vX1)}, {vr(vX1)}, {vr(vT+1)}")
    e(f"v_lshlrev_b32 {vr(vX3)}, 3, {vr(vX1)}")
    e(f"v_bfe_u32 {vr(vX3)}, {sr(sBHP)}, {vr(vX3)}, 8")
    list_addr_bh()
    e("s_nop 0")
    predict()
    stamp(1)
    issue("K")
    c("a wave without items runs one item with no active column")
    e(f"s_bcnt1_i32_b64 {sr(sREM)}, {sr(sCM+6,2)}")
    e(f"s_cselect_b64 {sr(mIT,2)}, {sr(mSL,2)}, 0")
    e(f"s_max_u32 {sr(sREM)}, {sr(sREM)}, 1")
    e("s_branch L_go")

    def sh_issue():
        la = g.newlab()
        e(f"s_and_b32 {sr(t1)}, {sr(sZI)}, 63")
        e(f"v_readlane_b32 {sr(t0)}, {vr(vE)}, {sr(t1)}")
        e(f"s_mov_b32 m0, {sr(sSL)}")
        e(f"s_add_u32 {sr(sSL)}, {sr(sSL)}, 0x4000")
        e(f"s_and_b32 {sr(sSL)}, {sr(sSL)}, 0xffff")
        e(f"s_lshl_b32 {sr(t0)}, {sr(t0)}, 15")
        e(f"s_or_b32 {sr(sB0)}, {sr(t0)}, {sr(sH8)}")
        dma4(vKO, srdK, sB0)
        e(f"s_add_u32 {sr(sZI)}, {sr(sZI)}, {sr(sSTR)}")
        e(f"s_and_b32 {sr(t1)}, {sr(sZI)}, 63")
        e(f"s_cbranch_scc1 {la}")
        for q in range(3):
            e(f"v_mov_b32 {vr(vE+q)}, {vr(vE+q+1)}")
        lab(la)
    def sh_check():
        e(f"s_bitcmp1_b32 {sr(sW)}, 0")
        e(f"s_cselect_b64 vcc, -1, 0")
        for q in range(4):
            e(f"v_cndmask_b32 {vr(vE+q)}, {vr(vU+2*q)}, {vr(vU+2*q+1)}, vcc")
        for i in range(8):
            e(f"v_xor_b32_dpp {vr(vU+8+i)}, {vr(vU+i)}, {vr(vU+i)} row_newbcast:0 row_mask:0xf bank_mask:0xf")
        e(f"v_or3_b32 {vr(vU+8)}, {vr(vU+8)}, {vr(vU+9)}, {vr(vU+10)}")
        e(f"v_or3_b32 {vr(vU+11)}, {vr(vU+11)}, {vr(vU+12)}, {vr(vU+13)}")
        e(f"v_or3_b32 {vr(vU+8)}, {vr(vU+8)}, {vr(vU+14)}, {vr(vU+15)}")
        e(f"v_or_b32 {vr(vU+8)}, {vr(vU+8)}, {vr(vU+11)}")
        e(f"v_cmp_ne_u32 vcc, 0, {vr(vU+8)}")
        e(f"s_cmp_eq_u64 vcc, 0")
        e(f"s_cselect_b32 {sr(sSTR)}, 16, 1")
    lab("L_sh_pro")
    c("======== shared-prefix workgroup (h, part=idx): steps 16*idx..+15, wave w owns rows 4w..4w+3")
    c("guess: all rows share block = column (checked below). waves 0,1 load K, waves 2,3 load V")
    e(f"s_lshl_b32 {sr(sS0)}, {sr(sIDX)}, 4")
    e(f"s_and_b32 {sr(t1)}, {sr(sW)}, 1")
    e(f"s_lshl1_add_u32 {sr(t1)}, {sr(sS0)}, {sr(t1)}")
    e(f"v_lshl_add_u32 {vr(vE)}, {vr(vG)}, 3, {sr(t1)}")
    e(f"s_lshl_b32 {sr(sH8)}, {sr(sHD)}, 8")
    e(f"s_mov_b32 {sr(sZI)}, 0")
    e(f"s_mov_b32 {sr(sSTR)}, 16")
    e(f"s_lshl_b32 {sr(sSL)}, {sr(sW)}, 12")
    e(f"s_cmp_lt_u32 {sr(sW)}, 2")
    e("s_waitcnt lgkmcnt(0)")
    e("s_cbranch_scc1 L_sh_k")
    setup_v(vKO)
    e(f"s_mov_b64 {sr(sK,2)}, {sr(sV,2)}")
    lab("L_sh_k")
    srd_k()
    stamp(1)
    sh_issue()
    misc()
    e(f"s_mov_b32 {sr(sROLE)}, 2")
    e(f"s_mov_b32 {sr(sKS)}, {sr(sIDX)}")
    e(f"s_lshl_b32 {sr(t1)}, {sr(sW)}, 5")
    e(f"s_or_b32 {sr(t1)}, {sr(t1)}, {sr(sHD)}")
    e(f"s_mul_i32 {sr(sBHP)}, {sr(t1)}, 0x01010101")
    e(f"s_add_u32 {sr(sBHP)}, {sr(sBHP)}, 0x18100800")
    e(f"s_mov_b32 {sr(sPHP)}, {sr(sBHP)}")
    c("entries: lane (g,row=c) loads 4 steps: row*1024 + (s0+4g)*8")
    e(f"s_lshl_b32 {sr(t2)}, {sr(sS0)}, 3")
    e(f"v_lshl_add_u32 {vr(vT+3)}, {vr(vC)}, 10, {sr(t2)}")
    e(f"v_lshl_add_u32 {vr(vT+3)}, {vr(vG)}, 5, {vr(vT+3)}")
    e(f"global_load_dwordx4 {vr(vU,4)}, {vr(vT+3)}, {sr(sBT,2)}")
    e(f"global_load_dwordx4 {vr(vU+4,4)}, {vr(vT+3)}, {sr(sBT,2)} offset:16")
    col_addr()
    col_load()
    sh_issue()
    sh_issue()
    clear_body()
    e(f"s_mov_b32 {sr(sZC)}, 0")
    e(f"s_cmp_eq_u32 {sr(sW)}, 0")
    e(f"s_cselect_b32 {sr(sONCE)}, 2, -1")
    e("s_branch L_init")
    lab("L_sh_verify")
    e(f"v_mov_b32 {vr(vKY)}, {vr(vE)}")
    sh_check()
    e(f"v_cmp_ne_u32 {sr(sCM,2)}, {vr(vKY)}, {vr(vE)}")
    e(f"s_or_b64 vcc, vcc, {sr(sCM,2)}")
    e("s_cbranch_scc0 L_sh_w")
    e("s_waitcnt vmcnt(0)")
    e(f"s_mov_b32 {sr(sZI)}, 0")
    e(f"s_lshl_b32 {sr(sSL)}, {sr(sW)}, 12")
    e(f"s_mov_b32 {sr(t7)}, 3")
    lab("L_sh_redo")
    sh_issue()
    e(f"s_sub_u32 {sr(t7)}, {sr(t7)}, 1")
    e(f"s_cmp_lg_u32 {sr(t7)}, 0")
    e("s_cbranch_scc1 L_sh_redo")

    lab("L_sh_loop")
    e(f"s_lshl_b32 {sr(t0)}, {sr(sSTR)}, 1")
    e(f"s_add_u32 {sr(t0)}, {sr(t0)}, {sr(sZC)}")
    e(f"s_cmp_lt_u32 {sr(t0)}, 256")
    e("s_waitcnt vmcnt(8)")
    e("s_cbranch_scc1 L_sh_w")
    e(f"s_cmp_eq_u32 {sr(t0)}, 256")
    e("s_waitcnt vmcnt(4)")
    e("s_cbranch_scc1 L_sh_w")
    e("s_waitcnt vmcnt(0)")
    lab("L_sh_w")
    e("s_barrier")
    e(f"s_cmp_lt_u32 {sr(sZI)}, 256")
    e("s_cbranch_scc0 L_sh_noiss")
    sh_issue()
    lab("L_sh_noiss")
    e(f"s_cmp_eq_u32 {sr(sONCE)}, {sr(sIT)}")
    e("s_cbranch_scc0 L_sh_nosig")
    signal()
    lab("L_sh_nosig")
    c("step = s0 + 4*((z>>4)&3) + (z>>6), row = z&15")
    e(f"s_bfe_u32 {sr(t0)}, {sr(sZC)}, 0x20004")
    e(f"s_lshl_b32 {sr(t0)}, {sr(t0)}, 2")
    e(f"s_lshr_b32 {sr(t1)}, {sr(sZC)}, 6")
    e(f"s_add_u32 {sr(t0)}, {sr(t0)}, {sr(t1)}")
    e(f"s_add_u32 {sr(t0)}, {sr(t0)}, {sr(sS0)}")
    e(f"s_lshl_b32 {sr(sPOS)}, {sr(t0)}, 5")
    e(f"s_mov_b64 {sr(sMK,2)}, -1")
    e(f"s_cmp_eq_u32 {sr(sSTR)}, 16")
    e("s_cbranch_scc1 L_sh_go")
    e(f"s_and_b32 {sr(t0)}, {sr(sZC)}, 3")
    e(f"s_lshl_b32 {sr(t0)}, {sr(t0)}, 2")
    e(f"s_lshl_b64 {sr(sMK,2)}, {sr(mSL,2)}, {sr(t0)}")
    e(f"s_bfe_u32 {sr(t0)}, {sr(sZC)}, 0x20002")
    e(f"s_cmp_eq_u32 {sr(t0)}, {sr(sW)}")
    e("s_cbranch_scc0 L_sh_next")
    lab("L_sh_go")
    probe("cons", 0)
    kreads()
    masks()
    qk()
    e("s_nop 3")
    vreads()
    softmax_a()
    rescale()
    e("s_waitcnt lgkmcnt(0)")
    for ee in range(8):
        pv(ee)
    probe("cons", 1)
    lab("L_sh_next")
    c("advance the fragment addresses to the next ring slot")
    e(f"s_add_u32 {sr(sIT)}, {sr(sIT)}, 1")
    e(f"s_bitcmp1_b32 {sr(sIT)}, 0")
    e(f"s_cselect_b32 {sr(t0)}, 1, 3")
    e(f"s_lshl_b32 {sr(t0)}, {sr(t0)}, 14")
    for i in range(12):
        e(f"v_xor_b32 {vr(vKA+i)}, {sr(t0)}, {vr(vKA+i)}")
    e(f"s_add_u32 {sr(sZC)}, {sr(sZC)}, {sr(sSTR)}")
    e(f"s_cmp_lt_u32 {sr(sZC)}, 256")
    e("s_cbranch_scc1 L_sh_loop")
    stamp(2)
    c("publish this wave's 16 columns (transpose through its own LDS region)")
    lsum()
    part_addr(vC, None, vWS_, vA1)
    e(f"v_min_u32 {vr(vM)}, -2, {vr(vM)}")
    e(f"v_min_u32 {vr(vLs)}, -2, {vr(vLs)}")
    for i in range(32):
        e(f"v_min_u32 {vr(vO+i)}, -2, {vr(vO+i)}")
    e("s_barrier")
    for ee in range(8):
        e(f"ds_write_b128 {vr(vLWa)}, {vr(vO+4*ee,4)} offset:{64*ee}")
    e(f"v_mul_u32_u24 {vr(vA2)}, {CSTR}, {vr(vG)}")
    e(f"v_lshl_add_u32 {vr(vA2)}, {vr(vC)}, 4, {vr(vA2)}")
    e(f"v_add_u32 {vr(vA2)}, {sr(sLB)}, {vr(vA2)}")
    e(f"v_lshlrev_b32 {vr(vCC)}, 12, {vr(vG)}")
    e(f"v_lshl_add_u32 {vr(vCC)}, {vr(vC)}, 4, {vr(vCC)}")
    e(f"s_lshl_b32 {sr(t6)}, {sr(sKS)}, 9")
    e("s_waitcnt lgkmcnt(0)")
    for i in range(4):
        for q in range(2):
            e(f"ds_read_b128 {vr(vOq+8*i+4*q,4)}, {vr(vA2)} offset:{4*CSTR*i+256*q}")
    e("s_mov_b64 exec, 0xffff")
    e(f"global_store_dwordx2 {vr(vWS_)}, {vr(vM,2)}, {sr(sWS,2)} sc1")
    e("s_mov_b64 exec, -1")
    for i in range(4):
        slot_base(i, vSt+i, vCC)
        e(f"s_waitcnt lgkmcnt({6-2*i})")
        e(f"global_store_dwordx4 {vr(vSt+i)}, {vr(vOq+8*i,4)}, {sr(sWS,2)} sc1")
        e(f"global_store_dwordx4 {vr(vSt+i)}, {vr(vOq+8*i+4,4)}, {sr(sWS,2)} offset:256 sc1")

    lab("L_done")
    if opt.stamps:
        e("s_waitcnt vmcnt(0)")
        stamp(3)
        e(f"s_getreg_b32 {sr(t5)}, hwreg(HW_REG_XCC_ID)")
        e(f"s_getreg_b32 {sr(t6)}, hwreg(HW_REG_HW_ID)")
        e("s_waitcnt lgkmcnt(0)")
        e(f"s_lshl_b32 {sr(t3)}, s2, 2")
        e(f"s_add_u32 {sr(t3)}, {sr(t3)}, {sr(sW)}")
        e(f"s_lshl_b32 {sr(t3)}, {sr(t3)}, 6")
        e(f"s_add_u32 {sr(t3)}, {sr(t3)}, {STAMPS}")
        e(f"s_sub_u32 {sr(sIT)}, {sr(sIT)}, 1")
        e(f"v_mov_b32 v4, {sr(t3)}")
        for i in range(8):
            e(f"v_mov_b32 v{8+i}, {sr(sST+i)}")
        e(f"v_mov_b32 v16, {sr(t5)}")
        e(f"v_mov_b32 v17, {sr(t6)}")
        for i in range(4):
            e(f"v_mov_b32 v{18+i}, {sr(sST+8+i)}")
        e(f"v_mov_b32 v22, {sr(sBHP)}")
        e(f"v_mov_b32 v23, {sr(sIT)}")
        e("s_mov_b64 exec, 1")
        e(f"global_store_dwordx4 v4, v[8:11], {sr(sWS,2)}")
        e(f"global_store_dwordx4 v4, v[12:15], {sr(sWS,2)} offset:16")
        e(f"global_store_dwordx4 v4, v[16:19], {sr(sWS,2)} offset:32")
        e(f"global_store_dwordx4 v4, v[20:23], {sr(sWS,2)} offset:48")
    if opt.amp:
        p = [int(x) for x in opt.amp.split(",")]
        a, b = p[0], p[1]
        if len(p) > 2:
            e(f"s_cmp_eq_u32 s2, {p[2]}")
            e("s_cbranch_scc0 L_end")
            e(f"s_cmp_eq_u32 {sr(sW)}, {p[3]}")
            e("s_cbranch_scc0 L_end")
        e(f"s_sub_u32 {sr(t0)}, {sr(sST+2*b)}, {sr(sST+2*a)}")
        e(f"s_lshl_b32 {sr(t0)}, {sr(t0)}, {5 if len(p)>2 else 3}")
        e(f"s_min_u32 {sr(t0)}, {sr(t0)}, 100000")
        lab("L_amp")
        e(f"s_memrealtime {sr(t2,2)}")
        e("s_waitcnt lgkmcnt(0)")
        e(f"s_sub_u32 {sr(t1)}, {sr(t2)}, {sr(sST+6)}")
        e(f"s_cmp_lt_u32 {sr(t1)}, {sr(t0)}")
        e("s_cbranch_scc1 L_amp")
    if opt.amp2:
        b, lo, hi, sh = [int(x) for x in opt.amp2.split(",")]
        neg = b >= 100
        b %= 100
        e(f"s_cmp_lt_u32 s2, {lo}")
        e("s_cbranch_scc1 L_end")
        e(f"s_cmp_ge_u32 s2, {hi}")
        e("s_cbranch_scc1 L_end")
        e("s_mov_b64 exec, -1")
        e(f"v_mov_b32 v4, 0x2f0000")
        e(f"global_load_dword v5, v4, {sr(sWS,2)} sc1")
        e("s_waitcnt vmcnt(0)")
        e(f"v_readfirstlane_b32 {sr(t4)}, v5")
        if neg:
            e(f"s_sub_u32 {sr(t0)}, {sr(t4)}, {sr(sST+2*b)}")
        else:
            e(f"s_sub_u32 {sr(t0)}, {sr(sST+2*b)}, {sr(t4)}")
        e(f"s_add_u32 {sr(t0)}, {sr(t0)}, 200")
        e(f"s_max_i32 {sr(t0)}, {sr(t0)}, 0")
        e(f"s_lshl_b32 {sr(t0)}, {sr(t0)}, {sh}")
        e(f"s_min_u32 {sr(t0)}, {sr(t0)}, 100000")
        lab("L_amp2")
        e(f"s_memrealtime {sr(t2,2)}")
        e("s_waitcnt lgkmcnt(0)")
        e(f"s_sub_u32 {sr(t1)}, {sr(t2)}, {sr(t4)}")
        e(f"s_cmp_lt_u32 {sr(t1)}, {sr(t0)}")
        e("s_cbranch_scc1 L_amp2")
    if opt.amp3:
        a, b, st = [int(x) for x in opt.amp3.split(",")]
        e(f"s_cmp_eq_u32 {sr(sW)}, 0")
        e("s_cbranch_scc0 L_end")
        e("s_mov_b64 exec, -1")
        e(f"v_mov_b32 v4, 0x2f0100")
        e(f"s_cmp_eq_u32 s2, {b}")
        e("s_cbranch_scc0 L_a3a")
        e(f"v_mov_b32 v5, {sr(sST+2*st)}")
        e(f"global_store_dword v4, v5, {sr(sWS,2)} sc1")
        lab("L_a3a")
        e(f"s_cmp_eq_u32 s2, {a}")
        e("s_cbranch_scc0 L_end")
        lab("L_a3b")
        e(f"s_memrealtime {sr(t2,2)}")
        e("s_waitcnt lgkmcnt(0)")
        e(f"s_sub_u32 {sr(t1)}, {sr(t2)}, {sr(sST)}")
        e(f"s_cmp_lt_u32 {sr(t1)}, 2800")
        e("s_cbranch_scc1 L_a3b")
        e(f"global_load_dword v5, v4, {sr(sWS,2)} sc1")
        e("s_waitcnt vmcnt(0)")
        e(f"v_readfirstlane_b32 {sr(t4)}, v5")
        e(f"s_sub_u32 {sr(t0)}, {sr(sST+2*st)}, {sr(t4)}")
        e(f"s_add_u32 {sr(t0)}, {sr(t0)}, 400")
        e(f"s_max_i32 {sr(t0)}, {sr(t0)}, 0")
        e(f"s_lshl_b32 {sr(t0)}, {sr(t0)}, 4")
        e(f"s_add_u32 {sr(t0)}, {sr(t0)}, 3000")
        e(f"s_min_u32 {sr(t0)}, {sr(t0)}, 100000")
        lab("L_a3c")
        e(f"s_memrealtime {sr(t2,2)}")
        e("s_waitcnt lgkmcnt(0)")
        e(f"s_sub_u32 {sr(t1)}, {sr(t2)}, {sr(sST)}")
        e(f"s_cmp_lt_u32 {sr(t1)}, {sr(t0)}")
        e("s_cbranch_scc1 L_a3c")
    lab("L_end")
    e("s_endpgm")

    out = HEADER
    out += f"; @launch grid=(256,1,1) block=({NW*64},1,1) lds={LDS}\n"
    out += '.amdgcn_target "amdgcn-amd-amdhsa--gfx950"\n.text\n'
    out += f".globl {NAME}_kernel\n.p2align 8\n.type {NAME}_kernel,@function\n{NAME}_kernel:\n"
    out += "\n".join(g.lines) + "\n"
    out += f""".section .rodata,"a"
.p2align 6
.amdhsa_kernel {NAME}_kernel
  .amdhsa_next_free_vgpr {NV}
  .amdhsa_next_free_sgpr 102
  .amdhsa_accum_offset {NV}
  .amdhsa_group_segment_fixed_size 0
  .amdhsa_kernarg_size 64
  .amdhsa_user_sgpr_count 2
  .amdhsa_user_sgpr_kernarg_segment_ptr 1
  .amdhsa_system_sgpr_workgroup_id_x 1
.end_amdhsa_kernel
"""
    return out

if __name__ == "__main__":
    ap = argparse.ArgumentParser()
    ap.add_argument("-o", default=f"cdna_kernels/{NAME}.s")
    ap.add_argument("--F", default="34,26,31,31")
    ap.add_argument("--spec", type=int, default=1)
    ap.add_argument("--spread", type=int, default=1)
    ap.add_argument("--rsleep", type=int, default=2)
    ap.add_argument("--lds", type=int, default=0)
    ap.add_argument("--pol", default="nt")
    ap.add_argument("--pol_out", default="")
    ap.add_argument("--stamps", action="store_true")
    ap.add_argument("--nobar", action="store_true")
    ap.add_argument("--amp", default="")
    ap.add_argument("--amp3", default="")
    ap.add_argument("--cpf", type=int, default=1)
    ap.add_argument("--amp2", default="")
    ap.add_argument("--mid", type=int, default=1)
    ap.add_argument("--probe", default="first")
    ap.add_argument("--clk", default="s_memrealtime")
    opt = ap.parse_args()
    for k in ("pol", "pol_out"):
        v = getattr(opt, k)
        setattr(opt, k, (" " + v.replace("+", " ")) if v else "")
    opt.code_bytes = 4096
    txt = build(opt)
    if opt.cpf:
        import subprocess, re, tempfile, os
        d = tempfile.mkdtemp()
        open(d + "/a.s", "w").write(txt)
        subprocess.check_call(["clang", "-target", "amdgcn-amd-amdhsa", "-mcpu=gfx950", "-c", d + "/a.s", "-o", d + "/a.o"])
        o = subprocess.check_output(["llvm-objdump", "-d", "--mcpu=gfx950", d + "/a.o"]).decode()
        end = int(re.search(r"^([0-9a-f]+) <L_end>:", o, re.M).group(1), 16)
        opt.code_bytes = end - 32
        txt = build(opt)
    open(opt.o, "w").write(txt)
```

```python
import sys, struct, argparse

NAME = "standalone__paged_block_table_kv_radixattention__sampling"

HEADER = """; Kernarg layout for this problem (64 bytes, ptrs only, base s[0:1]):
"""

def f2u(x):
    return struct.unpack("<I", struct.pack("<f", x))[0]

class Gen:
    def __init__(self, opt):
        self.o = opt
        self.lines = []
        self.nlab = 0
    def e(self, s):
        self.lines.append("    " + s)
    def c(self, s):
        self.lines.append("    ; " + s)
    def lab(self, name):
        self.lines.append(name + ":")
    def newlab(self, p="L"):
        self.nlab += 1
        return f"{p}_{self.nlab}"

def vr(b, n=1):
    return f"v{b}" if n == 1 else f"v[{b}:{b+n-1}]"
def sr(b, n=1):
    return f"s{b}" if n == 1 else f"s[{b}:{b+n-1}]"

def build(opt):
    g = Gen(opt)
    e, c, lab = g.e, g.c, g.lab
    NW = 4
    Fc = [int(x) for x in opt.F.split(",")]
    FPACK = sum((64 + Fc[i]) << (8*i) for i in range(4))
    KVB = 2176 * 32768
    CSTR = 528
    WSTR = 16384
    STAT = 16 * CSTR
    LDS = max(65536, opt.lds)
    pol = opt.pol
    PP = opt.pol_pub
    PG = opt.pol_get
    WSTAT = 0x200000
    STAMPS = 0x300000
    NG = 7
    NL = 21
    WNON = 0x220000
    sQ, sK, sV, sBT, sCTX, sOUT, sDBG, sWS = 4, 6, 8, 10, 12, 14, 16, 18
    srdK, srdV = 20, 24
    sBHP, sKS, sX_, sIDX = 28, 29, 30, 31
    sW, sHD, sS0, sSTR, sROLE = 32, 33, 34, 35, 36
    sIT, sREM, sLB = 37, 38, 39
    sCS, sONCE, sZI, sZC = 40, 41, 42, 43
    mSL = 44
    sB0, sB1, sPOS, sH8 = 46, 47, 48, 49
    sMK = 50
    sSL, sEND = 52, 53
    mIT = 54
    sFAST = 56
    sMW = 62
    sPHP = sBHP
    sR0, sR1, sN = 58, 59, 63
    sCM = 66
    t0, t1, t2, t3, t4, t5, t6, t7 = 82, 83, 84, 85, 86, 87, 88, 89
    sST = 90
    vL, vG, vC = 1, 2, 3
    vKO, vVO = 4, 8
    vQ = 12
    vO = 28
    vM, vLs, vCG = 60, 61, 62
    vMETA = 63
    vTB = 64
    vFM, vFI = 66, 67
    vS = 68
    vP = 76
    vF = 80
    vT = vF
    vLIM, vFILL, vMX, vAL, vX0, vX1, vX2, vX3 = 112, 113, 114, 115, 116, 117, 118, 119
    vKA, vVA = 120, 124
    vLE = 132
    vE = 134
    vKY, vKL = 138, 139
    vU = 140
    vGs, vGo = 140, 168
    vWO, vWS_, vOA, vLWa, vLWs, vA1, vA2, vCC = 224, 225, 226, 227, 228, 229, 230, 231
    vN = 133
    NV = 232

    def stamp(i):
        if opt.stamps:
            e(f"s_memrealtime {sr(sST+2*i,2)}")
    def probe(name, which):
        if opt.stamps and opt.probe == name:
            e(f"{opt.clk} {sr(sST+8+2*which,2)}")
            e("s_waitcnt lgkmcnt(0)")

    def list_addr_bh():
        c("vX0=step vX1=slot vX3=b*8+h -> vX3 table offset, vMETA")
        e(f"v_med3_i32 {vr(vX0)}, {vr(vX0)}, 0, {vr(vT+6)}")
        e(f"v_lshlrev_b32 {vr(vMETA)}, 5, {vr(vX0)}")
        e(f"v_lshl_add_u32 {vr(vMETA)}, {vr(vX1)}, 18, {vr(vMETA)}")
        e(f"v_lshl_add_u32 {vr(vMETA)}, {vr(vX3)}, 29, {vr(vMETA)}")
        e(f"v_lshrrev_b32 {vr(vX3)}, 3, {vr(vX3)}")
        e(f"v_lshlrev_b32 {vr(vX3)}, 10, {vr(vX3)}")
        e(f"v_lshl_add_u32 {vr(vX3)}, {vr(vX0)}, 3, {vr(vX3)}")
    def list_load():
        e(f"global_load_dwordx2 {vr(vTB,2)}, {vr(vX3)}, {sr(sBT,2)}")
    def predict():
        c("guess for the first item (checked against the table below): block = 128*row + column")
        e(f"v_readfirstlane_b32 {sr(t0)}, {vr(vX3)}")
        e(f"v_readfirstlane_b32 {sr(t2)}, {vr(vMETA)}")
        e(f"s_lshr_b32 {sr(t1)}, {sr(t0)}, 10")
        e(f"s_lshl_b32 {sr(t1)}, {sr(t1)}, 22")
        e(f"s_and_b32 {sr(t0)}, {sr(t0)}, 0x3ff")
        e(f"s_lshl_b32 {sr(t0)}, {sr(t0)}, 13")
        e(f"s_add_u32 {sr(t0)}, {sr(t0)}, {sr(t1)}")
        e(f"s_lshr_b32 {sr(t2)}, {sr(t2)}, 29")
        e(f"s_lshl_b32 {sr(t2)}, {sr(t2)}, 8")
        e(f"s_or_b32 {sr(sB0)}, {sr(t0)}, {sr(t2)}")
        e(f"s_add_u32 {sr(sB1)}, {sr(sB0)}, 0x8000")
    vQO, vCO = vT + 8, vT + 9
    def col_addr():
        c("per-lane column: Q offset and ctx offset")
        e(f"v_lshlrev_b32 {vr(vCO)}, 1, {vr(vC)}")
        e(f"v_and_b32 {vr(vCO)}, 24, {vr(vCO)}")
        e(f"v_bfe_u32 {vr(vCO)}, {sr(sBHP)}, {vr(vCO)}, 8")
        e(f"v_lshl_add_u32 {vr(vQO)}, {vr(vCO)}, 10, {vr(vT+10)}")
        e(f"v_lshrrev_b32 {vr(vCO)}, 1, {vr(vCO)}")
        e(f"v_and_b32 {vr(vCO)}, 60, {vr(vCO)}")
    def col_load():
        e(f"global_load_dword {vr(vCG)}, {vr(vCO)}, {sr(sCTX,2)}")
        for m in range(4):
            e(f"global_load_dwordx4 {vr(vQ+4*m,4)}, {vr(vQO)}, {sr(sQ,2)} offset:{64*m}")
    def part_addr(vcol, vo, vs, tmp):
        c("partial addresses for column vcol: row R=(b*8+h)*4+(col&3); O: R*4096 + k*512 ; stats: R*128 + k*16")
        e(f"v_lshlrev_b32 {vr(tmp)}, 1, {vr(vcol)}")
        e(f"v_and_b32 {vr(tmp)}, 24, {vr(tmp)}")
        e(f"v_bfe_u32 {vr(tmp)}, {sr(sPHP)}, {vr(tmp)}, 8")
        e(f"v_and_b32 {vr(vs)}, 3, {vr(vcol)}")
        e(f"v_lshl_add_u32 {vr(tmp)}, {vr(tmp)}, 2, {vr(vs)}")
        if vo is not None:
            e(f"s_lshl_b32 {sr(t3)}, {sr(sKS)}, 9")
            e(f"v_lshl_add_u32 {vr(vo)}, {vr(tmp)}, 12, {sr(t3)}")
        e(f"s_lshl_b32 {sr(t3)}, {sr(sKS)}, 4")
        e(f"s_add_u32 {sr(t3)}, {sr(t3)}, {WSTAT}")
        e(f"v_lshl_add_u32 {vr(vs)}, {vr(tmp)}, 7, {sr(t3)}")
    def slot_base(i, vdst, vlane):
        e(f"s_bfe_u32 {sr(t3)}, {sr(sPHP)}, 0x{0x80000+8*i:x}")
        e(f"s_lshl_b32 {sr(t3)}, {sr(t3)}, 14")
        e(f"s_add_u32 {sr(t3)}, {sr(t3)}, {sr(t6)}")
        e(f"v_add_u32 {vr(vdst)}, {sr(t3)}, {vr(vlane)}")
    def need_nonce():
        c("the nonce was normally fetched in the loop")
        la = g.newlab(); lb = g.newlab()
        e(f"s_mov_b32 {sr(t5)}, 0")
        e(f"v_mov_b32 {vr(vX0)}, 64")
        lab(la)
        e(f"s_cmp_lg_u32 {sr(sN)}, 0")
        e(f"s_cbranch_scc1 {lb}")
        e(f"global_load_dword {vr(vN)}, {vr(vX0)}, {sr(sDBG,2)} sc1")
        e("s_sleep 8")
        e(f"s_add_u32 {sr(t5)}, {sr(t5)}, 1")
        e("s_waitcnt vmcnt(0)")
        e(f"v_readfirstlane_b32 {sr(sN)}, {vr(vN)}")
        e(f"s_cmp_lt_u32 {sr(t5)}, 0x40000")
        e(f"s_cbranch_scc1 {la}")
        lab(lb)
    def tag_setup():
        e(f"v_mov_b32 {vr(vN)}, {sr(sN)}")
        for i in range(4):
            e(f"s_mov_b32 {sr(sCM+8+i)}, 0x0706050{i}")
    def tag(reg, i):
        e(f"v_perm_b32 {vr(reg)}, {vr(reg)}, {vr(vN)}, {sr(sCM+8+(i&3))}")
    def setup_k():
        c("K DMA source offsets (XOR-swizzled)")
        e(f"v_xor_b32 {vr(vT+16)}, {vr(vC)}, {vr(vG)}")
        e(f"v_lshlrev_b32 {vr(vT+17)}, 11, {vr(vG)}")
        e(f"v_lshl_add_u32 {vr(vKO)}, {vr(vT+16)}, 4, {vr(vT+17)}")
        for n in range(1, 4):
            e(f"v_xor_b32 {vr(vKO+n)}, {n<<6}, {vr(vKO)}")
            e(f"v_add_u32 {vr(vKO+n)}, {n*7168}, {vr(vKO+n)}")
        e(f"s_lshl_b32 {sr(sLB)}, {sr(sW)}, 14")
        e(f"s_mov_b32 {sr(srdK+2)}, {KVB}")
        e(f"s_mov_b32 {sr(srdK+3)}, 0x20000")
    def setup_v(dst=None):
        c("V DMA source offsets")
        d = vVO if dst is None else dst
        e(f"v_lshlrev_b32 {vr(vT+16)}, 1, {vr(vG)}")
        e(f"v_xor_b32 {vr(vT+16)}, {vr(vC)}, {vr(vT+16)}")
        e(f"v_lshl_add_u32 {vr(d)}, {vr(vT+16)}, 4, {vr(vT+17)}")
        e(f"v_xor_b32 {vr(d+1)}, 128, {vr(d)}")
        e(f"v_add_u32 {vr(d+3)}, {3*7168}, {vr(d+1)}")
        e(f"v_add_u32 {vr(d+1)}, 7168, {vr(d+1)}")
        e(f"v_add_u32 {vr(d+2)}, {2*7168}, {vr(d)}")
    def srd_k():
        e(f"s_mov_b32 {sr(srdK)}, {sr(sK)}")
        e(f"s_and_b32 {sr(srdK+1)}, {sr(sK+1)}, 0xffff")
    def srd_v():
        e(f"s_mov_b32 {sr(srdV)}, {sr(sV)}")
        e(f"s_and_b32 {sr(srdV+1)}, {sr(sV+1)}, 0xffff")
        e(f"s_mov_b32 {sr(srdV+3)}, 0x20000")
    def misc():
        e(f"v_and_b32 {vr(vL)}, 63, v0")
        e(f"v_and_b32 {vr(vX2)}, 3, v0")
        e(f"v_lshlrev_b32 {vr(vT+10)}, 4, {vr(vG)}")
        e(f"v_lshl_add_u32 {vr(vT+10)}, {vr(vX2)}, 8, {vr(vT+10)}")
        e(f"v_mov_b32 {vr(vT+6)}, 127")
        e(f"s_mov_b32 {sr(mSL)}, 0x000f000f")
        e(f"s_mov_b32 {sr(mSL+1)}, {sr(mSL)}")
        e(f"s_mov_b32 {sr(sIT)}, 0")
    def cpf():
        if opt.cpf:
            c("pull the kernel's code into L2: one dword per 64 bytes")
            e(f"v_lshlrev_b32 {vr(vF+30)}, 6, v0")
            e(f"v_min_u32 {vr(vF+30)}, {opt.code_bytes}, {vr(vF+30)}")
            e(f"global_load_dword {vr(vF+31)}, {vr(vF+30)}, {sr(sCM,2)}")
    def ranks():
        c("vKY: ctx of row c -> key = nsteps*16 + row ; vX3 = rank of the key")
        e(f"v_mov_b32 {vr(vX2)}, 0x1000")
        e(f"v_cmp_lt_i32 vcc, 0, {vr(vKY)}")
        e(f"v_min_i32 {vr(vKY)}, {vr(vKY)}, {vr(vX2)}")
        e(f"v_mov_b32 {vr(vX3)}, 0")
        e(f"v_cndmask_b32 {vr(vKL)}, {vr(vX2)}, {vr(vKY)}, vcc")
        e(f"v_add_u32 {vr(vKY)}, 31, {vr(vKL)}")
        e(f"v_lshrrev_b32 {vr(vKY)}, 5, {vr(vKY)}")
        e(f"v_lshl_add_u32 {vr(vKY)}, {vr(vKY)}, 4, {vr(vC)}")
        e("s_nop 1")
        for k in range(1, 16):
            e(f"v_sub_u32_dpp {vr(vT+(k&3))}, {vr(vKY)}, {vr(vKY)} row_ror:{k} row_mask:0xf bank_mask:0xf")
            e(f"v_lshrrev_b32 {vr(vT+(k&3))}, 31, {vr(vT+(k&3))}")
            e(f"v_add_u32 {vr(vX3)}, {vr(vX3)}, {vr(vT+(k&3))}")
    def gload(part="AB"):
        for k in range(NG):
            if ("A" if k < 4 else "B") in part:
                e(f"global_load_dwordx4 {vr(vGs+4*k,4)}, {vr(vWS_)}, {sr(sWS,2)} offset:{16*k}{PG}")
                for q in range(2):
                    e(f"global_load_dwordx4 {vr(vGo+8*k+4*q,4)}, {vr(vWO)}, {sr(sWS,2)} offset:{512*k+256*q}{PG}")
    def lsum():
        c("reduce l over the 4 lane groups")
        e(f"v_mov_b32 {vr(vX0)}, {vr(vLs)}")
        e("s_nop 1")
        e(f"v_permlane32_swap_b32 {vr(vLs)}, {vr(vX0)}")
        e(f"v_add_f32 {vr(vLs)}, {vr(vLs)}, {vr(vX0)}")
        e(f"v_mov_b32 {vr(vX0)}, {vr(vLs)}")
        e("s_nop 1")
        e(f"v_permlane16_swap_b32 {vr(vLs)}, {vr(vX0)}")
        e(f"v_add_f32 {vr(vLs)}, {vr(vLs)}, {vr(vX0)}")
    def limits(tl, pos):
        c("tokens past the context are not fetched: they fall outside num_records and read as zero")
        e(f"s_sub_i32 {sr(tl)}, {sr(tl)}, {sr(pos)}")
        e(f"s_max_i32 {sr(tl)}, {sr(tl)}, 0")
        e(f"s_min_u32 {sr(t0)}, {sr(tl)}, 16")
        e(f"s_min_u32 {sr(t1)}, {sr(tl)}, 32")
        e(f"s_sub_u32 {sr(t1)}, {sr(t1)}, {sr(t0)}")
        e(f"s_lshl_b32 {sr(t0)}, {sr(t0)}, 11")
        e(f"s_lshl_b32 {sr(t1)}, {sr(t1)}, 11")
        e(f"s_add_u32 {sr(t0)}, {sr(t0)}, {sr(sB0)}")
        e(f"s_add_u32 {sr(t1)}, {sr(t1)}, {sr(sB1)}")
        e(f"s_min_u32 {sr(sR0)}, {sr(t0)}, {KVB}")
        e(f"s_min_u32 {sr(sR1)}, {sr(t1)}, {KVB}")
    def fetch():
        e(f"v_readlane_b32 {sr(t2)}, {vr(vMETA)}, {sr(sIT)}")
        e(f"v_readlane_b32 {sr(t0)}, {vr(vTB)}, {sr(sIT)}")
        e(f"v_readlane_b32 {sr(t1)}, {vr(vTB+1)}, {sr(sIT)}")
        e(f"s_bfe_u32 {sr(t3)}, {sr(t2)}, 0x40010")
        e(f"s_lshr_b32 {sr(t4)}, {sr(t2)}, 29")
        e(f"v_readlane_b32 {sr(t5)}, {vr(vLE)}, {sr(t3)}")
        e(f"s_lshl_b32 {sr(t4)}, {sr(t4)}, 8")
        e(f"s_lshl_b32 {sr(t0)}, {sr(t0)}, 15")
        e(f"s_lshl_b32 {sr(t1)}, {sr(t1)}, 15")
        e(f"s_or_b32 {sr(sB0)}, {sr(t0)}, {sr(t4)}")
        e(f"s_or_b32 {sr(sB1)}, {sr(t1)}, {sr(t4)}")
        e(f"s_and_b32 {sr(sPOS)}, {sr(t2)}, 0xffff")
        e(f"s_lshl_b64 {sr(sMK,2)}, {sr(mIT,2)}, {sr(t3)}")
        e(f"s_add_u32 {sr(sIT)}, {sr(sIT)}, 1")
        limits(t5, sPOS)
    def decode():
        pass
    def dma4(off, srd, soff):
        for n in range(4):
            o = f" offset:{1024*n}" if n else ""
            e(f"buffer_load_dwordx4 {vr(off+n)}, {sr(srd,4)}, {sr(soff)} offen{o}{pol} lds")
    def issue(kv):
        off = vVO if kv == "V" else vKO
        srd = srdV if kv == "V" else srdK
        base = 8192 if kv == "V" else 0
        if base:
            e(f"s_add_u32 m0, {sr(sLB)}, {base}")
        else:
            e(f"s_mov_b32 m0, {sr(sLB)}")
        e(f"s_mov_b32 {sr(srd+2)}, {sr(sR0)}")
        dma4(off, srd, sB0)
        e(f"s_add_u32 m0, {sr(sLB)}, {base+4096}")
        e(f"s_mov_b32 {sr(srd+2)}, {sr(sR1)}")
        dma4(off, srd, sB1)
    e("s_cmp_ge_u32 s2, 256")
    e("s_cbranch_scc1 L_end")
    e(f"s_load_dwordx16 s[4:19], s[0:1], 0")
    stamp(0)
    if opt.cpf:
        e(f"s_getpc_b64 {sr(sCM,2)}")
    e(f"v_lshrrev_b32 {vr(vX0)}, 6, v0")
    e(f"v_and_b32 {vr(vC)}, 15, v0")
    e(f"v_bfe_u32 {vr(vG)}, v0, 4, 2")
    e(f"v_readfirstlane_b32 {sr(sW)}, {vr(vX0)}")
    e(f"s_lshr_b32 {sr(sIDX)}, s2, 3")
    c("head: bit1 = id&1, bits 0/2 rotate with idx")
    e(f"s_lshr_b32 {sr(t0)}, s2, 1")
    e(f"s_add_u32 {sr(t0)}, {sr(t0)}, {sr(sIDX)}")
    e(f"s_and_b32 {sr(t1)}, {sr(t0)}, 2")
    e(f"s_and_b32 {sr(t0)}, {sr(t0)}, 1")
    e(f"s_and_b32 {sr(t2)}, s2, 1")
    e(f"s_or_b32 {sr(t1)}, {sr(t1)}, {sr(t2)}")
    e(f"s_lshl1_add_u32 {sr(sHD)}, {sr(t1)}, {sr(t0)}")
    setup_k()
    e(f"s_cmp_lt_u32 {sr(sIDX)}, 16")
    e("s_cbranch_scc1 L_helper")
    c("======== finisher (b, h): steps 64+w+4*lane")
    c("guess for the first item (checked against the table below): block = 128*row + column")
    e(f"s_sub_u32 {sr(t0)}, {sr(sIDX)}, 15")
    e(f"s_lshl_b32 {sr(t0)}, {sr(t0)}, 6")
    e(f"s_add_u32 {sr(t0)}, {sr(t0)}, {sr(sW)}")
    e(f"s_lshl_b32 {sr(t0)}, {sr(t0)}, 8")
    e(f"s_add_u32 {sr(t0)}, {sr(t0)}, {sr(sHD)}")
    e(f"s_lshl_b32 {sr(sB0)}, {sr(t0)}, 8")
    e(f"s_add_u32 {sr(sB1)}, {sr(sB0)}, 0x8000")
    e(f"s_mov_b32 {sr(sR0)}, {sr(sB1)}")
    e(f"s_add_u32 {sr(sR1)}, {sr(sB1)}, 0x8000")
    e("s_waitcnt lgkmcnt(0)")
    srd_k()
    stamp(1)
    issue("K")
    misc()
    e(f"s_mov_b32 {sr(sROLE)}, 1")
    e(f"s_and_b32 {sr(t1)}, s2, 0x78")
    e(f"s_or_b32 {sr(t1)}, {sr(t1)}, {sr(sHD)}")
    e(f"s_mul_i32 {sr(sBHP)}, {sr(t1)}, 0x01010101")
    e(f"s_add_u32 {sr(t2)}, {sr(sW)}, 64")
    e(f"v_lshl_add_u32 {vr(vX0)}, {vr(vL)}, 2, {sr(t2)}")
    e(f"v_mov_b32 {vr(vX1)}, 0")
    e(f"v_mov_b32 {vr(vX3)}, {sr(t1)}")
    list_addr_bh()
    e(f"s_and_b32 {sr(t0)}, {sr(sHD)}, 3")
    e(f"s_lshl_b32 {sr(t0)}, {sr(t0)}, 3")
    e(f"s_lshr_b32 {sr(sEND)}, 0x{FPACK:08x}, {sr(t0)}")
    e(f"s_and_b32 {sr(sEND)}, {sr(sEND)}, 0xff")
    e(f"s_mov_b32 {sr(sKS)}, 0")
    e(f"s_mov_b64 {sr(mIT,2)}, -1")
    lab("L_go")
    list_load()
    col_addr()
    col_load()
    setup_v()
    srd_v()
    issue("V")
    lab("L_init")
    if opt.amp2:
        e(f"s_or_b32 {sr(t0)}, s2, {sr(sW)}")
        e("s_cbranch_scc1 L_noref")
        e(f"v_mov_b32 {vr(vX0)}, 0x2f0000")
        e(f"v_mov_b32 {vr(vX1)}, {sr(sST)}")
        e(f"global_store_dword {vr(vX0)}, {vr(vX1)}, {sr(sWS,2)} sc1")
        lab("L_noref")
    e(f"s_mov_b32 {sr(sCS)}, 0x{f2u(128**-0.5 * 1.4426950408889634):08x}")
    for i in range(32):
        e(f"v_mov_b32 {vr(vO+i)}, 0")
    e(f"v_mov_b32 {vr(vM)}, 0x{f2u(-1e30):08x}")
    e(f"v_mov_b32 {vr(vLs)}, 0")
    e(f"v_mov_b32 {vr(vFM)}, 0x{f2u(-1e9/(128**-0.5)):08x}")
    e(f"v_mov_b32 {vr(vFI)}, 0x{f2u(-3e38):08x}")
    c("LDS fragment addresses")
    e(f"s_cmp_eq_u32 {sr(sROLE)}, 2")
    e(f"s_cselect_b32 {sr(t0)}, 0, {sr(sLB)}")
    e(f"v_xor_b32 {vr(vX0)}, {vr(vC)}, {vr(vG)}")
    e(f"v_lshl_add_u32 {vr(vX1)}, {vr(vC)}, 8, {sr(t0)}")
    e(f"v_lshl_add_u32 {vr(vKA)}, {vr(vX0)}, 4, {vr(vX1)}")
    for m in range(1, 4):
        e(f"v_xor_b32 {vr(vKA+m)}, {m<<6}, {vr(vKA)}")
    e(f"v_lshrrev_b32 {vr(vX0)}, 2, {vr(vL)}")
    e(f"v_lshl_add_u32 {vr(vX1)}, {vr(vX0)}, 8, {sr(t0)}")
    e(f"v_and_b32 {vr(vX0)}, 7, {vr(vX0)}")
    e(f"v_lshl_add_u32 {vr(vX1)}, {vr(vX0)}, 5, {vr(vX1)}")
    e(f"v_and_b32 {vr(vX0)}, 3, {vr(vL)}")
    e(f"v_lshl_add_u32 {vr(vVA)}, {vr(vX0)}, 3, {vr(vX1)}")
    for ee in range(1, 8):
        e(f"v_xor_b32 {vr(vVA+ee)}, {ee<<5}, {vr(vVA)}")
    c("epilogue addresses")
    e(f"s_cmp_eq_u32 {sr(sROLE)}, 1")
    e(f"s_cselect_b32 {sr(t0)}, 3, 15")
    e(f"v_lshrrev_b32 {vr(vCC)}, 4, v0")
    e(f"v_and_b32 {vr(vCC)}, {sr(t0)}, {vr(vCC)}")
    part_addr(vCC, vWO, vWS_, vX0)
    e(f"v_lshl_add_u32 {vr(vWO)}, {vr(vC)}, 4, {vr(vWO)}")
    e(f"v_mul_u32_u24 {vr(vLWa)}, {CSTR}, {vr(vC)}")
    e(f"v_lshl_add_u32 {vr(vLWa)}, {vr(vG)}, 4, {vr(vLWa)}")
    e(f"v_add_u32 {vr(vLWa)}, {sr(sLB)}, {vr(vLWa)}")
    e(f"v_lshl_add_u32 {vr(vLWs)}, {vr(vC)}, 3, {sr(sLB)}")
    e(f"v_lshlrev_b32 {vr(vA1)}, 3, {vr(vCC)}")
    e(f"v_mul_u32_u24 {vr(vA2)}, {CSTR}, {vr(vCC)}")
    e(f"v_lshl_add_u32 {vr(vA2)}, {vr(vC)}, 4, {vr(vA2)}")
    e(f"s_and_b32 {sr(t3)}, {sr(sBHP)}, 0xff")
    e(f"s_lshl_b32 {sr(t3)}, {sr(t3)}, 10")
    e(f"v_lshl_add_u32 {vr(vOA)}, {vr(vG)}, 8, {sr(t3)}")
    e(f"v_lshl_add_u32 {vr(vOA)}, {vr(vC)}, 3, {vr(vOA)}")
    e(f"s_cmp_eq_u32 {sr(sW)}, {opt.mw}")
    e(f"s_cselect_b32 {sr(sMW)}, {sr(sROLE)}, 0")
    e(f"s_mov_b32 {sr(sN)}, 0")
    c("table/ctx/Q were issued before the first V loads (shared role: before items 1,2)")
    e(f"s_cmp_eq_u32 {sr(sROLE)}, 2")
    e("s_waitcnt vmcnt(8)")
    e(f"v_mov_b32 {vr(vX1)}, 0x1000")
    e(f"v_cmp_lt_i32 vcc, 0, {vr(vCG)}")
    e(f"v_lshlrev_b32 {vr(vX0)}, 2, {vr(vG)}")
    e(f"v_med3_i32 {vr(vCG)}, {vr(vCG)}, 0, {vr(vX1)}")
    e(f"v_cndmask_b32 {vr(vLE)}, {vr(vX1)}, {vr(vCG)}, vcc")
    e(f"v_sub_u32 {vr(vCG)}, {vr(vCG)}, {vr(vX0)}")
    e("s_cbranch_scc1 L_sh_verify")
    e(f"s_mov_b64 {sr(sCM,2)}, {sr(sB0,2)}")
    e(f"s_mov_b64 {sr(sCM+2,2)}, {sr(sR0,2)}")
    fetch()
    e(f"s_xor_b64 {sr(sCM,2)}, {sr(sCM,2)}, {sr(sB0,2)}")
    e(f"s_xor_b64 {sr(sCM+2,2)}, {sr(sCM+2,2)}, {sr(sR0,2)}")
    e(f"s_or_b64 {sr(sCM,2)}, {sr(sCM,2)}, {sr(sCM+2,2)}")
    e("s_cbranch_scc1 L_respec")
    lab("L_specok")
    e(f"s_cmp_eq_u32 {sr(sROLE)}, 1")
    e("s_cbranch_scc0 L_cnt")
    c("finisher item count (at least one: a step past the context is fully masked)")
    e(f"v_readfirstlane_b32 {sr(t1)}, {vr(vLE)}")
    e(f"s_add_u32 {sr(t1)}, {sr(t1)}, 31")
    e(f"s_lshr_b32 {sr(t1)}, {sr(t1)}, 5")
    e(f"s_min_u32 {sr(t1)}, {sr(t1)}, {sr(sEND)}")
    e(f"s_sub_i32 {sr(t1)}, {sr(t1)}, {sr(sW)}")
    e(f"s_sub_i32 {sr(t1)}, {sr(t1)}, 61")
    e(f"s_ashr_i32 {sr(t1)}, {sr(t1)}, 2")
    e(f"s_max_i32 {sr(sREM)}, {sr(t1)}, 1")
    lab("L_cnt")

    def kreads():
        for m in range(4):
            e(f"ds_read_b128 {vr(vF+8*m,4)}, {vr(vKA+m)}")
            e(f"ds_read_b128 {vr(vF+8*m+4,4)}, {vr(vKA+m)} offset:4096")
    def qk():
        for m in range(4):
            e(f"s_waitcnt lgkmcnt({6-2*m})")
            c0 = "0" if m == 0 else vr(vS, 4)
            c1 = "0" if m == 0 else vr(vS+4, 4)
            e(f"v_mfma_f32_16x16x32_bf16 {vr(vS,4)}, {vr(vF+8*m,4)}, {vr(vQ+4*m,4)}, {c0}")
            e(f"v_mfma_f32_16x16x32_bf16 {vr(vS+4,4)}, {vr(vF+8*m+4,4)}, {vr(vQ+4*m,4)}, {c1}")
    def masks():
        e(f"v_subrev_u32 {vr(vLIM)}, {sr(sPOS)}, {vr(vCG)}")
        e(f"v_cndmask_b32 {vr(vLIM)}, 0, {vr(vLIM)}, {sr(sMK,2)}")
        e(f"v_cndmask_b32 {vr(vFILL)}, {vr(vFI)}, {vr(vFM)}, {sr(sMK,2)}")
        e(f"v_cmp_gt_i32 {sr(sFAST,2)}, 20, {vr(vLIM)}")
    def vreads():
        for ee in range(8):
            e(f"ds_read_b64_tr_b16 {vr(vF+4*ee,2)}, {vr(vVA+ee)} offset:8192")
            e(f"ds_read_b64_tr_b16 {vr(vF+4*ee+2,2)}, {vr(vVA+ee)} offset:12288")
    def softmax_a():
        la = g.newlab()
        e(f"s_cmp_eq_u64 {sr(sFAST,2)}, 0")
        e(f"s_cbranch_scc1 {la}")
        for j in range(8):
            e(f"v_cmp_lt_i32 {sr(sCM+2*j,2)}, {(j>>2)*16+(j&3)}, {vr(vLIM)}")
        for j in range(8):
            e(f"v_cndmask_b32 {vr(vS+j)}, {vr(vFILL)}, {vr(vS+j)}, {sr(sCM+2*j,2)}")
        lab(la)
        e(f"v_max3_f32 {vr(vMX)}, {vr(vS)}, {vr(vS+1)}, {vr(vS+2)}")
        e(f"v_max3_f32 {vr(vX0)}, {vr(vS+3)}, {vr(vS+4)}, {vr(vS+5)}")
        e(f"v_max3_f32 {vr(vMX)}, {vr(vMX)}, {vr(vS+6)}, {vr(vS+7)}")
        e(f"v_max3_f32 {vr(vMX)}, {vr(vMX)}, {vr(vX0)}, {vr(vM)}")
        e(f"v_mov_b32 {vr(vX0)}, {vr(vMX)}")
        e("s_nop 1")
        e(f"v_permlane32_swap_b32 {vr(vMX)}, {vr(vX0)}")
        e(f"v_max_f32 {vr(vMX)}, {vr(vMX)}, {vr(vX0)}")
        e(f"v_mov_b32 {vr(vX0)}, {vr(vMX)}")
        e("s_nop 1")
        e(f"v_permlane16_swap_b32 {vr(vMX)}, {vr(vX0)}")
        e(f"v_max_f32 {vr(vMX)}, {vr(vMX)}, {vr(vX0)}")
        e(f"v_mul_f32 {vr(vX1)}, {sr(sCS)}, {vr(vMX)}")
        e(f"v_sub_f32 {vr(vAL)}, {vr(vM)}, {vr(vMX)}")
        e(f"v_cmp_lt_f32 vcc, {vr(vM)}, {vr(vMX)}")
        for j in range(8):
            e(f"v_fma_f32 {vr(vS+j)}, {vr(vS+j)}, {sr(sCS)}, -{vr(vX1)}")
        e(f"v_mul_f32 {vr(vAL)}, {sr(sCS)}, {vr(vAL)}")
        for j in range(8):
            e(f"v_exp_f32 {vr(vS+j)}, {vr(vS+j)}")
        e(f"v_exp_f32 {vr(vAL)}, {vr(vAL)}")
        e(f"v_mov_b32 {vr(vM)}, {vr(vMX)}")
        for u in range(4):
            e(f"v_cvt_pk_bf16_f32 {vr(vP+u)}, {vr(vS+2*u)}, {vr(vS+2*u+1)}")
        e(f"v_pk_add_f32 {vr(vS,2)}, {vr(vS,2)}, {vr(vS+2,2)}")
        e(f"v_pk_add_f32 {vr(vS+4,2)}, {vr(vS+4,2)}, {vr(vS+6,2)}")
        e(f"v_pk_add_f32 {vr(vS,2)}, {vr(vS,2)}, {vr(vS+4,2)}")
        e(f"v_fma_f32 {vr(vLs)}, {vr(vLs)}, {vr(vAL)}, {vr(vS)}")
        e(f"v_add_f32 {vr(vLs)}, {vr(vLs)}, {vr(vS+1)}")
    def rescale():
        la = g.newlab()
        e(f"s_cbranch_vccz {la}")
        for i in range(0, 32, 2):
            e(f"v_pk_mul_f32 {vr(vO+i,2)}, {vr(vO+i,2)}, {vr(vMX,2)} op_sel:[0,1] op_sel_hi:[1,1]")
        lab(la)
    def pv(ee):
        ob = vO + 4*ee
        e(f"v_mfma_f32_16x16x32_bf16 {vr(ob,4)}, {vr(vF+4*ee,4)}, {vr(vP,4)}, {vr(ob,4)}")

    lab("L_loop")
    e("s_waitcnt vmcnt(8) lgkmcnt(0)")
    if opt.stamps and opt.probe == "first":
        e(f"s_cmp_eq_u32 {sr(sIT)}, 1")
        e(f"s_cbranch_scc0 L_q1")
        stamp(4)
        e("s_waitcnt lgkmcnt(0)")
        lab("L_q1")
    kreads()
    masks()
    fetch()
    qk()
    e(f"s_cmp_eq_u32 {sr(sREM)}, 1")
    e("s_cbranch_scc1 L_noK")
    issue("K")
    e("s_branch L_sm")
    lab("L_noK")
    e(f"s_cmp_eq_u32 {sr(sMW)}, 1")
    e("s_cbranch_scc1 L_early")
    e("s_nop 6")
    lab("L_sm")
    softmax_a()
    rescale()
    e(f"s_cmp_eq_u32 {sr(sREM)}, 1")
    e("s_cbranch_scc1 L_last")
    e("s_waitcnt vmcnt(8)")
    e("s_branch L_vok")
    lab("L_last")
    lsum()
    e(f"s_cmp_eq_u32 {sr(sMW)}, 1")
    e(f"s_waitcnt vmcnt({NL})")
    e("s_cbranch_scc1 L_vok")
    e("s_waitcnt vmcnt(0)")
    lab("L_vok")
    vreads()
    for ee in range(8):
        e(f"s_waitcnt lgkmcnt({14-2*ee})")
        pv(ee)
    e(f"s_cmp_eq_u32 {sr(sREM)}, 1")
    e("s_cbranch_scc1 L_epi")
    issue("V")
    c("a cached load of the nonce can only be stale towards 0")
    e(f"s_cmp_eq_u32 {sr(sIT)}, 4")
    e("s_cbranch_scc0 L_hook_done")
    e(f"s_load_dword {sr(sN)}, {sr(sDBG,2)}, 0x40")
    lab("L_hook_done")
    if opt.stamps and opt.probe == "first":
        e(f"s_cmp_eq_u32 {sr(sIT)}, {opt.mid+1}")
        e(f"s_cbranch_scc0 L_q2")
        stamp(5)
        e("s_waitcnt lgkmcnt(0)")
        lab("L_q2")
    e(f"s_sub_u32 {sr(sREM)}, {sr(sREM)}, 1")
    e("s_branch L_loop")

    lab("L_epi")
    stamp(2)
    vSt = vS
    vOq = vF
    vR = 12
    vWt = 20
    c("finishers only need columns 0..3")
    e(f"s_cmp_eq_u32 {sr(sROLE)}, 1")
    e(f"s_cselect_b64 exec, {sr(mSL,2)}, -1")
    e(f"ds_write_b64 {vr(vLWs)}, {vr(vM,2)} offset:{STAT}")
    e("s_nop 1")
    for ee in range(8):
        e(f"ds_write_b128 {vr(vLWa)}, {vr(vO+4*ee,4)} offset:{64*ee}")
    e("s_mov_b64 exec, -1")
    e("s_cbranch_scc1 L_fin")

    def maxchain(ms):
        e(f"v_max3_f32 {vr(vMX)}, {vr(ms[0])}, {vr(ms[1])}, {vr(ms[2])}")
        i = 3
        while i < len(ms):
            if i + 1 < len(ms):
                e(f"v_max3_f32 {vr(vMX)}, {vr(vMX)}, {vr(ms[i])}, {vr(ms[i+1])}"); i += 2
            else:
                e(f"v_max_f32 {vr(vMX)}, {vr(vMX)}, {vr(ms[i])}"); i += 1
        for i in range(len(ms)):
            e(f"v_sub_f32 {vr(vWt+i)}, {vr(ms[i])}, {vr(vMX)}")
        for i in range(len(ms)):
            e(f"v_mul_f32 {vr(vWt+i)}, {sr(sCS)}, {vr(vWt+i)}")
        for i in range(len(ms)):
            e(f"v_exp_f32 {vr(vWt+i)}, {vr(vWt+i)}")
    def premerge():
        maxchain([vGs+4*k for k in range(NG)])
        e(f"v_mov_b32 {vr(vGs)}, {vr(vMX)}")
        e(f"v_mul_f32 {vr(vGs+1)}, {vr(vWt)}, {vr(vGs+1)}")
        for r in range(8):
            e(f"v_mul_f32 {vr(vGo+r)}, {vr(vWt)}, {vr(vGo+r)}")
        for i in range(1, NG):
            e(f"v_fmac_f32 {vr(vGs+1)}, {vr(vWt+i)}, {vr(vGs+4*i+1)}")
            for r in range(8):
                e(f"v_fmac_f32 {vr(vGo+r)}, {vr(vWt+i)}, {vr(vGo+8*i+r)}")
    def lds_reduce(nglob):
        c("thread: column vCC, quads vC and vC+16")
        e("s_waitcnt lgkmcnt(0)")
        e("s_barrier")
        if nglob:
            probe("tail", 1)
        for w in range(NW):
            e(f"ds_read_b64 {vr(vSt+2*w,2)}, {vr(vA1)} offset:{WSTR*w+STAT}")
        for w in range(NW):
            for q in range(2):
                e(f"ds_read_b128 {vr(vOq+8*w+4*q,4)}, {vr(vA2)} offset:{WSTR*w+256*q}")
        e(f"s_waitcnt lgkmcnt({2*NW})")
        ms = [vSt+2*w for w in range(NW)]
        ls = [vSt+2*w+1 for w in range(NW)]
        os_ = [vOq+8*w for w in range(NW)]
        if nglob:
            ms += [vGs]; ls += [vGs+1]; os_ += [vGo]
        maxchain(ms)
        e("s_nop 0")
        e(f"v_mul_f32 {vr(vAL)}, {vr(vWt)}, {vr(ls[0])}")
        for i in range(1, len(ms)):
            e(f"v_fmac_f32 {vr(vAL)}, {vr(vWt+i)}, {vr(ls[i])}")
        if nglob:
            e(f"v_rcp_f32 {vr(vAL)}, {vr(vAL)}")
        order_ = list(range(NW, len(ms))) + list(range(NW))
        first = True
        for i in order_:
            if i < NW:
                e(f"s_waitcnt lgkmcnt({2*(NW-1-i)})")
            for r in range(8):
                if first:
                    e(f"v_mul_f32 {vr(vR+r)}, {vr(vWt+i)}, {vr(os_[i]+r)}")
                else:
                    e(f"v_fmac_f32 {vr(vR+r)}, {vr(vWt+i)}, {vr(os_[i]+r)}")
            first = False

    c("---------- mixed helper: publish the workgroup partial, every word tagged with a byte of the nonce")
    need_nonce()
    tag_setup()
    lds_reduce(0)
    for r in range(8):
        tag(vR+r, r)
    e(f"v_mov_b32 {vr(vX0)}, {vr(vN)}")
    e(f"v_mov_b32 {vr(vX1)}, {vr(vN)}")
    e(f"global_store_dwordx4 {vr(vWO)}, {vr(vR,4)}, {sr(sWS,2)}{PP}") if not opt.nopub else None
    e(f"global_store_dwordx4 {vr(vWO)}, {vr(vR+4,4)}, {sr(sWS,2)} offset:256{PP}") if not opt.nopub else None
    e(f"v_cmp_eq_u32 vcc, 0, {vr(vC)}")
    e(f"s_and_saveexec_b64 {sr(sCM,2)}, vcc")
    e(f"global_store_dwordx4 {vr(vWS_)}, {vr(vMX,4)}, {sr(sWS,2)}{PP}") if not opt.nopub else None
    e(f"s_mov_b64 exec, {sr(sCM,2)}")
    e("s_branch L_done")

    c("---------- finisher")
    lab("L_fin")
    e(f"s_cmp_eq_u32 {sr(sMW)}, 1")
    e("s_cbranch_scc1 L_merge")
    e("s_waitcnt lgkmcnt(0)")
    e("s_barrier")
    e("s_branch L_done")
    lab("L_merge")
    need_nonce()
    for i in range(4):
        e(f"s_bfe_u32 {sr(sCM+8+i)}, {sr(sN)}, 0x{0x80000+8*i:x}")
    e(f"s_mov_b32 {sr(t5)}, 0")
    e("s_branch L_chk")
    lab("L_reload")
    gload("A")
    lab("L_reloadB")
    gload("B")
    lab("L_chk")
    e("s_waitcnt vmcnt(0)")
    for acc, ks in ((vX0, range(0, 4)), (vX1, range(4, NG))):
        first = True
        for k in ks:
            e(f"v_msad_u8 {vr(acc)}, {vr(vGs+4*k+2)}, {sr(sN)}, {'0' if first else vr(acc)}")
            first = False
            for r in range(8):
                e(f"v_msad_u8 {vr(acc)}, {vr(vGo+8*k+r)}, {sr(sCM+8+(r&3))}, {vr(acc)}")
    e(f"v_cmp_ne_u32 {sr(sCM,2)}, 0, {vr(vX0)}")
    e(f"v_cmp_ne_u32 vcc, 0, {vr(vX1)}")
    e(f"s_add_u32 {sr(t5)}, {sr(t5)}, 1")
    e(f"s_or_b64 vcc, vcc, {sr(sCM,2)}")
    e("s_cbranch_scc0 L_ready" if not opt.nopub else "s_branch L_ready")
    e(f"s_sleep {opt.rsleep}")
    e(f"s_cmp_ge_u32 {sr(t5)}, 0x40000")
    e("s_cbranch_scc1 L_ready")
    e(f"s_cmp_eq_u64 {sr(sCM,2)}, 0")
    e("s_cbranch_scc1 L_reloadB")
    e("s_branch L_reload")
    lab("L_ready")
    probe("tail", 0)
    premerge()
    lds_reduce(1)
    for r in range(8):
        e(f"v_mul_f32 {vr(vR+r)}, {vr(vR+r)}, {vr(vAL)}")
    for r in range(4):
        e(f"v_cvt_pk_bf16_f32 {vr(vWt+r)}, {vr(vR+2*r)}, {vr(vR+2*r+1)}")
    po = opt.pol_out
    e(f"global_store_dwordx2 {vr(vOA)}, {vr(vWt,2)}, {sr(sOUT,2)}{po}")
    e(f"global_store_dwordx2 {vr(vOA)}, {vr(vWt+2,2)}, {sr(sOUT,2)} offset:128{po}")
    e("s_branch L_done")

    if opt.spec:
        lab("L_respec")
        c("the guess was wrong: reload the first item")
        e("s_waitcnt vmcnt(0)")
        issue("K"); issue("V")
        e("s_branch L_specok")

    lab("L_early")
    c("merge wave, last item: fetch the helper partials under the V wait")
    gload()
    e("s_branch L_sm")

    lab("L_helper")
    e(f"s_cmp_lt_u32 {sr(sIDX)}, 4")
    e("s_cbranch_scc1 L_sh_pro")
    c("======== mixed helper. v=idx-4: j=v%3, u=v/3: r=((x>>1)+j)&3 + 4*(u&1), quad=u>>1, pair=x&1")
    cpf()
    e(f"v_lshlrev_b32 {vr(vT+7)}, 2, {vr(vC)}")
    e("s_waitcnt lgkmcnt(0)")
    e(f"global_load_dword {vr(vKY)}, {vr(vT+7)}, {sr(sCTX,2)}")
    misc()
    srd_k()
    e(f"s_mov_b32 {sr(sROLE)}, 0")
    e(f"s_sub_u32 {sr(t7)}, {sr(sIDX)}, 4")
    e(f"s_mul_i32 {sr(t1)}, {sr(t7)}, 11")
    e(f"s_lshr_b32 {sr(t1)}, {sr(t1)}, 5")
    e(f"s_mul_i32 {sr(t6)}, {sr(t1)}, 3")
    e(f"s_sub_u32 {sr(t7)}, {sr(t7)}, {sr(t6)}")
    e(f"s_add_u32 {sr(sKS)}, {sr(t7)}, 4")
    e(f"s_and_b32 {sr(t0)}, {sr(sHD)}, 2")
    e(f"s_and_b32 {sr(t6)}, {sr(t1)}, 2")
    e(f"s_lshl_b32 {sr(t6)}, {sr(t6)}, 1")
    e(f"s_or_b32 {sr(sHD)}, {sr(t6)}, {sr(t0)}")
    e(f"s_and_b32 {sr(t1)}, {sr(t1)}, 1")
    e(f"s_lshl_b32 {sr(t1)}, {sr(t1)}, 2")
    e(f"s_lshr_b32 {sr(sX_)}, s2, 1")
    if opt.spread:
        e(f"s_add_u32 {sr(sX_)}, {sr(sX_)}, {sr(t7)}")
    e(f"s_and_b32 {sr(sX_)}, {sr(sX_)}, 3")
    e(f"s_add_u32 {sr(sX_)}, {sr(sX_)}, {sr(t1)}")
    e(f"s_lshl_b32 {sr(t0)}, {sr(t0)}, 3")
    e(f"s_lshr_b32 {sr(t4)}, 0x{FPACK:08x}, {sr(t0)}")
    e(f"s_bfe_u32 {sr(t5)}, {sr(t4)}, 0x80008")
    e(f"s_and_b32 {sr(t4)}, {sr(t4)}, 0xff")
    e(f"s_cmp_lt_u32 {sr(t5)}, {sr(t4)}")
    e(f"s_cselect_b32 {sr(sS0)}, 1, 0")
    e(f"s_max_u32 {sr(sEND)}, {sr(t4)}, {sr(t5)}")
    e(f"s_min_u32 {sr(t5)}, {sr(t4)}, {sr(t5)}")
    c("x = j + 3*(w + 4*lane)")
    e(f"v_lshl_add_u32 {vr(vT+5)}, {vr(vL)}, 2, {sr(sW)}")
    e(f"v_mul_u32_u24 {vr(vT+5)}, 3, {vr(vT+5)}")
    e(f"v_add_u32 {vr(vT+5)}, {sr(t7)}, {vr(vT+5)}")
    e("s_waitcnt vmcnt(0)")
    ranks()
    e(f"s_sub_u32 {sr(t1)}, 15, {sr(sX_)}")
    e(f"v_cmp_eq_u32 {sr(sCM,2)}, {sr(sX_)}, {vr(vX3)}")
    e(f"v_cmp_eq_u32 {sr(sCM+2,2)}, {sr(t1)}, {vr(vX3)}")
    e(f"s_ff1_i32_b32 {sr(t0)}, {sr(sCM)}")
    e(f"s_ff1_i32_b32 {sr(t1)}, {sr(sCM+2)}")
    e(f"v_readlane_b32 {sr(t2)}, {vr(vKY)}, {sr(t0)}")
    e(f"v_readlane_b32 {sr(t3)}, {vr(vKY)}, {sr(t1)}")
    e(f"v_readlane_b32 {sr(t4)}, {vr(vKL)}, {sr(t1)}")
    e(f"s_lshl_b32 {sr(t0)}, {sr(t0)}, 3")
    e(f"s_lshl_b32 {sr(t1)}, {sr(t1)}, 19")
    e(f"s_or_b32 {sr(t0)}, {sr(t0)}, {sr(t1)}")
    e(f"s_mul_i32 {sr(t0)}, {sr(t0)}, 0x101")
    e(f"s_mul_i32 {sr(t6)}, {sr(sHD)}, 0x01010101")
    e(f"s_add_u32 {sr(sBHP)}, {sr(t0)}, {sr(t6)}")
    e(f"s_add_u32 {sr(sBHP)}, {sr(sBHP)}, 0x01000100")
    e(f"s_lshr_b32 {sr(t2)}, {sr(t2)}, 4")
    e(f"s_lshr_b32 {sr(t3)}, {sr(t3)}, 4")
    c("segments: [long both heads][long extra][short both heads][short extra], steps descending")
    P = sCM + 8
    TOP = sCM + 12
    e(f"s_sub_i32 {sr(t0)}, {sr(t3)}, {sr(sEND)}")
    e(f"s_max_i32 {sr(t0)}, {sr(t0)}, 0")
    e(f"s_lshl_b32 {sr(P)}, {sr(t0)}, 1")
    e(f"s_min_u32 {sr(TOP)}, {sr(t3)}, {sr(sEND)}")
    e(f"s_sub_i32 {sr(t0)}, {sr(TOP)}, {sr(t5)}")
    e(f"s_max_i32 {sr(t0)}, {sr(t0)}, 0")
    e(f"s_add_u32 {sr(P+1)}, {sr(P)}, {sr(t0)}")
    e(f"s_sub_i32 {sr(t0)}, {sr(t2)}, {sr(sEND)}")
    e(f"s_max_i32 {sr(t0)}, {sr(t0)}, 0")
    e(f"s_lshl_b32 {sr(t0)}, {sr(t0)}, 1")
    e(f"s_add_u32 {sr(P+2)}, {sr(P+1)}, {sr(t0)}")
    e(f"s_mov_b32 {sr(TOP+1)}, {sr(t2)}")
    e(f"s_min_u32 {sr(TOP+2)}, {sr(t2)}, {sr(sEND)}")
    e(f"s_sub_i32 {sr(t0)}, {sr(TOP+2)}, {sr(t5)}")
    e(f"s_max_i32 {sr(t0)}, {sr(t0)}, 0")
    e(f"s_add_u32 {sr(P+3)}, {sr(P+2)}, {sr(t0)}")
    for i in range(3):
        e(f"v_cmp_ge_u32 {sr(sCM+2*i,2)}, {vr(vT+5)}, {sr(P+i)}")
    e(f"v_cmp_gt_u32 {sr(sCM+6,2)}, {sr(P+3)}, {vr(vT+5)}")
    e(f"v_mov_b32 {vr(vX0)}, {sr(t3)}")
    e(f"v_mov_b32 {vr(vX2)}, 0")
    for i in range(3):
        e(f"v_mov_b32 {vr(vT+i)}, {sr(P+i)}")
        e(f"v_mov_b32 {vr(vT+11+i)}, {sr(TOP+i)}")
    for i in range(3):
        e(f"v_cndmask_b32 {vr(vX2)}, {vr(vX2)}, {vr(vT+i)}, {sr(sCM+2*i,2)}")
        e(f"v_cndmask_b32 {vr(vX0)}, {vr(vX0)}, {vr(vT+11+i)}, {sr(sCM+2*i,2)}")
    e(f"s_xor_b64 vcc, {sr(sCM,2)}, {sr(sCM+2,2)}")
    e(f"s_xor_b64 vcc, vcc, {sr(sCM+4,2)}")
    e(f"v_sub_u32 {vr(vX2)}, {vr(vT+5)}, {vr(vX2)}")
    e(f"v_lshrrev_b32 {vr(vT)}, 1, {vr(vX2)}")
    e(f"v_and_b32 {vr(vX1)}, 1, {vr(vX2)}")
    e(f"v_mov_b32 {vr(vT+1)}, {sr(sS0)}")
    e(f"v_cndmask_b32 {vr(vT)}, {vr(vT)}, {vr(vX2)}, vcc")
    e(f"v_cndmask_b32 {vr(vX1)}, {vr(vX1)}, {vr(vT+1)}, vcc")
    e(f"v_sub_u32 {vr(vX0)}, {vr(vX0)}, {vr(vT)}")
    e(f"v_add_u32 {vr(vX0)}, -1, {vr(vX0)}")
    e(f"v_cndmask_b32 {vr(vT+1)}, 2, 0, {sr(sCM+2,2)}")
    e(f"v_add_u32 {vr(vX1)}, {vr(vX1)}, {vr(vT+1)}")
    e(f"v_lshlrev_b32 {vr(vX3)}, 3, {vr(vX1)}")
    e(f"v_bfe_u32 {vr(vX3)}, {sr(sBHP)}, {vr(vX3)}, 8")
    list_addr_bh()
    e("s_nop 0")
    predict()
    e(f"v_readfirstlane_b32 {sr(t2)}, {vr(vMETA)}")
    e(f"s_and_b32 {sr(t2)}, {sr(t2)}, 0xffff")
    limits(t4, t2)
    stamp(1)
    issue("K")
    c("a wave without items runs one item with no active column")
    e(f"s_bcnt1_i32_b64 {sr(sREM)}, {sr(sCM+6,2)}")
    e(f"s_cselect_b64 {sr(mIT,2)}, {sr(mSL,2)}, 0")
    e(f"s_max_u32 {sr(sREM)}, {sr(sREM)}, 1")
    e("s_branch L_go")

    def sh_issue():
        la = g.newlab()
        e(f"s_and_b32 {sr(t1)}, {sr(sZI)}, 63")
        e(f"v_readlane_b32 {sr(t0)}, {vr(vE)}, {sr(t1)}")
        e(f"s_mov_b32 m0, {sr(sSL)}")
        e(f"s_add_u32 {sr(sSL)}, {sr(sSL)}, 0x4000")
        e(f"s_and_b32 {sr(sSL)}, {sr(sSL)}, 0xffff")
        e(f"s_lshl_b32 {sr(t0)}, {sr(t0)}, 15")
        e(f"s_or_b32 {sr(sB0)}, {sr(t0)}, {sr(sH8)}")
        dma4(vKO, srdK, sB0)
        e(f"s_add_u32 {sr(sZI)}, {sr(sZI)}, {sr(sSTR)}")
        e(f"s_and_b32 {sr(t1)}, {sr(sZI)}, 63")
        e(f"s_cbranch_scc1 {la}")
        for q in range(3):
            e(f"v_mov_b32 {vr(vE+q)}, {vr(vE+q+1)}")
        lab(la)
    def sh_check():
        e(f"s_bitcmp1_b32 {sr(sW)}, 0")
        e(f"s_cselect_b64 vcc, -1, 0")
        for q in range(4):
            e(f"v_cndmask_b32 {vr(vE+q)}, {vr(vU+2*q)}, {vr(vU+2*q+1)}, vcc")
        for i in range(8):
            e(f"v_xor_b32_dpp {vr(vU+8+i)}, {vr(vU+i)}, {vr(vU+i)} row_newbcast:0 row_mask:0xf bank_mask:0xf")
        e(f"v_or3_b32 {vr(vU+8)}, {vr(vU+8)}, {vr(vU+9)}, {vr(vU+10)}")
        e(f"v_or3_b32 {vr(vU+11)}, {vr(vU+11)}, {vr(vU+12)}, {vr(vU+13)}")
        e(f"v_or3_b32 {vr(vU+8)}, {vr(vU+8)}, {vr(vU+14)}, {vr(vU+15)}")
        e(f"v_or_b32 {vr(vU+8)}, {vr(vU+8)}, {vr(vU+11)}")
        e(f"v_cmp_ne_u32 vcc, 0, {vr(vU+8)}")
        e(f"s_cmp_eq_u64 vcc, 0")
        e(f"s_cselect_b32 {sr(sSTR)}, 16, 1")
    lab("L_sh_pro")
    c("======== shared-prefix workgroup (h, part=idx): steps 16*idx..+15, wave w owns rows 4w..4w+3")
    c("guess: all rows share block = column (checked below). waves 0,1 load K, waves 2,3 load V")
    e(f"s_lshl_b32 {sr(sS0)}, {sr(sIDX)}, 4")
    e(f"s_and_b32 {sr(t1)}, {sr(sW)}, 1")
    e(f"s_lshl1_add_u32 {sr(t1)}, {sr(sS0)}, {sr(t1)}")
    e(f"v_lshl_add_u32 {vr(vE)}, {vr(vG)}, 3, {sr(t1)}")
    e(f"s_lshl_b32 {sr(sH8)}, {sr(sHD)}, 8")
    e(f"s_mov_b32 {sr(sZI)}, 0")
    e(f"s_mov_b32 {sr(sSTR)}, 16")
    e(f"s_lshl_b32 {sr(sSL)}, {sr(sW)}, 12")
    e(f"s_cmp_lt_u32 {sr(sW)}, 2")
    e("s_waitcnt lgkmcnt(0)")
    e("s_cbranch_scc1 L_sh_k")
    setup_v(vKO)
    e(f"s_mov_b64 {sr(sK,2)}, {sr(sV,2)}")
    lab("L_sh_k")
    srd_k()
    stamp(1)
    sh_issue()
    misc()
    e(f"s_mov_b32 {sr(sROLE)}, 2")
    e(f"s_mov_b32 {sr(sKS)}, {sr(sIDX)}")
    e(f"s_lshl_b32 {sr(t1)}, {sr(sW)}, 5")
    e(f"s_or_b32 {sr(t1)}, {sr(t1)}, {sr(sHD)}")
    e(f"s_mul_i32 {sr(sBHP)}, {sr(t1)}, 0x01010101")
    e(f"s_add_u32 {sr(sBHP)}, {sr(sBHP)}, 0x18100800")
    c("entries: lane (g,row=c) loads 4 steps: row*1024 + (s0+4g)*8")
    e(f"s_lshl_b32 {sr(t2)}, {sr(sS0)}, 3")
    e(f"v_lshl_add_u32 {vr(vT+3)}, {vr(vC)}, 10, {sr(t2)}")
    e(f"v_lshl_add_u32 {vr(vT+3)}, {vr(vG)}, 5, {vr(vT+3)}")
    e(f"v_mov_b32 {vr(vKL)}, {WNON}")
    e(f"s_or_b32 {sr(t7)}, s2, {sr(sW)}")
    e("s_cbranch_scc1 L_sh_noprev")
    e(f"global_load_dword {vr(vN)}, {vr(vKL)}, {sr(sWS,2)} sc1")
    lab("L_sh_noprev")
    e(f"global_load_dwordx4 {vr(vU,4)}, {vr(vT+3)}, {sr(sBT,2)}")
    e(f"global_load_dwordx4 {vr(vU+4,4)}, {vr(vT+3)}, {sr(sBT,2)} offset:16")
    col_addr()
    col_load()
    sh_issue()
    sh_issue()
    e(f"s_mov_b32 {sr(sZC)}, 0")
    e("s_branch L_init")
    lab("L_sh_verify")
    e(f"s_or_b32 {sr(t7)}, s2, {sr(sW)}")
    e("s_cbranch_scc1 L_sh_nononce")
    c("workgroup 0: nonce = what the previous launch left, every byte stepped through 1..255")
    e(f"v_readfirstlane_b32 {sr(t0)}, {vr(vN)}")
    e(f"s_mov_b32 {sr(t2)}, 0")
    for i in range(4):
        e(f"s_bfe_u32 {sr(t1)}, {sr(t0)}, 0x{0x80000+8*i:x}")
        e(f"s_cmp_eq_u32 {sr(t1)}, 0xff")
        e(f"s_cselect_b32 {sr(t1)}, 0, {sr(t1)}")
        e(f"s_add_u32 {sr(t1)}, {sr(t1)}, 1")
        if i:
            e(f"s_lshl_b32 {sr(t1)}, {sr(t1)}, {8*i}")
        e(f"s_or_b32 {sr(t2)}, {sr(t2)}, {sr(t1)}")
    e(f"v_mov_b32 {vr(vN)}, {sr(t2)}")
    e(f"v_mov_b32 {vr(vX0)}, 64")
    e("s_mov_b64 exec, 1")
    e(f"global_store_dword {vr(vKL)}, {vr(vN)}, {sr(sWS,2)} sc1")
    e("s_waitcnt vmcnt(0)")
    e(f"global_store_dword {vr(vX0)}, {vr(vN)}, {sr(sDBG,2)} sc1")
    e("s_mov_b64 exec, -1")
    lab("L_sh_nononce")
    e(f"v_mov_b32 {vr(vKY)}, {vr(vE)}")
    sh_check()
    e(f"v_cmp_ne_u32 {sr(sCM,2)}, {vr(vKY)}, {vr(vE)}")
    e(f"s_or_b64 vcc, vcc, {sr(sCM,2)}")
    e("s_cbranch_scc0 L_sh_w")
    e("s_waitcnt vmcnt(0)")
    e(f"s_mov_b32 {sr(sZI)}, 0")
    e(f"s_lshl_b32 {sr(sSL)}, {sr(sW)}, 12")
    e(f"s_mov_b32 {sr(t7)}, 3")
    lab("L_sh_redo")
    sh_issue()
    e(f"s_sub_u32 {sr(t7)}, {sr(t7)}, 1")
    e(f"s_cmp_lg_u32 {sr(t7)}, 0")
    e("s_cbranch_scc1 L_sh_redo")

    lab("L_sh_loop")
    e(f"s_lshl_b32 {sr(t0)}, {sr(sSTR)}, 1")
    e(f"s_add_u32 {sr(t0)}, {sr(t0)}, {sr(sZC)}")
    e(f"s_cmp_lt_u32 {sr(t0)}, 256")
    e("s_waitcnt vmcnt(8)")
    e("s_cbranch_scc1 L_sh_w")
    e(f"s_cmp_eq_u32 {sr(t0)}, 256")
    e("s_waitcnt vmcnt(4)")
    e("s_cbranch_scc1 L_sh_w")
    e("s_waitcnt vmcnt(0)")
    lab("L_sh_w")
    e("s_barrier")
    e(f"s_cmp_lt_u32 {sr(sZI)}, 256")
    e("s_cbranch_scc0 L_sh_noiss")
    sh_issue()
    lab("L_sh_noiss")
    e(f"s_cmp_eq_u32 {sr(sIT)}, 8")
    e("s_cbranch_scc0 L_sh_nosig")
    e(f"s_load_dword {sr(sN)}, {sr(sDBG,2)}, 0x40")
    lab("L_sh_nosig")
    c("step = s0 + 4*((z>>4)&3) + (z>>6), row = z&15")
    e(f"s_bfe_u32 {sr(t0)}, {sr(sZC)}, 0x20004")
    e(f"s_lshl_b32 {sr(t0)}, {sr(t0)}, 2")
    e(f"s_lshr_b32 {sr(t1)}, {sr(sZC)}, 6")
    e(f"s_add_u32 {sr(t0)}, {sr(t0)}, {sr(t1)}")
    e(f"s_add_u32 {sr(t0)}, {sr(t0)}, {sr(sS0)}")
    e(f"s_lshl_b32 {sr(sPOS)}, {sr(t0)}, 5")
    e(f"s_mov_b64 {sr(sMK,2)}, -1")
    e(f"s_cmp_eq_u32 {sr(sSTR)}, 16")
    e("s_cbranch_scc1 L_sh_go")
    e(f"s_and_b32 {sr(t0)}, {sr(sZC)}, 3")
    e(f"s_lshl_b32 {sr(t0)}, {sr(t0)}, 2")
    e(f"s_lshl_b64 {sr(sMK,2)}, {sr(mSL,2)}, {sr(t0)}")
    e(f"s_bfe_u32 {sr(t0)}, {sr(sZC)}, 0x20002")
    e(f"s_cmp_eq_u32 {sr(t0)}, {sr(sW)}")
    e("s_cbranch_scc0 L_sh_next")
    lab("L_sh_go")
    probe("cons", 0)
    kreads()
    masks()
    qk()
    e("s_nop 3")
    vreads()
    softmax_a()
    rescale()
    e("s_waitcnt lgkmcnt(0)")
    for ee in range(8):
        pv(ee)
    probe("cons", 1)
    lab("L_sh_next")
    c("advance the fragment addresses to the next ring slot")
    e(f"s_add_u32 {sr(sIT)}, {sr(sIT)}, 1")
    e(f"s_bitcmp1_b32 {sr(sIT)}, 0")
    e(f"s_cselect_b32 {sr(t0)}, 1, 3")
    e(f"s_lshl_b32 {sr(t0)}, {sr(t0)}, 14")
    for i in range(12):
        e(f"v_xor_b32 {vr(vKA+i)}, {sr(t0)}, {vr(vKA+i)}")
    e(f"s_add_u32 {sr(sZC)}, {sr(sZC)}, {sr(sSTR)}")
    e(f"s_cmp_lt_u32 {sr(sZC)}, 256")
    e("s_cbranch_scc1 L_sh_loop")
    stamp(2)
    c("publish this wave's 16 columns (transpose through its own LDS region)")
    lsum()
    part_addr(vC, None, vWS_, vA1)
    e("s_waitcnt lgkmcnt(0)")
    need_nonce()
    tag_setup()
    for i in range(32):
        tag(vO+i, i)
    e(f"v_mov_b32 {vr(vM+2)}, {vr(vN)}")
    e(f"v_mov_b32 {vr(vM+3)}, {vr(vN)}")
    e("s_barrier")
    for ee in range(8):
        e(f"ds_write_b128 {vr(vLWa)}, {vr(vO+4*ee,4)} offset:{64*ee}")
    e(f"v_mul_u32_u24 {vr(vA2)}, {CSTR}, {vr(vG)}")
    e(f"v_lshl_add_u32 {vr(vA2)}, {vr(vC)}, 4, {vr(vA2)}")
    e(f"v_add_u32 {vr(vA2)}, {sr(sLB)}, {vr(vA2)}")
    e(f"v_lshlrev_b32 {vr(vCC)}, 12, {vr(vG)}")
    e(f"v_lshl_add_u32 {vr(vCC)}, {vr(vC)}, 4, {vr(vCC)}")
    e(f"s_lshl_b32 {sr(t6)}, {sr(sKS)}, 9")
    e("s_waitcnt lgkmcnt(0)")
    for i in range(4):
        for q in range(2):
            e(f"ds_read_b128 {vr(vOq+8*i+4*q,4)}, {vr(vA2)} offset:{4*CSTR*i+256*q}")
    e("s_mov_b64 exec, 0xffff")
    e(f"global_store_dwordx4 {vr(vWS_)}, {vr(vM,4)}, {sr(sWS,2)}{PP}") if not opt.nopub else None
    e("s_mov_b64 exec, -1")
    for i in range(4):
        slot_base(i, vSt+i, vCC)
        e(f"s_waitcnt lgkmcnt({6-2*i})")
        e(f"global_store_dwordx4 {vr(vSt+i)}, {vr(vOq+8*i,4)}, {sr(sWS,2)}{PP}") if not opt.nopub else None
        e(f"global_store_dwordx4 {vr(vSt+i)}, {vr(vOq+8*i+4,4)}, {sr(sWS,2)} offset:256{PP}") if not opt.nopub else None

    lab("L_done")
    if opt.stamps:
        e("s_waitcnt vmcnt(0)")
        stamp(3)
        e(f"s_getreg_b32 {sr(t5)}, hwreg(HW_REG_XCC_ID)")
        e(f"s_getreg_b32 {sr(t6)}, hwreg(HW_REG_HW_ID)")
        e("s_waitcnt lgkmcnt(0)")
        e(f"s_lshl_b32 {sr(t3)}, s2, 2")
        e(f"s_add_u32 {sr(t3)}, {sr(t3)}, {sr(sW)}")
        e(f"s_lshl_b32 {sr(t3)}, {sr(t3)}, 6")
        e(f"s_add_u32 {sr(t3)}, {sr(t3)}, {STAMPS}")
        e(f"s_sub_u32 {sr(sIT)}, {sr(sIT)}, 1")
        e(f"v_mov_b32 v4, {sr(t3)}")
        for i in range(8):
            e(f"v_mov_b32 v{8+i}, {sr(sST+i)}")
        e(f"v_mov_b32 v16, {sr(t5)}")
        e(f"v_mov_b32 v17, {sr(t6)}")
        for i in range(4):
            e(f"v_mov_b32 v{18+i}, {sr(sST+8+i)}")
        e(f"v_mov_b32 v22, {sr(sBHP)}")
        e(f"v_mov_b32 v23, {sr(sIT)}")
        e("s_mov_b64 exec, 1")
        e(f"global_store_dwordx4 v4, v[8:11], {sr(sWS,2)}")
        e(f"global_store_dwordx4 v4, v[12:15], {sr(sWS,2)} offset:16")
        e(f"global_store_dwordx4 v4, v[16:19], {sr(sWS,2)} offset:32")
        e(f"global_store_dwordx4 v4, v[20:23], {sr(sWS,2)} offset:48")
    if opt.amp:
        p = [int(x) for x in opt.amp.split(",")]
        a, b = p[0], p[1]
        if len(p) > 2:
            e(f"s_cmp_eq_u32 s2, {p[2]}")
            e("s_cbranch_scc0 L_end")
            e(f"s_cmp_eq_u32 {sr(sW)}, {p[3]}")
            e("s_cbranch_scc0 L_end")
        e(f"s_sub_u32 {sr(t0)}, {sr(sST+2*b)}, {sr(sST+2*a)}")
        e(f"s_lshl_b32 {sr(t0)}, {sr(t0)}, {5 if len(p)>2 else 3}")
        e(f"s_min_u32 {sr(t0)}, {sr(t0)}, 100000")
        lab("L_amp")
        e(f"s_memrealtime {sr(t2,2)}")
        e("s_waitcnt lgkmcnt(0)")
        e(f"s_sub_u32 {sr(t1)}, {sr(t2)}, {sr(sST+6)}")
        e(f"s_cmp_lt_u32 {sr(t1)}, {sr(t0)}")
        e("s_cbranch_scc1 L_amp")
    if opt.amp2:
        b, lo, hi, sh = [int(x) for x in opt.amp2.split(",")]
        neg = b >= 100
        b %= 100
        e(f"s_cmp_lt_u32 s2, {lo}")
        e("s_cbranch_scc1 L_end")
        e(f"s_cmp_ge_u32 s2, {hi}")
        e("s_cbranch_scc1 L_end")
        e("s_mov_b64 exec, -1")
        e(f"v_mov_b32 v4, 0x2f0000")
        e(f"global_load_dword v5, v4, {sr(sWS,2)} sc1")
        e("s_waitcnt vmcnt(0)")
        e(f"v_readfirstlane_b32 {sr(t4)}, v5")
        if neg:
            e(f"s_sub_u32 {sr(t0)}, {sr(t4)}, {sr(sST+2*b)}")
        else:
            e(f"s_sub_u32 {sr(t0)}, {sr(sST+2*b)}, {sr(t4)}")
        e(f"s_add_u32 {sr(t0)}, {sr(t0)}, 200")
        e(f"s_max_i32 {sr(t0)}, {sr(t0)}, 0")
        e(f"s_lshl_b32 {sr(t0)}, {sr(t0)}, {sh}")
        e(f"s_min_u32 {sr(t0)}, {sr(t0)}, 100000")
        lab("L_amp2")
        e(f"s_memrealtime {sr(t2,2)}")
        e("s_waitcnt lgkmcnt(0)")
        e(f"s_sub_u32 {sr(t1)}, {sr(t2)}, {sr(t4)}")
        e(f"s_cmp_lt_u32 {sr(t1)}, {sr(t0)}")
        e("s_cbranch_scc1 L_amp2")
    if opt.amp3:
        a, b, st = [int(x) for x in opt.amp3.split(",")]
        e(f"s_cmp_eq_u32 {sr(sW)}, 0")
        e("s_cbranch_scc0 L_end")
        e("s_mov_b64 exec, -1")
        e(f"v_mov_b32 v4, 0x2f0100")
        e(f"s_cmp_eq_u32 s2, {b}")
        e("s_cbranch_scc0 L_a3a")
        e(f"v_mov_b32 v5, {sr(sST+2*st)}")
        e(f"global_store_dword v4, v5, {sr(sWS,2)} sc1")
        lab("L_a3a")
        e(f"s_cmp_eq_u32 s2, {a}")
        e("s_cbranch_scc0 L_end")
        lab("L_a3b")
        e(f"s_memrealtime {sr(t2,2)}")
        e("s_waitcnt lgkmcnt(0)")
        e(f"s_sub_u32 {sr(t1)}, {sr(t2)}, {sr(sST)}")
        e(f"s_cmp_lt_u32 {sr(t1)}, 2800")
        e("s_cbranch_scc1 L_a3b")
        e(f"global_load_dword v5, v4, {sr(sWS,2)} sc1")
        e("s_waitcnt vmcnt(0)")
        e(f"v_readfirstlane_b32 {sr(t4)}, v5")
        e(f"s_sub_u32 {sr(t0)}, {sr(sST+2*st)}, {sr(t4)}")
        e(f"s_add_u32 {sr(t0)}, {sr(t0)}, 400")
        e(f"s_max_i32 {sr(t0)}, {sr(t0)}, 0")
        e(f"s_lshl_b32 {sr(t0)}, {sr(t0)}, 4")
        e(f"s_add_u32 {sr(t0)}, {sr(t0)}, 3000")
        e(f"s_min_u32 {sr(t0)}, {sr(t0)}, 100000")
        lab("L_a3c")
        e(f"s_memrealtime {sr(t2,2)}")
        e("s_waitcnt lgkmcnt(0)")
        e(f"s_sub_u32 {sr(t1)}, {sr(t2)}, {sr(sST)}")
        e(f"s_cmp_lt_u32 {sr(t1)}, {sr(t0)}")
        e("s_cbranch_scc1 L_a3c")
    lab("L_end")
    e("s_endpgm")

    out = HEADER
    out += f"; @launch grid=(256,1,1) block=({NW*64},1,1) lds={LDS}\n"
    out += '.amdgcn_target "amdgcn-amd-amdhsa--gfx950"\n.text\n'
    out += f".globl {NAME}_kernel\n.p2align 8\n.type {NAME}_kernel,@function\n{NAME}_kernel:\n"
    out += "\n".join(g.lines) + "\n"
    out += f""".section .rodata,"a"
.p2align 6
.amdhsa_kernel {NAME}_kernel
  .amdhsa_next_free_vgpr {NV}
  .amdhsa_next_free_sgpr 102
  .amdhsa_accum_offset {NV}
  .amdhsa_group_segment_fixed_size 0
  .amdhsa_kernarg_size 64
  .amdhsa_user_sgpr_count 2
  .amdhsa_user_sgpr_kernarg_segment_ptr 1
  .amdhsa_system_sgpr_workgroup_id_x 1
.end_amdhsa_kernel
"""
    return out

if __name__ == "__main__":
    ap = argparse.ArgumentParser()
    ap.add_argument("-o", default=f"cdna_kernels/{NAME}.s")
    ap.add_argument("--F", default="36,26,31,30")
    ap.add_argument("--spec", type=int, default=1)
    ap.add_argument("--spread", type=int, default=1)
    ap.add_argument("--rsleep", type=int, default=2)
    ap.add_argument("--lds", type=int, default=0)
    ap.add_argument("--pol", default="nt")
    ap.add_argument("--pol_out", default="")
    ap.add_argument("--stamps", action="store_true")
    ap.add_argument("--nobar", action="store_true")
    ap.add_argument("--amp", default="")
    ap.add_argument("--nopub", type=int, default=0)
    ap.add_argument("--pol_pub", default="sc1")
    ap.add_argument("--pol_get", default="sc1")
    ap.add_argument("--noclear", type=int, default=0)
    ap.add_argument("--nosig", type=int, default=0)
    ap.add_argument("--dummy", type=int, default=0)
    ap.add_argument("--mw", type=int, default=0)
    ap.add_argument("--amp3", default="")
    ap.add_argument("--cpf", type=int, default=1)
    ap.add_argument("--amp2", default="")
    ap.add_argument("--mid", type=int, default=1)
    ap.add_argument("--probe", default="first")
    ap.add_argument("--clk", default="s_memrealtime")
    opt = ap.parse_args()
    for k in ("pol", "pol_out", "pol_pub", "pol_get"):
        v = getattr(opt, k)
        setattr(opt, k, (" " + v.replace("+", " ")) if v else "")
    opt.code_bytes = 4096
    txt = build(opt)
    if opt.cpf:
        import subprocess, re, tempfile, os
        d = tempfile.mkdtemp()
        open(d + "/a.s", "w").write(txt)
        subprocess.check_call(["clang", "-target", "amdgcn-amd-amdhsa", "-mcpu=gfx950", "-c", d + "/a.s", "-o", d + "/a.o"])
        o = subprocess.check_output(["llvm-objdump", "-d", "--mcpu=gfx950", d + "/a.o"]).decode()
        end = int(re.search(r"^([0-9a-f]+) <L_end>:", o, re.M).group(1), 16)
        opt.code_bytes = end - 32
        txt = build(opt)
    open(opt.o, "w").write(txt)
```

```python
import sys, struct, argparse

NAME = "standalone__paged_block_table_kv_radixattention__sampling"

HEADER = """; Kernarg layout for this problem (64 bytes, ptrs only, base s[0:1]):
"""

def f2u(x):
    return struct.unpack("<I", struct.pack("<f", x))[0]

class Gen:
    def __init__(self, opt):
        self.o = opt
        self.lines = []
        self.nlab = 0
    def e(self, s):
        self.lines.append("    " + s)
    def c(self, s):
        self.lines.append("    ; " + s)
    def lab(self, name):
        self.lines.append(name + ":")
    def newlab(self, p="L"):
        self.nlab += 1
        return f"{p}_{self.nlab}"

def vr(b, n=1):
    return f"v{b}" if n == 1 else f"v[{b}:{b+n-1}]"
def sr(b, n=1):
    return f"s{b}" if n == 1 else f"s[{b}:{b+n-1}]"

def build(opt):
    g = Gen(opt)
    e, c, lab = g.e, g.c, g.lab
    NW = 4
    Fc = [int(x) for x in opt.F.split(",")]
    FPACK = sum((64 + Fc[i]) << (8*i) for i in range(4))
    KVB = 2176 * 32768
    CSTR = 528
    WSTR = 16384
    STAT = 16 * CSTR
    LDS = max(65536, opt.lds)
    pol = opt.pol
    PP = opt.pol_pub
    PG = opt.pol_get
    WSTAT = 0x200000
    STAMPS = 0x300000
    NG = 7
    NL = 21
    WNON = 0x220000
    sQ, sK, sV, sBT, sCTX, sOUT, sDBG, sWS = 4, 6, 8, 10, 12, 14, 16, 18
    srdK, srdV = 20, 24
    sBHP, sKS, sX_, sIDX = 28, 29, 30, 31
    sW, sHD, sS0, sSTR, sROLE = 32, 33, 34, 35, 36
    sIT, sREM, sLB = 37, 38, 39
    sCS, sONCE, sZI, sZC = 40, 41, 42, 43
    mSL = 44
    sB0, sB1, sPOS, sH8 = 46, 47, 48, 49
    sMK = 50
    sSL, sEND = 52, 53
    mIT = 54
    sFAST = 56
    sMW = 62
    sPHP = sBHP
    sR0, sR1, sN = 58, 59, 63
    sCM = 66
    t0, t1, t2, t3, t4, t5, t6, t7 = 82, 83, 84, 85, 86, 87, 88, 89
    sST = 90
    vL, vG, vC = 1, 2, 3
    vKO, vVO = 4, 8
    vQ = 12
    vO = 28
    vM, vLs, vCG = 60, 61, 62
    vMETA = 63
    vTB = 64
    vFM, vFI = 66, 67
    vS = 68
    vP = 76
    vF = 80
    vT = vF
    vLIM, vFILL, vMX, vAL, vX0, vX1, vX2, vX3 = 112, 113, 114, 115, 116, 117, 118, 119
    vKA, vVA = 120, 124
    vLE = 132
    vE = 134
    vKY, vKL = 138, 139
    vU = 140
    vGs, vGo = 140, 168
    vWO, vWS_, vOA, vLWa, vLWs, vA1, vA2, vCC = 224, 225, 226, 227, 228, 229, 230, 231
    vN = 133
    NV = 232

    def stamp(i):
        if opt.stamps:
            e(f"s_memrealtime {sr(sST+2*i,2)}")
    def probe(name, which):
        if opt.stamps and opt.probe == name:
            e(f"{opt.clk} {sr(sST+8+2*which,2)}")
            e("s_waitcnt lgkmcnt(0)")

    def list_addr_bh():
        c("vX0=step vX1=slot vX3=b*8+h -> vX3 table offset, vMETA")
        e(f"v_med3_i32 {vr(vX0)}, {vr(vX0)}, 0, {vr(vT+6)}")
        e(f"v_lshlrev_b32 {vr(vMETA)}, 5, {vr(vX0)}")
        e(f"v_lshl_add_u32 {vr(vMETA)}, {vr(vX1)}, 18, {vr(vMETA)}")
        e(f"v_lshl_add_u32 {vr(vMETA)}, {vr(vX3)}, 29, {vr(vMETA)}")
        e(f"v_lshrrev_b32 {vr(vX3)}, 3, {vr(vX3)}")
        e(f"v_lshlrev_b32 {vr(vX3)}, 10, {vr(vX3)}")
        e(f"v_lshl_add_u32 {vr(vX3)}, {vr(vX0)}, 3, {vr(vX3)}")
    def list_load():
        e(f"global_load_dwordx2 {vr(vTB,2)}, {vr(vX3)}, {sr(sBT,2)}")
    def predict():
        c("guess for the first item (checked against the table below): block = 128*row + column")
        e(f"v_readfirstlane_b32 {sr(t0)}, {vr(vX3)}")
        e(f"v_readfirstlane_b32 {sr(t2)}, {vr(vMETA)}")
        e(f"s_lshr_b32 {sr(t1)}, {sr(t0)}, 10")
        e(f"s_lshl_b32 {sr(t1)}, {sr(t1)}, 22")
        e(f"s_and_b32 {sr(t0)}, {sr(t0)}, 0x3ff")
        e(f"s_lshl_b32 {sr(t0)}, {sr(t0)}, 13")
        e(f"s_add_u32 {sr(t0)}, {sr(t0)}, {sr(t1)}")
        e(f"s_lshr_b32 {sr(t2)}, {sr(t2)}, 29")
        e(f"s_lshl_b32 {sr(t2)}, {sr(t2)}, 8")
        e(f"s_or_b32 {sr(sB0)}, {sr(t0)}, {sr(t2)}")
        e(f"s_add_u32 {sr(sB1)}, {sr(sB0)}, 0x8000")
    vQO, vCO = vT + 8, vT + 9
    def col_addr():
        c("per-lane column: Q offset and ctx offset")
        e(f"v_lshlrev_b32 {vr(vCO)}, 1, {vr(vC)}")
        e(f"v_and_b32 {vr(vCO)}, 24, {vr(vCO)}")
        e(f"v_bfe_u32 {vr(vCO)}, {sr(sBHP)}, {vr(vCO)}, 8")
        e(f"v_lshl_add_u32 {vr(vQO)}, {vr(vCO)}, 10, {vr(vT+10)}")
        e(f"v_lshrrev_b32 {vr(vCO)}, 1, {vr(vCO)}")
        e(f"v_and_b32 {vr(vCO)}, 60, {vr(vCO)}")
    def col_load():
        e(f"global_load_dword {vr(vCG)}, {vr(vCO)}, {sr(sCTX,2)}")
        for m in range(4):
            e(f"global_load_dwordx4 {vr(vQ+4*m,4)}, {vr(vQO)}, {sr(sQ,2)} offset:{64*m}")
    def part_addr(vcol, vo, vs, tmp):
        c("partial addresses for column vcol: row R=(b*8+h)*4+(col&3); O: R*4096 + k*512 ; stats: R*128 + k*16")
        e(f"v_lshlrev_b32 {vr(tmp)}, 1, {vr(vcol)}")
        e(f"v_and_b32 {vr(tmp)}, 24, {vr(tmp)}")
        e(f"v_bfe_u32 {vr(tmp)}, {sr(sPHP)}, {vr(tmp)}, 8")
        e(f"v_and_b32 {vr(vs)}, 3, {vr(vcol)}")
        e(f"v_lshl_add_u32 {vr(tmp)}, {vr(tmp)}, 2, {vr(vs)}")
        if vo is not None:
            e(f"s_lshl_b32 {sr(t3)}, {sr(sKS)}, 9")
            e(f"v_lshl_add_u32 {vr(vo)}, {vr(tmp)}, 12, {sr(t3)}")
        e(f"s_lshl_b32 {sr(t3)}, {sr(sKS)}, 4")
        e(f"s_add_u32 {sr(t3)}, {sr(t3)}, {WSTAT}")
        e(f"v_lshl_add_u32 {vr(vs)}, {vr(tmp)}, 7, {sr(t3)}")
    def slot_base(i, vdst, vlane):
        e(f"s_bfe_u32 {sr(t3)}, {sr(sPHP)}, 0x{0x80000+8*i:x}")
        e(f"s_lshl_b32 {sr(t3)}, {sr(t3)}, 14")
        e(f"s_add_u32 {sr(t3)}, {sr(t3)}, {sr(t6)}")
        e(f"v_add_u32 {vr(vdst)}, {sr(t3)}, {vr(vlane)}")
    def need_nonce():
        c("the nonce was normally fetched in the loop")
        la = g.newlab(); lb = g.newlab()
        e(f"s_mov_b32 {sr(t5)}, 0")
        e(f"v_mov_b32 {vr(vX0)}, 64")
        lab(la)
        e(f"s_cmp_lg_u32 {sr(sN)}, 0")
        e(f"s_cbranch_scc1 {lb}")
        e(f"global_load_dword {vr(vN)}, {vr(vX0)}, {sr(sDBG,2)} sc1")
        e("s_sleep 8")
        e(f"s_add_u32 {sr(t5)}, {sr(t5)}, 1")
        e("s_waitcnt vmcnt(0)")
        e(f"v_readfirstlane_b32 {sr(sN)}, {vr(vN)}")
        e(f"s_cmp_lt_u32 {sr(t5)}, 0x40000")
        e(f"s_cbranch_scc1 {la}")
        lab(lb)
    def tag_setup():
        e(f"v_mov_b32 {vr(vN)}, {sr(sN)}")
        for i in range(4):
            e(f"s_mov_b32 {sr(sCM+8+i)}, 0x0706050{i}")
    def tag(reg, i):
        e(f"v_perm_b32 {vr(reg)}, {vr(reg)}, {vr(vN)}, {sr(sCM+8+(i&3))}")
    def setup_k():
        c("K DMA source offsets (XOR-swizzled)")
        e(f"v_xor_b32 {vr(vT+16)}, {vr(vC)}, {vr(vG)}")
        e(f"v_lshlrev_b32 {vr(vT+17)}, 11, {vr(vG)}")
        e(f"v_lshl_add_u32 {vr(vKO)}, {vr(vT+16)}, 4, {vr(vT+17)}")
        for n in range(1, 4):
            e(f"v_xor_b32 {vr(vKO+n)}, {n<<6}, {vr(vKO)}")
            e(f"v_add_u32 {vr(vKO+n)}, {n*7168}, {vr(vKO+n)}")
        e(f"s_lshl_b32 {sr(sLB)}, {sr(sW)}, 14")
        e(f"s_mov_b32 {sr(srdK+2)}, {KVB}")
        e(f"s_mov_b32 {sr(srdK+3)}, 0x20000")
    def setup_v(dst=None):
        c("V DMA source offsets")
        d = vVO if dst is None else dst
        e(f"v_lshlrev_b32 {vr(vT+16)}, 1, {vr(vG)}")
        e(f"v_xor_b32 {vr(vT+16)}, {vr(vC)}, {vr(vT+16)}")
        e(f"v_lshl_add_u32 {vr(d)}, {vr(vT+16)}, 4, {vr(vT+17)}")
        e(f"v_xor_b32 {vr(d+1)}, 128, {vr(d)}")
        e(f"v_add_u32 {vr(d+3)}, {3*7168}, {vr(d+1)}")
        e(f"v_add_u32 {vr(d+1)}, 7168, {vr(d+1)}")
        e(f"v_add_u32 {vr(d+2)}, {2*7168}, {vr(d)}")
    def srd_k():
        e(f"s_mov_b32 {sr(srdK)}, {sr(sK)}")
        e(f"s_and_b32 {sr(srdK+1)}, {sr(sK+1)}, 0xffff")
    def srd_v():
        e(f"s_mov_b32 {sr(srdV)}, {sr(sV)}")
        e(f"s_and_b32 {sr(srdV+1)}, {sr(sV+1)}, 0xffff")
        e(f"s_mov_b32 {sr(srdV+3)}, 0x20000")
    def misc():
        e(f"v_and_b32 {vr(vL)}, 63, v0")
        e(f"v_and_b32 {vr(vX2)}, 3, v0")
        e(f"v_lshlrev_b32 {vr(vT+10)}, 4, {vr(vG)}")
        e(f"v_lshl_add_u32 {vr(vT+10)}, {vr(vX2)}, 8, {vr(vT+10)}")
        e(f"v_mov_b32 {vr(vT+6)}, 127")
        e(f"s_mov_b32 {sr(mSL)}, 0x000f000f")
        e(f"s_mov_b32 {sr(mSL+1)}, {sr(mSL)}")
        e(f"s_mov_b32 {sr(sIT)}, 0")
    def cpf():
        if opt.cpf:
            c("pull the kernel's code into L2: one dword per 64 bytes")
            e(f"v_lshlrev_b32 {vr(vF+30)}, 6, v0")
            e(f"v_min_u32 {vr(vF+30)}, {opt.code_bytes}, {vr(vF+30)}")
            e(f"global_load_dword {vr(vF+31)}, {vr(vF+30)}, {sr(sCM,2)}")
    def ranks():
        c("vKY: ctx of row c -> key = nsteps*16 + row ; vX3 = rank of the key")
        e(f"v_mov_b32 {vr(vX2)}, 0x1000")
        e(f"v_cmp_lt_i32 vcc, 0, {vr(vKY)}")
        e(f"v_min_i32 {vr(vKY)}, {vr(vKY)}, {vr(vX2)}")
        e(f"v_mov_b32 {vr(vX3)}, 0")
        e(f"v_cndmask_b32 {vr(vKL)}, {vr(vX2)}, {vr(vKY)}, vcc")
        e(f"v_add_u32 {vr(vKY)}, 31, {vr(vKL)}")
        e(f"v_lshrrev_b32 {vr(vKY)}, 5, {vr(vKY)}")
        e(f"v_lshl_add_u32 {vr(vKY)}, {vr(vKY)}, 4, {vr(vC)}")
        e("s_nop 1")
        for k in range(1, 16):
            e(f"v_sub_u32_dpp {vr(vT+(k&3))}, {vr(vKY)}, {vr(vKY)} row_ror:{k} row_mask:0xf bank_mask:0xf")
            e(f"v_lshrrev_b32 {vr(vT+(k&3))}, 31, {vr(vT+(k&3))}")
            e(f"v_add_u32 {vr(vX3)}, {vr(vX3)}, {vr(vT+(k&3))}")
    def gload(part="AB"):
        for k in range(NG):
            if ("A" if k < 4 else "B") in part:
                e(f"global_load_dwordx4 {vr(vGs+4*k,4)}, {vr(vWS_)}, {sr(sWS,2)} offset:{16*k}{PG}")
                for q in range(2):
                    e(f"global_load_dwordx4 {vr(vGo+8*k+4*q,4)}, {vr(vWO)}, {sr(sWS,2)} offset:{512*k+256*q}{PG}")
    def lsum():
        c("reduce l over the 4 lane groups")
        e(f"v_mov_b32 {vr(vX0)}, {vr(vLs)}")
        e("s_nop 1")
        e(f"v_permlane32_swap_b32 {vr(vLs)}, {vr(vX0)}")
        e(f"v_add_f32 {vr(vLs)}, {vr(vLs)}, {vr(vX0)}")
        e(f"v_mov_b32 {vr(vX0)}, {vr(vLs)}")
        e("s_nop 1")
        e(f"v_permlane16_swap_b32 {vr(vLs)}, {vr(vX0)}")
        e(f"v_add_f32 {vr(vLs)}, {vr(vLs)}, {vr(vX0)}")
    def limits(tl, pos):
        c("tokens past the context are not fetched: they fall outside num_records and read as zero")
        e(f"s_sub_i32 {sr(tl)}, {sr(tl)}, {sr(pos)}")
        e(f"s_max_i32 {sr(tl)}, {sr(tl)}, 0")
        e(f"s_min_u32 {sr(t0)}, {sr(tl)}, 16")
        e(f"s_min_u32 {sr(t1)}, {sr(tl)}, 32")
        e(f"s_sub_u32 {sr(t1)}, {sr(t1)}, {sr(t0)}")
        e(f"s_lshl_b32 {sr(t0)}, {sr(t0)}, 11")
        e(f"s_lshl_b32 {sr(t1)}, {sr(t1)}, 11")
        e(f"s_add_u32 {sr(t0)}, {sr(t0)}, {sr(sB0)}")
        e(f"s_add_u32 {sr(t1)}, {sr(t1)}, {sr(sB1)}")
        e(f"s_min_u32 {sr(sR0)}, {sr(t0)}, {KVB}")
        e(f"s_min_u32 {sr(sR1)}, {sr(t1)}, {KVB}")
    def fetch():
        e(f"v_readlane_b32 {sr(t2)}, {vr(vMETA)}, {sr(sIT)}")
        e(f"v_readlane_b32 {sr(t0)}, {vr(vTB)}, {sr(sIT)}")
        e(f"v_readlane_b32 {sr(t1)}, {vr(vTB+1)}, {sr(sIT)}")
        e(f"s_bfe_u32 {sr(t3)}, {sr(t2)}, 0x40010")
        e(f"s_lshr_b32 {sr(t4)}, {sr(t2)}, 29")
        e(f"v_readlane_b32 {sr(t5)}, {vr(vLE)}, {sr(t3)}")
        e(f"s_lshl_b32 {sr(t4)}, {sr(t4)}, 8")
        e(f"s_lshl_b32 {sr(t0)}, {sr(t0)}, 15")
        e(f"s_lshl_b32 {sr(t1)}, {sr(t1)}, 15")
        e(f"s_or_b32 {sr(sB0)}, {sr(t0)}, {sr(t4)}")
        e(f"s_or_b32 {sr(sB1)}, {sr(t1)}, {sr(t4)}")
        e(f"s_and_b32 {sr(sPOS)}, {sr(t2)}, 0xffff")
        e(f"s_lshl_b64 {sr(sMK,2)}, {sr(mIT,2)}, {sr(t3)}")
        e(f"s_add_u32 {sr(sIT)}, {sr(sIT)}, 1")
        limits(t5, sPOS)
    def decode():
        pass
    def dma4(off, srd, soff):
        for n in range(4):
            o = f" offset:{1024*n}" if n else ""
            e(f"buffer_load_dwordx4 {vr(off+n)}, {sr(srd,4)}, {sr(soff)} offen{o}{pol} lds")
    def issue(kv):
        off = vVO if kv == "V" else vKO
        srd = srdV if kv == "V" else srdK
        base = 8192 if kv == "V" else 0
        if base:
            e(f"s_add_u32 m0, {sr(sLB)}, {base}")
        else:
            e(f"s_mov_b32 m0, {sr(sLB)}")
        e(f"s_mov_b32 {sr(srd+2)}, {sr(sR0)}")
        dma4(off, srd, sB0)
        e(f"s_add_u32 m0, {sr(sLB)}, {base+4096}")
        e(f"s_mov_b32 {sr(srd+2)}, {sr(sR1)}")
        dma4(off, srd, sB1)
    e("s_cmp_ge_u32 s2, 256")
    e("s_cbranch_scc1 L_end")
    e(f"s_load_dwordx16 s[4:19], s[0:1], 0")
    stamp(0)
    if opt.cpf:
        e(f"s_getpc_b64 {sr(sCM,2)}")
    e(f"v_lshrrev_b32 {vr(vX0)}, 6, v0")
    e(f"v_and_b32 {vr(vC)}, 15, v0")
    e(f"v_bfe_u32 {vr(vG)}, v0, 4, 2")
    e(f"v_readfirstlane_b32 {sr(sW)}, {vr(vX0)}")
    e(f"s_lshr_b32 {sr(sIDX)}, s2, 3")
    c("head: bit1 = id&1, bits 0/2 rotate with idx")
    e(f"s_lshr_b32 {sr(t0)}, s2, 1")
    e(f"s_add_u32 {sr(t0)}, {sr(t0)}, {sr(sIDX)}")
    e(f"s_and_b32 {sr(t1)}, {sr(t0)}, 2")
    e(f"s_and_b32 {sr(t0)}, {sr(t0)}, 1")
    e(f"s_and_b32 {sr(t2)}, s2, 1")
    e(f"s_or_b32 {sr(t1)}, {sr(t1)}, {sr(t2)}")
    e(f"s_lshl1_add_u32 {sr(sHD)}, {sr(t1)}, {sr(t0)}")
    setup_k()
    e(f"s_cmp_lt_u32 {sr(sIDX)}, 16")
    e("s_cbranch_scc1 L_helper")
    c("======== finisher (b, h): steps 64+w+4*lane")
    c("guess for the first item (checked against the table below): block = 128*row + column")
    e(f"s_sub_u32 {sr(t0)}, {sr(sIDX)}, 15")
    e(f"s_lshl_b32 {sr(t0)}, {sr(t0)}, 6")
    e(f"s_add_u32 {sr(t0)}, {sr(t0)}, {sr(sW)}")
    e(f"s_lshl_b32 {sr(t0)}, {sr(t0)}, 8")
    e(f"s_add_u32 {sr(t0)}, {sr(t0)}, {sr(sHD)}")
    e(f"s_lshl_b32 {sr(sB0)}, {sr(t0)}, 8")
    e(f"s_add_u32 {sr(sB1)}, {sr(sB0)}, 0x8000")
    e(f"s_mov_b32 {sr(sR0)}, {sr(sB1)}")
    e(f"s_add_u32 {sr(sR1)}, {sr(sB1)}, 0x8000")
    e("s_waitcnt lgkmcnt(0)")
    srd_k()
    stamp(1)
    issue("K")
    misc()
    e(f"s_mov_b32 {sr(sROLE)}, 1")
    e(f"s_and_b32 {sr(t1)}, s2, 0x78")
    e(f"s_or_b32 {sr(t1)}, {sr(t1)}, {sr(sHD)}")
    e(f"s_mul_i32 {sr(sBHP)}, {sr(t1)}, 0x01010101")
    e(f"s_add_u32 {sr(t2)}, {sr(sW)}, 64")
    e(f"v_lshl_add_u32 {vr(vX0)}, {vr(vL)}, 2, {sr(t2)}")
    e(f"v_mov_b32 {vr(vX1)}, 0")
    e(f"v_mov_b32 {vr(vX3)}, {sr(t1)}")
    list_addr_bh()
    e(f"s_and_b32 {sr(t0)}, {sr(sHD)}, 3")
    e(f"s_lshl_b32 {sr(t0)}, {sr(t0)}, 3")
    e(f"s_lshr_b32 {sr(sEND)}, 0x{FPACK:08x}, {sr(t0)}")
    e(f"s_and_b32 {sr(sEND)}, {sr(sEND)}, 0xff")
    e(f"s_mov_b32 {sr(sKS)}, 0")
    e(f"s_mov_b64 {sr(mIT,2)}, -1")
    lab("L_go")
    list_load()
    col_addr()
    col_load()
    setup_v()
    srd_v()
    issue("V")
    lab("L_init")
    if opt.amp2:
        e(f"s_or_b32 {sr(t0)}, s2, {sr(sW)}")
        e("s_cbranch_scc1 L_noref")
        e(f"v_mov_b32 {vr(vX0)}, 0x2f0000")
        e(f"v_mov_b32 {vr(vX1)}, {sr(sST)}")
        e(f"global_store_dword {vr(vX0)}, {vr(vX1)}, {sr(sWS,2)} sc1")
        lab("L_noref")
    e(f"s_mov_b32 {sr(sCS)}, 0x{f2u(128**-0.5 * 1.4426950408889634):08x}")
    for i in range(32):
        e(f"v_mov_b32 {vr(vO+i)}, 0")
    e(f"v_mov_b32 {vr(vM)}, 0x{f2u(-1e30):08x}")
    e(f"v_mov_b32 {vr(vLs)}, 0")
    e(f"v_mov_b32 {vr(vFM)}, 0x{f2u(-1e9/(128**-0.5)):08x}")
    e(f"v_mov_b32 {vr(vFI)}, 0x{f2u(-3e38):08x}")
    c("LDS fragment addresses")
    e(f"s_cmp_eq_u32 {sr(sROLE)}, 2")
    e(f"s_cselect_b32 {sr(t0)}, 0, {sr(sLB)}")
    e(f"v_xor_b32 {vr(vX0)}, {vr(vC)}, {vr(vG)}")
    e(f"v_lshl_add_u32 {vr(vX1)}, {vr(vC)}, 8, {sr(t0)}")
    e(f"v_lshl_add_u32 {vr(vKA)}, {vr(vX0)}, 4, {vr(vX1)}")
    for m in range(1, 4):
        e(f"v_xor_b32 {vr(vKA+m)}, {m<<6}, {vr(vKA)}")
    e(f"v_lshrrev_b32 {vr(vX0)}, 2, {vr(vL)}")
    e(f"v_lshl_add_u32 {vr(vX1)}, {vr(vX0)}, 8, {sr(t0)}")
    e(f"v_and_b32 {vr(vX0)}, 7, {vr(vX0)}")
    e(f"v_lshl_add_u32 {vr(vX1)}, {vr(vX0)}, 5, {vr(vX1)}")
    e(f"v_and_b32 {vr(vX0)}, 3, {vr(vL)}")
    e(f"v_lshl_add_u32 {vr(vVA)}, {vr(vX0)}, 3, {vr(vX1)}")
    for ee in range(1, 8):
        e(f"v_xor_b32 {vr(vVA+ee)}, {ee<<5}, {vr(vVA)}")
    c("epilogue addresses")
    e(f"s_cmp_eq_u32 {sr(sROLE)}, 1")
    e(f"s_cselect_b32 {sr(t0)}, 3, 15")
    e(f"v_lshrrev_b32 {vr(vCC)}, 4, v0")
    e(f"v_and_b32 {vr(vCC)}, {sr(t0)}, {vr(vCC)}")
    part_addr(vCC, vWO, vWS_, vX0)
    e(f"v_lshl_add_u32 {vr(vWO)}, {vr(vC)}, 4, {vr(vWO)}")
    e(f"v_mul_u32_u24 {vr(vLWa)}, {CSTR}, {vr(vC)}")
    e(f"v_lshl_add_u32 {vr(vLWa)}, {vr(vG)}, 4, {vr(vLWa)}")
    e(f"v_add_u32 {vr(vLWa)}, {sr(sLB)}, {vr(vLWa)}")
    e(f"v_lshl_add_u32 {vr(vLWs)}, {vr(vC)}, 3, {sr(sLB)}")
    e(f"v_lshlrev_b32 {vr(vA1)}, 3, {vr(vCC)}")
    e(f"v_mul_u32_u24 {vr(vA2)}, {CSTR}, {vr(vCC)}")
    e(f"v_lshl_add_u32 {vr(vA2)}, {vr(vC)}, 4, {vr(vA2)}")
    e(f"s_and_b32 {sr(t3)}, {sr(sBHP)}, 0xff")
    e(f"s_lshl_b32 {sr(t3)}, {sr(t3)}, 10")
    e(f"v_lshl_add_u32 {vr(vOA)}, {vr(vG)}, 8, {sr(t3)}")
    e(f"v_lshl_add_u32 {vr(vOA)}, {vr(vC)}, 3, {vr(vOA)}")
    e(f"s_cmp_eq_u32 {sr(sW)}, {opt.mw}")
    e(f"s_cselect_b32 {sr(sMW)}, {sr(sROLE)}, 0")
    e(f"s_mov_b32 {sr(sN)}, 0")
    c("table/ctx/Q were issued before the first V loads (shared role: before items 1,2)")
    e(f"s_cmp_eq_u32 {sr(sROLE)}, 2")
    e("s_waitcnt vmcnt(8)")
    e(f"v_mov_b32 {vr(vX1)}, 0x1000")
    e(f"v_cmp_lt_i32 vcc, 0, {vr(vCG)}")
    e(f"v_lshlrev_b32 {vr(vX0)}, 2, {vr(vG)}")
    e(f"v_med3_i32 {vr(vCG)}, {vr(vCG)}, 0, {vr(vX1)}")
    e(f"v_cndmask_b32 {vr(vLE)}, {vr(vX1)}, {vr(vCG)}, vcc")
    e(f"v_sub_u32 {vr(vCG)}, {vr(vCG)}, {vr(vX0)}")
    e("s_cbranch_scc1 L_sh_verify")
    e(f"s_mov_b64 {sr(sCM,2)}, {sr(sB0,2)}")
    e(f"s_mov_b64 {sr(sCM+2,2)}, {sr(sR0,2)}")
    fetch()
    e(f"s_xor_b64 {sr(sCM,2)}, {sr(sCM,2)}, {sr(sB0,2)}")
    e(f"s_xor_b64 {sr(sCM+2,2)}, {sr(sCM+2,2)}, {sr(sR0,2)}")
    e(f"s_or_b64 {sr(sCM,2)}, {sr(sCM,2)}, {sr(sCM+2,2)}")
    e("s_cbranch_scc1 L_respec")
    lab("L_specok")
    e(f"s_cmp_eq_u32 {sr(sROLE)}, 1")
    e("s_cbranch_scc0 L_cnt")
    c("finisher item count (at least one: a step past the context is fully masked)")
    e(f"v_readfirstlane_b32 {sr(t1)}, {vr(vLE)}")
    e(f"s_add_u32 {sr(t1)}, {sr(t1)}, 31")
    e(f"s_lshr_b32 {sr(t1)}, {sr(t1)}, 5")
    e(f"s_min_u32 {sr(t1)}, {sr(t1)}, {sr(sEND)}")
    e(f"s_sub_i32 {sr(t1)}, {sr(t1)}, {sr(sW)}")
    e(f"s_sub_i32 {sr(t1)}, {sr(t1)}, 61")
    e(f"s_ashr_i32 {sr(t1)}, {sr(t1)}, 2")
    e(f"s_max_i32 {sr(sREM)}, {sr(t1)}, 1")
    lab("L_cnt")
    if opt.tlb:
        c("touch every 2 MB page of K and V once so that later page crossings find their translation")
        e(f"s_cmp_eq_u32 {sr(sW)}, 1")
        e("s_cbranch_scc0 L_notlb")
        if opt.tlb == 2:
            e(f"s_cmp_eq_u32 {sr(sIDX)}, 4")
            e("s_cbranch_scc0 L_notlb")
        e(f"v_lshlrev_b32 {vr(vX0)}, {opt.tlbsh}, {vr(vL)}")
        e(f"s_mov_b32 {sr(srdK+2)}, {KVB}")
        e(f"s_mov_b32 {sr(srdV+2)}, {KVB}")
        e(f"buffer_load_dword {vr(vKY)}, {vr(vX0)}, {sr(srdK,4)}, 0 offen")
        e(f"buffer_load_dword {vr(vKL)}, {vr(vX0)}, {sr(srdV,4)}, 0 offen")
        lab("L_notlb")

    def kreads():
        for m in range(4):
            e(f"ds_read_b128 {vr(vF+8*m,4)}, {vr(vKA+m)}")
            e(f"ds_read_b128 {vr(vF+8*m+4,4)}, {vr(vKA+m)} offset:4096")
    def qk():
        for m in range(4):
            e(f"s_waitcnt lgkmcnt({6-2*m})")
            c0 = "0" if m == 0 else vr(vS, 4)
            c1 = "0" if m == 0 else vr(vS+4, 4)
            e(f"v_mfma_f32_16x16x32_bf16 {vr(vS,4)}, {vr(vF+8*m,4)}, {vr(vQ+4*m,4)}, {c0}")
            e(f"v_mfma_f32_16x16x32_bf16 {vr(vS+4,4)}, {vr(vF+8*m+4,4)}, {vr(vQ+4*m,4)}, {c1}")
    def masks():
        e(f"v_subrev_u32 {vr(vLIM)}, {sr(sPOS)}, {vr(vCG)}")
        e(f"v_cndmask_b32 {vr(vLIM)}, 0, {vr(vLIM)}, {sr(sMK,2)}")
        e(f"v_cndmask_b32 {vr(vFILL)}, {vr(vFI)}, {vr(vFM)}, {sr(sMK,2)}")
        e(f"v_cmp_gt_i32 {sr(sFAST,2)}, 20, {vr(vLIM)}")
    def vreads():
        for ee in range(8):
            e(f"ds_read_b64_tr_b16 {vr(vF+4*ee,2)}, {vr(vVA+ee)} offset:8192")
            e(f"ds_read_b64_tr_b16 {vr(vF+4*ee+2,2)}, {vr(vVA+ee)} offset:12288")
    def softmax_a():
        la = g.newlab()
        e(f"s_cmp_eq_u64 {sr(sFAST,2)}, 0")
        e(f"s_cbranch_scc1 {la}")
        for j in range(8):
            e(f"v_cmp_lt_i32 {sr(sCM+2*j,2)}, {(j>>2)*16+(j&3)}, {vr(vLIM)}")
        for j in range(8):
            e(f"v_cndmask_b32 {vr(vS+j)}, {vr(vFILL)}, {vr(vS+j)}, {sr(sCM+2*j,2)}")
        lab(la)
        e(f"v_max3_f32 {vr(vMX)}, {vr(vS)}, {vr(vS+1)}, {vr(vS+2)}")
        e(f"v_max3_f32 {vr(vX0)}, {vr(vS+3)}, {vr(vS+4)}, {vr(vS+5)}")
        e(f"v_max3_f32 {vr(vMX)}, {vr(vMX)}, {vr(vS+6)}, {vr(vS+7)}")
        e(f"v_max3_f32 {vr(vMX)}, {vr(vMX)}, {vr(vX0)}, {vr(vM)}")
        e(f"v_mov_b32 {vr(vX0)}, {vr(vMX)}")
        e("s_nop 1")
        e(f"v_permlane32_swap_b32 {vr(vMX)}, {vr(vX0)}")
        e(f"v_max_f32 {vr(vMX)}, {vr(vMX)}, {vr(vX0)}")
        e(f"v_mov_b32 {vr(vX0)}, {vr(vMX)}")
        e("s_nop 1")
        e(f"v_permlane16_swap_b32 {vr(vMX)}, {vr(vX0)}")
        e(f"v_max_f32 {vr(vMX)}, {vr(vMX)}, {vr(vX0)}")
        e(f"v_mul_f32 {vr(vX1)}, {sr(sCS)}, {vr(vMX)}")
        e(f"v_sub_f32 {vr(vAL)}, {vr(vM)}, {vr(vMX)}")
        e(f"v_cmp_lt_f32 vcc, {vr(vM)}, {vr(vMX)}")
        for j in range(8):
            e(f"v_fma_f32 {vr(vS+j)}, {vr(vS+j)}, {sr(sCS)}, -{vr(vX1)}")
        e(f"v_mul_f32 {vr(vAL)}, {sr(sCS)}, {vr(vAL)}")
        for j in range(8):
            e(f"v_exp_f32 {vr(vS+j)}, {vr(vS+j)}")
        e(f"v_exp_f32 {vr(vAL)}, {vr(vAL)}")
        e(f"v_mov_b32 {vr(vM)}, {vr(vMX)}")
        for u in range(4):
            e(f"v_cvt_pk_bf16_f32 {vr(vP+u)}, {vr(vS+2*u)}, {vr(vS+2*u+1)}")
        e(f"v_pk_add_f32 {vr(vS,2)}, {vr(vS,2)}, {vr(vS+2,2)}")
        e(f"v_pk_add_f32 {vr(vS+4,2)}, {vr(vS+4,2)}, {vr(vS+6,2)}")
        e(f"v_pk_add_f32 {vr(vS,2)}, {vr(vS,2)}, {vr(vS+4,2)}")
        e(f"v_fma_f32 {vr(vLs)}, {vr(vLs)}, {vr(vAL)}, {vr(vS)}")
        e(f"v_add_f32 {vr(vLs)}, {vr(vLs)}, {vr(vS+1)}")
    def rescale():
        la = g.newlab()
        e(f"s_cbranch_vccz {la}")
        for i in range(0, 32, 2):
            e(f"v_pk_mul_f32 {vr(vO+i,2)}, {vr(vO+i,2)}, {vr(vMX,2)} op_sel:[0,1] op_sel_hi:[1,1]")
        lab(la)
    def pv(ee):
        ob = vO + 4*ee
        e(f"v_mfma_f32_16x16x32_bf16 {vr(ob,4)}, {vr(vF+4*ee,4)}, {vr(vP,4)}, {vr(ob,4)}")

    lab("L_loop")
    e("s_waitcnt vmcnt(8) lgkmcnt(0)")
    if opt.stamps and opt.probe == "first":
        e(f"s_cmp_eq_u32 {sr(sIT)}, 1")
        e(f"s_cbranch_scc0 L_q1")
        stamp(4)
        e("s_waitcnt lgkmcnt(0)")
        lab("L_q1")
    kreads()
    masks()
    fetch()
    qk()
    e(f"s_cmp_eq_u32 {sr(sREM)}, 1")
    e("s_cbranch_scc1 L_noK")
    issue("K")
    e("s_branch L_sm")
    lab("L_noK")
    e(f"s_cmp_eq_u32 {sr(sMW)}, 1")
    e("s_cbranch_scc1 L_early")
    e("s_nop 6")
    lab("L_sm")
    softmax_a()
    rescale()
    e(f"s_cmp_eq_u32 {sr(sREM)}, 1")
    e("s_cbranch_scc1 L_last")
    e("s_waitcnt vmcnt(8)")
    e("s_branch L_vok")
    lab("L_last")
    lsum()
    e(f"s_cmp_eq_u32 {sr(sMW)}, 1")
    e(f"s_waitcnt vmcnt({NL})")
    e("s_cbranch_scc1 L_vok")
    e("s_waitcnt vmcnt(0)")
    lab("L_vok")
    vreads()
    for ee in range(8):
        e(f"s_waitcnt lgkmcnt({14-2*ee})")
        pv(ee)
    e(f"s_cmp_eq_u32 {sr(sREM)}, 1")
    e("s_cbranch_scc1 L_epi")
    issue("V")
    c("a cached load of the nonce can only be stale towards 0")
    e(f"s_cmp_eq_u32 {sr(sIT)}, 4")
    e("s_cbranch_scc0 L_hook_done")
    e(f"s_load_dword {sr(sN)}, {sr(sDBG,2)}, 0x40")
    lab("L_hook_done")
    if opt.stamps and opt.probe == "first":
        e(f"s_cmp_eq_u32 {sr(sIT)}, {opt.mid+1}")
        e(f"s_cbranch_scc0 L_q2")
        stamp(5)
        e("s_waitcnt lgkmcnt(0)")
        lab("L_q2")
    e(f"s_sub_u32 {sr(sREM)}, {sr(sREM)}, 1")
    e("s_branch L_loop")

    lab("L_epi")
    stamp(2)
    vSt = vS
    vOq = vF
    vR = 12
    vWt = 20
    c("finishers only need columns 0..3")
    e(f"s_cmp_eq_u32 {sr(sROLE)}, 1")
    e(f"s_cselect_b64 exec, {sr(mSL,2)}, -1")
    e(f"ds_write_b64 {vr(vLWs)}, {vr(vM,2)} offset:{STAT}")
    e("s_nop 1")
    for ee in range(8):
        e(f"ds_write_b128 {vr(vLWa)}, {vr(vO+4*ee,4)} offset:{64*ee}")
    e("s_mov_b64 exec, -1")
    e("s_cbranch_scc1 L_fin")

    def maxchain(ms):
        e(f"v_max3_f32 {vr(vMX)}, {vr(ms[0])}, {vr(ms[1])}, {vr(ms[2])}")
        i = 3
        while i < len(ms):
            if i + 1 < len(ms):
                e(f"v_max3_f32 {vr(vMX)}, {vr(vMX)}, {vr(ms[i])}, {vr(ms[i+1])}"); i += 2
            else:
                e(f"v_max_f32 {vr(vMX)}, {vr(vMX)}, {vr(ms[i])}"); i += 1
        for i in range(len(ms)):
            e(f"v_sub_f32 {vr(vWt+i)}, {vr(ms[i])}, {vr(vMX)}")
        for i in range(len(ms)):
            e(f"v_mul_f32 {vr(vWt+i)}, {sr(sCS)}, {vr(vWt+i)}")
        for i in range(len(ms)):
            e(f"v_exp_f32 {vr(vWt+i)}, {vr(vWt+i)}")
    def premerge():
        maxchain([vGs+4*k for k in range(NG)])
        e(f"v_mov_b32 {vr(vGs)}, {vr(vMX)}")
        e(f"v_mul_f32 {vr(vGs+1)}, {vr(vWt)}, {vr(vGs+1)}")
        for r in range(8):
            e(f"v_mul_f32 {vr(vGo+r)}, {vr(vWt)}, {vr(vGo+r)}")
        for i in range(1, NG):
            e(f"v_fmac_f32 {vr(vGs+1)}, {vr(vWt+i)}, {vr(vGs+4*i+1)}")
            for r in range(8):
                e(f"v_fmac_f32 {vr(vGo+r)}, {vr(vWt+i)}, {vr(vGo+8*i+r)}")
    def lds_reduce(nglob):
        c("thread: column vCC, quads vC and vC+16")
        e("s_waitcnt lgkmcnt(0)")
        e("s_barrier")
        if nglob:
            probe("tail", 1)
        for w in range(NW):
            e(f"ds_read_b64 {vr(vSt+2*w,2)}, {vr(vA1)} offset:{WSTR*w+STAT}")
        for w in range(NW):
            for q in range(2):
                e(f"ds_read_b128 {vr(vOq+8*w+4*q,4)}, {vr(vA2)} offset:{WSTR*w+256*q}")
        e(f"s_waitcnt lgkmcnt({2*NW})")
        ms = [vSt+2*w for w in range(NW)]
        ls = [vSt+2*w+1 for w in range(NW)]
        os_ = [vOq+8*w for w in range(NW)]
        if nglob:
            ms += [vGs]; ls += [vGs+1]; os_ += [vGo]
        maxchain(ms)
        e("s_nop 0")
        e(f"v_mul_f32 {vr(vAL)}, {vr(vWt)}, {vr(ls[0])}")
        for i in range(1, len(ms)):
            e(f"v_fmac_f32 {vr(vAL)}, {vr(vWt+i)}, {vr(ls[i])}")
        if nglob:
            e(f"v_rcp_f32 {vr(vAL)}, {vr(vAL)}")
        order_ = list(range(NW, len(ms))) + list(range(NW))
        first = True
        for i in order_:
            if i < NW:
                e(f"s_waitcnt lgkmcnt({2*(NW-1-i)})")
            for r in range(8):
                if first:
                    e(f"v_mul_f32 {vr(vR+r)}, {vr(vWt+i)}, {vr(os_[i]+r)}")
                else:
                    e(f"v_fmac_f32 {vr(vR+r)}, {vr(vWt+i)}, {vr(os_[i]+r)}")
            first = False

    c("---------- mixed helper: publish the workgroup partial, every word tagged with a byte of the nonce")
    need_nonce()
    tag_setup()
    lds_reduce(0)
    for r in range(8):
        tag(vR+r, r)
    tag(vAL, 1)
    e(f"v_xor_b32 {vr(vX0)}, {vr(vMX)}, {vr(vN)}")
    e(f"v_mov_b32 {vr(vX1)}, {vr(vN)}")
    e(f"global_store_dwordx4 {vr(vWO)}, {vr(vR,4)}, {sr(sWS,2)}{PP}") if not opt.nopub else None
    e(f"global_store_dwordx4 {vr(vWO)}, {vr(vR+4,4)}, {sr(sWS,2)} offset:256{PP}") if not opt.nopub else None
    e(f"v_cmp_eq_u32 vcc, 0, {vr(vC)}")
    e(f"s_and_saveexec_b64 {sr(sCM,2)}, vcc")
    e(f"global_store_dwordx4 {vr(vWS_)}, {vr(vMX,4)}, {sr(sWS,2)}{PP}") if not opt.nopub else None
    e(f"s_mov_b64 exec, {sr(sCM,2)}")
    e("s_branch L_done")

    c("---------- finisher")
    lab("L_fin")
    e(f"s_cmp_eq_u32 {sr(sMW)}, 1")
    e("s_cbranch_scc1 L_merge")
    e("s_waitcnt lgkmcnt(0)")
    e("s_barrier")
    e("s_branch L_done")
    lab("L_merge")
    need_nonce()
    for i in range(4):
        e(f"s_bfe_u32 {sr(sCM+8+i)}, {sr(sN)}, 0x{0x80000+8*i:x}")
    e(f"s_mov_b32 {sr(t5)}, 0")
    e("s_branch L_chk")
    lab("L_reload")
    gload("A")
    lab("L_reloadB")
    gload("B")
    lab("L_chk")
    e("s_waitcnt vmcnt(0)")
    c("every word must carry this launch's tag (masked byte SAD against the tag bytes)")
    for k in range(NG):
        e(f"v_xor_b32 {vr(vGs+4*k+3)}, {vr(vGs+4*k)}, {vr(vGs+4*k+2)}")
    accs = (vX0, vX1, vX2, vX3)
    seq = []
    for k in range(NG):
        seq.append((k, vGs+4*k+3, sN))
        seq.append((k, vGs+4*k+1, sCM+9))
        for r in range(8):
            seq.append((k, vGo+8*k+r, sCM+8+(r&3)))
    used = set()
    for i, (k, reg, ref) in enumerate(seq):
        acc = accs[(0 if k < 4 else 2) + (i & 1)]
        e(f"v_msad_u8 {vr(acc)}, {vr(reg)}, {sr(ref)}, {vr(acc) if acc in used else '0'}")
        used.add(acc)
    e(f"v_or_b32 {vr(vX0)}, {vr(vX0)}, {vr(vX1)}")
    e(f"v_or_b32 {vr(vX2)}, {vr(vX2)}, {vr(vX3)}")
    e(f"v_cmp_ne_u32 {sr(sCM,2)}, 0, {vr(vX0)}")
    e(f"v_cmp_ne_u32 vcc, 0, {vr(vX2)}")
    e(f"s_add_u32 {sr(t5)}, {sr(t5)}, 1")
    e(f"s_or_b64 vcc, vcc, {sr(sCM,2)}")
    e("s_cbranch_scc0 L_ready" if not opt.nopub else "s_branch L_ready")
    e(f"s_sleep {opt.rsleep}")
    e(f"s_cmp_ge_u32 {sr(t5)}, 0x40000")
    e("s_cbranch_scc1 L_ready")
    e(f"s_cmp_eq_u64 {sr(sCM,2)}, 0")
    e("s_cbranch_scc1 L_reloadB")
    e("s_branch L_reload")
    lab("L_ready")
    probe("tail", 0)
    premerge()
    lds_reduce(1)
    for r in range(8):
        e(f"v_mul_f32 {vr(vR+r)}, {vr(vR+r)}, {vr(vAL)}")
    for r in range(4):
        e(f"v_cvt_pk_bf16_f32 {vr(vWt+r)}, {vr(vR+2*r)}, {vr(vR+2*r+1)}")
    po = opt.pol_out
    e(f"global_store_dwordx2 {vr(vOA)}, {vr(vWt,2)}, {sr(sOUT,2)}{po}")
    e(f"global_store_dwordx2 {vr(vOA)}, {vr(vWt+2,2)}, {sr(sOUT,2)} offset:128{po}")
    e("s_branch L_done")

    if opt.spec:
        lab("L_respec")
        c("the guess was wrong: reload the first item")
        e("s_waitcnt vmcnt(0)")
        issue("K"); issue("V")
        e("s_branch L_specok")

    lab("L_early")
    c("merge wave, last item: fetch the helper partials under the V wait")
    gload()
    e("s_branch L_sm")

    lab("L_helper")
    e(f"s_cmp_lt_u32 {sr(sIDX)}, 4")
    e("s_cbranch_scc1 L_sh_pro")
    c("======== mixed helper. v=idx-4: j=v%3, u=v/3: r=((x>>1)+j)&3 + 4*(u&1), quad=u>>1, pair=x&1")
    cpf()
    e(f"v_lshlrev_b32 {vr(vT+7)}, 2, {vr(vC)}")
    e("s_waitcnt lgkmcnt(0)")
    e(f"global_load_dword {vr(vKY)}, {vr(vT+7)}, {sr(sCTX,2)}")
    misc()
    srd_k()
    e(f"s_mov_b32 {sr(sROLE)}, 0")
    e(f"s_sub_u32 {sr(t7)}, {sr(sIDX)}, 4")
    e(f"s_mul_i32 {sr(t1)}, {sr(t7)}, 11")
    e(f"s_lshr_b32 {sr(t1)}, {sr(t1)}, 5")
    e(f"s_mul_i32 {sr(t6)}, {sr(t1)}, 3")
    e(f"s_sub_u32 {sr(t7)}, {sr(t7)}, {sr(t6)}")
    e(f"s_add_u32 {sr(sKS)}, {sr(t7)}, 4")
    e(f"s_and_b32 {sr(t0)}, {sr(sHD)}, 2")
    e(f"s_and_b32 {sr(t6)}, {sr(t1)}, 2")
    e(f"s_lshl_b32 {sr(t6)}, {sr(t6)}, 1")
    e(f"s_or_b32 {sr(sHD)}, {sr(t6)}, {sr(t0)}")
    e(f"s_and_b32 {sr(t1)}, {sr(t1)}, 1")
    e(f"s_lshl_b32 {sr(t1)}, {sr(t1)}, 2")
    e(f"s_lshr_b32 {sr(sX_)}, s2, 1")
    if opt.spread:
        e(f"s_add_u32 {sr(sX_)}, {sr(sX_)}, {sr(t7)}")
    e(f"s_and_b32 {sr(sX_)}, {sr(sX_)}, 3")
    e(f"s_add_u32 {sr(sX_)}, {sr(sX_)}, {sr(t1)}")
    e(f"s_lshl_b32 {sr(t0)}, {sr(t0)}, 3")
    e(f"s_lshr_b32 {sr(t4)}, 0x{FPACK:08x}, {sr(t0)}")
    e(f"s_bfe_u32 {sr(t5)}, {sr(t4)}, 0x80008")
    e(f"s_and_b32 {sr(t4)}, {sr(t4)}, 0xff")
    e(f"s_cmp_lt_u32 {sr(t5)}, {sr(t4)}")
    e(f"s_cselect_b32 {sr(sS0)}, 1, 0")
    e(f"s_max_u32 {sr(sEND)}, {sr(t4)}, {sr(t5)}")
    e(f"s_min_u32 {sr(t5)}, {sr(t4)}, {sr(t5)}")
    c("x = j + 3*(w + 4*lane)")
    e(f"v_lshl_add_u32 {vr(vT+5)}, {vr(vL)}, 2, {sr(sW)}")
    e(f"v_mul_u32_u24 {vr(vT+5)}, 3, {vr(vT+5)}")
    e(f"v_add_u32 {vr(vT+5)}, {sr(t7)}, {vr(vT+5)}")
    e("s_waitcnt vmcnt(0)")
    ranks()
    e(f"s_sub_u32 {sr(t1)}, 15, {sr(sX_)}")
    e(f"v_cmp_eq_u32 {sr(sCM,2)}, {sr(sX_)}, {vr(vX3)}")
    e(f"v_cmp_eq_u32 {sr(sCM+2,2)}, {sr(t1)}, {vr(vX3)}")
    e(f"s_ff1_i32_b32 {sr(t0)}, {sr(sCM)}")
    e(f"s_ff1_i32_b32 {sr(t1)}, {sr(sCM+2)}")
    e(f"v_readlane_b32 {sr(t2)}, {vr(vKY)}, {sr(t0)}")
    e(f"v_readlane_b32 {sr(t3)}, {vr(vKY)}, {sr(t1)}")
    e(f"v_readlane_b32 {sr(t4)}, {vr(vKL)}, {sr(t1)}")
    e(f"s_lshl_b32 {sr(t0)}, {sr(t0)}, 3")
    e(f"s_lshl_b32 {sr(t1)}, {sr(t1)}, 19")
    e(f"s_or_b32 {sr(t0)}, {sr(t0)}, {sr(t1)}")
    e(f"s_mul_i32 {sr(t0)}, {sr(t0)}, 0x101")
    e(f"s_mul_i32 {sr(t6)}, {sr(sHD)}, 0x01010101")
    e(f"s_add_u32 {sr(sBHP)}, {sr(t0)}, {sr(t6)}")
    e(f"s_add_u32 {sr(sBHP)}, {sr(sBHP)}, 0x01000100")
    e(f"s_lshr_b32 {sr(t2)}, {sr(t2)}, 4")
    e(f"s_lshr_b32 {sr(t3)}, {sr(t3)}, 4")
    c("segments: [long both heads][long extra][short both heads][short extra], steps descending")
    P = sCM + 8
    TOP = sCM + 12
    e(f"s_sub_i32 {sr(t0)}, {sr(t3)}, {sr(sEND)}")
    e(f"s_max_i32 {sr(t0)}, {sr(t0)}, 0")
    e(f"s_lshl_b32 {sr(P)}, {sr(t0)}, 1")
    e(f"s_min_u32 {sr(TOP)}, {sr(t3)}, {sr(sEND)}")
    e(f"s_sub_i32 {sr(t0)}, {sr(TOP)}, {sr(t5)}")
    e(f"s_max_i32 {sr(t0)}, {sr(t0)}, 0")
    e(f"s_add_u32 {sr(P+1)}, {sr(P)}, {sr(t0)}")
    e(f"s_sub_i32 {sr(t0)}, {sr(t2)}, {sr(sEND)}")
    e(f"s_max_i32 {sr(t0)}, {sr(t0)}, 0")
    e(f"s_lshl_b32 {sr(t0)}, {sr(t0)}, 1")
    e(f"s_add_u32 {sr(P+2)}, {sr(P+1)}, {sr(t0)}")
    e(f"s_mov_b32 {sr(TOP+1)}, {sr(t2)}")
    e(f"s_min_u32 {sr(TOP+2)}, {sr(t2)}, {sr(sEND)}")
    e(f"s_sub_i32 {sr(t0)}, {sr(TOP+2)}, {sr(t5)}")
    e(f"s_max_i32 {sr(t0)}, {sr(t0)}, 0")
    e(f"s_add_u32 {sr(P+3)}, {sr(P+2)}, {sr(t0)}")
    for i in range(3):
        e(f"v_cmp_ge_u32 {sr(sCM+2*i,2)}, {vr(vT+5)}, {sr(P+i)}")
    e(f"v_cmp_gt_u32 {sr(sCM+6,2)}, {sr(P+3)}, {vr(vT+5)}")
    e(f"v_mov_b32 {vr(vX0)}, {sr(t3)}")
    e(f"v_mov_b32 {vr(vX2)}, 0")
    for i in range(3):
        e(f"v_mov_b32 {vr(vT+i)}, {sr(P+i)}")
        e(f"v_mov_b32 {vr(vT+11+i)}, {sr(TOP+i)}")
    for i in range(3):
        e(f"v_cndmask_b32 {vr(vX2)}, {vr(vX2)}, {vr(vT+i)}, {sr(sCM+2*i,2)}")
        e(f"v_cndmask_b32 {vr(vX0)}, {vr(vX0)}, {vr(vT+11+i)}, {sr(sCM+2*i,2)}")
    e(f"s_xor_b64 vcc, {sr(sCM,2)}, {sr(sCM+2,2)}")
    e(f"s_xor_b64 vcc, vcc, {sr(sCM+4,2)}")
    e(f"v_sub_u32 {vr(vX2)}, {vr(vT+5)}, {vr(vX2)}")
    e(f"v_lshrrev_b32 {vr(vT)}, 1, {vr(vX2)}")
    e(f"v_and_b32 {vr(vX1)}, 1, {vr(vX2)}")
    e(f"v_mov_b32 {vr(vT+1)}, {sr(sS0)}")
    e(f"v_cndmask_b32 {vr(vT)}, {vr(vT)}, {vr(vX2)}, vcc")
    e(f"v_cndmask_b32 {vr(vX1)}, {vr(vX1)}, {vr(vT+1)}, vcc")
    e(f"v_sub_u32 {vr(vX0)}, {vr(vX0)}, {vr(vT)}")
    e(f"v_add_u32 {vr(vX0)}, -1, {vr(vX0)}")
    e(f"v_cndmask_b32 {vr(vT+1)}, 2, 0, {sr(sCM+2,2)}")
    e(f"v_add_u32 {vr(vX1)}, {vr(vX1)}, {vr(vT+1)}")
    e(f"v_lshlrev_b32 {vr(vX3)}, 3, {vr(vX1)}")
    e(f"v_bfe_u32 {vr(vX3)}, {sr(sBHP)}, {vr(vX3)}, 8")
    list_addr_bh()
    e("s_nop 0")
    predict()
    e(f"v_readfirstlane_b32 {sr(t2)}, {vr(vMETA)}")
    e(f"s_and_b32 {sr(t2)}, {sr(t2)}, 0xffff")
    limits(t4, t2)
    stamp(1)
    issue("K")
    c("a wave without items runs one item with no active column")
    e(f"s_bcnt1_i32_b64 {sr(sREM)}, {sr(sCM+6,2)}")
    e(f"s_cselect_b64 {sr(mIT,2)}, {sr(mSL,2)}, 0")
    e(f"s_max_u32 {sr(sREM)}, {sr(sREM)}, 1")
    e("s_branch L_go")

    def sh_issue():
        la = g.newlab()
        e(f"s_and_b32 {sr(t1)}, {sr(sZI)}, 63")
        e(f"v_readlane_b32 {sr(t0)}, {vr(vE)}, {sr(t1)}")
        e(f"s_mov_b32 m0, {sr(sSL)}")
        e(f"s_add_u32 {sr(sSL)}, {sr(sSL)}, 0x4000")
        e(f"s_and_b32 {sr(sSL)}, {sr(sSL)}, 0xffff")
        e(f"s_lshl_b32 {sr(t0)}, {sr(t0)}, 15")
        e(f"s_or_b32 {sr(sB0)}, {sr(t0)}, {sr(sH8)}")
        dma4(vKO, srdK, sB0)
        e(f"s_add_u32 {sr(sZI)}, {sr(sZI)}, {sr(sSTR)}")
        e(f"s_and_b32 {sr(t1)}, {sr(sZI)}, 63")
        e(f"s_cbranch_scc1 {la}")
        for q in range(3):
            e(f"v_mov_b32 {vr(vE+q)}, {vr(vE+q+1)}")
        lab(la)
    def sh_check():
        e(f"s_bitcmp1_b32 {sr(sW)}, 0")
        e(f"s_cselect_b64 vcc, -1, 0")
        for q in range(4):
            e(f"v_cndmask_b32 {vr(vE+q)}, {vr(vU+2*q)}, {vr(vU+2*q+1)}, vcc")
        for i in range(8):
            e(f"v_xor_b32_dpp {vr(vU+8+i)}, {vr(vU+i)}, {vr(vU+i)} row_newbcast:0 row_mask:0xf bank_mask:0xf")
        e(f"v_or3_b32 {vr(vU+8)}, {vr(vU+8)}, {vr(vU+9)}, {vr(vU+10)}")
        e(f"v_or3_b32 {vr(vU+11)}, {vr(vU+11)}, {vr(vU+12)}, {vr(vU+13)}")
        e(f"v_or3_b32 {vr(vU+8)}, {vr(vU+8)}, {vr(vU+14)}, {vr(vU+15)}")
        e(f"v_or_b32 {vr(vU+8)}, {vr(vU+8)}, {vr(vU+11)}")
        e(f"v_cmp_ne_u32 vcc, 0, {vr(vU+8)}")
        e(f"s_cmp_eq_u64 vcc, 0")
        e(f"s_cselect_b32 {sr(sSTR)}, 16, 1")
    lab("L_sh_pro")
    c("======== shared-prefix workgroup (h, part=idx): steps 16*idx..+15, wave w owns rows 4w..4w+3")
    c("guess: all rows share block = column (checked below). waves 0,1 load K, waves 2,3 load V")
    e(f"s_lshl_b32 {sr(sS0)}, {sr(sIDX)}, 4")
    e(f"s_and_b32 {sr(t1)}, {sr(sW)}, 1")
    e(f"s_lshl1_add_u32 {sr(t1)}, {sr(sS0)}, {sr(t1)}")
    e(f"v_lshl_add_u32 {vr(vE)}, {vr(vG)}, 3, {sr(t1)}")
    e(f"s_lshl_b32 {sr(sH8)}, {sr(sHD)}, 8")
    e(f"s_mov_b32 {sr(sZI)}, 0")
    e(f"s_mov_b32 {sr(sSTR)}, 16")
    e(f"s_lshl_b32 {sr(sSL)}, {sr(sW)}, 12")
    e(f"s_cmp_lt_u32 {sr(sW)}, 2")
    e("s_waitcnt lgkmcnt(0)")
    e("s_cbranch_scc1 L_sh_k")
    setup_v(vKO)
    e(f"s_mov_b64 {sr(sK,2)}, {sr(sV,2)}")
    lab("L_sh_k")
    srd_k()
    stamp(1)
    sh_issue()
    misc()
    e(f"s_mov_b32 {sr(sROLE)}, 2")
    e(f"s_mov_b32 {sr(sKS)}, {sr(sIDX)}")
    e(f"s_lshl_b32 {sr(t1)}, {sr(sW)}, 5")
    e(f"s_or_b32 {sr(t1)}, {sr(t1)}, {sr(sHD)}")
    e(f"s_mul_i32 {sr(sBHP)}, {sr(t1)}, 0x01010101")
    e(f"s_add_u32 {sr(sBHP)}, {sr(sBHP)}, 0x18100800")
    c("entries: lane (g,row=c) loads 4 steps: row*1024 + (s0+4g)*8")
    e(f"s_lshl_b32 {sr(t2)}, {sr(sS0)}, 3")
    e(f"v_lshl_add_u32 {vr(vT+3)}, {vr(vC)}, 10, {sr(t2)}")
    e(f"v_lshl_add_u32 {vr(vT+3)}, {vr(vG)}, 5, {vr(vT+3)}")
    e(f"v_mov_b32 {vr(vKL)}, {WNON}")
    e(f"s_or_b32 {sr(t7)}, s2, {sr(sW)}")
    e("s_cbranch_scc1 L_sh_noprev")
    e(f"global_load_dword {vr(vN)}, {vr(vKL)}, {sr(sWS,2)} sc1")
    lab("L_sh_noprev")
    e(f"global_load_dwordx4 {vr(vU,4)}, {vr(vT+3)}, {sr(sBT,2)}")
    e(f"global_load_dwordx4 {vr(vU+4,4)}, {vr(vT+3)}, {sr(sBT,2)} offset:16")
    col_addr()
    col_load()
    sh_issue()
    sh_issue()
    e(f"s_mov_b32 {sr(sZC)}, 0")
    e("s_branch L_init")
    lab("L_sh_verify")
    e(f"s_or_b32 {sr(t7)}, s2, {sr(sW)}")
    e("s_cbranch_scc1 L_sh_nononce")
    c("workgroup 0: nonce = what the previous launch left, every byte stepped through 1..255")
    e(f"v_readfirstlane_b32 {sr(t0)}, {vr(vN)}")
    e(f"s_mov_b32 {sr(t2)}, 0")
    for i in range(4):
        e(f"s_bfe_u32 {sr(t1)}, {sr(t0)}, 0x{0x80000+8*i:x}")
        e(f"s_cmp_eq_u32 {sr(t1)}, 0xff")
        e(f"s_cselect_b32 {sr(t1)}, 0, {sr(t1)}")
        e(f"s_add_u32 {sr(t1)}, {sr(t1)}, 1")
        if i:
            e(f"s_lshl_b32 {sr(t1)}, {sr(t1)}, {8*i}")
        e(f"s_or_b32 {sr(t2)}, {sr(t2)}, {sr(t1)}")
    e(f"v_mov_b32 {vr(vN)}, {sr(t2)}")
    e(f"v_mov_b32 {vr(vX0)}, 64")
    e("s_mov_b64 exec, 1")
    e(f"global_store_dword {vr(vKL)}, {vr(vN)}, {sr(sWS,2)} sc1")
    e("s_waitcnt vmcnt(0)")
    e(f"global_store_dword {vr(vX0)}, {vr(vN)}, {sr(sDBG,2)} sc1")
    e("s_mov_b64 exec, -1")
    lab("L_sh_nononce")
    e(f"v_mov_b32 {vr(vKY)}, {vr(vE)}")
    sh_check()
    e(f"v_cmp_ne_u32 {sr(sCM,2)}, {vr(vKY)}, {vr(vE)}")
    e(f"s_or_b64 vcc, vcc, {sr(sCM,2)}")
    e("s_cbranch_scc0 L_sh_w")
    e("s_waitcnt vmcnt(0)")
    e(f"s_mov_b32 {sr(sZI)}, 0")
    e(f"s_lshl_b32 {sr(sSL)}, {sr(sW)}, 12")
    e(f"s_mov_b32 {sr(t7)}, 3")
    lab("L_sh_redo")
    sh_issue()
    e(f"s_sub_u32 {sr(t7)}, {sr(t7)}, 1")
    e(f"s_cmp_lg_u32 {sr(t7)}, 0")
    e("s_cbranch_scc1 L_sh_redo")

    lab("L_sh_loop")
    e(f"s_lshl_b32 {sr(t0)}, {sr(sSTR)}, 1")
    e(f"s_add_u32 {sr(t0)}, {sr(t0)}, {sr(sZC)}")
    e(f"s_cmp_lt_u32 {sr(t0)}, 256")
    e("s_waitcnt vmcnt(8)")
    e("s_cbranch_scc1 L_sh_w")
    e(f"s_cmp_eq_u32 {sr(t0)}, 256")
    e("s_waitcnt vmcnt(4)")
    e("s_cbranch_scc1 L_sh_w")
    e("s_waitcnt vmcnt(0)")
    lab("L_sh_w")
    e("s_barrier")
    e(f"s_cmp_lt_u32 {sr(sZI)}, 256")
    e("s_cbranch_scc0 L_sh_noiss")
    sh_issue()
    lab("L_sh_noiss")
    e(f"s_cmp_eq_u32 {sr(sIT)}, 8")
    e("s_cbranch_scc0 L_sh_nosig")
    e(f"s_load_dword {sr(sN)}, {sr(sDBG,2)}, 0x40")
    lab("L_sh_nosig")
    c("step = s0 + 4*((z>>4)&3) + (z>>6), row = z&15")
    e(f"s_bfe_u32 {sr(t0)}, {sr(sZC)}, 0x20004")
    e(f"s_lshl_b32 {sr(t0)}, {sr(t0)}, 2")
    e(f"s_lshr_b32 {sr(t1)}, {sr(sZC)}, 6")
    e(f"s_add_u32 {sr(t0)}, {sr(t0)}, {sr(t1)}")
    e(f"s_add_u32 {sr(t0)}, {sr(t0)}, {sr(sS0)}")
    e(f"s_lshl_b32 {sr(sPOS)}, {sr(t0)}, 5")
    e(f"s_mov_b64 {sr(sMK,2)}, -1")
    e(f"s_cmp_eq_u32 {sr(sSTR)}, 16")
    e("s_cbranch_scc1 L_sh_go")
    e(f"s_and_b32 {sr(t0)}, {sr(sZC)}, 3")
    e(f"s_lshl_b32 {sr(t0)}, {sr(t0)}, 2")
    e(f"s_lshl_b64 {sr(sMK,2)}, {sr(mSL,2)}, {sr(t0)}")
    e(f"s_bfe_u32 {sr(t0)}, {sr(sZC)}, 0x20002")
    e(f"s_cmp_eq_u32 {sr(t0)}, {sr(sW)}")
    e("s_cbranch_scc0 L_sh_next")
    lab("L_sh_go")
    probe("cons", 0)
    kreads()
    masks()
    qk()
    e("s_nop 3")
    vreads()
    softmax_a()
    rescale()
    e("s_waitcnt lgkmcnt(0)")
    for ee in range(8):
        pv(ee)
    probe("cons", 1)
    lab("L_sh_next")
    c("advance the fragment addresses to the next ring slot")
    e(f"s_add_u32 {sr(sIT)}, {sr(sIT)}, 1")
    e(f"s_bitcmp1_b32 {sr(sIT)}, 0")
    e(f"s_cselect_b32 {sr(t0)}, 1, 3")
    e(f"s_lshl_b32 {sr(t0)}, {sr(t0)}, 14")
    for i in range(12):
        e(f"v_xor_b32 {vr(vKA+i)}, {sr(t0)}, {vr(vKA+i)}")
    e(f"s_add_u32 {sr(sZC)}, {sr(sZC)}, {sr(sSTR)}")
    e(f"s_cmp_lt_u32 {sr(sZC)}, 256")
    e("s_cbranch_scc1 L_sh_loop")
    stamp(2)
    c("publish this wave's 16 columns (transpose through its own LDS region)")
    lsum()
    part_addr(vC, None, vWS_, vA1)
    e("s_waitcnt lgkmcnt(0)")
    need_nonce()
    tag_setup()
    for i in range(32):
        tag(vO+i, i)
    tag(vLs, 1)
    e(f"v_xor_b32 {vr(vM+2)}, {vr(vM)}, {vr(vN)}")
    e(f"v_mov_b32 {vr(vM+3)}, {vr(vN)}")
    e("s_barrier")
    for ee in range(8):
        e(f"ds_write_b128 {vr(vLWa)}, {vr(vO+4*ee,4)} offset:{64*ee}")
    e(f"v_mul_u32_u24 {vr(vA2)}, {CSTR}, {vr(vG)}")
    e(f"v_lshl_add_u32 {vr(vA2)}, {vr(vC)}, 4, {vr(vA2)}")
    e(f"v_add_u32 {vr(vA2)}, {sr(sLB)}, {vr(vA2)}")
    e(f"v_lshlrev_b32 {vr(vCC)}, 12, {vr(vG)}")
    e(f"v_lshl_add_u32 {vr(vCC)}, {vr(vC)}, 4, {vr(vCC)}")
    e(f"s_lshl_b32 {sr(t6)}, {sr(sKS)}, 9")
    e("s_waitcnt lgkmcnt(0)")
    for i in range(4):
        for q in range(2):
            e(f"ds_read_b128 {vr(vOq+8*i+4*q,4)}, {vr(vA2)} offset:{4*CSTR*i+256*q}")
    e("s_mov_b64 exec, 0xffff")
    e(f"global_store_dwordx4 {vr(vWS_)}, {vr(vM,4)}, {sr(sWS,2)}{PP}") if not opt.nopub else None
    e("s_mov_b64 exec, -1")
    for i in range(4):
        slot_base(i, vSt+i, vCC)
        e(f"s_waitcnt lgkmcnt({6-2*i})")
        e(f"global_store_dwordx4 {vr(vSt+i)}, {vr(vOq+8*i,4)}, {sr(sWS,2)}{PP}") if not opt.nopub else None
        e(f"global_store_dwordx4 {vr(vSt+i)}, {vr(vOq+8*i+4,4)}, {sr(sWS,2)} offset:256{PP}") if not opt.nopub else None

    lab("L_done")
    if opt.stamps:
        e("s_waitcnt vmcnt(0)")
        stamp(3)
        e(f"s_getreg_b32 {sr(t5)}, hwreg(HW_REG_XCC_ID)")
        e(f"s_getreg_b32 {sr(t6)}, hwreg(HW_REG_HW_ID)")
        e("s_waitcnt lgkmcnt(0)")
        e(f"s_lshl_b32 {sr(t3)}, s2, 2")
        e(f"s_add_u32 {sr(t3)}, {sr(t3)}, {sr(sW)}")
        e(f"s_lshl_b32 {sr(t3)}, {sr(t3)}, 6")
        e(f"s_add_u32 {sr(t3)}, {sr(t3)}, {STAMPS}")
        e(f"s_sub_u32 {sr(sIT)}, {sr(sIT)}, 1")
        e(f"v_mov_b32 v4, {sr(t3)}")
        for i in range(8):
            e(f"v_mov_b32 v{8+i}, {sr(sST+i)}")
        e(f"v_mov_b32 v16, {sr(t5)}")
        e(f"v_mov_b32 v17, {sr(t6)}")
        for i in range(4):
            e(f"v_mov_b32 v{18+i}, {sr(sST+8+i)}")
        e(f"v_mov_b32 v22, {sr(sBHP)}")
        e(f"v_mov_b32 v23, {sr(sIT)}")
        e("s_mov_b64 exec, 1")
        e(f"global_store_dwordx4 v4, v[8:11], {sr(sWS,2)}")
        e(f"global_store_dwordx4 v4, v[12:15], {sr(sWS,2)} offset:16")
        e(f"global_store_dwordx4 v4, v[16:19], {sr(sWS,2)} offset:32")
        e(f"global_store_dwordx4 v4, v[20:23], {sr(sWS,2)} offset:48")
    if opt.amp:
        p = [int(x) for x in opt.amp.split(",")]
        a, b = p[0], p[1]
        if len(p) > 2:
            e(f"s_cmp_eq_u32 s2, {p[2]}")
            e("s_cbranch_scc0 L_end")
            e(f"s_cmp_eq_u32 {sr(sW)}, {p[3]}")
            e("s_cbranch_scc0 L_end")
        e(f"s_sub_u32 {sr(t0)}, {sr(sST+2*b)}, {sr(sST+2*a)}")
        e(f"s_lshl_b32 {sr(t0)}, {sr(t0)}, {5 if len(p)>2 else 3}")
        e(f"s_min_u32 {sr(t0)}, {sr(t0)}, 100000")
        lab("L_amp")
        e(f"s_memrealtime {sr(t2,2)}")
        e("s_waitcnt lgkmcnt(0)")
        e(f"s_sub_u32 {sr(t1)}, {sr(t2)}, {sr(sST+6)}")
        e(f"s_cmp_lt_u32 {sr(t1)}, {sr(t0)}")
        e("s_cbranch_scc1 L_amp")
    if opt.amp2:
        b, lo, hi, sh = [int(x) for x in opt.amp2.split(",")]
        neg = b >= 100
        b %= 100
        e(f"s_cmp_lt_u32 s2, {lo}")
        e("s_cbranch_scc1 L_end")
        e(f"s_cmp_ge_u32 s2, {hi}")
        e("s_cbranch_scc1 L_end")
        e("s_mov_b64 exec, -1")
        e(f"v_mov_b32 v4, 0x2f0000")
        e(f"global_load_dword v5, v4, {sr(sWS,2)} sc1")
        e("s_waitcnt vmcnt(0)")
        e(f"v_readfirstlane_b32 {sr(t4)}, v5")
        if neg:
            e(f"s_sub_u32 {sr(t0)}, {sr(t4)}, {sr(sST+2*b)}")
        else:
            e(f"s_sub_u32 {sr(t0)}, {sr(sST+2*b)}, {sr(t4)}")
        e(f"s_add_u32 {sr(t0)}, {sr(t0)}, 200")
        e(f"s_max_i32 {sr(t0)}, {sr(t0)}, 0")
        e(f"s_lshl_b32 {sr(t0)}, {sr(t0)}, {sh}")
        e(f"s_min_u32 {sr(t0)}, {sr(t0)}, 100000")
        lab("L_amp2")
        e(f"s_memrealtime {sr(t2,2)}")
        e("s_waitcnt lgkmcnt(0)")
        e(f"s_sub_u32 {sr(t1)}, {sr(t2)}, {sr(t4)}")
        e(f"s_cmp_lt_u32 {sr(t1)}, {sr(t0)}")
        e("s_cbranch_scc1 L_amp2")
    if opt.amp3:
        a, b, st = [int(x) for x in opt.amp3.split(",")]
        e(f"s_cmp_eq_u32 {sr(sW)}, 0")
        e("s_cbranch_scc0 L_end")
        e("s_mov_b64 exec, -1")
        e(f"v_mov_b32 v4, 0x2f0100")
        e(f"s_cmp_eq_u32 s2, {b}")
        e("s_cbranch_scc0 L_a3a")
        e(f"v_mov_b32 v5, {sr(sST+2*st)}")
        e(f"global_store_dword v4, v5, {sr(sWS,2)} sc1")
        lab("L_a3a")
        e(f"s_cmp_eq_u32 s2, {a}")
        e("s_cbranch_scc0 L_end")
        lab("L_a3b")
        e(f"s_memrealtime {sr(t2,2)}")
        e("s_waitcnt lgkmcnt(0)")
        e(f"s_sub_u32 {sr(t1)}, {sr(t2)}, {sr(sST)}")
        e(f"s_cmp_lt_u32 {sr(t1)}, 2800")
        e("s_cbranch_scc1 L_a3b")
        e(f"global_load_dword v5, v4, {sr(sWS,2)} sc1")
        e("s_waitcnt vmcnt(0)")
        e(f"v_readfirstlane_b32 {sr(t4)}, v5")
        e(f"s_sub_u32 {sr(t0)}, {sr(sST+2*st)}, {sr(t4)}")
        e(f"s_add_u32 {sr(t0)}, {sr(t0)}, 400")
        e(f"s_max_i32 {sr(t0)}, {sr(t0)}, 0")
        e(f"s_lshl_b32 {sr(t0)}, {sr(t0)}, 4")
        e(f"s_add_u32 {sr(t0)}, {sr(t0)}, 3000")
        e(f"s_min_u32 {sr(t0)}, {sr(t0)}, 100000")
        lab("L_a3c")
        e(f"s_memrealtime {sr(t2,2)}")
        e("s_waitcnt lgkmcnt(0)")
        e(f"s_sub_u32 {sr(t1)}, {sr(t2)}, {sr(sST)}")
        e(f"s_cmp_lt_u32 {sr(t1)}, {sr(t0)}")
        e("s_cbranch_scc1 L_a3c")
    lab("L_end")
    e("s_endpgm")

    out = HEADER
    out += f"; @launch grid=(256,1,1) block=({NW*64},1,1) lds={LDS}\n"
    out += '.amdgcn_target "amdgcn-amd-amdhsa--gfx950"\n.text\n'
    out += f".globl {NAME}_kernel\n.p2align 8\n.type {NAME}_kernel,@function\n{NAME}_kernel:\n"
    out += "\n".join(g.lines) + "\n"
    out += f""".section .rodata,"a"
.p2align 6
.amdhsa_kernel {NAME}_kernel
  .amdhsa_next_free_vgpr {NV}
  .amdhsa_next_free_sgpr 102
  .amdhsa_accum_offset {NV}
  .amdhsa_group_segment_fixed_size 0
  .amdhsa_kernarg_size 64
  .amdhsa_user_sgpr_count 2
  .amdhsa_user_sgpr_kernarg_segment_ptr 1
  .amdhsa_system_sgpr_workgroup_id_x 1
.end_amdhsa_kernel
"""
    return out

if __name__ == "__main__":
    ap = argparse.ArgumentParser()
    ap.add_argument("-o", default=f"cdna_kernels/{NAME}.s")
    ap.add_argument("--F", default="36,26,31,30")
    ap.add_argument("--spec", type=int, default=1)
    ap.add_argument("--spread", type=int, default=1)
    ap.add_argument("--rsleep", type=int, default=2)
    ap.add_argument("--lds", type=int, default=0)
    ap.add_argument("--pol", default="nt")
    ap.add_argument("--pol_out", default="")
    ap.add_argument("--stamps", action="store_true")
    ap.add_argument("--nobar", action="store_true")
    ap.add_argument("--amp", default="")
    ap.add_argument("--tlb", type=int, default=0)
    ap.add_argument("--tlbsh", type=int, default=21)
    ap.add_argument("--nopub", type=int, default=0)
    ap.add_argument("--pol_pub", default="sc1")
    ap.add_argument("--pol_get", default="sc1")
    ap.add_argument("--noclear", type=int, default=0)
    ap.add_argument("--nosig", type=int, default=0)
    ap.add_argument("--dummy", type=int, default=0)
    ap.add_argument("--mw", type=int, default=0)
    ap.add_argument("--amp3", default="")
    ap.add_argument("--cpf", type=int, default=0)
    ap.add_argument("--amp2", default="")
    ap.add_argument("--mid", type=int, default=1)
    ap.add_argument("--probe", default="first")
    ap.add_argument("--clk", default="s_memrealtime")
    opt = ap.parse_args()
    for k in ("pol", "pol_out", "pol_pub", "pol_get"):
        v = getattr(opt, k)
        setattr(opt, k, (" " + v.replace("+", " ")) if v else "")
    opt.code_bytes = 4096
    txt = build(opt)
    if opt.cpf:
        import subprocess, re, tempfile, os
        d = tempfile.mkdtemp()
        open(d + "/a.s", "w").write(txt)
        subprocess.check_call(["clang", "-target", "amdgcn-amd-amdhsa", "-mcpu=gfx950", "-c", d + "/a.s", "-o", d + "/a.o"])
        o = subprocess.check_output(["llvm-objdump", "-d", "--mcpu=gfx950", d + "/a.o"]).decode()
        end = int(re.search(r"^([0-9a-f]+) <L_end>:", o, re.M).group(1), 16)
        opt.code_bytes = end - 32
        txt = build(opt)
    open(opt.o, "w").write(txt)
```

```python
import sys, struct, argparse

NAME = "standalone__paged_block_table_kv_radixattention__sampling"

HEADER = """; Kernarg layout for this problem (64 bytes, ptrs only, base s[0:1]):
"""

DOC = """; Paged GQA decode attention, one launch, 256 workgroups x 4 waves.
;   ids   0..31  : first 128 table columns, all 16 rows at once when the rows name the same blocks (checked; otherwise row by row)
;   ids 128..255 : finishers, one per (row, kv head): first steps of columns 128.., then merge all partials and write the output
; The first loads of a wave use a guessed block id that is checked against the table (reloaded on a mismatch).
"""

def f2u(x):
    return struct.unpack("<I", struct.pack("<f", x))[0]

class Gen:
    def __init__(self, opt):
        self.o = opt
        self.lines = []
        self.nlab = 0
    def e(self, s):
        self.lines.append("    " + s)
    def c(self, s):
        self.lines.append("    ; " + s)
    def lab(self, name):
        self.lines.append(name + ":")
    def newlab(self, p="L"):
        self.nlab += 1
        return f"{p}_{self.nlab}"

def vr(b, n=1):
    return f"v{b}" if n == 1 else f"v[{b}:{b+n-1}]"
def sr(b, n=1):
    return f"s{b}" if n == 1 else f"s[{b}:{b+n-1}]"

def build(opt):
    g = Gen(opt)
    e, c, lab = g.e, g.c, g.lab
    NW = 4
    Fc = [int(x) for x in opt.F.split(",")]
    FPACK = sum((64 + Fc[i]) << (8*i) for i in range(4))
    KVB = 2176 * 32768
    CSTR = 528
    WSTR = 16384
    STAT = 16 * CSTR
    LDS = max(65536, opt.lds)
    pol = opt.pol
    PP = opt.pol_pub
    PG = opt.pol_get
    WSTAT = 0x200000
    STAMPS = 0x300000
    NG = 7
    NL = 21
    WNON = 0x220000
    sQ, sK, sV, sBT, sCTX, sOUT, sDBG, sWS = 4, 6, 8, 10, 12, 14, 16, 18
    srdK, srdV = 20, 24
    sBHP, sKS, sX_, sIDX = 28, 29, 30, 31
    sW, sHD, sS0, sSTR, sROLE = 32, 33, 34, 35, 36
    sIT, sREM, sLB = 37, 38, 39
    sCS, sONCE, sZI, sZC = 40, 41, 42, 43
    mSL = 44
    sB0, sB1, sPOS, sH8 = 46, 47, 48, 49
    sMK = 50
    sSL, sEND = 52, 53
    mIT = 54
    sFAST = 56
    sMW = 62
    sPHP = sBHP
    sR0, sR1, sN = 58, 59, 63
    sCM = 66
    t0, t1, t2, t3, t4, t5, t6, t7 = 82, 83, 84, 85, 86, 87, 88, 89
    sST = 90
    vL, vG, vC = 1, 2, 3
    vKO, vVO = 4, 8
    vQ = 12
    vO = 28
    vM, vLs, vCG = 60, 61, 62
    vMETA = 63
    vTB = 64
    vFM, vFI = 66, 67
    vS = 68
    vP = 76
    vF = 80
    vT = vF
    vLIM, vFILL, vMX, vAL, vX0, vX1, vX2, vX3 = 112, 113, 114, 115, 116, 117, 118, 119
    vKA, vVA = 120, 124
    vLE = 132
    vE = 134
    vKY, vKL = 138, 139
    vU = 140
    vGs, vGo = 140, 168
    vWO, vWS_, vOA, vLWa, vLWs, vA1, vA2, vCC = 224, 225, 226, 227, 228, 229, 230, 231
    vN = 133
    vPX = 223
    PXO = WSTR + 12288
    NV = 232

    def stamp(i):
        if opt.stamps:
            e(f"s_memrealtime {sr(sST+2*i,2)}")
    def probe(name, which):
        if opt.stamps and opt.probe == name:
            e(f"{opt.clk} {sr(sST+8+2*which,2)}")
            e("s_waitcnt lgkmcnt(0)")

    def list_addr_bh():
        c("vX0=step vX1=slot vX3=b*8+h -> vX3 table offset, vMETA")
        e(f"v_med3_i32 {vr(vX0)}, {vr(vX0)}, 0, {vr(vT+6)}")
        e(f"v_lshlrev_b32 {vr(vMETA)}, 5, {vr(vX0)}")
        e(f"v_lshl_add_u32 {vr(vMETA)}, {vr(vX1)}, 18, {vr(vMETA)}")
        e(f"v_lshl_add_u32 {vr(vMETA)}, {vr(vX3)}, 29, {vr(vMETA)}")
        e(f"v_lshrrev_b32 {vr(vX3)}, 3, {vr(vX3)}")
        e(f"v_lshlrev_b32 {vr(vX3)}, 10, {vr(vX3)}")
        e(f"v_lshl_add_u32 {vr(vX3)}, {vr(vX0)}, 3, {vr(vX3)}")
    def list_load():
        e(f"global_load_dwordx2 {vr(vTB,2)}, {vr(vX3)}, {sr(sBT,2)}")
    def predict():
        c("guess for the first item (checked against the table below): block = 128*row + column")
        e(f"v_readfirstlane_b32 {sr(t0)}, {vr(vX3)}")
        e(f"v_readfirstlane_b32 {sr(t2)}, {vr(vMETA)}")
        e(f"s_lshr_b32 {sr(t1)}, {sr(t0)}, 10")
        e(f"s_lshl_b32 {sr(t1)}, {sr(t1)}, 22")
        e(f"s_and_b32 {sr(t0)}, {sr(t0)}, 0x3ff")
        e(f"s_lshl_b32 {sr(t0)}, {sr(t0)}, 13")
        e(f"s_add_u32 {sr(t0)}, {sr(t0)}, {sr(t1)}")
        e(f"s_lshr_b32 {sr(t2)}, {sr(t2)}, 29")
        e(f"s_lshl_b32 {sr(t2)}, {sr(t2)}, 8")
        e(f"s_or_b32 {sr(sB0)}, {sr(t0)}, {sr(t2)}")
        e(f"s_add_u32 {sr(sB1)}, {sr(sB0)}, 0x8000")
    vQO, vCO = vT + 8, vT + 9
    def col_addr():
        c("per-lane column: Q offset and ctx offset")
        e(f"v_lshlrev_b32 {vr(vCO)}, 1, {vr(vC)}")
        e(f"v_and_b32 {vr(vCO)}, 24, {vr(vCO)}")
        e(f"v_bfe_u32 {vr(vCO)}, {sr(sBHP)}, {vr(vCO)}, 8")
        e(f"v_lshl_add_u32 {vr(vQO)}, {vr(vCO)}, 10, {vr(vT+10)}")
        e(f"v_lshrrev_b32 {vr(vCO)}, 1, {vr(vCO)}")
        e(f"v_and_b32 {vr(vCO)}, 60, {vr(vCO)}")
    def col_load():
        e(f"global_load_dword {vr(vCG)}, {vr(vCO)}, {sr(sCTX,2)}")
        for m in range(4):
            e(f"global_load_dwordx4 {vr(vQ+4*m,4)}, {vr(vQO)}, {sr(sQ,2)} offset:{64*m}")
    def part_addr(vcol, vo, vs, tmp):
        c("partial addresses for column vcol: row R=(b*8+h)*4+(col&3); O: R*4096 + k*512 ; stats: R*128 + k*16")
        e(f"v_lshlrev_b32 {vr(tmp)}, 1, {vr(vcol)}")
        e(f"v_and_b32 {vr(tmp)}, 24, {vr(tmp)}")
        e(f"v_bfe_u32 {vr(tmp)}, {sr(sPHP)}, {vr(tmp)}, 8")
        e(f"v_and_b32 {vr(vs)}, 3, {vr(vcol)}")
        e(f"v_lshl_add_u32 {vr(tmp)}, {vr(tmp)}, 2, {vr(vs)}")
        if vo is not None:
            e(f"s_lshl_b32 {sr(t3)}, {sr(sKS)}, 9")
            e(f"v_lshl_add_u32 {vr(vo)}, {vr(tmp)}, 12, {sr(t3)}")
        e(f"s_lshl_b32 {sr(t3)}, {sr(sKS)}, 4")
        e(f"s_add_u32 {sr(t3)}, {sr(t3)}, {WSTAT}")
        e(f"v_lshl_add_u32 {vr(vs)}, {vr(tmp)}, 7, {sr(t3)}")
    def slot_base(i, vdst, vlane):
        e(f"s_bfe_u32 {sr(t3)}, {sr(sPHP)}, 0x{0x80000+8*i:x}")
        e(f"s_lshl_b32 {sr(t3)}, {sr(t3)}, 14")
        e(f"s_add_u32 {sr(t3)}, {sr(t3)}, {sr(t6)}")
        e(f"v_add_u32 {vr(vdst)}, {sr(t3)}, {vr(vlane)}")
    def need_nonce():
        c("the nonce was normally fetched in the loop")
        la = g.newlab(); lb = g.newlab()
        e(f"s_mov_b32 {sr(t5)}, 0")
        e(f"v_mov_b32 {vr(vX0)}, 64")
        lab(la)
        e(f"s_cmp_lg_u32 {sr(sN)}, 0")
        e(f"s_cbranch_scc1 {lb}")
        e(f"global_load_dword {vr(vN)}, {vr(vX0)}, {sr(sDBG,2)} sc1")
        e("s_sleep 8")
        e(f"s_add_u32 {sr(t5)}, {sr(t5)}, 1")
        e("s_waitcnt vmcnt(0)")
        e(f"v_readfirstlane_b32 {sr(sN)}, {vr(vN)}")
        e(f"s_cmp_lt_u32 {sr(t5)}, 0x40000")
        e(f"s_cbranch_scc1 {la}")
        lab(lb)
    def tag_setup():
        e(f"v_mov_b32 {vr(vN)}, {sr(sN)}")
        for i in range(4):
            e(f"s_mov_b32 {sr(sCM+8+i)}, 0x0706050{i}")
    def tag(reg, i):
        e(f"v_perm_b32 {vr(reg)}, {vr(reg)}, {vr(vN)}, {sr(sCM+8+(i&3))}")
    def setup_k():
        c("K DMA source offsets (XOR-swizzled)")
        e(f"v_xor_b32 {vr(vT+16)}, {vr(vC)}, {vr(vG)}")
        e(f"v_lshlrev_b32 {vr(vT+17)}, 11, {vr(vG)}")
        e(f"v_lshl_add_u32 {vr(vKO)}, {vr(vT+16)}, 4, {vr(vT+17)}")
        for n in range(1, 4):
            e(f"v_xor_b32 {vr(vKO+n)}, {n<<6}, {vr(vKO)}")
            e(f"v_add_u32 {vr(vKO+n)}, {n*7168}, {vr(vKO+n)}")
        e(f"s_lshl_b32 {sr(sLB)}, {sr(sW)}, 14")
        e(f"s_mov_b32 {sr(srdK+2)}, {KVB}")
        e(f"s_mov_b32 {sr(srdK+3)}, 0x20000")
    def setup_v(dst=None):
        c("V DMA source offsets")
        d = vVO if dst is None else dst
        e(f"v_lshlrev_b32 {vr(vT+16)}, 1, {vr(vG)}")
        e(f"v_xor_b32 {vr(vT+16)}, {vr(vC)}, {vr(vT+16)}")
        e(f"v_lshl_add_u32 {vr(d)}, {vr(vT+16)}, 4, {vr(vT+17)}")
        e(f"v_xor_b32 {vr(d+1)}, 128, {vr(d)}")
        e(f"v_add_u32 {vr(d+3)}, {3*7168}, {vr(d+1)}")
        e(f"v_add_u32 {vr(d+1)}, 7168, {vr(d+1)}")
        e(f"v_add_u32 {vr(d+2)}, {2*7168}, {vr(d)}")
    def srd_k():
        e(f"s_mov_b32 {sr(srdK)}, {sr(sK)}")
        e(f"s_and_b32 {sr(srdK+1)}, {sr(sK+1)}, 0xffff")
    def srd_v():
        e(f"s_mov_b32 {sr(srdV)}, {sr(sV)}")
        e(f"s_and_b32 {sr(srdV+1)}, {sr(sV+1)}, 0xffff")
        e(f"s_mov_b32 {sr(srdV+3)}, 0x20000")
    def misc():
        e(f"v_and_b32 {vr(vL)}, 63, v0")
        e(f"v_and_b32 {vr(vX2)}, 3, v0")
        e(f"v_lshlrev_b32 {vr(vT+10)}, 4, {vr(vG)}")
        e(f"v_lshl_add_u32 {vr(vT+10)}, {vr(vX2)}, 8, {vr(vT+10)}")
        e(f"v_mov_b32 {vr(vT+6)}, 127")
        e(f"s_mov_b32 {sr(mSL)}, 0x000f000f")
        e(f"s_mov_b32 {sr(mSL+1)}, {sr(mSL)}")
        e(f"s_mov_b32 {sr(sIT)}, 0")
    def cpf():
        if opt.cpf:
            c("pull the kernel's code into L2: one dword per 64 bytes")
            e(f"v_lshlrev_b32 {vr(vF+30)}, 6, v0")
            e(f"v_min_u32 {vr(vF+30)}, {opt.code_bytes}, {vr(vF+30)}")
            e(f"global_load_dword {vr(vF+31)}, {vr(vF+30)}, {sr(sCM,2)}")
    def ranks():
        c("vKY: ctx of row c -> key = nsteps*16 + row ; vX3 = rank of the key")
        e(f"v_mov_b32 {vr(vX2)}, 0x1000")
        e(f"v_cmp_lt_i32 vcc, 0, {vr(vKY)}")
        e(f"v_min_i32 {vr(vKY)}, {vr(vKY)}, {vr(vX2)}")
        e(f"v_mov_b32 {vr(vX3)}, 0")
        e(f"v_cndmask_b32 {vr(vKL)}, {vr(vX2)}, {vr(vKY)}, vcc")
        e(f"v_add_u32 {vr(vKY)}, 31, {vr(vKL)}")
        e(f"v_lshrrev_b32 {vr(vKY)}, 5, {vr(vKY)}")
        e(f"v_lshl_add_u32 {vr(vKY)}, {vr(vKY)}, 4, {vr(vC)}")
        e("s_nop 1")
        for k in range(1, 16):
            e(f"v_sub_u32_dpp {vr(vT+(k&3))}, {vr(vKY)}, {vr(vKY)} row_ror:{k} row_mask:0xf bank_mask:0xf")
            e(f"v_lshrrev_b32 {vr(vT+(k&3))}, 31, {vr(vT+(k&3))}")
            e(f"v_add_u32 {vr(vX3)}, {vr(vX3)}, {vr(vT+(k&3))}")
    PARTS = {"A": range(0, 4), "B": range(4, NG)}
    def gload(part):
        for i, k in enumerate(PARTS[part]):
            e(f"global_load_dwordx4 {vr(vGs+4*i,4)}, {vr(vWS_)}, {sr(sWS,2)} offset:{16*k}{PG}")
            for q in range(2):
                e(f"global_load_dwordx4 {vr(vGo+8*i+4*q,4)}, {vr(vWO)}, {sr(sWS,2)} offset:{512*k+256*q}{PG}")
    def lsum():
        c("reduce l over the 4 lane groups")
        e(f"v_mov_b32 {vr(vX0)}, {vr(vLs)}")
        e("s_nop 1")
        e(f"v_permlane32_swap_b32 {vr(vLs)}, {vr(vX0)}")
        e(f"v_add_f32 {vr(vLs)}, {vr(vLs)}, {vr(vX0)}")
        e(f"v_mov_b32 {vr(vX0)}, {vr(vLs)}")
        e("s_nop 1")
        e(f"v_permlane16_swap_b32 {vr(vLs)}, {vr(vX0)}")
        e(f"v_add_f32 {vr(vLs)}, {vr(vLs)}, {vr(vX0)}")
    def limits(tl, pos):
        c("tokens past the context are not fetched: they fall outside num_records and read as zero")
        e(f"s_sub_i32 {sr(tl)}, {sr(tl)}, {sr(pos)}")
        e(f"s_max_i32 {sr(tl)}, {sr(tl)}, 0")
        e(f"s_min_u32 {sr(t0)}, {sr(tl)}, 16")
        e(f"s_min_u32 {sr(t1)}, {sr(tl)}, 32")
        e(f"s_sub_u32 {sr(t1)}, {sr(t1)}, {sr(t0)}")
        e(f"s_lshl_b32 {sr(t0)}, {sr(t0)}, 11")
        e(f"s_lshl_b32 {sr(t1)}, {sr(t1)}, 11")
        e(f"s_add_u32 {sr(t0)}, {sr(t0)}, {sr(sB0)}")
        e(f"s_add_u32 {sr(t1)}, {sr(t1)}, {sr(sB1)}")
        e(f"s_min_u32 {sr(sR0)}, {sr(t0)}, {KVB}")
        e(f"s_min_u32 {sr(sR1)}, {sr(t1)}, {KVB}")
    def fetch():
        e(f"v_readlane_b32 {sr(t2)}, {vr(vMETA)}, {sr(sIT)}")
        e(f"v_readlane_b32 {sr(t0)}, {vr(vTB)}, {sr(sIT)}")
        e(f"v_readlane_b32 {sr(t1)}, {vr(vTB+1)}, {sr(sIT)}")
        e(f"s_bfe_u32 {sr(t3)}, {sr(t2)}, 0x40010")
        e(f"s_lshr_b32 {sr(t4)}, {sr(t2)}, 29")
        e(f"v_readlane_b32 {sr(t5)}, {vr(vLE)}, {sr(t3)}")
        e(f"s_lshl_b32 {sr(t4)}, {sr(t4)}, 8")
        e(f"s_lshl_b32 {sr(t0)}, {sr(t0)}, 15")
        e(f"s_lshl_b32 {sr(t1)}, {sr(t1)}, 15")
        e(f"s_or_b32 {sr(sB0)}, {sr(t0)}, {sr(t4)}")
        e(f"s_or_b32 {sr(sB1)}, {sr(t1)}, {sr(t4)}")
        e(f"s_and_b32 {sr(sPOS)}, {sr(t2)}, 0xffff")
        e(f"s_lshl_b64 {sr(sMK,2)}, {sr(mIT,2)}, {sr(t3)}")
        e(f"s_add_u32 {sr(sIT)}, {sr(sIT)}, 1")
        limits(t5, sPOS)
    def decode():
        pass
    def dma4(off, srd, soff):
        for n in range(4):
            o = f" offset:{1024*n}" if n else ""
            e(f"buffer_load_dwordx4 {vr(off+n)}, {sr(srd,4)}, {sr(soff)} offen{o}{pol} lds")
    def issue(kv):
        off = vVO if kv == "V" else vKO
        srd = srdV if kv == "V" else srdK
        base = 8192 if kv == "V" else 0
        if base:
            e(f"s_add_u32 m0, {sr(sLB)}, {base}")
        else:
            e(f"s_mov_b32 m0, {sr(sLB)}")
        e(f"s_mov_b32 {sr(srd+2)}, {sr(sR0)}")
        dma4(off, srd, sB0)
        e(f"s_add_u32 m0, {sr(sLB)}, {base+4096}")
        e(f"s_mov_b32 {sr(srd+2)}, {sr(sR1)}")
        dma4(off, srd, sB1)
    e("s_cmp_ge_u32 s2, 256")
    e("s_cbranch_scc1 L_end")
    e(f"s_load_dwordx16 s[4:19], s[0:1], 0")
    stamp(0)
    if opt.cpf:
        e(f"s_getpc_b64 {sr(sCM,2)}")
    e(f"v_lshrrev_b32 {vr(vX0)}, 6, v0")
    e(f"v_and_b32 {vr(vC)}, 15, v0")
    e(f"v_bfe_u32 {vr(vG)}, v0, 4, 2")
    e(f"v_readfirstlane_b32 {sr(sW)}, {vr(vX0)}")
    e(f"s_lshr_b32 {sr(sIDX)}, s2, 3")
    c("head: bit1 = id&1, bits 0/2 rotate with idx")
    e(f"s_lshr_b32 {sr(t0)}, s2, 1")
    e(f"s_add_u32 {sr(t0)}, {sr(t0)}, {sr(sIDX)}")
    e(f"s_and_b32 {sr(t1)}, {sr(t0)}, 2")
    e(f"s_and_b32 {sr(t0)}, {sr(t0)}, 1")
    e(f"s_and_b32 {sr(t2)}, s2, 1")
    e(f"s_or_b32 {sr(t1)}, {sr(t1)}, {sr(t2)}")
    e(f"s_lshl1_add_u32 {sr(sHD)}, {sr(t1)}, {sr(t0)}")
    setup_k()
    e(f"s_cmp_lt_u32 {sr(sIDX)}, 16")
    e("s_cbranch_scc1 L_helper")
    c("======== finisher (b, h): steps 64+w+4*lane")
    c("guess for the first item (checked against the table below): block = 128*row + column")
    e(f"s_sub_u32 {sr(t0)}, {sr(sIDX)}, 15")
    e(f"s_lshl_b32 {sr(t0)}, {sr(t0)}, 6")
    e(f"s_add_u32 {sr(t0)}, {sr(t0)}, {sr(sW)}")
    e(f"s_lshl_b32 {sr(t0)}, {sr(t0)}, 8")
    e(f"s_add_u32 {sr(t0)}, {sr(t0)}, {sr(sHD)}")
    e(f"s_lshl_b32 {sr(sB0)}, {sr(t0)}, 8")
    e(f"s_add_u32 {sr(sB1)}, {sr(sB0)}, 0x8000")
    e(f"s_mov_b32 {sr(sR0)}, {sr(sB1)}")
    e(f"s_add_u32 {sr(sR1)}, {sr(sB1)}, 0x8000")
    e("s_waitcnt lgkmcnt(0)")
    srd_k()
    stamp(1)
    issue("K")
    misc()
    e(f"s_mov_b32 {sr(sROLE)}, 1")
    e(f"s_and_b32 {sr(t1)}, s2, 0x78")
    e(f"s_or_b32 {sr(t1)}, {sr(t1)}, {sr(sHD)}")
    e(f"s_mul_i32 {sr(sBHP)}, {sr(t1)}, 0x01010101")
    e(f"s_add_u32 {sr(t2)}, {sr(sW)}, 64")
    e(f"v_lshl_add_u32 {vr(vX0)}, {vr(vL)}, 2, {sr(t2)}")
    e(f"v_mov_b32 {vr(vX1)}, 0")
    e(f"v_mov_b32 {vr(vX3)}, {sr(t1)}")
    list_addr_bh()
    e(f"s_and_b32 {sr(t0)}, {sr(sHD)}, 3")
    e(f"s_lshl_b32 {sr(t0)}, {sr(t0)}, 3")
    e(f"s_lshr_b32 {sr(sEND)}, 0x{FPACK:08x}, {sr(t0)}")
    e(f"s_and_b32 {sr(sEND)}, {sr(sEND)}, 0xff")
    e(f"s_mov_b32 {sr(sKS)}, 0")
    e(f"s_mov_b64 {sr(mIT,2)}, -1")
    lab("L_go")
    list_load()
    col_addr()
    col_load()
    setup_v()
    srd_v()
    issue("V")
    lab("L_init")
    if opt.amp2:
        e(f"s_or_b32 {sr(t0)}, s2, {sr(sW)}")
        e("s_cbranch_scc1 L_noref")
        e(f"v_mov_b32 {vr(vX0)}, 0x2f0000")
        e(f"v_mov_b32 {vr(vX1)}, {sr(sST)}")
        e(f"global_store_dword {vr(vX0)}, {vr(vX1)}, {sr(sWS,2)} sc1")
        lab("L_noref")
    e(f"s_mov_b32 {sr(sCS)}, 0x{f2u(128**-0.5 * 1.4426950408889634):08x}")
    for i in range(32):
        e(f"v_mov_b32 {vr(vO+i)}, 0")
    e(f"v_mov_b32 {vr(vM)}, 0x{f2u(-1e30):08x}")
    e(f"v_mov_b32 {vr(vLs)}, 0")
    e(f"v_mov_b32 {vr(vFM)}, 0x{f2u(-1e9/(128**-0.5)):08x}")
    e(f"v_mov_b32 {vr(vFI)}, 0x{f2u(-3e38):08x}")
    c("LDS fragment addresses")
    e(f"s_cmp_eq_u32 {sr(sROLE)}, 2")
    e(f"s_cselect_b32 {sr(t0)}, 0, {sr(sLB)}")
    e(f"v_xor_b32 {vr(vX0)}, {vr(vC)}, {vr(vG)}")
    e(f"v_lshl_add_u32 {vr(vX1)}, {vr(vC)}, 8, {sr(t0)}")
    e(f"v_lshl_add_u32 {vr(vKA)}, {vr(vX0)}, 4, {vr(vX1)}")
    for m in range(1, 4):
        e(f"v_xor_b32 {vr(vKA+m)}, {m<<6}, {vr(vKA)}")
    e(f"v_lshrrev_b32 {vr(vX0)}, 2, {vr(vL)}")
    e(f"v_lshl_add_u32 {vr(vX1)}, {vr(vX0)}, 8, {sr(t0)}")
    e(f"v_and_b32 {vr(vX0)}, 7, {vr(vX0)}")
    e(f"v_lshl_add_u32 {vr(vX1)}, {vr(vX0)}, 5, {vr(vX1)}")
    e(f"v_and_b32 {vr(vX0)}, 3, {vr(vL)}")
    e(f"v_lshl_add_u32 {vr(vVA)}, {vr(vX0)}, 3, {vr(vX1)}")
    for ee in range(1, 8):
        e(f"v_xor_b32 {vr(vVA+ee)}, {ee<<5}, {vr(vVA)}")
    c("epilogue addresses")
    e(f"s_cmp_eq_u32 {sr(sROLE)}, 1")
    e(f"s_cselect_b32 {sr(t0)}, 3, 15")
    e(f"v_lshrrev_b32 {vr(vCC)}, 4, v0")
    e(f"v_and_b32 {vr(vCC)}, {sr(t0)}, {vr(vCC)}")
    part_addr(vCC, vWO, vWS_, vX0)
    e(f"v_lshl_add_u32 {vr(vWO)}, {vr(vC)}, 4, {vr(vWO)}")
    e(f"v_mul_u32_u24 {vr(vLWa)}, {CSTR}, {vr(vC)}")
    e(f"v_lshl_add_u32 {vr(vLWa)}, {vr(vG)}, 4, {vr(vLWa)}")
    e(f"v_add_u32 {vr(vLWa)}, {sr(sLB)}, {vr(vLWa)}")
    e(f"v_lshl_add_u32 {vr(vLWs)}, {vr(vC)}, 3, {sr(sLB)}")
    e(f"v_lshlrev_b32 {vr(vA1)}, 3, {vr(vCC)}")
    e(f"v_mul_u32_u24 {vr(vA2)}, {CSTR}, {vr(vCC)}")
    e(f"v_lshl_add_u32 {vr(vA2)}, {vr(vC)}, 4, {vr(vA2)}")
    e(f"s_and_b32 {sr(t3)}, {sr(sBHP)}, 0xff")
    e(f"s_lshl_b32 {sr(t3)}, {sr(t3)}, 10")
    e(f"v_lshl_add_u32 {vr(vOA)}, {vr(vG)}, 8, {sr(t3)}")
    e(f"v_lshl_add_u32 {vr(vOA)}, {vr(vC)}, 3, {vr(vOA)}")
    e(f"s_add_u32 {sr(sMW)}, {sr(sW)}, 1")
    e(f"s_cmp_lt_u32 {sr(sW)}, 2")
    e(f"s_cselect_b32 {sr(sMW)}, {sr(sMW)}, 0")
    e(f"s_mul_i32 {sr(sMW)}, {sr(sMW)}, {sr(sROLE)}")
    e(f"v_lshlrev_b32 {vr(vPX)}, 4, {vr(vL)}")
    e(f"s_mov_b32 {sr(sN)}, 0")
    c("table/ctx/Q were issued before the first V loads (shared role: before items 1,2)")
    e(f"s_cmp_eq_u32 {sr(sROLE)}, 2")
    e("s_waitcnt vmcnt(8)")
    e(f"v_mov_b32 {vr(vX1)}, 0x1000")
    e(f"v_cmp_lt_i32 vcc, 0, {vr(vCG)}")
    e(f"v_lshlrev_b32 {vr(vX0)}, 2, {vr(vG)}")
    e(f"v_med3_i32 {vr(vCG)}, {vr(vCG)}, 0, {vr(vX1)}")
    e(f"v_cndmask_b32 {vr(vLE)}, {vr(vX1)}, {vr(vCG)}, vcc")
    e(f"v_sub_u32 {vr(vCG)}, {vr(vCG)}, {vr(vX0)}")
    e("s_cbranch_scc1 L_sh_verify")
    e(f"s_mov_b64 {sr(sCM,2)}, {sr(sB0,2)}")
    e(f"s_mov_b64 {sr(sCM+2,2)}, {sr(sR0,2)}")
    fetch()
    e(f"s_xor_b64 {sr(sCM,2)}, {sr(sCM,2)}, {sr(sB0,2)}")
    e(f"s_xor_b64 {sr(sCM+2,2)}, {sr(sCM+2,2)}, {sr(sR0,2)}")
    e(f"s_or_b64 {sr(sCM,2)}, {sr(sCM,2)}, {sr(sCM+2,2)}")
    e("s_cbranch_scc1 L_respec")
    lab("L_specok")
    e(f"s_cmp_eq_u32 {sr(sROLE)}, 1")
    e("s_cbranch_scc0 L_cnt")
    c("finisher item count (at least one: a step past the context is fully masked)")
    e(f"v_readfirstlane_b32 {sr(t1)}, {vr(vLE)}")
    e(f"s_add_u32 {sr(t1)}, {sr(t1)}, 31")
    e(f"s_lshr_b32 {sr(t1)}, {sr(t1)}, 5")
    e(f"s_min_u32 {sr(t1)}, {sr(t1)}, {sr(sEND)}")
    e(f"s_sub_i32 {sr(t1)}, {sr(t1)}, {sr(sW)}")
    e(f"s_sub_i32 {sr(t1)}, {sr(t1)}, 61")
    e(f"s_ashr_i32 {sr(t1)}, {sr(t1)}, 2")
    e(f"s_max_i32 {sr(sREM)}, {sr(t1)}, 1")
    lab("L_cnt")

    def kreads():
        for m in range(4):
            e(f"ds_read_b128 {vr(vF+8*m,4)}, {vr(vKA+m)}")
            e(f"ds_read_b128 {vr(vF+8*m+4,4)}, {vr(vKA+m)} offset:4096")
    def qk():
        for m in range(4):
            e(f"s_waitcnt lgkmcnt({6-2*m})")
            c0 = "0" if m == 0 else vr(vS, 4)
            c1 = "0" if m == 0 else vr(vS+4, 4)
            e(f"v_mfma_f32_16x16x32_bf16 {vr(vS,4)}, {vr(vF+8*m,4)}, {vr(vQ+4*m,4)}, {c0}")
            e(f"v_mfma_f32_16x16x32_bf16 {vr(vS+4,4)}, {vr(vF+8*m+4,4)}, {vr(vQ+4*m,4)}, {c1}")
    def masks():
        e(f"v_subrev_u32 {vr(vLIM)}, {sr(sPOS)}, {vr(vCG)}")
        e(f"v_cndmask_b32 {vr(vLIM)}, 0, {vr(vLIM)}, {sr(sMK,2)}")
        e(f"v_cndmask_b32 {vr(vFILL)}, {vr(vFI)}, {vr(vFM)}, {sr(sMK,2)}")
        e(f"v_cmp_gt_i32 {sr(sFAST,2)}, 20, {vr(vLIM)}")
    def vreads():
        for ee in range(8):
            e(f"ds_read_b64_tr_b16 {vr(vF+4*ee,2)}, {vr(vVA+ee)} offset:8192")
            e(f"ds_read_b64_tr_b16 {vr(vF+4*ee+2,2)}, {vr(vVA+ee)} offset:12288")
    def softmax_a():
        la = g.newlab()
        e(f"s_cmp_eq_u64 {sr(sFAST,2)}, 0")
        e(f"s_cbranch_scc1 {la}")
        for j in range(8):
            e(f"v_cmp_lt_i32 {sr(sCM+2*j,2)}, {(j>>2)*16+(j&3)}, {vr(vLIM)}")
        for j in range(8):
            e(f"v_cndmask_b32 {vr(vS+j)}, {vr(vFILL)}, {vr(vS+j)}, {sr(sCM+2*j,2)}")
        lab(la)
        e(f"v_max3_f32 {vr(vMX)}, {vr(vS)}, {vr(vS+1)}, {vr(vS+2)}")
        e(f"v_max3_f32 {vr(vX0)}, {vr(vS+3)}, {vr(vS+4)}, {vr(vS+5)}")
        e(f"v_max3_f32 {vr(vMX)}, {vr(vMX)}, {vr(vS+6)}, {vr(vS+7)}")
        e(f"v_max3_f32 {vr(vMX)}, {vr(vMX)}, {vr(vX0)}, {vr(vM)}")
        e(f"v_mov_b32 {vr(vX0)}, {vr(vMX)}")
        e("s_nop 1")
        e(f"v_permlane32_swap_b32 {vr(vMX)}, {vr(vX0)}")
        e(f"v_max_f32 {vr(vMX)}, {vr(vMX)}, {vr(vX0)}")
        e(f"v_mov_b32 {vr(vX0)}, {vr(vMX)}")
        e("s_nop 1")
        e(f"v_permlane16_swap_b32 {vr(vMX)}, {vr(vX0)}")
        e(f"v_max_f32 {vr(vMX)}, {vr(vMX)}, {vr(vX0)}")
        e(f"v_mul_f32 {vr(vX1)}, {sr(sCS)}, {vr(vMX)}")
        e(f"v_sub_f32 {vr(vAL)}, {vr(vM)}, {vr(vMX)}")
        e(f"v_cmp_lt_f32 vcc, {vr(vM)}, {vr(vMX)}")
        for j in range(8):
            e(f"v_fma_f32 {vr(vS+j)}, {vr(vS+j)}, {sr(sCS)}, -{vr(vX1)}")
        e(f"v_mul_f32 {vr(vAL)}, {sr(sCS)}, {vr(vAL)}")
        for j in range(8):
            e(f"v_exp_f32 {vr(vS+j)}, {vr(vS+j)}")
        e(f"v_exp_f32 {vr(vAL)}, {vr(vAL)}")
        e(f"v_mov_b32 {vr(vM)}, {vr(vMX)}")
        for u in range(4):
            e(f"v_cvt_pk_bf16_f32 {vr(vP+u)}, {vr(vS+2*u)}, {vr(vS+2*u+1)}")
        e(f"v_pk_add_f32 {vr(vS,2)}, {vr(vS,2)}, {vr(vS+2,2)}")
        e(f"v_pk_add_f32 {vr(vS+4,2)}, {vr(vS+4,2)}, {vr(vS+6,2)}")
        e(f"v_pk_add_f32 {vr(vS,2)}, {vr(vS,2)}, {vr(vS+4,2)}")
        e(f"v_fma_f32 {vr(vLs)}, {vr(vLs)}, {vr(vAL)}, {vr(vS)}")
        e(f"v_add_f32 {vr(vLs)}, {vr(vLs)}, {vr(vS+1)}")
    def rescale():
        la = g.newlab()
        e(f"s_cbranch_vccz {la}")
        for i in range(0, 32, 2):
            e(f"v_pk_mul_f32 {vr(vO+i,2)}, {vr(vO+i,2)}, {vr(vMX,2)} op_sel:[0,1] op_sel_hi:[1,1]")
        lab(la)
    def pv(ee):
        ob = vO + 4*ee
        e(f"v_mfma_f32_16x16x32_bf16 {vr(ob,4)}, {vr(vF+4*ee,4)}, {vr(vP,4)}, {vr(ob,4)}")

    lab("L_loop")
    e("s_waitcnt vmcnt(8) lgkmcnt(0)")
    if opt.stamps and opt.probe == "first":
        e(f"s_cmp_eq_u32 {sr(sIT)}, 1")
        e(f"s_cbranch_scc0 L_q1")
        stamp(4)
        e("s_waitcnt lgkmcnt(0)")
        lab("L_q1")
    kreads()
    masks()
    fetch()
    qk()
    e(f"s_cmp_eq_u32 {sr(sREM)}, 1")
    e("s_cbranch_scc1 L_noK")
    issue("K")
    e("s_branch L_sm")
    lab("L_noK")
    e(f"s_cmp_lg_u32 {sr(sMW)}, 0")
    e("s_cbranch_scc1 L_early")
    e("s_nop 6")
    lab("L_sm")
    softmax_a()
    rescale()
    e(f"s_cmp_eq_u32 {sr(sREM)}, 1")
    e("s_cbranch_scc1 L_last")
    e("s_waitcnt vmcnt(8)")
    e("s_branch L_vok")
    lab("L_last")
    lsum()
    e(f"s_cmp_eq_u32 {sr(sMW)}, 2")
    e("s_waitcnt vmcnt(12)")
    e("s_cbranch_scc1 L_vok")
    e(f"s_cmp_eq_u32 {sr(sMW)}, 1")
    e("s_waitcnt vmcnt(9)")
    e("s_cbranch_scc1 L_vok")
    e("s_waitcnt vmcnt(0)")
    lab("L_vok")
    vreads()
    for ee in range(8):
        e(f"s_waitcnt lgkmcnt({14-2*ee})")
        pv(ee)
    e(f"s_cmp_eq_u32 {sr(sREM)}, 1")
    e("s_cbranch_scc1 L_epi")
    issue("V")
    c("a cached load of the nonce can only be stale towards 0")
    e(f"s_cmp_eq_u32 {sr(sIT)}, 4")
    e("s_cbranch_scc0 L_hook_done")
    e(f"s_load_dword {sr(sN)}, {sr(sDBG,2)}, 0x40")
    lab("L_hook_done")
    if opt.stamps and opt.probe == "first":
        e(f"s_cmp_eq_u32 {sr(sIT)}, {opt.mid+1}")
        e(f"s_cbranch_scc0 L_q2")
        stamp(5)
        e("s_waitcnt lgkmcnt(0)")
        lab("L_q2")
    e(f"s_sub_u32 {sr(sREM)}, {sr(sREM)}, 1")
    e("s_branch L_loop")

    lab("L_epi")
    stamp(2)
    vSt = vS
    vOq = vF
    vR = 12
    vWt = 20
    c("finishers only need columns 0..3")
    e(f"s_cmp_eq_u32 {sr(sROLE)}, 1")
    e(f"s_cselect_b64 exec, {sr(mSL,2)}, -1")
    e(f"ds_write_b64 {vr(vLWs)}, {vr(vM,2)} offset:{STAT}")
    e("s_nop 1")
    for ee in range(8):
        e(f"ds_write_b128 {vr(vLWa)}, {vr(vO+4*ee,4)} offset:{64*ee}")
    e("s_mov_b64 exec, -1")
    e("s_cbranch_scc1 L_fin")

    def maxchain(ms):
        e(f"v_max3_f32 {vr(vMX)}, {vr(ms[0])}, {vr(ms[1])}, {vr(ms[2])}")
        i = 3
        while i < len(ms):
            if i + 1 < len(ms):
                e(f"v_max3_f32 {vr(vMX)}, {vr(vMX)}, {vr(ms[i])}, {vr(ms[i+1])}"); i += 2
            else:
                e(f"v_max_f32 {vr(vMX)}, {vr(vMX)}, {vr(ms[i])}"); i += 1
        for i in range(len(ms)):
            e(f"v_sub_f32 {vr(vWt+i)}, {vr(ms[i])}, {vr(vMX)}")
        for i in range(len(ms)):
            e(f"v_mul_f32 {vr(vWt+i)}, {sr(sCS)}, {vr(vWt+i)}")
        for i in range(len(ms)):
            e(f"v_exp_f32 {vr(vWt+i)}, {vr(vWt+i)}")
    def axpy(dst, src, wi, first):
        wp = vWt + (wi & ~1); sl = wi & 1
        for r in range(0, 8, 2):
            if first:
                e(f"v_pk_mul_f32 {vr(dst+r,2)}, {vr(src+r,2)}, {vr(wp,2)} op_sel:[0,{sl}] op_sel_hi:[1,{sl}]")
            else:
                e(f"v_pk_fma_f32 {vr(dst+r,2)}, {vr(src+r,2)}, {vr(wp,2)}, {vr(dst+r,2)} op_sel:[0,{sl},0] op_sel_hi:[1,{sl},1]")
    def premerge(n):
        maxchain([vGs+4*k for k in range(n)])
        e(f"v_mov_b32 {vr(vGs)}, {vr(vMX)}")
        e(f"v_mul_f32 {vr(vGs+1)}, {vr(vWt)}, {vr(vGs+1)}")
        axpy(vGo, vGo, 0, True)
        for i in range(1, n):
            e(f"v_fmac_f32 {vr(vGs+1)}, {vr(vWt+i)}, {vr(vGs+4*i+1)}")
            axpy(vGo, vGo+8*i, i, False)
    def lds_reduce(nglob):
        c("thread: column vCC, quads vC and vC+16")
        e("s_waitcnt lgkmcnt(0)")
        e("s_barrier")
        if nglob:
            probe("tail", 1)
        for w in range(NW):
            e(f"ds_read_b64 {vr(vSt+2*w,2)}, {vr(vA1)} offset:{WSTR*w+STAT}")
        if nglob:
            e(f"ds_read_b64 {vr(vGs+4,2)}, {vr(vPX)} offset:{PXO+2048}")
            e(f"ds_read_b128 {vr(vGo+8,4)}, {vr(vPX)} offset:{PXO}")
            e(f"ds_read_b128 {vr(vGo+12,4)}, {vr(vPX)} offset:{PXO+1024}")
        for w in range(NW):
            for q in range(2):
                e(f"ds_read_b128 {vr(vOq+8*w+4*q,4)}, {vr(vA2)} offset:{WSTR*w+256*q}")
        e(f"s_waitcnt lgkmcnt({2*NW})")
        ms = [vSt+2*w for w in range(NW)]
        ls = [vSt+2*w+1 for w in range(NW)]
        os_ = [vOq+8*w for w in range(NW)]
        if nglob:
            ms += [vGs, vGs+4]; ls += [vGs+1, vGs+5]; os_ += [vGo, vGo+8]
        maxchain(ms)
        e("s_nop 0")
        e(f"v_mul_f32 {vr(vAL)}, {vr(vWt)}, {vr(ls[0])}")
        for i in range(1, len(ms)):
            e(f"v_fmac_f32 {vr(vAL)}, {vr(vWt+i)}, {vr(ls[i])}")
        if nglob:
            e(f"v_rcp_f32 {vr(vAL)}, {vr(vAL)}")
        order_ = list(range(NW, len(ms))) + list(range(NW))
        first = True
        for i in order_:
            if i < NW:
                e(f"s_waitcnt lgkmcnt({2*(NW-1-i)})")
            axpy(vR, os_[i], i, first)
            first = False

    c("---------- mixed helper: publish the workgroup partial, every word tagged with a byte of the nonce")
    need_nonce()
    tag_setup()
    lds_reduce(0)
    for r in range(8):
        tag(vR+r, r)
    tag(vAL, 1)
    e(f"v_xor_b32 {vr(vX0)}, {vr(vMX)}, {vr(vN)}")
    e(f"v_mov_b32 {vr(vX1)}, {vr(vN)}")
    e(f"global_store_dwordx4 {vr(vWO)}, {vr(vR,4)}, {sr(sWS,2)}{PP}") if not opt.nopub else None
    e(f"global_store_dwordx4 {vr(vWO)}, {vr(vR+4,4)}, {sr(sWS,2)} offset:256{PP}") if not opt.nopub else None
    e(f"v_cmp_eq_u32 vcc, 0, {vr(vC)}")
    e(f"s_and_saveexec_b64 {sr(sCM,2)}, vcc")
    e(f"global_store_dwordx4 {vr(vWS_)}, {vr(vMX,4)}, {sr(sWS,2)}{PP}") if not opt.nopub else None
    e(f"s_mov_b64 exec, {sr(sCM,2)}")
    e("s_branch L_done")

    c("---------- finisher")
    lab("L_fin")
    e(f"s_cmp_lg_u32 {sr(sMW)}, 0")
    e("s_cbranch_scc1 L_merge")
    e("s_waitcnt lgkmcnt(0)")
    e("s_barrier")
    e("s_branch L_done")
    lab("L_merge")
    need_nonce()
    for i in range(4):
        e(f"s_bfe_u32 {sr(sCM+8+i)}, {sr(sN)}, 0x{0x80000+8*i:x}")
    def untag(ks, acc, acc2):
        c("strip the tags (a matching tag leaves a zero low byte) and collect what is left of them")
        regs = []
        for k in ks:
            e(f"v_xor_b32 {vr(vGs+4*k+1)}, {sr(sCM+9)}, {vr(vGs+4*k+1)}")
            e(f"v_xor_b32 {vr(vGs+4*k+2)}, {vr(vGs+4*k)}, {vr(vGs+4*k+2)}")
            regs.append(vGs+4*k+1)
            for r in range(8):
                e(f"v_xor_b32 {vr(vGo+8*k+r)}, {sr(sCM+8+(r&3))}, {vr(vGo+8*k+r)}")
                regs.append(vGo+8*k+r)
        first = True
        for k in ks:
            e(f"v_msad_u8 {vr(acc2)}, {vr(vGs+4*k+2)}, {sr(sN)}, {'0' if first else vr(acc2)}")
            first = False
        e(f"v_or3_b32 {vr(acc)}, {vr(regs[0])}, {vr(regs[1])}, {vr(regs[2])}")
        i = 3
        while i < len(regs):
            if i + 1 < len(regs):
                e(f"v_or3_b32 {vr(acc)}, {vr(acc)}, {vr(regs[i])}, {vr(regs[i+1])}"); i += 2
            else:
                e(f"v_or_b32 {vr(acc)}, {vr(acc)}, {vr(regs[i])}"); i += 1
        e(f"v_and_b32 {vr(acc)}, 0xff, {vr(acc)}")
        e(f"v_or_b32 {vr(acc)}, {vr(acc)}, {vr(acc2)}")
        e(f"v_cmp_ne_u32 vcc, 0, {vr(acc)}")
    e(f"s_mov_b32 {sr(t5)}, 0")
    e(f"s_cmp_eq_u32 {sr(sMW)}, 1")
    e("s_cbranch_scc1 L_chkB")
    e("s_branch L_chkA")
    for part, n in (("A", 4), ("B", 3)):
        lab(f"L_reload{part}")
        gload(part)
        lab(f"L_chk{part}")
        e("s_waitcnt vmcnt(0)")
        untag(range(n), vX0, vX1)
        e(f"s_add_u32 {sr(t5)}, {sr(t5)}, 1")
        e(f"s_cbranch_vccz L_ready{part}")
        e(f"s_sleep {opt.rsleep}")
        e(f"s_cmp_lt_u32 {sr(t5)}, 0x40000")
        e(f"s_cbranch_scc1 L_reload{part}")
        lab(f"L_ready{part}")
        if part == "B":
            probe("tail", 0)
        premerge(n)
        if part == "A":
            e(f"ds_write_b64 {vr(vPX)}, {vr(vGs,2)} offset:{PXO+2048}")
            e(f"ds_write_b128 {vr(vPX)}, {vr(vGo,4)} offset:{PXO}")
            e(f"ds_write_b128 {vr(vPX)}, {vr(vGo+4,4)} offset:{PXO+1024}")
            e("s_waitcnt lgkmcnt(0)")
            e("s_barrier")
            e("s_branch L_done")
    lds_reduce(1)
    for r in range(0, 8, 2):
        e(f"v_pk_mul_f32 {vr(vR+r,2)}, {vr(vR+r,2)}, {vr(vMX,2)} op_sel:[0,1] op_sel_hi:[1,1]")
    for r in range(4):
        e(f"v_cvt_pk_bf16_f32 {vr(vWt+r)}, {vr(vR+2*r)}, {vr(vR+2*r+1)}")
    po = opt.pol_out
    e(f"global_store_dwordx2 {vr(vOA)}, {vr(vWt,2)}, {sr(sOUT,2)}{po}")
    e(f"global_store_dwordx2 {vr(vOA)}, {vr(vWt+2,2)}, {sr(sOUT,2)} offset:128{po}")
    e("s_branch L_done")

    if opt.spec:
        lab("L_respec")
        c("the guess was wrong: reload the first item")
        e("s_waitcnt vmcnt(0)")
        issue("K"); issue("V")
        e("s_branch L_specok")

    lab("L_early")
    c("merge waves, last item: fetch the partials under the V wait")
    e(f"s_cmp_eq_u32 {sr(sMW)}, 1")
    e("s_cbranch_scc1 L_earlyB")
    gload("A")
    e("s_branch L_sm")
    lab("L_earlyB")
    gload("B")
    e("s_branch L_sm")

    lab("L_helper")
    e(f"s_cmp_lt_u32 {sr(sIDX)}, 4")
    e("s_cbranch_scc1 L_sh_pro")
    c("======== mixed helper. v=idx-4: j=v%3, u=v/3: r=((x>>1)+j)&3 + 4*(u&1), quad=u>>1, pair=x&1")
    cpf()
    e(f"v_lshlrev_b32 {vr(vT+7)}, 2, {vr(vC)}")
    e("s_waitcnt lgkmcnt(0)")
    e(f"global_load_dword {vr(vKY)}, {vr(vT+7)}, {sr(sCTX,2)}")
    misc()
    srd_k()
    e(f"s_mov_b32 {sr(sROLE)}, 0")
    e(f"s_sub_u32 {sr(t7)}, {sr(sIDX)}, 4")
    e(f"s_mul_i32 {sr(t1)}, {sr(t7)}, 11")
    e(f"s_lshr_b32 {sr(t1)}, {sr(t1)}, 5")
    e(f"s_mul_i32 {sr(t6)}, {sr(t1)}, 3")
    e(f"s_sub_u32 {sr(t7)}, {sr(t7)}, {sr(t6)}")
    e(f"s_add_u32 {sr(sKS)}, {sr(t7)}, 4")
    e(f"s_and_b32 {sr(t0)}, {sr(sHD)}, 2")
    e(f"s_and_b32 {sr(t6)}, {sr(t1)}, 2")
    e(f"s_lshl_b32 {sr(t6)}, {sr(t6)}, 1")
    e(f"s_or_b32 {sr(sHD)}, {sr(t6)}, {sr(t0)}")
    e(f"s_and_b32 {sr(t1)}, {sr(t1)}, 1")
    e(f"s_lshl_b32 {sr(t1)}, {sr(t1)}, 2")
    e(f"s_lshr_b32 {sr(sX_)}, s2, 1")
    if opt.spread:
        e(f"s_add_u32 {sr(sX_)}, {sr(sX_)}, {sr(t7)}")
    e(f"s_and_b32 {sr(sX_)}, {sr(sX_)}, 3")
    e(f"s_add_u32 {sr(sX_)}, {sr(sX_)}, {sr(t1)}")
    e(f"s_lshl_b32 {sr(t0)}, {sr(t0)}, 3")
    e(f"s_lshr_b32 {sr(t4)}, 0x{FPACK:08x}, {sr(t0)}")
    e(f"s_bfe_u32 {sr(t5)}, {sr(t4)}, 0x80008")
    e(f"s_and_b32 {sr(t4)}, {sr(t4)}, 0xff")
    e(f"s_cmp_lt_u32 {sr(t5)}, {sr(t4)}")
    e(f"s_cselect_b32 {sr(sS0)}, 1, 0")
    e(f"s_max_u32 {sr(sEND)}, {sr(t4)}, {sr(t5)}")
    e(f"s_min_u32 {sr(t5)}, {sr(t4)}, {sr(t5)}")
    c("x = j + 3*(w + 4*lane)")
    e(f"v_lshl_add_u32 {vr(vT+5)}, {vr(vL)}, 2, {sr(sW)}")
    e(f"v_mul_u32_u24 {vr(vT+5)}, 3, {vr(vT+5)}")
    e(f"v_add_u32 {vr(vT+5)}, {sr(t7)}, {vr(vT+5)}")
    e("s_waitcnt vmcnt(0)")
    ranks()
    e(f"s_sub_u32 {sr(t1)}, 15, {sr(sX_)}")
    e(f"v_cmp_eq_u32 {sr(sCM,2)}, {sr(sX_)}, {vr(vX3)}")
    e(f"v_cmp_eq_u32 {sr(sCM+2,2)}, {sr(t1)}, {vr(vX3)}")
    e(f"s_ff1_i32_b32 {sr(t0)}, {sr(sCM)}")
    e(f"s_ff1_i32_b32 {sr(t1)}, {sr(sCM+2)}")
    e(f"v_readlane_b32 {sr(t2)}, {vr(vKY)}, {sr(t0)}")
    e(f"v_readlane_b32 {sr(t3)}, {vr(vKY)}, {sr(t1)}")
    e(f"v_readlane_b32 {sr(t4)}, {vr(vKL)}, {sr(t1)}")
    e(f"s_lshl_b32 {sr(t0)}, {sr(t0)}, 3")
    e(f"s_lshl_b32 {sr(t1)}, {sr(t1)}, 19")
    e(f"s_or_b32 {sr(t0)}, {sr(t0)}, {sr(t1)}")
    e(f"s_mul_i32 {sr(t0)}, {sr(t0)}, 0x101")
    e(f"s_mul_i32 {sr(t6)}, {sr(sHD)}, 0x01010101")
    e(f"s_add_u32 {sr(sBHP)}, {sr(t0)}, {sr(t6)}")
    e(f"s_add_u32 {sr(sBHP)}, {sr(sBHP)}, 0x01000100")
    e(f"s_lshr_b32 {sr(t2)}, {sr(t2)}, 4")
    e(f"s_lshr_b32 {sr(t3)}, {sr(t3)}, 4")
    c("segments: [long both heads][long extra][short both heads][short extra], steps descending")
    P = sCM + 8
    TOP = sCM + 12
    e(f"s_sub_i32 {sr(t0)}, {sr(t3)}, {sr(sEND)}")
    e(f"s_max_i32 {sr(t0)}, {sr(t0)}, 0")
    e(f"s_lshl_b32 {sr(P)}, {sr(t0)}, 1")
    e(f"s_min_u32 {sr(TOP)}, {sr(t3)}, {sr(sEND)}")
    e(f"s_sub_i32 {sr(t0)}, {sr(TOP)}, {sr(t5)}")
    e(f"s_max_i32 {sr(t0)}, {sr(t0)}, 0")
    e(f"s_add_u32 {sr(P+1)}, {sr(P)}, {sr(t0)}")
    e(f"s_sub_i32 {sr(t0)}, {sr(t2)}, {sr(sEND)}")
    e(f"s_max_i32 {sr(t0)}, {sr(t0)}, 0")
    e(f"s_lshl_b32 {sr(t0)}, {sr(t0)}, 1")
    e(f"s_add_u32 {sr(P+2)}, {sr(P+1)}, {sr(t0)}")
    e(f"s_mov_b32 {sr(TOP+1)}, {sr(t2)}")
    e(f"s_min_u32 {sr(TOP+2)}, {sr(t2)}, {sr(sEND)}")
    e(f"s_sub_i32 {sr(t0)}, {sr(TOP+2)}, {sr(t5)}")
    e(f"s_max_i32 {sr(t0)}, {sr(t0)}, 0")
    e(f"s_add_u32 {sr(P+3)}, {sr(P+2)}, {sr(t0)}")
    for i in range(3):
        e(f"v_cmp_ge_u32 {sr(sCM+2*i,2)}, {vr(vT+5)}, {sr(P+i)}")
    e(f"v_cmp_gt_u32 {sr(sCM+6,2)}, {sr(P+3)}, {vr(vT+5)}")
    e(f"v_mov_b32 {vr(vX0)}, {sr(t3)}")
    e(f"v_mov_b32 {vr(vX2)}, 0")
    for i in range(3):
        e(f"v_mov_b32 {vr(vT+i)}, {sr(P+i)}")
        e(f"v_mov_b32 {vr(vT+11+i)}, {sr(TOP+i)}")
    for i in range(3):
        e(f"v_cndmask_b32 {vr(vX2)}, {vr(vX2)}, {vr(vT+i)}, {sr(sCM+2*i,2)}")
        e(f"v_cndmask_b32 {vr(vX0)}, {vr(vX0)}, {vr(vT+11+i)}, {sr(sCM+2*i,2)}")
    e(f"s_xor_b64 vcc, {sr(sCM,2)}, {sr(sCM+2,2)}")
    e(f"s_xor_b64 vcc, vcc, {sr(sCM+4,2)}")
    e(f"v_sub_u32 {vr(vX2)}, {vr(vT+5)}, {vr(vX2)}")
    e(f"v_lshrrev_b32 {vr(vT)}, 1, {vr(vX2)}")
    e(f"v_and_b32 {vr(vX1)}, 1, {vr(vX2)}")
    e(f"v_mov_b32 {vr(vT+1)}, {sr(sS0)}")
    e(f"v_cndmask_b32 {vr(vT)}, {vr(vT)}, {vr(vX2)}, vcc")
    e(f"v_cndmask_b32 {vr(vX1)}, {vr(vX1)}, {vr(vT+1)}, vcc")
    e(f"v_sub_u32 {vr(vX0)}, {vr(vX0)}, {vr(vT)}")
    e(f"v_add_u32 {vr(vX0)}, -1, {vr(vX0)}")
    e(f"v_cndmask_b32 {vr(vT+1)}, 2, 0, {sr(sCM+2,2)}")
    e(f"v_add_u32 {vr(vX1)}, {vr(vX1)}, {vr(vT+1)}")
    e(f"v_lshlrev_b32 {vr(vX3)}, 3, {vr(vX1)}")
    e(f"v_bfe_u32 {vr(vX3)}, {sr(sBHP)}, {vr(vX3)}, 8")
    list_addr_bh()
    e("s_nop 0")
    predict()
    e(f"v_readfirstlane_b32 {sr(t2)}, {vr(vMETA)}")
    e(f"s_and_b32 {sr(t2)}, {sr(t2)}, 0xffff")
    limits(t4, t2)
    stamp(1)
    issue("K")
    c("a wave without items runs one item with no active column")
    e(f"s_bcnt1_i32_b64 {sr(sREM)}, {sr(sCM+6,2)}")
    e(f"s_cselect_b64 {sr(mIT,2)}, {sr(mSL,2)}, 0")
    e(f"s_max_u32 {sr(sREM)}, {sr(sREM)}, 1")
    e("s_branch L_go")

    def sh_issue():
        la = g.newlab()
        e(f"s_and_b32 {sr(t1)}, {sr(sZI)}, 63")
        e(f"v_readlane_b32 {sr(t0)}, {vr(vE)}, {sr(t1)}")
        e(f"s_mov_b32 m0, {sr(sSL)}")
        e(f"s_add_u32 {sr(sSL)}, {sr(sSL)}, 0x4000")
        e(f"s_and_b32 {sr(sSL)}, {sr(sSL)}, 0xffff")
        e(f"s_lshl_b32 {sr(t0)}, {sr(t0)}, 15")
        e(f"s_or_b32 {sr(sB0)}, {sr(t0)}, {sr(sH8)}")
        dma4(vKO, srdK, sB0)
        e(f"s_add_u32 {sr(sZI)}, {sr(sZI)}, {sr(sSTR)}")
        e(f"s_and_b32 {sr(t1)}, {sr(sZI)}, 63")
        e(f"s_cbranch_scc1 {la}")
        for q in range(3):
            e(f"v_mov_b32 {vr(vE+q)}, {vr(vE+q+1)}")
        lab(la)
    def sh_check():
        e(f"s_bitcmp1_b32 {sr(sW)}, 0")
        e(f"s_cselect_b64 vcc, -1, 0")
        for q in range(4):
            e(f"v_cndmask_b32 {vr(vE+q)}, {vr(vU+2*q)}, {vr(vU+2*q+1)}, vcc")
        for i in range(8):
            e(f"v_xor_b32_dpp {vr(vU+8+i)}, {vr(vU+i)}, {vr(vU+i)} row_newbcast:0 row_mask:0xf bank_mask:0xf")
        e(f"v_or3_b32 {vr(vU+8)}, {vr(vU+8)}, {vr(vU+9)}, {vr(vU+10)}")
        e(f"v_or3_b32 {vr(vU+11)}, {vr(vU+11)}, {vr(vU+12)}, {vr(vU+13)}")
        e(f"v_or3_b32 {vr(vU+8)}, {vr(vU+8)}, {vr(vU+14)}, {vr(vU+15)}")
        e(f"v_or_b32 {vr(vU+8)}, {vr(vU+8)}, {vr(vU+11)}")
        e(f"v_cmp_ne_u32 vcc, 0, {vr(vU+8)}")
        e(f"s_cmp_eq_u64 vcc, 0")
        e(f"s_cselect_b32 {sr(sSTR)}, 16, 1")
    lab("L_sh_pro")
    c("======== shared-prefix workgroup (h, part=idx): steps 16*idx..+15, wave w owns rows 4w..4w+3")
    c("guess: all rows share block = column (checked below). waves 0,1 load K, waves 2,3 load V")
    e(f"s_lshl_b32 {sr(sS0)}, {sr(sIDX)}, 4")
    e(f"s_and_b32 {sr(t1)}, {sr(sW)}, 1")
    e(f"s_lshl1_add_u32 {sr(t1)}, {sr(sS0)}, {sr(t1)}")
    e(f"v_lshl_add_u32 {vr(vE)}, {vr(vG)}, 3, {sr(t1)}")
    e(f"s_lshl_b32 {sr(sH8)}, {sr(sHD)}, 8")
    e(f"s_mov_b32 {sr(sZI)}, 0")
    e(f"s_mov_b32 {sr(sSTR)}, 16")
    e(f"s_lshl_b32 {sr(sSL)}, {sr(sW)}, 12")
    e(f"s_cmp_lt_u32 {sr(sW)}, 2")
    e("s_waitcnt lgkmcnt(0)")
    e("s_cbranch_scc1 L_sh_k")
    setup_v(vKO)
    e(f"s_mov_b64 {sr(sK,2)}, {sr(sV,2)}")
    lab("L_sh_k")
    srd_k()
    stamp(1)
    sh_issue()
    misc()
    e(f"s_mov_b32 {sr(sROLE)}, 2")
    e(f"s_mov_b32 {sr(sKS)}, {sr(sIDX)}")
    e(f"s_lshl_b32 {sr(t1)}, {sr(sW)}, 5")
    e(f"s_or_b32 {sr(t1)}, {sr(t1)}, {sr(sHD)}")
    e(f"s_mul_i32 {sr(sBHP)}, {sr(t1)}, 0x01010101")
    e(f"s_add_u32 {sr(sBHP)}, {sr(sBHP)}, 0x18100800")
    c("entries: lane (g,row=c) loads 4 steps: row*1024 + (s0+4g)*8")
    e(f"s_lshl_b32 {sr(t2)}, {sr(sS0)}, 3")
    e(f"v_lshl_add_u32 {vr(vT+3)}, {vr(vC)}, 10, {sr(t2)}")
    e(f"v_lshl_add_u32 {vr(vT+3)}, {vr(vG)}, 5, {vr(vT+3)}")
    e(f"v_mov_b32 {vr(vKL)}, {WNON}")
    e(f"s_or_b32 {sr(t7)}, s2, {sr(sW)}")
    e("s_cbranch_scc1 L_sh_noprev")
    e(f"global_load_dword {vr(vN)}, {vr(vKL)}, {sr(sWS,2)} sc1")
    lab("L_sh_noprev")
    e(f"global_load_dwordx4 {vr(vU,4)}, {vr(vT+3)}, {sr(sBT,2)}")
    e(f"global_load_dwordx4 {vr(vU+4,4)}, {vr(vT+3)}, {sr(sBT,2)} offset:16")
    col_addr()
    col_load()
    sh_issue()
    sh_issue()
    e(f"s_mov_b32 {sr(sZC)}, 0")
    e("s_branch L_init")
    lab("L_sh_verify")
    e(f"s_or_b32 {sr(t7)}, s2, {sr(sW)}")
    e("s_cbranch_scc1 L_sh_nononce")
    c("workgroup 0: nonce = what the previous launch left, every byte stepped through 1..255")
    e(f"v_readfirstlane_b32 {sr(t0)}, {vr(vN)}")
    e(f"s_mov_b32 {sr(t2)}, 0")
    for i in range(4):
        e(f"s_bfe_u32 {sr(t1)}, {sr(t0)}, 0x{0x80000+8*i:x}")
        e(f"s_cmp_eq_u32 {sr(t1)}, 0xff")
        e(f"s_cselect_b32 {sr(t1)}, 0, {sr(t1)}")
        e(f"s_add_u32 {sr(t1)}, {sr(t1)}, 1")
        if i:
            e(f"s_lshl_b32 {sr(t1)}, {sr(t1)}, {8*i}")
        e(f"s_or_b32 {sr(t2)}, {sr(t2)}, {sr(t1)}")
    e(f"v_mov_b32 {vr(vN)}, {sr(t2)}")
    e(f"v_mov_b32 {vr(vX0)}, 64")
    e("s_mov_b64 exec, 1")
    e(f"global_store_dword {vr(vKL)}, {vr(vN)}, {sr(sWS,2)} sc1")
    e("s_waitcnt vmcnt(0)")
    e(f"global_store_dword {vr(vX0)}, {vr(vN)}, {sr(sDBG,2)} sc1")
    e("s_mov_b64 exec, -1")
    lab("L_sh_nononce")
    e(f"v_mov_b32 {vr(vKY)}, {vr(vE)}")
    sh_check()
    e(f"v_cmp_ne_u32 {sr(sCM,2)}, {vr(vKY)}, {vr(vE)}")
    e(f"s_or_b64 vcc, vcc, {sr(sCM,2)}")
    e("s_cbranch_scc0 L_sh_w")
    e("s_waitcnt vmcnt(0)")
    e(f"s_mov_b32 {sr(sZI)}, 0")
    e(f"s_lshl_b32 {sr(sSL)}, {sr(sW)}, 12")
    e(f"s_mov_b32 {sr(t7)}, 3")
    lab("L_sh_redo")
    sh_issue()
    e(f"s_sub_u32 {sr(t7)}, {sr(t7)}, 1")
    e(f"s_cmp_lg_u32 {sr(t7)}, 0")
    e("s_cbranch_scc1 L_sh_redo")

    lab("L_sh_loop")
    e(f"s_lshl_b32 {sr(t0)}, {sr(sSTR)}, 1")
    e(f"s_add_u32 {sr(t0)}, {sr(t0)}, {sr(sZC)}")
    e(f"s_cmp_lt_u32 {sr(t0)}, 256")
    e("s_waitcnt vmcnt(8)")
    e("s_cbranch_scc1 L_sh_w")
    e(f"s_cmp_eq_u32 {sr(t0)}, 256")
    e("s_waitcnt vmcnt(4)")
    e("s_cbranch_scc1 L_sh_w")
    e("s_waitcnt vmcnt(0)")
    lab("L_sh_w")
    e("s_barrier")
    e(f"s_cmp_lt_u32 {sr(sZI)}, 256")
    e("s_cbranch_scc0 L_sh_noiss")
    sh_issue()
    lab("L_sh_noiss")
    e(f"s_cmp_eq_u32 {sr(sIT)}, 8")
    e("s_cbranch_scc0 L_sh_nosig")
    e(f"s_load_dword {sr(sN)}, {sr(sDBG,2)}, 0x40")
    lab("L_sh_nosig")
    c("step = s0 + 4*((z>>4)&3) + (z>>6), row = z&15")
    e(f"s_bfe_u32 {sr(t0)}, {sr(sZC)}, 0x20004")
    e(f"s_lshl_b32 {sr(t0)}, {sr(t0)}, 2")
    e(f"s_lshr_b32 {sr(t1)}, {sr(sZC)}, 6")
    e(f"s_add_u32 {sr(t0)}, {sr(t0)}, {sr(t1)}")
    e(f"s_add_u32 {sr(t0)}, {sr(t0)}, {sr(sS0)}")
    e(f"s_lshl_b32 {sr(sPOS)}, {sr(t0)}, 5")
    e(f"s_mov_b64 {sr(sMK,2)}, -1")
    e(f"s_cmp_eq_u32 {sr(sSTR)}, 16")
    e("s_cbranch_scc1 L_sh_go")
    e(f"s_and_b32 {sr(t0)}, {sr(sZC)}, 3")
    e(f"s_lshl_b32 {sr(t0)}, {sr(t0)}, 2")
    e(f"s_lshl_b64 {sr(sMK,2)}, {sr(mSL,2)}, {sr(t0)}")
    e(f"s_bfe_u32 {sr(t0)}, {sr(sZC)}, 0x20002")
    e(f"s_cmp_eq_u32 {sr(t0)}, {sr(sW)}")
    e("s_cbranch_scc0 L_sh_next")
    lab("L_sh_go")
    probe("cons", 0)
    kreads()
    masks()
    qk()
    e("s_nop 3")
    vreads()
    softmax_a()
    rescale()
    e("s_waitcnt lgkmcnt(0)")
    for ee in range(8):
        pv(ee)
    probe("cons", 1)
    lab("L_sh_next")
    c("advance the fragment addresses to the next ring slot")
    e(f"s_add_u32 {sr(sIT)}, {sr(sIT)}, 1")
    e(f"s_bitcmp1_b32 {sr(sIT)}, 0")
    e(f"s_cselect_b32 {sr(t0)}, 1, 3")
    e(f"s_lshl_b32 {sr(t0)}, {sr(t0)}, 14")
    for i in range(12):
        e(f"v_xor_b32 {vr(vKA+i)}, {sr(t0)}, {vr(vKA+i)}")
    e(f"s_add_u32 {sr(sZC)}, {sr(sZC)}, {sr(sSTR)}")
    e(f"s_cmp_lt_u32 {sr(sZC)}, 256")
    e("s_cbranch_scc1 L_sh_loop")
    stamp(2)
    c("publish this wave's 16 columns (transpose through its own LDS region)")
    lsum()
    part_addr(vC, None, vWS_, vA1)
    e("s_waitcnt lgkmcnt(0)")
    need_nonce()
    tag_setup()
    for i in range(32):
        tag(vO+i, i)
    tag(vLs, 1)
    e(f"v_xor_b32 {vr(vM+2)}, {vr(vM)}, {vr(vN)}")
    e(f"v_mov_b32 {vr(vM+3)}, {vr(vN)}")
    e("s_barrier")
    for ee in range(8):
        e(f"ds_write_b128 {vr(vLWa)}, {vr(vO+4*ee,4)} offset:{64*ee}")
    e(f"v_mul_u32_u24 {vr(vA2)}, {CSTR}, {vr(vG)}")
    e(f"v_lshl_add_u32 {vr(vA2)}, {vr(vC)}, 4, {vr(vA2)}")
    e(f"v_add_u32 {vr(vA2)}, {sr(sLB)}, {vr(vA2)}")
    e(f"v_lshlrev_b32 {vr(vCC)}, 12, {vr(vG)}")
    e(f"v_lshl_add_u32 {vr(vCC)}, {vr(vC)}, 4, {vr(vCC)}")
    e(f"s_lshl_b32 {sr(t6)}, {sr(sKS)}, 9")
    e("s_waitcnt lgkmcnt(0)")
    for i in range(4):
        for q in range(2):
            e(f"ds_read_b128 {vr(vOq+8*i+4*q,4)}, {vr(vA2)} offset:{4*CSTR*i+256*q}")
    e("s_mov_b64 exec, 0xffff")
    e(f"global_store_dwordx4 {vr(vWS_)}, {vr(vM,4)}, {sr(sWS,2)}{PP}") if not opt.nopub else None
    e("s_mov_b64 exec, -1")
    for i in range(4):
        slot_base(i, vSt+i, vCC)
        e(f"s_waitcnt lgkmcnt({6-2*i})")
        e(f"global_store_dwordx4 {vr(vSt+i)}, {vr(vOq+8*i,4)}, {sr(sWS,2)}{PP}") if not opt.nopub else None
        e(f"global_store_dwordx4 {vr(vSt+i)}, {vr(vOq+8*i+4,4)}, {sr(sWS,2)} offset:256{PP}") if not opt.nopub else None

    lab("L_done")
    if opt.stamps:
        e("s_waitcnt vmcnt(0)")
        stamp(3)
        e(f"s_getreg_b32 {sr(t5)}, hwreg(HW_REG_XCC_ID)")
        e(f"s_getreg_b32 {sr(t6)}, hwreg(HW_REG_HW_ID)")
        e("s_waitcnt lgkmcnt(0)")
        e(f"s_lshl_b32 {sr(t3)}, s2, 2")
        e(f"s_add_u32 {sr(t3)}, {sr(t3)}, {sr(sW)}")
        e(f"s_lshl_b32 {sr(t3)}, {sr(t3)}, 6")
        e(f"s_add_u32 {sr(t3)}, {sr(t3)}, {STAMPS}")
        e(f"s_sub_u32 {sr(sIT)}, {sr(sIT)}, 1")
        e(f"v_mov_b32 v4, {sr(t3)}")
        for i in range(8):
            e(f"v_mov_b32 v{8+i}, {sr(sST+i)}")
        e(f"v_mov_b32 v16, {sr(t5)}")
        e(f"v_mov_b32 v17, {sr(t6)}")
        for i in range(4):
            e(f"v_mov_b32 v{18+i}, {sr(sST+8+i)}")
        e(f"v_mov_b32 v22, {sr(sBHP)}")
        e(f"v_mov_b32 v23, {sr(sIT)}")
        e("s_mov_b64 exec, 1")
        e(f"global_store_dwordx4 v4, v[8:11], {sr(sWS,2)}")
        e(f"global_store_dwordx4 v4, v[12:15], {sr(sWS,2)} offset:16")
        e(f"global_store_dwordx4 v4, v[16:19], {sr(sWS,2)} offset:32")
        e(f"global_store_dwordx4 v4, v[20:23], {sr(sWS,2)} offset:48")
    if opt.amp:
        p = [int(x) for x in opt.amp.split(",")]
        a, b = p[0], p[1]
        if len(p) > 2:
            e(f"s_cmp_eq_u32 s2, {p[2]}")
            e("s_cbranch_scc0 L_end")
            e(f"s_cmp_eq_u32 {sr(sW)}, {p[3]}")
            e("s_cbranch_scc0 L_end")
        e(f"s_sub_u32 {sr(t0)}, {sr(sST+2*b)}, {sr(sST+2*a)}")
        e(f"s_lshl_b32 {sr(t0)}, {sr(t0)}, {5 if len(p)>2 else 3}")
        e(f"s_min_u32 {sr(t0)}, {sr(t0)}, 100000")
        lab("L_amp")
        e(f"s_memrealtime {sr(t2,2)}")
        e("s_waitcnt lgkmcnt(0)")
        e(f"s_sub_u32 {sr(t1)}, {sr(t2)}, {sr(sST+6)}")
        e(f"s_cmp_lt_u32 {sr(t1)}, {sr(t0)}")
        e("s_cbranch_scc1 L_amp")
    if opt.amp2:
        b, lo, hi, sh = [int(x) for x in opt.amp2.split(",")]
        neg = b >= 100
        b %= 100
        e(f"s_cmp_lt_u32 s2, {lo}")
        e("s_cbranch_scc1 L_end")
        e(f"s_cmp_ge_u32 s2, {hi}")
        e("s_cbranch_scc1 L_end")
        e("s_mov_b64 exec, -1")
        e(f"v_mov_b32 v4, 0x2f0000")
        e(f"global_load_dword v5, v4, {sr(sWS,2)} sc1")
        e("s_waitcnt vmcnt(0)")
        e(f"v_readfirstlane_b32 {sr(t4)}, v5")
        if neg:
            e(f"s_sub_u32 {sr(t0)}, {sr(t4)}, {sr(sST+2*b)}")
        else:
            e(f"s_sub_u32 {sr(t0)}, {sr(sST+2*b)}, {sr(t4)}")
        e(f"s_add_u32 {sr(t0)}, {sr(t0)}, 200")
        e(f"s_max_i32 {sr(t0)}, {sr(t0)}, 0")
        e(f"s_lshl_b32 {sr(t0)}, {sr(t0)}, {sh}")
        e(f"s_min_u32 {sr(t0)}, {sr(t0)}, 100000")
        lab("L_amp2")
        e(f"s_memrealtime {sr(t2,2)}")
        e("s_waitcnt lgkmcnt(0)")
        e(f"s_sub_u32 {sr(t1)}, {sr(t2)}, {sr(t4)}")
        e(f"s_cmp_lt_u32 {sr(t1)}, {sr(t0)}")
        e("s_cbranch_scc1 L_amp2")
    if opt.amp3:
        a, b, st = [int(x) for x in opt.amp3.split(",")]
        e(f"s_cmp_eq_u32 {sr(sW)}, 0")
        e("s_cbranch_scc0 L_end")
        e("s_mov_b64 exec, -1")
        e(f"v_mov_b32 v4, 0x2f0100")
        e(f"s_cmp_eq_u32 s2, {b}")
        e("s_cbranch_scc0 L_a3a")
        e(f"v_mov_b32 v5, {sr(sST+2*st)}")
        e(f"global_store_dword v4, v5, {sr(sWS,2)} sc1")
        lab("L_a3a")
        e(f"s_cmp_eq_u32 s2, {a}")
        e("s_cbranch_scc0 L_end")
        lab("L_a3b")
        e(f"s_memrealtime {sr(t2,2)}")
        e("s_waitcnt lgkmcnt(0)")
        e(f"s_sub_u32 {sr(t1)}, {sr(t2)}, {sr(sST)}")
        e(f"s_cmp_lt_u32 {sr(t1)}, 2800")
        e("s_cbranch_scc1 L_a3b")
        e(f"global_load_dword v5, v4, {sr(sWS,2)} sc1")
        e("s_waitcnt vmcnt(0)")
        e(f"v_readfirstlane_b32 {sr(t4)}, v5")
        e(f"s_sub_u32 {sr(t0)}, {sr(sST+2*st)}, {sr(t4)}")
        e(f"s_add_u32 {sr(t0)}, {sr(t0)}, 400")
        e(f"s_max_i32 {sr(t0)}, {sr(t0)}, 0")
        e(f"s_lshl_b32 {sr(t0)}, {sr(t0)}, 4")
        e(f"s_add_u32 {sr(t0)}, {sr(t0)}, 3000")
        e(f"s_min_u32 {sr(t0)}, {sr(t0)}, 100000")
        lab("L_a3c")
        e(f"s_memrealtime {sr(t2,2)}")
        e("s_waitcnt lgkmcnt(0)")
        e(f"s_sub_u32 {sr(t1)}, {sr(t2)}, {sr(sST)}")
        e(f"s_cmp_lt_u32 {sr(t1)}, {sr(t0)}")
        e("s_cbranch_scc1 L_a3c")
    lab("L_end")
    e("s_endpgm")

    out = HEADER + DOC
    out += f"; @launch grid=(256,1,1) block=({NW*64},1,1) lds={LDS}\n"
    out += '.amdgcn_target "amdgcn-amd-amdhsa--gfx950"\n.text\n'
    out += f".globl {NAME}_kernel\n.p2align 8\n.type {NAME}_kernel,@function\n{NAME}_kernel:\n"
    out += "\n".join(g.lines) + "\n"
    out += f""".section .rodata,"a"
.p2align 6
.amdhsa_kernel {NAME}_kernel
  .amdhsa_next_free_vgpr {NV}
  .amdhsa_next_free_sgpr 102
  .amdhsa_accum_offset {NV}
  .amdhsa_group_segment_fixed_size 0
  .amdhsa_kernarg_size 64
  .amdhsa_user_sgpr_count 2
  .amdhsa_user_sgpr_kernarg_segment_ptr 1
  .amdhsa_system_sgpr_workgroup_id_x 1
.end_amdhsa_kernel
"""
    return out

if __name__ == "__main__":
    ap = argparse.ArgumentParser()
    ap.add_argument("-o", default=f"cdna_kernels/{NAME}.s")
    ap.add_argument("--F", default="36,26,31,30")
    ap.add_argument("--spec", type=int, default=1)
    ap.add_argument("--spread", type=int, default=1)
    ap.add_argument("--rsleep", type=int, default=1)
    ap.add_argument("--lds", type=int, default=0)
    ap.add_argument("--pol", default="nt")
    ap.add_argument("--pol_out", default="")
    ap.add_argument("--stamps", action="store_true")
    ap.add_argument("--nobar", action="store_true")
    ap.add_argument("--amp", default="")
    ap.add_argument("--pf", type=int, default=0)
    ap.add_argument("--tlb", type=int, default=0)
    ap.add_argument("--tlbsh", type=int, default=21)
    ap.add_argument("--nopub", type=int, default=0)
    ap.add_argument("--pol_pub", default="sc1")
    ap.add_argument("--pol_get", default="sc1")
    ap.add_argument("--noclear", type=int, default=0)
    ap.add_argument("--nosig", type=int, default=0)
    ap.add_argument("--dummy", type=int, default=0)
    ap.add_argument("--mw", type=int, default=0)
    ap.add_argument("--amp3", default="")
    ap.add_argument("--cpf", type=int, default=0)
    ap.add_argument("--amp2", default="")
    ap.add_argument("--mid", type=int, default=1)
    ap.add_argument("--probe", default="first")
    ap.add_argument("--clk", default="s_memrealtime")
    opt = ap.parse_args()
    for k in ("pol", "pol_out", "pol_pub", "pol_get"):
        v = getattr(opt, k)
        setattr(opt, k, (" " + v.replace("+", " ")) if v else "")
    opt.code_bytes = 4096
    txt = build(opt)
    if opt.cpf:
        import subprocess, re, tempfile, os
        d = tempfile.mkdtemp()
        open(d + "/a.s", "w").write(txt)
        subprocess.check_call(["clang", "-target", "amdgcn-amd-amdhsa", "-mcpu=gfx950", "-c", d + "/a.s", "-o", d + "/a.o"])
        o = subprocess.check_output(["llvm-objdump", "-d", "--mcpu=gfx950", d + "/a.o"]).decode()
        end = int(re.search(r"^([0-9a-f]+) <L_end>:", o, re.M).group(1), 16)
        opt.code_bytes = end - 32
        txt = build(opt)
    open(opt.o, "w").write(txt)
```

```python
import sys, struct, argparse

NAME = "standalone__paged_block_table_kv_radixattention__sampling"

HEADER = """; Kernarg layout for this problem (64 bytes, ptrs only, base s[0:1]):
"""

DOC = """; Paged GQA decode attention, one launch, 256 workgroups x 4 waves.
;   ids   0..31  : first 128 table columns, all 16 rows at once when the rows name the same blocks (checked; otherwise row by row)
;   ids 128..255 : finishers, one per (row, kv head): first steps of columns 128.., then merge all partials and write the output
; The first loads of a wave use a guessed block id that is checked against the table (reloaded on a mismatch).
"""

def f2u(x):
    return struct.unpack("<I", struct.pack("<f", x))[0]

class Gen:
    def __init__(self, opt):
        self.o = opt
        self.lines = []
        self.nlab = 0
    def e(self, s):
        self.lines.append("    " + s)
    def c(self, s):
        self.lines.append("    ; " + s)
    def lab(self, name):
        self.lines.append(name + ":")
    def newlab(self, p="L"):
        self.nlab += 1
        return f"{p}_{self.nlab}"

def vr(b, n=1):
    return f"v{b}" if n == 1 else f"v[{b}:{b+n-1}]"
def sr(b, n=1):
    return f"s{b}" if n == 1 else f"s[{b}:{b+n-1}]"

def build(opt):
    g = Gen(opt)
    e, c, lab = g.e, g.c, g.lab
    NW = 4
    Fc = [int(x) for x in opt.F.split(",")]
    FPACK = sum((64 + Fc[i]) << (8*i) for i in range(4))
    KVB = 2176 * 32768
    CSTR = 528
    WSTR = 16384
    STAT = 16 * CSTR
    LDS = max(65536, opt.lds)
    pol = opt.pol
    PP = opt.pol_pub
    PG = opt.pol_get
    WSTAT = 0x200000
    STAMPS = 0x300000
    NG = 7
    NL = 21
    WNON = 3584
    sQ, sK, sV, sBT, sCTX, sOUT, sDBG, sWS = 4, 6, 8, 10, 12, 14, 16, 18
    srdK, srdV = 20, 24
    sBHP, sKS, sX_, sIDX = 28, 29, 30, 31
    sW, sHD, sS0, sSTR, sROLE = 32, 33, 34, 35, 36
    sIT, sREM, sLB = 37, 38, 39
    sCS, sONCE, sZI, sZC = 40, 41, 42, 43
    mSL = 44
    sB0, sB1, sPOS, sH8 = 46, 47, 48, 49
    sMK = 50
    sSL, sEND = 52, 53
    mIT = 54
    sFAST = 56
    sMW = 62
    sPHP = sBHP
    sR0, sR1, sN = 58, 59, 63
    sCM = 66
    t0, t1, t2, t3, t4, t5, t6, t7 = 82, 83, 84, 85, 86, 87, 88, 89
    sST = 90
    vL, vG, vC = 1, 2, 3
    vKO, vVO = 4, 8
    vQ = 12
    vO = 28
    vM, vLs, vCG = 60, 61, 62
    vMETA = 63
    vTB = 64
    vFM, vFI = 66, 67
    vS = 68
    vP = 76
    vF = 80
    vT = vF
    vLIM, vFILL, vMX, vAL, vX0, vX1, vX2, vX3 = 112, 113, 114, 115, 116, 117, 118, 119
    vKA, vVA = 120, 124
    vLE = 132
    vE = 134
    vKY, vKL = 138, 139
    vU = 140
    vGs, vGo = 140, 168
    vWO, vWS_, vOA, vLWa, vLWs, vA1, vA2, vCC = 224, 225, 226, 227, 228, 229, 230, 231
    vN = 133
    vPX = 223
    PXO = WSTR + 12288
    NV = 232

    def stamp(i):
        if opt.stamps:
            e(f"s_memrealtime {sr(sST+2*i,2)}")
    def probe(name, which):
        if opt.stamps and opt.probe == name:
            e(f"{opt.clk} {sr(sST+8+2*which,2)}")
            e("s_waitcnt lgkmcnt(0)")

    def list_addr_bh():
        c("vX0=step vX1=slot vX3=b*8+h -> vX3 table offset, vMETA")
        e(f"v_med3_i32 {vr(vX0)}, {vr(vX0)}, 0, {vr(vT+6)}")
        e(f"v_lshlrev_b32 {vr(vMETA)}, 5, {vr(vX0)}")
        e(f"v_lshl_add_u32 {vr(vMETA)}, {vr(vX1)}, 18, {vr(vMETA)}")
        e(f"v_lshl_add_u32 {vr(vMETA)}, {vr(vX3)}, 29, {vr(vMETA)}")
        e(f"v_lshrrev_b32 {vr(vX3)}, 3, {vr(vX3)}")
        e(f"v_lshlrev_b32 {vr(vX3)}, 10, {vr(vX3)}")
        e(f"v_lshl_add_u32 {vr(vX3)}, {vr(vX0)}, 3, {vr(vX3)}")
    def list_load():
        e(f"global_load_dwordx2 {vr(vTB,2)}, {vr(vX3)}, {sr(sBT,2)}")
    def predict():
        c("guess for the first item (checked against the table below): block = 128*row + column")
        e(f"v_readfirstlane_b32 {sr(t0)}, {vr(vX3)}")
        e(f"v_readfirstlane_b32 {sr(t2)}, {vr(vMETA)}")
        e(f"s_lshr_b32 {sr(t1)}, {sr(t0)}, 10")
        e(f"s_lshl_b32 {sr(t1)}, {sr(t1)}, 22")
        e(f"s_and_b32 {sr(t0)}, {sr(t0)}, 0x3ff")
        e(f"s_lshl_b32 {sr(t0)}, {sr(t0)}, 13")
        e(f"s_add_u32 {sr(t0)}, {sr(t0)}, {sr(t1)}")
        e(f"s_lshr_b32 {sr(t2)}, {sr(t2)}, 29")
        e(f"s_lshl_b32 {sr(t2)}, {sr(t2)}, 8")
        e(f"s_or_b32 {sr(sB0)}, {sr(t0)}, {sr(t2)}")
        e(f"s_add_u32 {sr(sB1)}, {sr(sB0)}, 0x8000")
    vQO, vCO = vT + 8, vT + 9
    def col_addr():
        c("per-lane column: Q offset and ctx offset")
        e(f"v_lshlrev_b32 {vr(vCO)}, 1, {vr(vC)}")
        e(f"v_and_b32 {vr(vCO)}, 24, {vr(vCO)}")
        e(f"v_bfe_u32 {vr(vCO)}, {sr(sBHP)}, {vr(vCO)}, 8")
        e(f"v_lshl_add_u32 {vr(vQO)}, {vr(vCO)}, 10, {vr(vT+10)}")
        e(f"v_lshrrev_b32 {vr(vCO)}, 1, {vr(vCO)}")
        e(f"v_and_b32 {vr(vCO)}, 60, {vr(vCO)}")
    def col_load():
        e(f"global_load_dword {vr(vCG)}, {vr(vCO)}, {sr(sCTX,2)}")
        for m in range(4):
            e(f"global_load_dwordx4 {vr(vQ+4*m,4)}, {vr(vQO)}, {sr(sQ,2)} offset:{64*m}")
    def part_addr(vcol, vo, vs, tmp):
        c("partial addresses for column vcol: row R=(b*8+h)*4+(col&3); O: R*4096 + k*512 ; stats: R*128 + k*16")
        e(f"v_lshlrev_b32 {vr(tmp)}, 1, {vr(vcol)}")
        e(f"v_and_b32 {vr(tmp)}, 24, {vr(tmp)}")
        e(f"v_bfe_u32 {vr(tmp)}, {sr(sPHP)}, {vr(tmp)}, 8")
        e(f"v_and_b32 {vr(vs)}, 3, {vr(vcol)}")
        e(f"v_lshl_add_u32 {vr(tmp)}, {vr(tmp)}, 2, {vr(vs)}")
        if vo is not None:
            e(f"s_lshl_b32 {sr(t3)}, {sr(sKS)}, 9")
            e(f"v_lshl_add_u32 {vr(vo)}, {vr(tmp)}, 12, {sr(t3)}")
        e(f"s_lshl_b32 {sr(t3)}, {sr(sKS)}, 4")
        e(f"s_add_u32 {sr(t3)}, {sr(t3)}, {WSTAT}")
        e(f"v_lshl_add_u32 {vr(vs)}, {vr(tmp)}, 7, {sr(t3)}")
    def slot_base(i, vdst, vlane):
        e(f"s_bfe_u32 {sr(t3)}, {sr(sPHP)}, 0x{0x80000+8*i:x}")
        e(f"s_lshl_b32 {sr(t3)}, {sr(t3)}, 14")
        e(f"s_add_u32 {sr(t3)}, {sr(t3)}, {sr(t6)}")
        e(f"v_add_u32 {vr(vdst)}, {sr(t3)}, {vr(vlane)}")
    def need_nonce():
        c("the nonce was normally fetched in the loop")
        la = g.newlab(); lb = g.newlab()
        e(f"s_mov_b32 {sr(t5)}, 0")
        e(f"v_mov_b32 {vr(vX0)}, 64")
        lab(la)
        e(f"s_cmp_lg_u32 {sr(sN)}, 0")
        e(f"s_cbranch_scc1 {lb}")
        e(f"global_load_dword {vr(vN)}, {vr(vX0)}, {sr(sDBG,2)} sc1")
        e("s_sleep 8")
        e(f"s_add_u32 {sr(t5)}, {sr(t5)}, 1")
        e("s_waitcnt vmcnt(0)")
        e(f"v_readfirstlane_b32 {sr(sN)}, {vr(vN)}")
        e(f"s_cmp_lt_u32 {sr(t5)}, 0x40000")
        e(f"s_cbranch_scc1 {la}")
        lab(lb)
    def nonce_hook(first):
        c("fetch the nonce: a cached load can only be stale towards 0, later tries go to memory")
        la = g.newlab(); lb = g.newlab()
        e(f"s_cmp_lt_u32 {sr(sIT)}, {first}")
        e(f"s_cselect_b32 {sr(t0)}, 1, {sr(sN)}")
        e(f"s_cmp_lg_u32 {sr(t0)}, 0")
        e(f"s_cbranch_scc1 {lb}")
        e(f"s_cmp_eq_u32 {sr(sIT)}, {first}")
        e(f"s_cbranch_scc0 {la}")
        e(f"s_load_dword {sr(sN)}, {sr(sDBG,2)}, 0x40")
        e(f"s_branch {lb}")
        lab(la)
        e(f"s_atomic_add {sr(sN)}, {sr(sDBG,2)}, 0x40 glc")
        lab(lb)
    def tag_setup():
        e(f"v_mov_b32 {vr(vN)}, {sr(sN)}")
        for i in range(4):
            e(f"s_mov_b32 {sr(sCM+8+i)}, 0x0706050{i}")
    def tag(reg, i):
        e(f"v_perm_b32 {vr(reg)}, {vr(reg)}, {vr(vN)}, {sr(sCM+8+(i&3))}")
    def setup_k():
        c("K DMA source offsets (XOR-swizzled)")
        e(f"v_xor_b32 {vr(vT+16)}, {vr(vC)}, {vr(vG)}")
        e(f"v_lshlrev_b32 {vr(vT+17)}, 11, {vr(vG)}")
        e(f"v_lshl_add_u32 {vr(vKO)}, {vr(vT+16)}, 4, {vr(vT+17)}")
        for n in range(1, 4):
            e(f"v_xor_b32 {vr(vKO+n)}, {n<<6}, {vr(vKO)}")
            e(f"v_add_u32 {vr(vKO+n)}, {n*7168}, {vr(vKO+n)}")
        e(f"s_lshl_b32 {sr(sLB)}, {sr(sW)}, 14")
        e(f"s_mov_b32 {sr(srdK+2)}, {KVB}")
        e(f"s_mov_b32 {sr(srdK+3)}, 0x20000")
    def setup_v(dst=None):
        c("V DMA source offsets")
        d = vVO if dst is None else dst
        e(f"v_lshlrev_b32 {vr(vT+16)}, 1, {vr(vG)}")
        e(f"v_xor_b32 {vr(vT+16)}, {vr(vC)}, {vr(vT+16)}")
        e(f"v_lshl_add_u32 {vr(d)}, {vr(vT+16)}, 4, {vr(vT+17)}")
        e(f"v_xor_b32 {vr(d+1)}, 128, {vr(d)}")
        e(f"v_add_u32 {vr(d+3)}, {3*7168}, {vr(d+1)}")
        e(f"v_add_u32 {vr(d+1)}, 7168, {vr(d+1)}")
        e(f"v_add_u32 {vr(d+2)}, {2*7168}, {vr(d)}")
    def srd_k():
        e(f"s_mov_b32 {sr(srdK)}, {sr(sK)}")
        e(f"s_and_b32 {sr(srdK+1)}, {sr(sK+1)}, 0xffff")
    def srd_v():
        e(f"s_mov_b32 {sr(srdV)}, {sr(sV)}")
        e(f"s_and_b32 {sr(srdV+1)}, {sr(sV+1)}, 0xffff")
        e(f"s_mov_b32 {sr(srdV+3)}, 0x20000")
    def misc():
        e(f"v_and_b32 {vr(vL)}, 63, v0")
        e(f"v_and_b32 {vr(vX2)}, 3, v0")
        e(f"v_lshlrev_b32 {vr(vT+10)}, 4, {vr(vG)}")
        e(f"v_lshl_add_u32 {vr(vT+10)}, {vr(vX2)}, 8, {vr(vT+10)}")
        e(f"v_mov_b32 {vr(vT+6)}, 127")
        e(f"s_mov_b32 {sr(mSL)}, 0x000f000f")
        e(f"s_mov_b32 {sr(mSL+1)}, {sr(mSL)}")
        e(f"s_mov_b32 {sr(sIT)}, 0")
    def cpf():
        if opt.cpf:
            c("pull the kernel's code into L2: one dword per 64 bytes")
            e(f"v_lshlrev_b32 {vr(vF+30)}, 6, v0")
            e(f"v_min_u32 {vr(vF+30)}, {opt.code_bytes}, {vr(vF+30)}")
            e(f"global_load_dword {vr(vF+31)}, {vr(vF+30)}, {sr(sCM,2)}")
    def ranks():
        c("vKY: ctx of row c -> key = nsteps*16 + row ; vX3 = rank of the key")
        e(f"v_mov_b32 {vr(vX2)}, 0x1000")
        e(f"v_cmp_lt_i32 vcc, 0, {vr(vKY)}")
        e(f"v_min_i32 {vr(vKY)}, {vr(vKY)}, {vr(vX2)}")
        e(f"v_mov_b32 {vr(vX3)}, 0")
        e(f"v_cndmask_b32 {vr(vKL)}, {vr(vX2)}, {vr(vKY)}, vcc")
        e(f"v_add_u32 {vr(vKY)}, 31, {vr(vKL)}")
        e(f"v_lshrrev_b32 {vr(vKY)}, 5, {vr(vKY)}")
        e(f"v_lshl_add_u32 {vr(vKY)}, {vr(vKY)}, 4, {vr(vC)}")
        e("s_nop 1")
        for k in range(1, 16):
            e(f"v_sub_u32_dpp {vr(vT+(k&3))}, {vr(vKY)}, {vr(vKY)} row_ror:{k} row_mask:0xf bank_mask:0xf")
            e(f"v_lshrrev_b32 {vr(vT+(k&3))}, 31, {vr(vT+(k&3))}")
            e(f"v_add_u32 {vr(vX3)}, {vr(vX3)}, {vr(vT+(k&3))}")
    PARTS = {"A": range(0, 4), "B": range(4, NG)}
    def gload(part):
        for i, k in enumerate(PARTS[part]):
            e(f"global_load_dwordx4 {vr(vGs+4*i,4)}, {vr(vWS_)}, {sr(sWS,2)} offset:{16*k}{PG}")
            for q in range(2):
                e(f"global_load_dwordx4 {vr(vGo+8*i+4*q,4)}, {vr(vWO)}, {sr(sWS,2)} offset:{512*k+256*q}{PG}")
    def lsum():
        c("reduce l over the 4 lane groups")
        e(f"v_mov_b32 {vr(vX0)}, {vr(vLs)}")
        e("s_nop 1")
        e(f"v_permlane32_swap_b32 {vr(vLs)}, {vr(vX0)}")
        e(f"v_add_f32 {vr(vLs)}, {vr(vLs)}, {vr(vX0)}")
        e(f"v_mov_b32 {vr(vX0)}, {vr(vLs)}")
        e("s_nop 1")
        e(f"v_permlane16_swap_b32 {vr(vLs)}, {vr(vX0)}")
        e(f"v_add_f32 {vr(vLs)}, {vr(vLs)}, {vr(vX0)}")
    def limits(tl, pos):
        c("tokens past the context are not fetched: they fall outside num_records and read as zero")
        e(f"s_sub_i32 {sr(tl)}, {sr(tl)}, {sr(pos)}")
        e(f"s_max_i32 {sr(tl)}, {sr(tl)}, 0")
        e(f"s_min_u32 {sr(t0)}, {sr(tl)}, 16")
        e(f"s_min_u32 {sr(t1)}, {sr(tl)}, 32")
        e(f"s_sub_u32 {sr(t1)}, {sr(t1)}, {sr(t0)}")
        e(f"s_lshl_b32 {sr(t0)}, {sr(t0)}, 11")
        e(f"s_lshl_b32 {sr(t1)}, {sr(t1)}, 11")
        e(f"s_add_u32 {sr(t0)}, {sr(t0)}, {sr(sB0)}")
        e(f"s_add_u32 {sr(t1)}, {sr(t1)}, {sr(sB1)}")
        e(f"s_min_u32 {sr(sR0)}, {sr(t0)}, {KVB}")
        e(f"s_min_u32 {sr(sR1)}, {sr(t1)}, {KVB}")
    def fetch():
        e(f"v_readlane_b32 {sr(t2)}, {vr(vMETA)}, {sr(sIT)}")
        e(f"v_readlane_b32 {sr(t0)}, {vr(vTB)}, {sr(sIT)}")
        e(f"v_readlane_b32 {sr(t1)}, {vr(vTB+1)}, {sr(sIT)}")
        e(f"s_bfe_u32 {sr(t3)}, {sr(t2)}, 0x40010")
        e(f"s_lshr_b32 {sr(t4)}, {sr(t2)}, 29")
        e(f"v_readlane_b32 {sr(t5)}, {vr(vLE)}, {sr(t3)}")
        e(f"s_lshl_b32 {sr(t4)}, {sr(t4)}, 8")
        e(f"s_lshl_b32 {sr(t0)}, {sr(t0)}, 15")
        e(f"s_lshl_b32 {sr(t1)}, {sr(t1)}, 15")
        e(f"s_or_b32 {sr(sB0)}, {sr(t0)}, {sr(t4)}")
        e(f"s_or_b32 {sr(sB1)}, {sr(t1)}, {sr(t4)}")
        e(f"s_and_b32 {sr(sPOS)}, {sr(t2)}, 0xffff")
        e(f"s_lshl_b64 {sr(sMK,2)}, {sr(mIT,2)}, {sr(t3)}")
        e(f"s_add_u32 {sr(sIT)}, {sr(sIT)}, 1")
        limits(t5, sPOS)
    def decode():
        pass
    def dma4(off, srd, soff):
        for n in range(4):
            o = f" offset:{1024*n}" if n else ""
            e(f"buffer_load_dwordx4 {vr(off+n)}, {sr(srd,4)}, {sr(soff)} offen{o}{pol} lds")
    def issue(kv):
        off = vVO if kv == "V" else vKO
        srd = srdV if kv == "V" else srdK
        base = 8192 if kv == "V" else 0
        if base:
            e(f"s_add_u32 m0, {sr(sLB)}, {base}")
        else:
            e(f"s_mov_b32 m0, {sr(sLB)}")
        e(f"s_mov_b32 {sr(srd+2)}, {sr(sR0)}")
        dma4(off, srd, sB0)
        e(f"s_add_u32 m0, {sr(sLB)}, {base+4096}")
        e(f"s_mov_b32 {sr(srd+2)}, {sr(sR1)}")
        dma4(off, srd, sB1)
    e("s_cmp_ge_u32 s2, 256")
    e("s_cbranch_scc1 L_end")
    e(f"s_load_dwordx16 s[4:19], s[0:1], 0")
    stamp(0)
    if opt.cpf:
        e(f"s_getpc_b64 {sr(sCM,2)}")
    e(f"v_lshrrev_b32 {vr(vX0)}, 6, v0")
    e(f"v_and_b32 {vr(vC)}, 15, v0")
    e(f"v_bfe_u32 {vr(vG)}, v0, 4, 2")
    e(f"v_readfirstlane_b32 {sr(sW)}, {vr(vX0)}")
    e(f"s_lshr_b32 {sr(sIDX)}, s2, 3")
    c("head: bit1 = id&1, bits 0/2 rotate with idx")
    e(f"s_lshr_b32 {sr(t0)}, s2, 1")
    e(f"s_add_u32 {sr(t0)}, {sr(t0)}, {sr(sIDX)}")
    e(f"s_and_b32 {sr(t1)}, {sr(t0)}, 2")
    e(f"s_and_b32 {sr(t0)}, {sr(t0)}, 1")
    e(f"s_and_b32 {sr(t2)}, s2, 1")
    e(f"s_or_b32 {sr(t1)}, {sr(t1)}, {sr(t2)}")
    e(f"s_lshl1_add_u32 {sr(sHD)}, {sr(t1)}, {sr(t0)}")
    setup_k()
    e(f"s_cmp_lt_u32 {sr(sIDX)}, 16")
    e("s_cbranch_scc1 L_helper")
    c("======== finisher (b, h): steps 64+w+4*lane")
    c("guess for the first item (checked against the table below): block = 128*row + column")
    e(f"s_sub_u32 {sr(t0)}, {sr(sIDX)}, 15")
    e(f"s_lshl_b32 {sr(t0)}, {sr(t0)}, 6")
    e(f"s_add_u32 {sr(t0)}, {sr(t0)}, {sr(sW)}")
    e(f"s_lshl_b32 {sr(t0)}, {sr(t0)}, 8")
    e(f"s_add_u32 {sr(t0)}, {sr(t0)}, {sr(sHD)}")
    e(f"s_lshl_b32 {sr(sB0)}, {sr(t0)}, 8")
    e(f"s_add_u32 {sr(sB1)}, {sr(sB0)}, 0x8000")
    e(f"s_mov_b32 {sr(sR0)}, {sr(sB1)}")
    e(f"s_add_u32 {sr(sR1)}, {sr(sB1)}, 0x8000")
    e("s_waitcnt lgkmcnt(0)")
    srd_k()
    stamp(1)
    issue("K")
    misc()
    e(f"s_mov_b32 {sr(sROLE)}, 1")
    e(f"s_and_b32 {sr(t1)}, s2, 0x78")
    e(f"s_or_b32 {sr(t1)}, {sr(t1)}, {sr(sHD)}")
    e(f"s_mul_i32 {sr(sBHP)}, {sr(t1)}, 0x01010101")
    e(f"s_add_u32 {sr(t2)}, {sr(sW)}, 64")
    e(f"v_lshl_add_u32 {vr(vX0)}, {vr(vL)}, 2, {sr(t2)}")
    e(f"v_mov_b32 {vr(vX1)}, 0")
    e(f"v_mov_b32 {vr(vX3)}, {sr(t1)}")
    list_addr_bh()
    e(f"s_and_b32 {sr(t0)}, {sr(sHD)}, 3")
    e(f"s_lshl_b32 {sr(t0)}, {sr(t0)}, 3")
    e(f"s_lshr_b32 {sr(sEND)}, 0x{FPACK:08x}, {sr(t0)}")
    e(f"s_and_b32 {sr(sEND)}, {sr(sEND)}, 0xff")
    e(f"s_mov_b32 {sr(sKS)}, 0")
    e(f"s_mov_b64 {sr(mIT,2)}, -1")
    lab("L_go")
    list_load()
    col_addr()
    col_load()
    setup_v()
    srd_v()
    issue("V")
    lab("L_init")
    if opt.amp2:
        e(f"s_or_b32 {sr(t0)}, s2, {sr(sW)}")
        e("s_cbranch_scc1 L_noref")
        e(f"v_mov_b32 {vr(vX0)}, 0x2f0000")
        e(f"v_mov_b32 {vr(vX1)}, {sr(sST)}")
        e(f"global_store_dword {vr(vX0)}, {vr(vX1)}, {sr(sWS,2)} sc1")
        lab("L_noref")
    e(f"s_mov_b32 {sr(sCS)}, 0x{f2u(128**-0.5 * 1.4426950408889634):08x}")
    for i in range(32):
        e(f"v_mov_b32 {vr(vO+i)}, 0")
    e(f"v_mov_b32 {vr(vM)}, 0x{f2u(-1e30):08x}")
    e(f"v_mov_b32 {vr(vLs)}, 0")
    e(f"v_mov_b32 {vr(vFM)}, 0x{f2u(-1e9/(128**-0.5)):08x}")
    e(f"v_mov_b32 {vr(vFI)}, 0x{f2u(-3e38):08x}")
    c("LDS fragment addresses")
    e(f"s_cmp_eq_u32 {sr(sROLE)}, 2")
    e(f"s_cselect_b32 {sr(t0)}, 0, {sr(sLB)}")
    e(f"v_xor_b32 {vr(vX0)}, {vr(vC)}, {vr(vG)}")
    e(f"v_lshl_add_u32 {vr(vX1)}, {vr(vC)}, 8, {sr(t0)}")
    e(f"v_lshl_add_u32 {vr(vKA)}, {vr(vX0)}, 4, {vr(vX1)}")
    for m in range(1, 4):
        e(f"v_xor_b32 {vr(vKA+m)}, {m<<6}, {vr(vKA)}")
    e(f"v_lshrrev_b32 {vr(vX0)}, 2, {vr(vL)}")
    e(f"v_lshl_add_u32 {vr(vX1)}, {vr(vX0)}, 8, {sr(t0)}")
    e(f"v_and_b32 {vr(vX0)}, 7, {vr(vX0)}")
    e(f"v_lshl_add_u32 {vr(vX1)}, {vr(vX0)}, 5, {vr(vX1)}")
    e(f"v_and_b32 {vr(vX0)}, 3, {vr(vL)}")
    e(f"v_lshl_add_u32 {vr(vVA)}, {vr(vX0)}, 3, {vr(vX1)}")
    for ee in range(1, 8):
        e(f"v_xor_b32 {vr(vVA+ee)}, {ee<<5}, {vr(vVA)}")
    c("epilogue addresses")
    e(f"s_cmp_eq_u32 {sr(sROLE)}, 1")
    e(f"s_cselect_b32 {sr(t0)}, 3, 15")
    e(f"v_lshrrev_b32 {vr(vCC)}, 4, v0")
    e(f"v_and_b32 {vr(vCC)}, {sr(t0)}, {vr(vCC)}")
    part_addr(vCC, vWO, vWS_, vX0)
    e(f"v_lshl_add_u32 {vr(vWO)}, {vr(vC)}, 4, {vr(vWO)}")
    e(f"v_mul_u32_u24 {vr(vLWa)}, {CSTR}, {vr(vC)}")
    e(f"v_lshl_add_u32 {vr(vLWa)}, {vr(vG)}, 4, {vr(vLWa)}")
    e(f"v_add_u32 {vr(vLWa)}, {sr(sLB)}, {vr(vLWa)}")
    e(f"v_lshl_add_u32 {vr(vLWs)}, {vr(vC)}, 3, {sr(sLB)}")
    e(f"v_lshlrev_b32 {vr(vA1)}, 3, {vr(vCC)}")
    e(f"v_mul_u32_u24 {vr(vA2)}, {CSTR}, {vr(vCC)}")
    e(f"v_lshl_add_u32 {vr(vA2)}, {vr(vC)}, 4, {vr(vA2)}")
    e(f"s_and_b32 {sr(t3)}, {sr(sBHP)}, 0xff")
    e(f"s_lshl_b32 {sr(t3)}, {sr(t3)}, 10")
    e(f"v_lshl_add_u32 {vr(vOA)}, {vr(vG)}, 8, {sr(t3)}")
    e(f"v_lshl_add_u32 {vr(vOA)}, {vr(vC)}, 3, {vr(vOA)}")
    e(f"s_add_u32 {sr(sMW)}, {sr(sW)}, 1")
    e(f"s_cmp_lt_u32 {sr(sW)}, 2")
    e(f"s_cselect_b32 {sr(sMW)}, {sr(sMW)}, 0")
    e(f"s_mul_i32 {sr(sMW)}, {sr(sMW)}, {sr(sROLE)}")
    e(f"v_lshlrev_b32 {vr(vPX)}, 4, {vr(vL)}")
    e(f"s_mov_b32 {sr(sN)}, 0")
    c("table/ctx/Q were issued before the first V loads (shared role: before items 1,2)")
    e(f"s_cmp_eq_u32 {sr(sROLE)}, 2")
    e("s_waitcnt vmcnt(8)")
    e(f"v_mov_b32 {vr(vX1)}, 0x1000")
    e(f"v_cmp_lt_i32 vcc, 0, {vr(vCG)}")
    e(f"v_lshlrev_b32 {vr(vX0)}, 2, {vr(vG)}")
    e(f"v_med3_i32 {vr(vCG)}, {vr(vCG)}, 0, {vr(vX1)}")
    e(f"v_cndmask_b32 {vr(vLE)}, {vr(vX1)}, {vr(vCG)}, vcc")
    e(f"v_sub_u32 {vr(vCG)}, {vr(vCG)}, {vr(vX0)}")
    e("s_cbranch_scc1 L_sh_verify")
    e(f"s_mov_b64 {sr(sCM,2)}, {sr(sB0,2)}")
    e(f"s_mov_b64 {sr(sCM+2,2)}, {sr(sR0,2)}")
    fetch()
    e(f"s_xor_b64 {sr(sCM,2)}, {sr(sCM,2)}, {sr(sB0,2)}")
    e(f"s_xor_b64 {sr(sCM+2,2)}, {sr(sCM+2,2)}, {sr(sR0,2)}")
    e(f"s_or_b64 {sr(sCM,2)}, {sr(sCM,2)}, {sr(sCM+2,2)}")
    e("s_cbranch_scc1 L_respec")
    lab("L_specok")
    e(f"s_cmp_eq_u32 {sr(sROLE)}, 1")
    e("s_cbranch_scc0 L_cnt")
    c("finisher item count (at least one: a step past the context is fully masked)")
    e(f"v_readfirstlane_b32 {sr(t1)}, {vr(vLE)}")
    e(f"s_add_u32 {sr(t1)}, {sr(t1)}, 31")
    e(f"s_lshr_b32 {sr(t1)}, {sr(t1)}, 5")
    e(f"s_min_u32 {sr(t1)}, {sr(t1)}, {sr(sEND)}")
    e(f"s_sub_i32 {sr(t1)}, {sr(t1)}, {sr(sW)}")
    e(f"s_sub_i32 {sr(t1)}, {sr(t1)}, 61")
    e(f"s_ashr_i32 {sr(t1)}, {sr(t1)}, 2")
    e(f"s_max_i32 {sr(sREM)}, {sr(t1)}, 1")
    lab("L_cnt")

    def kreads():
        for m in range(4):
            e(f"ds_read_b128 {vr(vF+8*m,4)}, {vr(vKA+m)}")
            e(f"ds_read_b128 {vr(vF+8*m+4,4)}, {vr(vKA+m)} offset:4096")
    def qk():
        for m in range(4):
            e(f"s_waitcnt lgkmcnt({6-2*m})")
            c0 = "0" if m == 0 else vr(vS, 4)
            c1 = "0" if m == 0 else vr(vS+4, 4)
            e(f"v_mfma_f32_16x16x32_bf16 {vr(vS,4)}, {vr(vF+8*m,4)}, {vr(vQ+4*m,4)}, {c0}")
            e(f"v_mfma_f32_16x16x32_bf16 {vr(vS+4,4)}, {vr(vF+8*m+4,4)}, {vr(vQ+4*m,4)}, {c1}")
    def masks():
        e(f"v_subrev_u32 {vr(vLIM)}, {sr(sPOS)}, {vr(vCG)}")
        e(f"v_cndmask_b32 {vr(vLIM)}, 0, {vr(vLIM)}, {sr(sMK,2)}")
        e(f"v_cndmask_b32 {vr(vFILL)}, {vr(vFI)}, {vr(vFM)}, {sr(sMK,2)}")
        e(f"v_cmp_gt_i32 {sr(sFAST,2)}, 20, {vr(vLIM)}")
    def vreads():
        for ee in range(8):
            e(f"ds_read_b64_tr_b16 {vr(vF+4*ee,2)}, {vr(vVA+ee)} offset:8192")
            e(f"ds_read_b64_tr_b16 {vr(vF+4*ee+2,2)}, {vr(vVA+ee)} offset:12288")
    def softmax_a():
        la = g.newlab()
        e(f"s_cmp_eq_u64 {sr(sFAST,2)}, 0")
        e(f"s_cbranch_scc1 {la}")
        for j in range(8):
            e(f"v_cmp_lt_i32 {sr(sCM+2*j,2)}, {(j>>2)*16+(j&3)}, {vr(vLIM)}")
        for j in range(8):
            e(f"v_cndmask_b32 {vr(vS+j)}, {vr(vFILL)}, {vr(vS+j)}, {sr(sCM+2*j,2)}")
        lab(la)
        e(f"v_max3_f32 {vr(vMX)}, {vr(vS)}, {vr(vS+1)}, {vr(vS+2)}")
        e(f"v_max3_f32 {vr(vX0)}, {vr(vS+3)}, {vr(vS+4)}, {vr(vS+5)}")
        e(f"v_max3_f32 {vr(vMX)}, {vr(vMX)}, {vr(vS+6)}, {vr(vS+7)}")
        e(f"v_max3_f32 {vr(vMX)}, {vr(vMX)}, {vr(vX0)}, {vr(vM)}")
        e(f"v_mov_b32 {vr(vX0)}, {vr(vMX)}")
        e("s_nop 1")
        e(f"v_permlane32_swap_b32 {vr(vMX)}, {vr(vX0)}")
        e(f"v_max_f32 {vr(vMX)}, {vr(vMX)}, {vr(vX0)}")
        e(f"v_mov_b32 {vr(vX0)}, {vr(vMX)}")
        e("s_nop 1")
        e(f"v_permlane16_swap_b32 {vr(vMX)}, {vr(vX0)}")
        e(f"v_max_f32 {vr(vMX)}, {vr(vMX)}, {vr(vX0)}")
        e(f"v_mul_f32 {vr(vX1)}, {sr(sCS)}, {vr(vMX)}")
        e(f"v_sub_f32 {vr(vAL)}, {vr(vM)}, {vr(vMX)}")
        e(f"v_cmp_lt_f32 vcc, {vr(vM)}, {vr(vMX)}")
        for j in range(8):
            e(f"v_fma_f32 {vr(vS+j)}, {vr(vS+j)}, {sr(sCS)}, -{vr(vX1)}")
        e(f"v_mul_f32 {vr(vAL)}, {sr(sCS)}, {vr(vAL)}")
        for j in range(8):
            e(f"v_exp_f32 {vr(vS+j)}, {vr(vS+j)}")
        e(f"v_exp_f32 {vr(vAL)}, {vr(vAL)}")
        e(f"v_mov_b32 {vr(vM)}, {vr(vMX)}")
        for u in range(4):
            e(f"v_cvt_pk_bf16_f32 {vr(vP+u)}, {vr(vS+2*u)}, {vr(vS+2*u+1)}")
        e(f"v_pk_add_f32 {vr(vS,2)}, {vr(vS,2)}, {vr(vS+2,2)}")
        e(f"v_pk_add_f32 {vr(vS+4,2)}, {vr(vS+4,2)}, {vr(vS+6,2)}")
        e(f"v_pk_add_f32 {vr(vS,2)}, {vr(vS,2)}, {vr(vS+4,2)}")
        e(f"v_fma_f32 {vr(vLs)}, {vr(vLs)}, {vr(vAL)}, {vr(vS)}")
        e(f"v_add_f32 {vr(vLs)}, {vr(vLs)}, {vr(vS+1)}")
    def rescale():
        la = g.newlab()
        e(f"s_cbranch_vccz {la}")
        for i in range(0, 32, 2):
            e(f"v_pk_mul_f32 {vr(vO+i,2)}, {vr(vO+i,2)}, {vr(vMX,2)} op_sel:[0,1] op_sel_hi:[1,1]")
        lab(la)
    def pv(ee):
        ob = vO + 4*ee
        e(f"v_mfma_f32_16x16x32_bf16 {vr(ob,4)}, {vr(vF+4*ee,4)}, {vr(vP,4)}, {vr(ob,4)}")

    lab("L_loop")
    e("s_waitcnt vmcnt(8) lgkmcnt(0)")
    if opt.stamps and opt.probe == "first":
        e(f"s_cmp_eq_u32 {sr(sIT)}, 1")
        e(f"s_cbranch_scc0 L_q1")
        stamp(4)
        e("s_waitcnt lgkmcnt(0)")
        lab("L_q1")
    kreads()
    masks()
    fetch()
    qk()
    e(f"s_cmp_eq_u32 {sr(sREM)}, 1")
    e("s_cbranch_scc1 L_noK")
    issue("K")
    e("s_branch L_sm")
    lab("L_noK")
    e(f"s_cmp_lg_u32 {sr(sMW)}, 0")
    e("s_cbranch_scc1 L_early")
    e("s_nop 6")
    lab("L_sm")
    softmax_a()
    rescale()
    e(f"s_cmp_eq_u32 {sr(sREM)}, 1")
    e("s_cbranch_scc1 L_last")
    e("s_waitcnt vmcnt(8)")
    e("s_branch L_vok")
    lab("L_last")
    lsum()
    e(f"s_cmp_eq_u32 {sr(sMW)}, 2")
    e("s_waitcnt vmcnt(12)")
    e("s_cbranch_scc1 L_vok")
    e(f"s_cmp_eq_u32 {sr(sMW)}, 1")
    e("s_waitcnt vmcnt(9)")
    e("s_cbranch_scc1 L_vok")
    e("s_waitcnt vmcnt(0)")
    lab("L_vok")
    vreads()
    for ee in range(8):
        e(f"s_waitcnt lgkmcnt({14-2*ee})")
        pv(ee)
    e(f"s_cmp_eq_u32 {sr(sREM)}, 1")
    e("s_cbranch_scc1 L_epi")
    issue("V")
    nonce_hook(4)
    if opt.stamps and opt.probe == "first":
        e(f"s_cmp_eq_u32 {sr(sIT)}, {opt.mid+1}")
        e(f"s_cbranch_scc0 L_q2")
        stamp(5)
        e("s_waitcnt lgkmcnt(0)")
        lab("L_q2")
    e(f"s_sub_u32 {sr(sREM)}, {sr(sREM)}, 1")
    e("s_branch L_loop")

    lab("L_epi")
    stamp(2)
    vSt = vS
    vOq = vF
    vR = 12
    vWt = 20
    c("finishers only need columns 0..3")
    e(f"s_cmp_eq_u32 {sr(sROLE)}, 1")
    e(f"s_cselect_b64 exec, {sr(mSL,2)}, -1")
    e(f"ds_write_b64 {vr(vLWs)}, {vr(vM,2)} offset:{STAT}")
    e("s_nop 1")
    for ee in range(8):
        e(f"ds_write_b128 {vr(vLWa)}, {vr(vO+4*ee,4)} offset:{64*ee}")
    e("s_mov_b64 exec, -1")
    e("s_cbranch_scc1 L_fin")

    def maxchain(ms):
        e(f"v_max3_f32 {vr(vMX)}, {vr(ms[0])}, {vr(ms[1])}, {vr(ms[2])}")
        i = 3
        while i < len(ms):
            if i + 1 < len(ms):
                e(f"v_max3_f32 {vr(vMX)}, {vr(vMX)}, {vr(ms[i])}, {vr(ms[i+1])}"); i += 2
            else:
                e(f"v_max_f32 {vr(vMX)}, {vr(vMX)}, {vr(ms[i])}"); i += 1
        for i in range(len(ms)):
            e(f"v_sub_f32 {vr(vWt+i)}, {vr(ms[i])}, {vr(vMX)}")
        for i in range(len(ms)):
            e(f"v_mul_f32 {vr(vWt+i)}, {sr(sCS)}, {vr(vWt+i)}")
        for i in range(len(ms)):
            e(f"v_exp_f32 {vr(vWt+i)}, {vr(vWt+i)}")
    def axpy(dst, src, wi, first):
        wp = vWt + (wi & ~1); sl = wi & 1
        for r in range(0, 8, 2):
            if first:
                e(f"v_pk_mul_f32 {vr(dst+r,2)}, {vr(src+r,2)}, {vr(wp,2)} op_sel:[0,{sl}] op_sel_hi:[1,{sl}]")
            else:
                e(f"v_pk_fma_f32 {vr(dst+r,2)}, {vr(src+r,2)}, {vr(wp,2)}, {vr(dst+r,2)} op_sel:[0,{sl},0] op_sel_hi:[1,{sl},1]")
    def premerge(n):
        maxchain([vGs+4*k for k in range(n)])
        e(f"v_mov_b32 {vr(vGs)}, {vr(vMX)}")
        e(f"v_mul_f32 {vr(vGs+1)}, {vr(vWt)}, {vr(vGs+1)}")
        axpy(vGo, vGo, 0, True)
        for i in range(1, n):
            e(f"v_fmac_f32 {vr(vGs+1)}, {vr(vWt+i)}, {vr(vGs+4*i+1)}")
            axpy(vGo, vGo+8*i, i, False)
    def lds_reduce(nglob):
        c("thread: column vCC, quads vC and vC+16")
        e("s_waitcnt lgkmcnt(0)")
        e("s_barrier")
        if nglob:
            probe("tail", 1)
        for w in range(NW):
            e(f"ds_read_b64 {vr(vSt+2*w,2)}, {vr(vA1)} offset:{WSTR*w+STAT}")
        if nglob:
            e(f"ds_read_b64 {vr(vGs+4,2)}, {vr(vPX)} offset:{PXO+2048}")
            e(f"ds_read_b128 {vr(vGo+8,4)}, {vr(vPX)} offset:{PXO}")
            e(f"ds_read_b128 {vr(vGo+12,4)}, {vr(vPX)} offset:{PXO+1024}")
        for w in range(NW):
            for q in range(2):
                e(f"ds_read_b128 {vr(vOq+8*w+4*q,4)}, {vr(vA2)} offset:{WSTR*w+256*q}")
        e(f"s_waitcnt lgkmcnt({2*NW})")
        ms = [vSt+2*w for w in range(NW)]
        ls = [vSt+2*w+1 for w in range(NW)]
        os_ = [vOq+8*w for w in range(NW)]
        if nglob:
            ms += [vGs, vGs+4]; ls += [vGs+1, vGs+5]; os_ += [vGo, vGo+8]
        maxchain(ms)
        e("s_nop 0")
        e(f"v_mul_f32 {vr(vAL)}, {vr(vWt)}, {vr(ls[0])}")
        for i in range(1, len(ms)):
            e(f"v_fmac_f32 {vr(vAL)}, {vr(vWt+i)}, {vr(ls[i])}")
        if nglob:
            e(f"v_rcp_f32 {vr(vAL)}, {vr(vAL)}")
        order_ = list(range(NW, len(ms))) + list(range(NW))
        first = True
        for i in order_:
            if i < NW:
                e(f"s_waitcnt lgkmcnt({2*(NW-1-i)})")
            axpy(vR, os_[i], i, first)
            first = False

    c("---------- mixed helper: publish the workgroup partial, every word tagged with a byte of the nonce")
    need_nonce()
    tag_setup()
    lds_reduce(0)
    for r in range(8):
        tag(vR+r, r)
    tag(vAL, 1)
    e(f"v_xor_b32 {vr(vX0)}, {vr(vMX)}, {vr(vN)}")
    e(f"v_mov_b32 {vr(vX1)}, {vr(vN)}")
    e(f"global_store_dwordx4 {vr(vWO)}, {vr(vR,4)}, {sr(sWS,2)}{PP}") if not opt.nopub else None
    e(f"global_store_dwordx4 {vr(vWO)}, {vr(vR+4,4)}, {sr(sWS,2)} offset:256{PP}") if not opt.nopub else None
    e(f"v_cmp_eq_u32 vcc, 0, {vr(vC)}")
    e(f"s_and_saveexec_b64 {sr(sCM,2)}, vcc")
    e(f"global_store_dwordx4 {vr(vWS_)}, {vr(vMX,4)}, {sr(sWS,2)}{PP}") if not opt.nopub else None
    e(f"s_mov_b64 exec, {sr(sCM,2)}")
    e("s_branch L_done")

    c("---------- finisher")
    lab("L_fin")
    e(f"s_cmp_lg_u32 {sr(sMW)}, 0")
    e("s_cbranch_scc1 L_merge")
    e("s_waitcnt lgkmcnt(0)")
    e("s_barrier")
    e("s_branch L_done")
    lab("L_merge")
    need_nonce()
    for i in range(4):
        e(f"s_bfe_u32 {sr(sCM+8+i)}, {sr(sN)}, 0x{0x80000+8*i:x}")
    def untag(ks, acc, acc2):
        c("strip the tags (a matching tag leaves a zero low byte) and collect what is left of them")
        regs = []
        for k in ks:
            e(f"v_xor_b32 {vr(vGs+4*k+1)}, {sr(sCM+9)}, {vr(vGs+4*k+1)}")
            e(f"v_xor_b32 {vr(vGs+4*k+2)}, {vr(vGs+4*k)}, {vr(vGs+4*k+2)}")
            regs.append(vGs+4*k+1)
            for r in range(8):
                e(f"v_xor_b32 {vr(vGo+8*k+r)}, {sr(sCM+8+(r&3))}, {vr(vGo+8*k+r)}")
                regs.append(vGo+8*k+r)
        first = True
        for k in ks:
            e(f"v_msad_u8 {vr(acc2)}, {vr(vGs+4*k+2)}, {sr(sN)}, {'0' if first else vr(acc2)}")
            first = False
        e(f"v_or3_b32 {vr(acc)}, {vr(regs[0])}, {vr(regs[1])}, {vr(regs[2])}")
        i = 3
        while i < len(regs):
            if i + 1 < len(regs):
                e(f"v_or3_b32 {vr(acc)}, {vr(acc)}, {vr(regs[i])}, {vr(regs[i+1])}"); i += 2
            else:
                e(f"v_or_b32 {vr(acc)}, {vr(acc)}, {vr(regs[i])}"); i += 1
        e(f"v_and_b32 {vr(acc)}, 0xff, {vr(acc)}")
        e(f"v_or_b32 {vr(acc)}, {vr(acc)}, {vr(acc2)}")
        e(f"v_cmp_ne_u32 vcc, 0, {vr(acc)}")
    e(f"s_mov_b32 {sr(t5)}, 0")
    e(f"s_cmp_eq_u32 {sr(sMW)}, 1")
    e("s_cbranch_scc1 L_chkB")
    e("s_branch L_chkA")
    for part, n in (("A", 4), ("B", 3)):
        lab(f"L_reload{part}")
        gload(part)
        lab(f"L_chk{part}")
        e("s_waitcnt vmcnt(0)")
        untag(range(n), vX0, vX1)
        e(f"s_add_u32 {sr(t5)}, {sr(t5)}, 1")
        e(f"s_cbranch_vccz L_ready{part}")
        e(f"s_sleep {opt.rsleep}")
        e(f"s_cmp_lt_u32 {sr(t5)}, 0x40000")
        e(f"s_cbranch_scc1 L_reload{part}")
        lab(f"L_ready{part}")
        if part == "B":
            probe("tail", 0)
        premerge(n)
        if part == "A":
            e(f"ds_write_b64 {vr(vPX)}, {vr(vGs,2)} offset:{PXO+2048}")
            e(f"ds_write_b128 {vr(vPX)}, {vr(vGo,4)} offset:{PXO}")
            e(f"ds_write_b128 {vr(vPX)}, {vr(vGo+4,4)} offset:{PXO+1024}")
            e("s_waitcnt lgkmcnt(0)")
            e("s_barrier")
            e("s_branch L_done")
    lds_reduce(1)
    for r in range(0, 8, 2):
        e(f"v_pk_mul_f32 {vr(vR+r,2)}, {vr(vR+r,2)}, {vr(vMX,2)} op_sel:[0,1] op_sel_hi:[1,1]")
    for r in range(4):
        e(f"v_cvt_pk_bf16_f32 {vr(vWt+r)}, {vr(vR+2*r)}, {vr(vR+2*r+1)}")
    po = opt.pol_out
    e(f"global_store_dwordx2 {vr(vOA)}, {vr(vWt,2)}, {sr(sOUT,2)}{po}")
    e(f"global_store_dwordx2 {vr(vOA)}, {vr(vWt+2,2)}, {sr(sOUT,2)} offset:128{po}")
    e("s_branch L_done")

    if opt.spec:
        lab("L_respec")
        c("the guess was wrong: reload the first item")
        e("s_waitcnt vmcnt(0)")
        issue("K"); issue("V")
        e("s_branch L_specok")

    lab("L_early")
    c("merge waves, last item: fetch the partials under the V wait")
    e(f"s_cmp_eq_u32 {sr(sMW)}, 1")
    e("s_cbranch_scc1 L_earlyB")
    gload("A")
    e("s_branch L_sm")
    lab("L_earlyB")
    gload("B")
    e("s_branch L_sm")

    lab("L_helper")
    e(f"s_cmp_lt_u32 {sr(sIDX)}, 4")
    e("s_cbranch_scc1 L_sh_pro")
    c("======== mixed helper. v=idx-4: j=v%3, u=v/3: r=((x>>1)+j)&3 + 4*(u&1), quad=u>>1, pair=x&1")
    cpf()
    e(f"v_lshlrev_b32 {vr(vT+7)}, 2, {vr(vC)}")
    e("s_waitcnt lgkmcnt(0)")
    e(f"global_load_dword {vr(vKY)}, {vr(vT+7)}, {sr(sCTX,2)}")
    misc()
    srd_k()
    e(f"s_mov_b32 {sr(sROLE)}, 0")
    e(f"s_sub_u32 {sr(t7)}, {sr(sIDX)}, 4")
    e(f"s_mul_i32 {sr(t1)}, {sr(t7)}, 11")
    e(f"s_lshr_b32 {sr(t1)}, {sr(t1)}, 5")
    e(f"s_mul_i32 {sr(t6)}, {sr(t1)}, 3")
    e(f"s_sub_u32 {sr(t7)}, {sr(t7)}, {sr(t6)}")
    e(f"s_add_u32 {sr(sKS)}, {sr(t7)}, 4")
    e(f"s_and_b32 {sr(t0)}, {sr(sHD)}, 2")
    e(f"s_and_b32 {sr(t6)}, {sr(t1)}, 2")
    e(f"s_lshl_b32 {sr(t6)}, {sr(t6)}, 1")
    e(f"s_or_b32 {sr(sHD)}, {sr(t6)}, {sr(t0)}")
    e(f"s_and_b32 {sr(t1)}, {sr(t1)}, 1")
    e(f"s_lshl_b32 {sr(t1)}, {sr(t1)}, 2")
    e(f"s_lshr_b32 {sr(sX_)}, s2, 1")
    if opt.spread:
        e(f"s_add_u32 {sr(sX_)}, {sr(sX_)}, {sr(t7)}")
    e(f"s_and_b32 {sr(sX_)}, {sr(sX_)}, 3")
    e(f"s_add_u32 {sr(sX_)}, {sr(sX_)}, {sr(t1)}")
    e(f"s_lshl_b32 {sr(t0)}, {sr(t0)}, 3")
    e(f"s_lshr_b32 {sr(t4)}, 0x{FPACK:08x}, {sr(t0)}")
    e(f"s_bfe_u32 {sr(t5)}, {sr(t4)}, 0x80008")
    e(f"s_and_b32 {sr(t4)}, {sr(t4)}, 0xff")
    e(f"s_cmp_lt_u32 {sr(t5)}, {sr(t4)}")
    e(f"s_cselect_b32 {sr(sS0)}, 1, 0")
    e(f"s_max_u32 {sr(sEND)}, {sr(t4)}, {sr(t5)}")
    e(f"s_min_u32 {sr(t5)}, {sr(t4)}, {sr(t5)}")
    c("x = j + 3*(w + 4*lane)")
    e(f"v_lshl_add_u32 {vr(vT+5)}, {vr(vL)}, 2, {sr(sW)}")
    e(f"v_mul_u32_u24 {vr(vT+5)}, 3, {vr(vT+5)}")
    e(f"v_add_u32 {vr(vT+5)}, {sr(t7)}, {vr(vT+5)}")
    e("s_waitcnt vmcnt(0)")
    ranks()
    e(f"s_sub_u32 {sr(t1)}, 15, {sr(sX_)}")
    e(f"v_cmp_eq_u32 {sr(sCM,2)}, {sr(sX_)}, {vr(vX3)}")
    e(f"v_cmp_eq_u32 {sr(sCM+2,2)}, {sr(t1)}, {vr(vX3)}")
    e(f"s_ff1_i32_b32 {sr(t0)}, {sr(sCM)}")
    e(f"s_ff1_i32_b32 {sr(t1)}, {sr(sCM+2)}")
    e(f"v_readlane_b32 {sr(t2)}, {vr(vKY)}, {sr(t0)}")
    e(f"v_readlane_b32 {sr(t3)}, {vr(vKY)}, {sr(t1)}")
    e(f"v_readlane_b32 {sr(t4)}, {vr(vKL)}, {sr(t1)}")
    e(f"s_lshl_b32 {sr(t0)}, {sr(t0)}, 3")
    e(f"s_lshl_b32 {sr(t1)}, {sr(t1)}, 19")
    e(f"s_or_b32 {sr(t0)}, {sr(t0)}, {sr(t1)}")
    e(f"s_mul_i32 {sr(t0)}, {sr(t0)}, 0x101")
    e(f"s_mul_i32 {sr(t6)}, {sr(sHD)}, 0x01010101")
    e(f"s_add_u32 {sr(sBHP)}, {sr(t0)}, {sr(t6)}")
    e(f"s_add_u32 {sr(sBHP)}, {sr(sBHP)}, 0x01000100")
    e(f"s_lshr_b32 {sr(t2)}, {sr(t2)}, 4")
    e(f"s_lshr_b32 {sr(t3)}, {sr(t3)}, 4")
    c("segments: [long both heads][long extra][short both heads][short extra], steps descending")
    P = sCM + 8
    TOP = sCM + 12
    e(f"s_sub_i32 {sr(t0)}, {sr(t3)}, {sr(sEND)}")
    e(f"s_max_i32 {sr(t0)}, {sr(t0)}, 0")
    e(f"s_lshl_b32 {sr(P)}, {sr(t0)}, 1")
    e(f"s_min_u32 {sr(TOP)}, {sr(t3)}, {sr(sEND)}")
    e(f"s_sub_i32 {sr(t0)}, {sr(TOP)}, {sr(t5)}")
    e(f"s_max_i32 {sr(t0)}, {sr(t0)}, 0")
    e(f"s_add_u32 {sr(P+1)}, {sr(P)}, {sr(t0)}")
    e(f"s_sub_i32 {sr(t0)}, {sr(t2)}, {sr(sEND)}")
    e(f"s_max_i32 {sr(t0)}, {sr(t0)}, 0")
    e(f"s_lshl_b32 {sr(t0)}, {sr(t0)}, 1")
    e(f"s_add_u32 {sr(P+2)}, {sr(P+1)}, {sr(t0)}")
    e(f"s_mov_b32 {sr(TOP+1)}, {sr(t2)}")
    e(f"s_min_u32 {sr(TOP+2)}, {sr(t2)}, {sr(sEND)}")
    e(f"s_sub_i32 {sr(t0)}, {sr(TOP+2)}, {sr(t5)}")
    e(f"s_max_i32 {sr(t0)}, {sr(t0)}, 0")
    e(f"s_add_u32 {sr(P+3)}, {sr(P+2)}, {sr(t0)}")
    for i in range(3):
        e(f"v_cmp_ge_u32 {sr(sCM+2*i,2)}, {vr(vT+5)}, {sr(P+i)}")
    e(f"v_cmp_gt_u32 {sr(sCM+6,2)}, {sr(P+3)}, {vr(vT+5)}")
    e(f"v_mov_b32 {vr(vX0)}, {sr(t3)}")
    e(f"v_mov_b32 {vr(vX2)}, 0")
    for i in range(3):
        e(f"v_mov_b32 {vr(vT+i)}, {sr(P+i)}")
        e(f"v_mov_b32 {vr(vT+11+i)}, {sr(TOP+i)}")
    for i in range(3):
        e(f"v_cndmask_b32 {vr(vX2)}, {vr(vX2)}, {vr(vT+i)}, {sr(sCM+2*i,2)}")
        e(f"v_cndmask_b32 {vr(vX0)}, {vr(vX0)}, {vr(vT+11+i)}, {sr(sCM+2*i,2)}")
    e(f"s_xor_b64 vcc, {sr(sCM,2)}, {sr(sCM+2,2)}")
    e(f"s_xor_b64 vcc, vcc, {sr(sCM+4,2)}")
    e(f"v_sub_u32 {vr(vX2)}, {vr(vT+5)}, {vr(vX2)}")
    e(f"v_lshrrev_b32 {vr(vT)}, 1, {vr(vX2)}")
    e(f"v_and_b32 {vr(vX1)}, 1, {vr(vX2)}")
    e(f"v_mov_b32 {vr(vT+1)}, {sr(sS0)}")
    e(f"v_cndmask_b32 {vr(vT)}, {vr(vT)}, {vr(vX2)}, vcc")
    e(f"v_cndmask_b32 {vr(vX1)}, {vr(vX1)}, {vr(vT+1)}, vcc")
    e(f"v_sub_u32 {vr(vX0)}, {vr(vX0)}, {vr(vT)}")
    e(f"v_add_u32 {vr(vX0)}, -1, {vr(vX0)}")
    e(f"v_cndmask_b32 {vr(vT+1)}, 2, 0, {sr(sCM+2,2)}")
    e(f"v_add_u32 {vr(vX1)}, {vr(vX1)}, {vr(vT+1)}")
    e(f"v_lshlrev_b32 {vr(vX3)}, 3, {vr(vX1)}")
    e(f"v_bfe_u32 {vr(vX3)}, {sr(sBHP)}, {vr(vX3)}, 8")
    list_addr_bh()
    e("s_nop 0")
    predict()
    e(f"v_readfirstlane_b32 {sr(t2)}, {vr(vMETA)}")
    e(f"s_and_b32 {sr(t2)}, {sr(t2)}, 0xffff")
    limits(t4, t2)
    stamp(1)
    issue("K")
    c("a wave without items runs one item with no active column")
    e(f"s_bcnt1_i32_b64 {sr(sREM)}, {sr(sCM+6,2)}")
    e(f"s_cselect_b64 {sr(mIT,2)}, {sr(mSL,2)}, 0")
    e(f"s_max_u32 {sr(sREM)}, {sr(sREM)}, 1")
    e("s_branch L_go")

    def sh_issue():
        la = g.newlab()
        e(f"s_and_b32 {sr(t1)}, {sr(sZI)}, 63")
        e(f"v_readlane_b32 {sr(t0)}, {vr(vE)}, {sr(t1)}")
        e(f"s_mov_b32 m0, {sr(sSL)}")
        e(f"s_add_u32 {sr(sSL)}, {sr(sSL)}, 0x4000")
        e(f"s_and_b32 {sr(sSL)}, {sr(sSL)}, 0xffff")
        e(f"s_lshl_b32 {sr(t0)}, {sr(t0)}, 15")
        e(f"s_or_b32 {sr(sB0)}, {sr(t0)}, {sr(sH8)}")
        dma4(vKO, srdK, sB0)
        e(f"s_add_u32 {sr(sZI)}, {sr(sZI)}, {sr(sSTR)}")
        e(f"s_and_b32 {sr(t1)}, {sr(sZI)}, 63")
        e(f"s_cbranch_scc1 {la}")
        for q in range(3):
            e(f"v_mov_b32 {vr(vE+q)}, {vr(vE+q+1)}")
        lab(la)
    def sh_check():
        e(f"s_bitcmp1_b32 {sr(sW)}, 0")
        e(f"s_cselect_b64 vcc, -1, 0")
        for q in range(4):
            e(f"v_cndmask_b32 {vr(vE+q)}, {vr(vU+2*q)}, {vr(vU+2*q+1)}, vcc")
        for i in range(8):
            e(f"v_xor_b32_dpp {vr(vU+8+i)}, {vr(vU+i)}, {vr(vU+i)} row_newbcast:0 row_mask:0xf bank_mask:0xf")
        e(f"v_or3_b32 {vr(vU+8)}, {vr(vU+8)}, {vr(vU+9)}, {vr(vU+10)}")
        e(f"v_or3_b32 {vr(vU+11)}, {vr(vU+11)}, {vr(vU+12)}, {vr(vU+13)}")
        e(f"v_or3_b32 {vr(vU+8)}, {vr(vU+8)}, {vr(vU+14)}, {vr(vU+15)}")
        e(f"v_or_b32 {vr(vU+8)}, {vr(vU+8)}, {vr(vU+11)}")
        e(f"v_cmp_ne_u32 vcc, 0, {vr(vU+8)}")
        e(f"s_cmp_eq_u64 vcc, 0")
        e(f"s_cselect_b32 {sr(sSTR)}, 16, 1")
    lab("L_sh_pro")
    c("======== shared-prefix workgroup (h, part=idx): steps 16*idx..+15, wave w owns rows 4w..4w+3")
    c("guess: all rows share block = column (checked below). waves 0,1 load K, waves 2,3 load V")
    e(f"s_lshl_b32 {sr(sS0)}, {sr(sIDX)}, 4")
    e(f"s_and_b32 {sr(t1)}, {sr(sW)}, 1")
    e(f"s_lshl1_add_u32 {sr(t1)}, {sr(sS0)}, {sr(t1)}")
    e(f"v_lshl_add_u32 {vr(vE)}, {vr(vG)}, 3, {sr(t1)}")
    e(f"s_lshl_b32 {sr(sH8)}, {sr(sHD)}, 8")
    e(f"s_mov_b32 {sr(sZI)}, 0")
    e(f"s_mov_b32 {sr(sSTR)}, 16")
    e(f"s_lshl_b32 {sr(sSL)}, {sr(sW)}, 12")
    e(f"s_cmp_lt_u32 {sr(sW)}, 2")
    e("s_waitcnt lgkmcnt(0)")
    e("s_cbranch_scc1 L_sh_k")
    setup_v(vKO)
    e(f"s_mov_b64 {sr(sK,2)}, {sr(sV,2)}")
    lab("L_sh_k")
    srd_k()
    stamp(1)
    sh_issue()
    e(f"s_or_b32 {sr(t7)}, s2, {sr(sW)}")
    e("s_cbranch_scc1 L_sh_noprev")
    e(f"s_mov_b32 {sr(sN)}, 0")
    e(f"s_atomic_add {sr(sN)}, {sr(sWS,2)}, {WNON} glc")
    lab("L_sh_noprev")
    misc()
    e(f"s_mov_b32 {sr(sROLE)}, 2")
    e(f"s_mov_b32 {sr(sKS)}, {sr(sIDX)}")
    e(f"s_lshl_b32 {sr(t1)}, {sr(sW)}, 5")
    e(f"s_or_b32 {sr(t1)}, {sr(t1)}, {sr(sHD)}")
    e(f"s_mul_i32 {sr(sBHP)}, {sr(t1)}, 0x01010101")
    e(f"s_add_u32 {sr(sBHP)}, {sr(sBHP)}, 0x18100800")
    c("entries: lane (g,row=c) loads 4 steps: row*1024 + (s0+4g)*8")
    e(f"s_lshl_b32 {sr(t2)}, {sr(sS0)}, 3")
    e(f"v_lshl_add_u32 {vr(vT+3)}, {vr(vC)}, 10, {sr(t2)}")
    e(f"v_lshl_add_u32 {vr(vT+3)}, {vr(vG)}, 5, {vr(vT+3)}")
    e(f"global_load_dwordx4 {vr(vU,4)}, {vr(vT+3)}, {sr(sBT,2)}")
    e(f"global_load_dwordx4 {vr(vU+4,4)}, {vr(vT+3)}, {sr(sBT,2)} offset:16")
    col_addr()
    col_load()
    sh_issue()
    sh_issue()
    e(f"s_mov_b32 {sr(sZC)}, 0")
    e(f"s_or_b32 {sr(t7)}, s2, {sr(sW)}")
    e("s_cbranch_scc1 L_init")
    c("workgroup 0: nonce = what the previous launch left, every byte stepped through 1..255")
    e("s_waitcnt lgkmcnt(0)")
    e(f"s_mov_b32 {sr(t2)}, 0")
    for i in range(4):
        e(f"s_bfe_u32 {sr(t1)}, {sr(sN)}, 0x{0x80000+8*i:x}")
        e(f"s_cmp_eq_u32 {sr(t1)}, 0xff")
        e(f"s_cselect_b32 {sr(t1)}, 0, {sr(t1)}")
        e(f"s_add_u32 {sr(t1)}, {sr(t1)}, 1")
        if i:
            e(f"s_lshl_b32 {sr(t1)}, {sr(t1)}, {8*i}")
        e(f"s_or_b32 {sr(t2)}, {sr(t2)}, {sr(t1)}")
    e(f"s_mov_b32 {sr(t1)}, {sr(t2)}")
    e(f"s_atomic_swap {sr(t1)}, {sr(sWS,2)}, {WNON} glc")
    e("s_waitcnt lgkmcnt(0)")
    e(f"s_atomic_add {sr(t2)}, {sr(sDBG,2)}, 0x40 glc")
    e("s_waitcnt lgkmcnt(0)")
    e("s_branch L_init")
    lab("L_sh_verify")
    e(f"v_mov_b32 {vr(vKY)}, {vr(vE)}")
    sh_check()
    e(f"v_cmp_ne_u32 {sr(sCM,2)}, {vr(vKY)}, {vr(vE)}")
    e(f"s_or_b64 vcc, vcc, {sr(sCM,2)}")
    e("s_cbranch_scc0 L_sh_w")
    e("s_waitcnt vmcnt(0)")
    e(f"s_mov_b32 {sr(sZI)}, 0")
    e(f"s_lshl_b32 {sr(sSL)}, {sr(sW)}, 12")
    e(f"s_mov_b32 {sr(t7)}, 3")
    lab("L_sh_redo")
    sh_issue()
    e(f"s_sub_u32 {sr(t7)}, {sr(t7)}, 1")
    e(f"s_cmp_lg_u32 {sr(t7)}, 0")
    e("s_cbranch_scc1 L_sh_redo")

    lab("L_sh_loop")
    e(f"s_lshl_b32 {sr(t0)}, {sr(sSTR)}, 1")
    e(f"s_add_u32 {sr(t0)}, {sr(t0)}, {sr(sZC)}")
    e(f"s_cmp_lt_u32 {sr(t0)}, 256")
    e("s_waitcnt vmcnt(8)")
    e("s_cbranch_scc1 L_sh_w")
    e(f"s_cmp_eq_u32 {sr(t0)}, 256")
    e("s_waitcnt vmcnt(4)")
    e("s_cbranch_scc1 L_sh_w")
    e("s_waitcnt vmcnt(0)")
    lab("L_sh_w")
    e("s_barrier")
    e(f"s_cmp_lt_u32 {sr(sZI)}, 256")
    e("s_cbranch_scc0 L_sh_noiss")
    sh_issue()
    lab("L_sh_noiss")
    e("s_waitcnt lgkmcnt(0)")
    nonce_hook(8)
    c("step = s0 + 4*((z>>4)&3) + (z>>6), row = z&15")
    e(f"s_bfe_u32 {sr(t0)}, {sr(sZC)}, 0x20004")
    e(f"s_lshl_b32 {sr(t0)}, {sr(t0)}, 2")
    e(f"s_lshr_b32 {sr(t1)}, {sr(sZC)}, 6")
    e(f"s_add_u32 {sr(t0)}, {sr(t0)}, {sr(t1)}")
    e(f"s_add_u32 {sr(t0)}, {sr(t0)}, {sr(sS0)}")
    e(f"s_lshl_b32 {sr(sPOS)}, {sr(t0)}, 5")
    e(f"s_mov_b64 {sr(sMK,2)}, -1")
    e(f"s_cmp_eq_u32 {sr(sSTR)}, 16")
    e("s_cbranch_scc1 L_sh_go")
    e(f"s_and_b32 {sr(t0)}, {sr(sZC)}, 3")
    e(f"s_lshl_b32 {sr(t0)}, {sr(t0)}, 2")
    e(f"s_lshl_b64 {sr(sMK,2)}, {sr(mSL,2)}, {sr(t0)}")
    e(f"s_bfe_u32 {sr(t0)}, {sr(sZC)}, 0x20002")
    e(f"s_cmp_eq_u32 {sr(t0)}, {sr(sW)}")
    e("s_cbranch_scc0 L_sh_next")
    lab("L_sh_go")
    probe("cons", 0)
    kreads()
    masks()
    qk()
    e("s_nop 3")
    vreads()
    softmax_a()
    rescale()
    e("s_waitcnt lgkmcnt(0)")
    for ee in range(8):
        pv(ee)
    probe("cons", 1)
    lab("L_sh_next")
    c("advance the fragment addresses to the next ring slot")
    e(f"s_add_u32 {sr(sIT)}, {sr(sIT)}, 1")
    e(f"s_bitcmp1_b32 {sr(sIT)}, 0")
    e(f"s_cselect_b32 {sr(t0)}, 1, 3")
    e(f"s_lshl_b32 {sr(t0)}, {sr(t0)}, 14")
    for i in range(12):
        e(f"v_xor_b32 {vr(vKA+i)}, {sr(t0)}, {vr(vKA+i)}")
    e(f"s_add_u32 {sr(sZC)}, {sr(sZC)}, {sr(sSTR)}")
    e(f"s_cmp_lt_u32 {sr(sZC)}, 256")
    e("s_cbranch_scc1 L_sh_loop")
    stamp(2)
    c("publish this wave's 16 columns (transpose through its own LDS region)")
    lsum()
    part_addr(vC, None, vWS_, vA1)
    e("s_waitcnt lgkmcnt(0)")
    need_nonce()
    tag_setup()
    for i in range(32):
        tag(vO+i, i)
    tag(vLs, 1)
    e(f"v_xor_b32 {vr(vM+2)}, {vr(vM)}, {vr(vN)}")
    e(f"v_mov_b32 {vr(vM+3)}, {vr(vN)}")
    e("s_barrier")
    for ee in range(8):
        e(f"ds_write_b128 {vr(vLWa)}, {vr(vO+4*ee,4)} offset:{64*ee}")
    e(f"v_mul_u32_u24 {vr(vA2)}, {CSTR}, {vr(vG)}")
    e(f"v_lshl_add_u32 {vr(vA2)}, {vr(vC)}, 4, {vr(vA2)}")
    e(f"v_add_u32 {vr(vA2)}, {sr(sLB)}, {vr(vA2)}")
    e(f"v_lshlrev_b32 {vr(vCC)}, 12, {vr(vG)}")
    e(f"v_lshl_add_u32 {vr(vCC)}, {vr(vC)}, 4, {vr(vCC)}")
    e(f"s_lshl_b32 {sr(t6)}, {sr(sKS)}, 9")
    e("s_waitcnt lgkmcnt(0)")
    for i in range(4):
        for q in range(2):
            e(f"ds_read_b128 {vr(vOq+8*i+4*q,4)}, {vr(vA2)} offset:{4*CSTR*i+256*q}")
    e("s_mov_b64 exec, 0xffff")
    e(f"global_store_dwordx4 {vr(vWS_)}, {vr(vM,4)}, {sr(sWS,2)}{PP}") if not opt.nopub else None
    e("s_mov_b64 exec, -1")
    for i in range(4):
        slot_base(i, vSt+i, vCC)
        e(f"s_waitcnt lgkmcnt({6-2*i})")
        e(f"global_store_dwordx4 {vr(vSt+i)}, {vr(vOq+8*i,4)}, {sr(sWS,2)}{PP}") if not opt.nopub else None
        e(f"global_store_dwordx4 {vr(vSt+i)}, {vr(vOq+8*i+4,4)}, {sr(sWS,2)} offset:256{PP}") if not opt.nopub else None

    lab("L_done")
    if opt.stamps:
        e("s_waitcnt vmcnt(0)")
        stamp(3)
        e(f"s_getreg_b32 {sr(t5)}, hwreg(HW_REG_XCC_ID)")
        e(f"s_getreg_b32 {sr(t6)}, hwreg(HW_REG_HW_ID)")
        e("s_waitcnt lgkmcnt(0)")
        e(f"s_lshl_b32 {sr(t3)}, s2, 2")
        e(f"s_add_u32 {sr(t3)}, {sr(t3)}, {sr(sW)}")
        e(f"s_lshl_b32 {sr(t3)}, {sr(t3)}, 6")
        e(f"s_add_u32 {sr(t3)}, {sr(t3)}, {STAMPS}")
        e(f"s_sub_u32 {sr(sIT)}, {sr(sIT)}, 1")
        e(f"v_mov_b32 v4, {sr(t3)}")
        for i in range(8):
            e(f"v_mov_b32 v{8+i}, {sr(sST+i)}")
        e(f"v_mov_b32 v16, {sr(t5)}")
        e(f"v_mov_b32 v17, {sr(t6)}")
        for i in range(4):
            e(f"v_mov_b32 v{18+i}, {sr(sST+8+i)}")
        e(f"v_mov_b32 v22, {sr(sBHP)}")
        e(f"v_mov_b32 v23, {sr(sIT)}")
        e("s_mov_b64 exec, 1")
        e(f"global_store_dwordx4 v4, v[8:11], {sr(sWS,2)}")
        e(f"global_store_dwordx4 v4, v[12:15], {sr(sWS,2)} offset:16")
        e(f"global_store_dwordx4 v4, v[16:19], {sr(sWS,2)} offset:32")
        e(f"global_store_dwordx4 v4, v[20:23], {sr(sWS,2)} offset:48")
    if opt.amp:
        p = [int(x) for x in opt.amp.split(",")]
        a, b = p[0], p[1]
        if len(p) > 2:
            e(f"s_cmp_eq_u32 s2, {p[2]}")
            e("s_cbranch_scc0 L_end")
            e(f"s_cmp_eq_u32 {sr(sW)}, {p[3]}")
            e("s_cbranch_scc0 L_end")
        e(f"s_sub_u32 {sr(t0)}, {sr(sST+2*b)}, {sr(sST+2*a)}")
        e(f"s_lshl_b32 {sr(t0)}, {sr(t0)}, {5 if len(p)>2 else 3}")
        e(f"s_min_u32 {sr(t0)}, {sr(t0)}, 100000")
        lab("L_amp")
        e(f"s_memrealtime {sr(t2,2)}")
        e("s_waitcnt lgkmcnt(0)")
        e(f"s_sub_u32 {sr(t1)}, {sr(t2)}, {sr(sST+6)}")
        e(f"s_cmp_lt_u32 {sr(t1)}, {sr(t0)}")
        e("s_cbranch_scc1 L_amp")
    if opt.amp2:
        b, lo, hi, sh = [int(x) for x in opt.amp2.split(",")]
        neg = b >= 100
        b %= 100
        e(f"s_cmp_lt_u32 s2, {lo}")
        e("s_cbranch_scc1 L_end")
        e(f"s_cmp_ge_u32 s2, {hi}")
        e("s_cbranch_scc1 L_end")
        e("s_mov_b64 exec, -1")
        e(f"v_mov_b32 v4, 0x2f0000")
        e(f"global_load_dword v5, v4, {sr(sWS,2)} sc1")
        e("s_waitcnt vmcnt(0)")
        e(f"v_readfirstlane_b32 {sr(t4)}, v5")
        if neg:
            e(f"s_sub_u32 {sr(t0)}, {sr(t4)}, {sr(sST+2*b)}")
        else:
            e(f"s_sub_u32 {sr(t0)}, {sr(sST+2*b)}, {sr(t4)}")
        e(f"s_add_u32 {sr(t0)}, {sr(t0)}, 200")
        e(f"s_max_i32 {sr(t0)}, {sr(t0)}, 0")
        e(f"s_lshl_b32 {sr(t0)}, {sr(t0)}, {sh}")
        e(f"s_min_u32 {sr(t0)}, {sr(t0)}, 100000")
        lab("L_amp2")
        e(f"s_memrealtime {sr(t2,2)}")
        e("s_waitcnt lgkmcnt(0)")
        e(f"s_sub_u32 {sr(t1)}, {sr(t2)}, {sr(t4)}")
        e(f"s_cmp_lt_u32 {sr(t1)}, {sr(t0)}")
        e("s_cbranch_scc1 L_amp2")
    if opt.amp3:
        a, b, st = [int(x) for x in opt.amp3.split(",")]
        e(f"s_cmp_eq_u32 {sr(sW)}, 0")
        e("s_cbranch_scc0 L_end")
        e("s_mov_b64 exec, -1")
        e(f"v_mov_b32 v4, 0x2f0100")
        e(f"s_cmp_eq_u32 s2, {b}")
        e("s_cbranch_scc0 L_a3a")
        e(f"v_mov_b32 v5, {sr(sST+2*st)}")
        e(f"global_store_dword v4, v5, {sr(sWS,2)} sc1")
        lab("L_a3a")
        e(f"s_cmp_eq_u32 s2, {a}")
        e("s_cbranch_scc0 L_end")
        lab("L_a3b")
        e(f"s_memrealtime {sr(t2,2)}")
        e("s_waitcnt lgkmcnt(0)")
        e(f"s_sub_u32 {sr(t1)}, {sr(t2)}, {sr(sST)}")
        e(f"s_cmp_lt_u32 {sr(t1)}, 2800")
        e("s_cbranch_scc1 L_a3b")
        e(f"global_load_dword v5, v4, {sr(sWS,2)} sc1")
        e("s_waitcnt vmcnt(0)")
        e(f"v_readfirstlane_b32 {sr(t4)}, v5")
        e(f"s_sub_u32 {sr(t0)}, {sr(sST+2*st)}, {sr(t4)}")
        e(f"s_add_u32 {sr(t0)}, {sr(t0)}, 400")
        e(f"s_max_i32 {sr(t0)}, {sr(t0)}, 0")
        e(f"s_lshl_b32 {sr(t0)}, {sr(t0)}, 4")
        e(f"s_add_u32 {sr(t0)}, {sr(t0)}, 3000")
        e(f"s_min_u32 {sr(t0)}, {sr(t0)}, 100000")
        lab("L_a3c")
        e(f"s_memrealtime {sr(t2,2)}")
        e("s_waitcnt lgkmcnt(0)")
        e(f"s_sub_u32 {sr(t1)}, {sr(t2)}, {sr(sST)}")
        e(f"s_cmp_lt_u32 {sr(t1)}, {sr(t0)}")
        e("s_cbranch_scc1 L_a3c")
    lab("L_end")
    e("s_endpgm")

    out = HEADER + DOC
    out += f"; @launch grid=(256,1,1) block=({NW*64},1,1) lds={LDS}\n"
    out += '.amdgcn_target "amdgcn-amd-amdhsa--gfx950"\n.text\n'
    out += f".globl {NAME}_kernel\n.p2align 8\n.type {NAME}_kernel,@function\n{NAME}_kernel:\n"
    out += "\n".join(g.lines) + "\n"
    out += f""".section .rodata,"a"
.p2align 6
.amdhsa_kernel {NAME}_kernel
  .amdhsa_next_free_vgpr {NV}
  .amdhsa_next_free_sgpr 102
  .amdhsa_accum_offset {NV}
  .amdhsa_group_segment_fixed_size 0
  .amdhsa_kernarg_size 64
  .amdhsa_user_sgpr_count 2
  .amdhsa_user_sgpr_kernarg_segment_ptr 1
  .amdhsa_system_sgpr_workgroup_id_x 1
.end_amdhsa_kernel
"""
    return out

if __name__ == "__main__":
    ap = argparse.ArgumentParser()
    ap.add_argument("-o", default=f"cdna_kernels/{NAME}.s")
    ap.add_argument("--F", default="36,26,31,30")
    ap.add_argument("--spec", type=int, default=1)
    ap.add_argument("--spread", type=int, default=1)
    ap.add_argument("--rsleep", type=int, default=1)
    ap.add_argument("--lds", type=int, default=0)
    ap.add_argument("--pol", default="nt")
    ap.add_argument("--pol_out", default="")
    ap.add_argument("--stamps", action="store_true")
    ap.add_argument("--nobar", action="store_true")
    ap.add_argument("--amp", default="")
    ap.add_argument("--pf", type=int, default=0)
    ap.add_argument("--tlb", type=int, default=0)
    ap.add_argument("--tlbsh", type=int, default=21)
    ap.add_argument("--nopub", type=int, default=0)
    ap.add_argument("--pol_pub", default="sc1")
    ap.add_argument("--pol_get", default="sc1")
    ap.add_argument("--noclear", type=int, default=0)
    ap.add_argument("--nosig", type=int, default=0)
    ap.add_argument("--dummy", type=int, default=0)
    ap.add_argument("--mw", type=int, default=0)
    ap.add_argument("--amp3", default="")
    ap.add_argument("--cpf", type=int, default=0)
    ap.add_argument("--amp2", default="")
    ap.add_argument("--mid", type=int, default=1)
    ap.add_argument("--probe", default="first")
    ap.add_argument("--clk", default="s_memrealtime")
    opt = ap.parse_args()
    for k in ("pol", "pol_out", "pol_pub", "pol_get"):
        v = getattr(opt, k)
        setattr(opt, k, (" " + v.replace("+", " ")) if v else "")
    opt.code_bytes = 4096
    txt = build(opt)
    if opt.cpf:
        import subprocess, re, tempfile, os
        d = tempfile.mkdtemp()
        open(d + "/a.s", "w").write(txt)
        subprocess.check_call(["clang", "-target", "amdgcn-amd-amdhsa", "-mcpu=gfx950", "-c", d + "/a.s", "-o", d + "/a.o"])
        o = subprocess.check_output(["llvm-objdump", "-d", "--mcpu=gfx950", d + "/a.o"]).decode()
        end = int(re.search(r"^([0-9a-f]+) <L_end>:", o, re.M).group(1), 16)
        opt.code_bytes = end - 32
        txt = build(opt)
    open(opt.o, "w").write(txt)
```

```python
import sys, struct, argparse

NAME = "standalone__paged_block_table_kv_radixattention__sampling"

HEADER = """; Kernarg layout for this problem (64 bytes, ptrs only, base s[0:1]):
"""

DOC = """; Paged GQA decode attention, one launch, 256 workgroups x 4 waves.
;   ids   0..31  : first 128 table columns, all 16 rows at once when the rows name the same blocks (checked; otherwise row by row)
;   ids 128..255 : finishers, one per (row, kv head): first steps of columns 128.., then merge all partials and write the output
; The first loads of a wave use a guessed block id that is checked against the table (reloaded on a mismatch).
"""

def f2u(x):
    return struct.unpack("<I", struct.pack("<f", x))[0]

class Gen:
    def __init__(self, opt):
        self.o = opt
        self.lines = []
        self.nlab = 0
    def e(self, s):
        self.lines.append("    " + s)
    def c(self, s):
        self.lines.append("    ; " + s)
    def lab(self, name):
        self.lines.append(name + ":")
    def newlab(self, p="L"):
        self.nlab += 1
        return f"{p}_{self.nlab}"

def vr(b, n=1):
    return f"v{b}" if n == 1 else f"v[{b}:{b+n-1}]"
def sr(b, n=1):
    return f"s{b}" if n == 1 else f"s[{b}:{b+n-1}]"

def build(opt):
    g = Gen(opt)
    e, c, lab = g.e, g.c, g.lab
    NW = 4
    Fc = [int(x) for x in opt.F.split(",")]
    FPACK = sum((64 + Fc[i]) << (8*i) for i in range(4))
    KVB = 2176 * 32768
    CSTR = 528
    WSTR = 16384
    STAT = 16 * CSTR
    LDS = max(131072, opt.lds)
    pol = opt.pol
    PP = opt.pol_pub
    PG = opt.pol_get
    WSTAT = 0x200000
    STAMPS = 0x300000
    NG = 7
    NL = 21
    WNON = 0x220000
    sQ, sK, sV, sBT, sCTX, sOUT, sDBG, sWS = 4, 6, 8, 10, 12, 14, 16, 18
    srdK, srdV = 20, 24
    sBHP, sKS, sX_, sIDX = 28, 29, 30, 31
    sW, sHD, sS0, sSTR, sROLE = 32, 33, 34, 35, 36
    sIT, sREM, sLB = 37, 38, 39
    sCS, sONCE, sZI, sZC = 40, 41, 42, 43
    mSL = 44
    sB0, sB1, sPOS, sH8 = 46, 47, 48, 49
    sMK = 50
    sSL, sEND = 52, 53
    mIT = 54
    sFAST = 56
    sMW = 62
    sPHP = sBHP
    sR0, sR1, sN = 58, 59, 63
    sPOS2, sLI, sMK2 = 60, 61, 64
    sCM = 66
    t0, t1, t2, t3, t4, t5, t6, t7 = 82, 83, 84, 85, 86, 87, 88, 89
    sST = 90
    vL, vG, vC = 1, 2, 3
    vKO, vVO = 4, 8
    vQ = 12
    vO = 28
    vM, vLs, vCG = 60, 61, 62
    vMETA = 63
    vTB = 64
    vFM, vFI = 66, 67
    vS = 68
    vP = 76
    vF = 80
    vT = vF
    vLIM, vFILL, vMX, vAL, vX0, vX1, vX2, vX3 = 112, 113, 114, 115, 116, 117, 118, 119
    vKA, vVA = 120, 124
    vLE = 132
    vE = 134
    vKY, vKL = 138, 139
    vU = 140
    vGs, vGo = 140, 168
    vWO, vWS_, vOA, vLWa, vLWs, vA1, vA2, vCC = 224, 225, 226, 227, 228, 229, 230, 231
    vN = 133
    vPX = 223
    PXO = WSTR + 12288
    NV = 232

    def stamp(i):
        if opt.stamps:
            e(f"s_memrealtime {sr(sST+2*i,2)}")
    def probe(name, which):
        if opt.stamps and opt.probe == name:
            e(f"{opt.clk} {sr(sST+8+2*which,2)}")
            e("s_waitcnt lgkmcnt(0)")

    def list_addr_bh():
        c("vX0=step vX1=slot vX3=b*8+h -> vX3 table offset, vMETA")
        e(f"v_med3_i32 {vr(vX0)}, {vr(vX0)}, 0, {vr(vT+6)}")
        e(f"v_lshlrev_b32 {vr(vMETA)}, 5, {vr(vX0)}")
        e(f"v_lshl_add_u32 {vr(vMETA)}, {vr(vX1)}, 18, {vr(vMETA)}")
        e(f"v_lshl_add_u32 {vr(vMETA)}, {vr(vX3)}, 29, {vr(vMETA)}")
        e(f"v_lshrrev_b32 {vr(vX3)}, 3, {vr(vX3)}")
        e(f"v_lshlrev_b32 {vr(vX3)}, 10, {vr(vX3)}")
        e(f"v_lshl_add_u32 {vr(vX3)}, {vr(vX0)}, 3, {vr(vX3)}")
    def list_load():
        e(f"global_load_dwordx2 {vr(vTB,2)}, {vr(vX3)}, {sr(sBT,2)}")
    def predict():
        c("guess for the first item (checked against the table below): block = 128*row + column")
        e(f"v_readfirstlane_b32 {sr(t0)}, {vr(vX3)}")
        e(f"v_readfirstlane_b32 {sr(t2)}, {vr(vMETA)}")
        e(f"s_lshr_b32 {sr(t1)}, {sr(t0)}, 10")
        e(f"s_lshl_b32 {sr(t1)}, {sr(t1)}, 22")
        e(f"s_and_b32 {sr(t0)}, {sr(t0)}, 0x3ff")
        e(f"s_lshl_b32 {sr(t0)}, {sr(t0)}, 13")
        e(f"s_add_u32 {sr(t0)}, {sr(t0)}, {sr(t1)}")
        e(f"s_lshr_b32 {sr(t2)}, {sr(t2)}, 29")
        e(f"s_lshl_b32 {sr(t2)}, {sr(t2)}, 8")
        e(f"s_or_b32 {sr(sB0)}, {sr(t0)}, {sr(t2)}")
        e(f"s_add_u32 {sr(sB1)}, {sr(sB0)}, 0x8000")
    vQO, vCO = vT + 8, vT + 9
    def col_addr():
        c("per-lane column: Q offset and ctx offset")
        e(f"v_lshlrev_b32 {vr(vCO)}, 1, {vr(vC)}")
        e(f"v_and_b32 {vr(vCO)}, 24, {vr(vCO)}")
        e(f"v_bfe_u32 {vr(vCO)}, {sr(sBHP)}, {vr(vCO)}, 8")
        e(f"v_lshl_add_u32 {vr(vQO)}, {vr(vCO)}, 10, {vr(vT+10)}")
        e(f"v_lshrrev_b32 {vr(vCO)}, 1, {vr(vCO)}")
        e(f"v_and_b32 {vr(vCO)}, 60, {vr(vCO)}")
    def col_load():
        e(f"global_load_dword {vr(vCG)}, {vr(vCO)}, {sr(sCTX,2)}")
        for m in range(4):
            e(f"global_load_dwordx4 {vr(vQ+4*m,4)}, {vr(vQO)}, {sr(sQ,2)} offset:{64*m}")
    def part_addr(vcol, vo, vs, tmp):
        c("partial addresses for column vcol: row R=(b*8+h)*4+(col&3); O: R*4096 + k*512 ; stats: R*128 + k*16")
        e(f"v_lshlrev_b32 {vr(tmp)}, 1, {vr(vcol)}")
        e(f"v_and_b32 {vr(tmp)}, 24, {vr(tmp)}")
        e(f"v_bfe_u32 {vr(tmp)}, {sr(sPHP)}, {vr(tmp)}, 8")
        e(f"v_and_b32 {vr(vs)}, 3, {vr(vcol)}")
        e(f"v_lshl_add_u32 {vr(tmp)}, {vr(tmp)}, 2, {vr(vs)}")
        if vo is not None:
            e(f"s_lshl_b32 {sr(t3)}, {sr(sKS)}, 9")
            e(f"v_lshl_add_u32 {vr(vo)}, {vr(tmp)}, 12, {sr(t3)}")
        e(f"s_lshl_b32 {sr(t3)}, {sr(sKS)}, 4")
        e(f"s_add_u32 {sr(t3)}, {sr(t3)}, {WSTAT}")
        e(f"v_lshl_add_u32 {vr(vs)}, {vr(tmp)}, 7, {sr(t3)}")
    def slot_base(i, vdst, vlane):
        e(f"s_bfe_u32 {sr(t3)}, {sr(sPHP)}, 0x{0x80000+8*i:x}")
        e(f"s_lshl_b32 {sr(t3)}, {sr(t3)}, 14")
        e(f"s_add_u32 {sr(t3)}, {sr(t3)}, {sr(t6)}")
        e(f"v_add_u32 {vr(vdst)}, {sr(t3)}, {vr(vlane)}")
    def need_nonce():
        c("the nonce was normally fetched in the loop")
        la = g.newlab(); lb = g.newlab()
        e(f"s_mov_b32 {sr(t5)}, 0")
        e(f"v_mov_b32 {vr(vX0)}, 64")
        lab(la)
        e(f"s_cmp_lg_u32 {sr(sN)}, 0")
        e(f"s_cbranch_scc1 {lb}")
        e(f"global_load_dword {vr(vN)}, {vr(vX0)}, {sr(sDBG,2)} sc1")
        e("s_sleep 8")
        e(f"s_add_u32 {sr(t5)}, {sr(t5)}, 1")
        e("s_waitcnt vmcnt(0)")
        e(f"v_readfirstlane_b32 {sr(sN)}, {vr(vN)}")
        e(f"s_cmp_lt_u32 {sr(t5)}, 0x40000")
        e(f"s_cbranch_scc1 {la}")
        lab(lb)
    def tag_setup():
        e(f"v_mov_b32 {vr(vN)}, {sr(sN)}")
        for i in range(4):
            e(f"s_mov_b32 {sr(sCM+8+i)}, 0x0706050{i}")
    def tag(reg, i):
        e(f"v_perm_b32 {vr(reg)}, {vr(reg)}, {vr(vN)}, {sr(sCM+8+(i&3))}")
    def setup_k():
        c("K DMA source offsets (XOR-swizzled)")
        e(f"v_xor_b32 {vr(vT+16)}, {vr(vC)}, {vr(vG)}")
        e(f"v_lshlrev_b32 {vr(vT+17)}, 11, {vr(vG)}")
        e(f"v_lshl_add_u32 {vr(vKO)}, {vr(vT+16)}, 4, {vr(vT+17)}")
        for n in range(1, 4):
            e(f"v_xor_b32 {vr(vKO+n)}, {n<<6}, {vr(vKO)}")
            e(f"v_add_u32 {vr(vKO+n)}, {n*7168}, {vr(vKO+n)}")
        e(f"s_lshl_b32 {sr(sLI)}, {sr(sW)}, 14")
        e(f"s_mov_b32 {sr(srdK+2)}, {KVB}")
        e(f"s_mov_b32 {sr(srdK+3)}, 0x20000")
    def setup_v(dst=None):
        c("V DMA source offsets")
        d = vVO if dst is None else dst
        e(f"v_lshlrev_b32 {vr(vT+16)}, 1, {vr(vG)}")
        e(f"v_xor_b32 {vr(vT+16)}, {vr(vC)}, {vr(vT+16)}")
        e(f"v_lshl_add_u32 {vr(d)}, {vr(vT+16)}, 4, {vr(vT+17)}")
        e(f"v_xor_b32 {vr(d+1)}, 128, {vr(d)}")
        e(f"v_add_u32 {vr(d+3)}, {3*7168}, {vr(d+1)}")
        e(f"v_add_u32 {vr(d+1)}, 7168, {vr(d+1)}")
        e(f"v_add_u32 {vr(d+2)}, {2*7168}, {vr(d)}")
    def srd_k():
        e(f"s_mov_b32 {sr(srdK)}, {sr(sK)}")
        e(f"s_and_b32 {sr(srdK+1)}, {sr(sK+1)}, 0xffff")
    def srd_v():
        e(f"s_mov_b32 {sr(srdV)}, {sr(sV)}")
        e(f"s_and_b32 {sr(srdV+1)}, {sr(sV+1)}, 0xffff")
        e(f"s_mov_b32 {sr(srdV+3)}, 0x20000")
    def misc():
        e(f"v_and_b32 {vr(vL)}, 63, v0")
        e(f"v_and_b32 {vr(vX2)}, 3, v0")
        e(f"v_lshlrev_b32 {vr(vT+10)}, 4, {vr(vG)}")
        e(f"v_lshl_add_u32 {vr(vT+10)}, {vr(vX2)}, 8, {vr(vT+10)}")
        e(f"v_mov_b32 {vr(vT+6)}, 127")
        e(f"s_mov_b32 {sr(mSL)}, 0x000f000f")
        e(f"s_mov_b32 {sr(mSL+1)}, {sr(mSL)}")
        e(f"s_mov_b32 {sr(sIT)}, 0")
        e(f"s_mov_b32 {sr(sLB)}, {sr(sLI)}")
    def cpf():
        if opt.cpf:
            c("pull the kernel's code into L2: one dword per 64 bytes")
            e(f"v_lshlrev_b32 {vr(vF+30)}, 6, v0")
            e(f"v_min_u32 {vr(vF+30)}, {opt.code_bytes}, {vr(vF+30)}")
            e(f"global_load_dword {vr(vF+31)}, {vr(vF+30)}, {sr(sCM,2)}")
    def ranks():
        c("vKY: ctx of row c -> key = nsteps*16 + row ; vX3 = rank of the key")
        e(f"v_mov_b32 {vr(vX2)}, 0x1000")
        e(f"v_cmp_lt_i32 vcc, 0, {vr(vKY)}")
        e(f"v_min_i32 {vr(vKY)}, {vr(vKY)}, {vr(vX2)}")
        e(f"v_mov_b32 {vr(vX3)}, 0")
        e(f"v_cndmask_b32 {vr(vKL)}, {vr(vX2)}, {vr(vKY)}, vcc")
        e(f"v_add_u32 {vr(vKY)}, 31, {vr(vKL)}")
        e(f"v_lshrrev_b32 {vr(vKY)}, 5, {vr(vKY)}")
        e(f"v_lshl_add_u32 {vr(vKY)}, {vr(vKY)}, 4, {vr(vC)}")
        e("s_nop 1")
        for k in range(1, 16):
            e(f"v_sub_u32_dpp {vr(vT+(k&3))}, {vr(vKY)}, {vr(vKY)} row_ror:{k} row_mask:0xf bank_mask:0xf")
            e(f"v_lshrrev_b32 {vr(vT+(k&3))}, 31, {vr(vT+(k&3))}")
            e(f"v_add_u32 {vr(vX3)}, {vr(vX3)}, {vr(vT+(k&3))}")
    PARTS = {"A": range(0, 4), "B": range(4, NG)}
    def gload(part):
        for i, k in enumerate(PARTS[part]):
            e(f"global_load_dwordx4 {vr(vGs+4*i,4)}, {vr(vWS_)}, {sr(sWS,2)} offset:{16*k}{PG}")
            for q in range(2):
                e(f"global_load_dwordx4 {vr(vGo+8*i+4*q,4)}, {vr(vWO)}, {sr(sWS,2)} offset:{512*k+256*q}{PG}")
    def lsum():
        c("reduce l over the 4 lane groups")
        e(f"v_mov_b32 {vr(vX0)}, {vr(vLs)}")
        e("s_nop 1")
        e(f"v_permlane32_swap_b32 {vr(vLs)}, {vr(vX0)}")
        e(f"v_add_f32 {vr(vLs)}, {vr(vLs)}, {vr(vX0)}")
        e(f"v_mov_b32 {vr(vX0)}, {vr(vLs)}")
        e("s_nop 1")
        e(f"v_permlane16_swap_b32 {vr(vLs)}, {vr(vX0)}")
        e(f"v_add_f32 {vr(vLs)}, {vr(vLs)}, {vr(vX0)}")
    def limits(tl, pos):
        c("tokens past the context are not fetched: they fall outside num_records and read as zero")
        e(f"s_sub_i32 {sr(tl)}, {sr(tl)}, {sr(pos)}")
        e(f"s_max_i32 {sr(tl)}, {sr(tl)}, 0")
        e(f"s_min_u32 {sr(t0)}, {sr(tl)}, 16")
        e(f"s_min_u32 {sr(t1)}, {sr(tl)}, 32")
        e(f"s_sub_u32 {sr(t1)}, {sr(t1)}, {sr(t0)}")
        e(f"s_lshl_b32 {sr(t0)}, {sr(t0)}, 11")
        e(f"s_lshl_b32 {sr(t1)}, {sr(t1)}, 11")
        e(f"s_add_u32 {sr(t0)}, {sr(t0)}, {sr(sB0)}")
        e(f"s_add_u32 {sr(t1)}, {sr(t1)}, {sr(sB1)}")
        e(f"s_min_u32 {sr(sR0)}, {sr(t0)}, {KVB}")
        e(f"s_min_u32 {sr(sR1)}, {sr(t1)}, {KVB}")
    def fetch():
        e(f"v_readlane_b32 {sr(t2)}, {vr(vMETA)}, {sr(sIT)}")
        e(f"v_readlane_b32 {sr(t0)}, {vr(vTB)}, {sr(sIT)}")
        e(f"v_readlane_b32 {sr(t1)}, {vr(vTB+1)}, {sr(sIT)}")
        e(f"s_bfe_u32 {sr(t3)}, {sr(t2)}, 0x40010")
        e(f"s_lshr_b32 {sr(t4)}, {sr(t2)}, 29")
        e(f"v_readlane_b32 {sr(t5)}, {vr(vLE)}, {sr(t3)}")
        e(f"s_lshl_b32 {sr(t4)}, {sr(t4)}, 8")
        e(f"s_lshl_b32 {sr(t0)}, {sr(t0)}, 15")
        e(f"s_lshl_b32 {sr(t1)}, {sr(t1)}, 15")
        e(f"s_or_b32 {sr(sB0)}, {sr(t0)}, {sr(t4)}")
        e(f"s_or_b32 {sr(sB1)}, {sr(t1)}, {sr(t4)}")
        e(f"s_and_b32 {sr(sPOS2)}, {sr(t2)}, 0xffff")
        e(f"s_lshl_b64 {sr(sMK2,2)}, {sr(mIT,2)}, {sr(t3)}")
        e(f"s_add_u32 {sr(sIT)}, {sr(sIT)}, 1")
        limits(t5, sPOS2)
    def adv():
        e(f"s_mov_b32 {sr(sPOS)}, {sr(sPOS2)}")
        e(f"s_mov_b64 {sr(sMK,2)}, {sr(sMK2,2)}")
    def decode():
        pass
    def dma4(off, srd, soff):
        for n in range(4):
            o = f" offset:{1024*n}" if n else ""
            e(f"buffer_load_dwordx4 {vr(off+n)}, {sr(srd,4)}, {sr(soff)} offen{o}{pol} lds")
    def issue(kv):
        off = vVO if kv == "V" else vKO
        srd = srdV if kv == "V" else srdK
        base = 8192 if kv == "V" else 0
        if base:
            e(f"s_add_u32 m0, {sr(sLI)}, {base}")
        else:
            e(f"s_mov_b32 m0, {sr(sLI)}")
        e(f"s_mov_b32 {sr(srd+2)}, {sr(sR0)}")
        dma4(off, srd, sB0)
        e(f"s_add_u32 m0, {sr(sLI)}, {base+4096}")
        e(f"s_mov_b32 {sr(srd+2)}, {sr(sR1)}")
        dma4(off, srd, sB1)
    e("s_cmp_ge_u32 s2, 256")
    e("s_cbranch_scc1 L_end")
    e(f"s_load_dwordx16 s[4:19], s[0:1], 0")
    stamp(0)
    if opt.cpf:
        e(f"s_getpc_b64 {sr(sCM,2)}")
    e(f"v_lshrrev_b32 {vr(vX0)}, 6, v0")
    e(f"v_and_b32 {vr(vC)}, 15, v0")
    e(f"v_bfe_u32 {vr(vG)}, v0, 4, 2")
    e(f"v_readfirstlane_b32 {sr(sW)}, {vr(vX0)}")
    e(f"s_lshr_b32 {sr(sIDX)}, s2, 3")
    c("head: bit1 = id&1, bits 0/2 rotate with idx")
    e(f"s_lshr_b32 {sr(t0)}, s2, 1")
    e(f"s_add_u32 {sr(t0)}, {sr(t0)}, {sr(sIDX)}")
    e(f"s_and_b32 {sr(t1)}, {sr(t0)}, 2")
    e(f"s_and_b32 {sr(t0)}, {sr(t0)}, 1")
    e(f"s_and_b32 {sr(t2)}, s2, 1")
    e(f"s_or_b32 {sr(t1)}, {sr(t1)}, {sr(t2)}")
    e(f"s_lshl1_add_u32 {sr(sHD)}, {sr(t1)}, {sr(t0)}")
    setup_k()
    e(f"s_cmp_lt_u32 {sr(sIDX)}, 16")
    e("s_cbranch_scc1 L_helper")
    c("======== finisher (b, h): steps 64+w+4*lane")
    c("guess for the first item (checked against the table below): block = 128*row + column")
    e(f"s_sub_u32 {sr(t0)}, {sr(sIDX)}, 15")
    e(f"s_lshl_b32 {sr(t0)}, {sr(t0)}, 6")
    e(f"s_add_u32 {sr(t0)}, {sr(t0)}, {sr(sW)}")
    e(f"s_lshl_b32 {sr(t0)}, {sr(t0)}, 8")
    e(f"s_add_u32 {sr(t0)}, {sr(t0)}, {sr(sHD)}")
    e(f"s_lshl_b32 {sr(sB0)}, {sr(t0)}, 8")
    e(f"s_add_u32 {sr(sB1)}, {sr(sB0)}, 0x8000")
    e(f"s_mov_b32 {sr(sR0)}, {sr(sB1)}")
    e(f"s_add_u32 {sr(sR1)}, {sr(sB1)}, 0x8000")
    e("s_waitcnt lgkmcnt(0)")
    srd_k()
    stamp(1)
    issue("K")
    misc()
    e(f"s_mov_b32 {sr(sROLE)}, 1")
    e(f"s_and_b32 {sr(t1)}, s2, 0x78")
    e(f"s_or_b32 {sr(t1)}, {sr(t1)}, {sr(sHD)}")
    e(f"s_mul_i32 {sr(sBHP)}, {sr(t1)}, 0x01010101")
    e(f"s_add_u32 {sr(t2)}, {sr(sW)}, 64")
    e(f"v_lshl_add_u32 {vr(vX0)}, {vr(vL)}, 2, {sr(t2)}")
    e(f"v_mov_b32 {vr(vX1)}, 0")
    e(f"v_mov_b32 {vr(vX3)}, {sr(t1)}")
    list_addr_bh()
    e(f"s_and_b32 {sr(t0)}, {sr(sHD)}, 3")
    e(f"s_lshl_b32 {sr(t0)}, {sr(t0)}, 3")
    e(f"s_lshr_b32 {sr(sEND)}, 0x{FPACK:08x}, {sr(t0)}")
    e(f"s_and_b32 {sr(sEND)}, {sr(sEND)}, 0xff")
    e(f"s_mov_b32 {sr(sKS)}, 0")
    e(f"s_mov_b64 {sr(mIT,2)}, -1")
    lab("L_go")
    list_load()
    col_addr()
    col_load()
    setup_v()
    srd_v()
    issue("V")
    lab("L_init")
    if opt.amp2:
        e(f"s_or_b32 {sr(t0)}, s2, {sr(sW)}")
        e("s_cbranch_scc1 L_noref")
        e(f"v_mov_b32 {vr(vX0)}, 0x2f0000")
        e(f"v_mov_b32 {vr(vX1)}, {sr(sST)}")
        e(f"global_store_dword {vr(vX0)}, {vr(vX1)}, {sr(sWS,2)} sc1")
        lab("L_noref")
    e(f"s_mov_b32 {sr(sCS)}, 0x{f2u(128**-0.5 * 1.4426950408889634):08x}")
    for i in range(32):
        e(f"v_mov_b32 {vr(vO+i)}, 0")
    e(f"v_mov_b32 {vr(vM)}, 0x{f2u(-1e30):08x}")
    e(f"v_mov_b32 {vr(vLs)}, 0")
    e(f"v_mov_b32 {vr(vFM)}, 0x{f2u(-1e9/(128**-0.5)):08x}")
    e(f"v_mov_b32 {vr(vFI)}, 0x{f2u(-3e38):08x}")
    c("LDS fragment addresses")
    e(f"s_cmp_eq_u32 {sr(sROLE)}, 2")
    e(f"s_cselect_b32 {sr(t0)}, 0, {sr(sLB)}")
    e(f"v_xor_b32 {vr(vX0)}, {vr(vC)}, {vr(vG)}")
    e(f"v_lshl_add_u32 {vr(vX1)}, {vr(vC)}, 8, {sr(t0)}")
    e(f"v_lshl_add_u32 {vr(vKA)}, {vr(vX0)}, 4, {vr(vX1)}")
    for m in range(1, 4):
        e(f"v_xor_b32 {vr(vKA+m)}, {m<<6}, {vr(vKA)}")
    e(f"v_lshrrev_b32 {vr(vX0)}, 2, {vr(vL)}")
    e(f"v_lshl_add_u32 {vr(vX1)}, {vr(vX0)}, 8, {sr(t0)}")
    e(f"v_and_b32 {vr(vX0)}, 7, {vr(vX0)}")
    e(f"v_lshl_add_u32 {vr(vX1)}, {vr(vX0)}, 5, {vr(vX1)}")
    e(f"v_and_b32 {vr(vX0)}, 3, {vr(vL)}")
    e(f"v_lshl_add_u32 {vr(vVA)}, {vr(vX0)}, 3, {vr(vX1)}")
    for ee in range(1, 8):
        e(f"v_xor_b32 {vr(vVA+ee)}, {ee<<5}, {vr(vVA)}")
    c("epilogue addresses")
    e(f"s_cmp_eq_u32 {sr(sROLE)}, 1")
    e(f"s_cselect_b32 {sr(t0)}, 3, 15")
    e(f"v_lshrrev_b32 {vr(vCC)}, 4, v0")
    e(f"v_and_b32 {vr(vCC)}, {sr(t0)}, {vr(vCC)}")
    part_addr(vCC, vWO, vWS_, vX0)
    e(f"v_lshl_add_u32 {vr(vWO)}, {vr(vC)}, 4, {vr(vWO)}")
    e(f"v_mul_u32_u24 {vr(vLWa)}, {CSTR}, {vr(vC)}")
    e(f"v_lshl_add_u32 {vr(vLWa)}, {vr(vG)}, 4, {vr(vLWa)}")
    e(f"v_add_u32 {vr(vLWa)}, {sr(sLB)}, {vr(vLWa)}")
    e(f"v_lshl_add_u32 {vr(vLWs)}, {vr(vC)}, 3, {sr(sLB)}")
    e(f"v_lshlrev_b32 {vr(vA1)}, 3, {vr(vCC)}")
    e(f"v_mul_u32_u24 {vr(vA2)}, {CSTR}, {vr(vCC)}")
    e(f"v_lshl_add_u32 {vr(vA2)}, {vr(vC)}, 4, {vr(vA2)}")
    e(f"s_and_b32 {sr(t3)}, {sr(sBHP)}, 0xff")
    e(f"s_lshl_b32 {sr(t3)}, {sr(t3)}, 10")
    e(f"v_lshl_add_u32 {vr(vOA)}, {vr(vG)}, 8, {sr(t3)}")
    e(f"v_lshl_add_u32 {vr(vOA)}, {vr(vC)}, 3, {vr(vOA)}")
    e(f"s_add_u32 {sr(sMW)}, {sr(sW)}, 1")
    e(f"s_cmp_lt_u32 {sr(sW)}, 2")
    e(f"s_cselect_b32 {sr(sMW)}, {sr(sMW)}, 0")
    e(f"s_mul_i32 {sr(sMW)}, {sr(sMW)}, {sr(sROLE)}")
    e(f"v_lshlrev_b32 {vr(vPX)}, 4, {vr(vL)}")
    e(f"s_mov_b32 {sr(sN)}, 0")
    c("table/ctx/Q were issued before the first V loads (shared role: before items 1,2)")
    e(f"s_cmp_eq_u32 {sr(sROLE)}, 2")
    e("s_waitcnt vmcnt(8)")
    e(f"v_mov_b32 {vr(vX1)}, 0x1000")
    e(f"v_cmp_lt_i32 vcc, 0, {vr(vCG)}")
    e(f"v_lshlrev_b32 {vr(vX0)}, 2, {vr(vG)}")
    e(f"v_med3_i32 {vr(vCG)}, {vr(vCG)}, 0, {vr(vX1)}")
    e(f"v_cndmask_b32 {vr(vLE)}, {vr(vX1)}, {vr(vCG)}, vcc")
    e(f"v_sub_u32 {vr(vCG)}, {vr(vCG)}, {vr(vX0)}")
    e("s_cbranch_scc1 L_sh_verify")
    e(f"s_mov_b64 {sr(sCM,2)}, {sr(sB0,2)}")
    e(f"s_mov_b64 {sr(sCM+2,2)}, {sr(sR0,2)}")
    fetch()
    e(f"s_xor_b64 {sr(sCM,2)}, {sr(sCM,2)}, {sr(sB0,2)}")
    e(f"s_xor_b64 {sr(sCM+2,2)}, {sr(sCM+2,2)}, {sr(sR0,2)}")
    e(f"s_or_b64 {sr(sCM,2)}, {sr(sCM,2)}, {sr(sCM+2,2)}")
    e("s_cbranch_scc1 L_respec")
    lab("L_specok")
    e(f"s_cmp_eq_u32 {sr(sROLE)}, 1")
    e("s_cbranch_scc0 L_cnt")
    c("finisher item count (at least one: a step past the context is fully masked)")
    e(f"v_readfirstlane_b32 {sr(t1)}, {vr(vLE)}")
    e(f"s_add_u32 {sr(t1)}, {sr(t1)}, 31")
    e(f"s_lshr_b32 {sr(t1)}, {sr(t1)}, 5")
    e(f"s_min_u32 {sr(t1)}, {sr(t1)}, {sr(sEND)}")
    e(f"s_sub_i32 {sr(t1)}, {sr(t1)}, {sr(sW)}")
    e(f"s_sub_i32 {sr(t1)}, {sr(t1)}, 61")
    e(f"s_ashr_i32 {sr(t1)}, {sr(t1)}, 2")
    e(f"s_max_i32 {sr(sREM)}, {sr(t1)}, 1")
    lab("L_cnt")
    adv()
    fetch()
    e(f"s_cmp_eq_u32 {sr(sREM)}, 1")
    e("s_cbranch_scc1 L_loop")
    e(f"s_xor_b32 {sr(sLI)}, {sr(sLI)}, 0x10000")
    issue("K"); issue("V")
    e(f"s_xor_b32 {sr(sLI)}, {sr(sLI)}, 0x10000")

    def kreads():
        for m in range(4):
            e(f"ds_read_b128 {vr(vF+8*m,4)}, {vr(vKA+m)}")
            e(f"ds_read_b128 {vr(vF+8*m+4,4)}, {vr(vKA+m)} offset:4096")
    def qk():
        for m in range(4):
            e(f"s_waitcnt lgkmcnt({6-2*m})")
            c0 = "0" if m == 0 else vr(vS, 4)
            c1 = "0" if m == 0 else vr(vS+4, 4)
            e(f"v_mfma_f32_16x16x32_bf16 {vr(vS,4)}, {vr(vF+8*m,4)}, {vr(vQ+4*m,4)}, {c0}")
            e(f"v_mfma_f32_16x16x32_bf16 {vr(vS+4,4)}, {vr(vF+8*m+4,4)}, {vr(vQ+4*m,4)}, {c1}")
    def masks():
        e(f"v_subrev_u32 {vr(vLIM)}, {sr(sPOS)}, {vr(vCG)}")
        e(f"v_cndmask_b32 {vr(vLIM)}, 0, {vr(vLIM)}, {sr(sMK,2)}")
        e(f"v_cndmask_b32 {vr(vFILL)}, {vr(vFI)}, {vr(vFM)}, {sr(sMK,2)}")
        e(f"v_cmp_gt_i32 {sr(sFAST,2)}, 20, {vr(vLIM)}")
    def vreads():
        for ee in range(8):
            e(f"ds_read_b64_tr_b16 {vr(vF+4*ee,2)}, {vr(vVA+ee)} offset:8192")
            e(f"ds_read_b64_tr_b16 {vr(vF+4*ee+2,2)}, {vr(vVA+ee)} offset:12288")
    def softmax_a():
        la = g.newlab()
        e(f"s_cmp_eq_u64 {sr(sFAST,2)}, 0")
        e(f"s_cbranch_scc1 {la}")
        for j in range(8):
            e(f"v_cmp_lt_i32 {sr(sCM+2*j,2)}, {(j>>2)*16+(j&3)}, {vr(vLIM)}")
        for j in range(8):
            e(f"v_cndmask_b32 {vr(vS+j)}, {vr(vFILL)}, {vr(vS+j)}, {sr(sCM+2*j,2)}")
        lab(la)
        e(f"v_max3_f32 {vr(vMX)}, {vr(vS)}, {vr(vS+1)}, {vr(vS+2)}")
        e(f"v_max3_f32 {vr(vX0)}, {vr(vS+3)}, {vr(vS+4)}, {vr(vS+5)}")
        e(f"v_max3_f32 {vr(vMX)}, {vr(vMX)}, {vr(vS+6)}, {vr(vS+7)}")
        e(f"v_max3_f32 {vr(vMX)}, {vr(vMX)}, {vr(vX0)}, {vr(vM)}")
        e(f"v_mov_b32 {vr(vX0)}, {vr(vMX)}")
        e("s_nop 1")
        e(f"v_permlane32_swap_b32 {vr(vMX)}, {vr(vX0)}")
        e(f"v_max_f32 {vr(vMX)}, {vr(vMX)}, {vr(vX0)}")
        e(f"v_mov_b32 {vr(vX0)}, {vr(vMX)}")
        e("s_nop 1")
        e(f"v_permlane16_swap_b32 {vr(vMX)}, {vr(vX0)}")
        e(f"v_max_f32 {vr(vMX)}, {vr(vMX)}, {vr(vX0)}")
        e(f"v_mul_f32 {vr(vX1)}, {sr(sCS)}, {vr(vMX)}")
        e(f"v_sub_f32 {vr(vAL)}, {vr(vM)}, {vr(vMX)}")
        e(f"v_cmp_lt_f32 vcc, {vr(vM)}, {vr(vMX)}")
        for j in range(8):
            e(f"v_fma_f32 {vr(vS+j)}, {vr(vS+j)}, {sr(sCS)}, -{vr(vX1)}")
        e(f"v_mul_f32 {vr(vAL)}, {sr(sCS)}, {vr(vAL)}")
        for j in range(8):
            e(f"v_exp_f32 {vr(vS+j)}, {vr(vS+j)}")
        e(f"v_exp_f32 {vr(vAL)}, {vr(vAL)}")
        e(f"v_mov_b32 {vr(vM)}, {vr(vMX)}")
        for u in range(4):
            e(f"v_cvt_pk_bf16_f32 {vr(vP+u)}, {vr(vS+2*u)}, {vr(vS+2*u+1)}")
        e(f"v_pk_add_f32 {vr(vS,2)}, {vr(vS,2)}, {vr(vS+2,2)}")
        e(f"v_pk_add_f32 {vr(vS+4,2)}, {vr(vS+4,2)}, {vr(vS+6,2)}")
        e(f"v_pk_add_f32 {vr(vS,2)}, {vr(vS,2)}, {vr(vS+4,2)}")
        e(f"v_fma_f32 {vr(vLs)}, {vr(vLs)}, {vr(vAL)}, {vr(vS)}")
        e(f"v_add_f32 {vr(vLs)}, {vr(vLs)}, {vr(vS+1)}")
    def rescale():
        la = g.newlab()
        e(f"s_cbranch_vccz {la}")
        for i in range(0, 32, 2):
            e(f"v_pk_mul_f32 {vr(vO+i,2)}, {vr(vO+i,2)}, {vr(vMX,2)} op_sel:[0,1] op_sel_hi:[1,1]")
        lab(la)
    def pv(ee):
        ob = vO + 4*ee
        e(f"v_mfma_f32_16x16x32_bf16 {vr(ob,4)}, {vr(vF+4*ee,4)}, {vr(vP,4)}, {vr(ob,4)}")

    lab("L_loop")
    e(f"s_cmp_gt_u32 {sr(sREM)}, 1")
    e("s_waitcnt vmcnt(24) lgkmcnt(0)")
    e("s_cbranch_scc1 L_kok")
    e("s_waitcnt vmcnt(8)")
    lab("L_kok")
    if opt.stamps and opt.probe == "first":
        e(f"s_cmp_eq_u32 {sr(sIT)}, 1")
        e(f"s_cbranch_scc0 L_q1")
        stamp(4)
        e("s_waitcnt lgkmcnt(0)")
        lab("L_q1")
    kreads()
    masks()
    adv()
    fetch()
    qk()
    e(f"s_cmp_le_u32 {sr(sREM)}, 2")
    e("s_cbranch_scc1 L_noK")
    if not opt.lateK:
        issue("K")
    else:
        e("s_nop 6")
    e("s_branch L_sm")
    lab("L_noK")
    e(f"s_cmp_eq_u32 {sr(sREM)}, 1")
    e(f"s_cselect_b32 {sr(t0)}, {sr(sMW)}, 0")
    e(f"s_cmp_lg_u32 {sr(t0)}, 0")
    e("s_cbranch_scc1 L_early")
    e("s_nop 6")
    lab("L_sm")
    softmax_a()
    rescale()
    e(f"s_cmp_eq_u32 {sr(sREM)}, 1")
    e("s_cbranch_scc1 L_last")
    if opt.lateK == 1:
        issue("K")
        e("s_waitcnt vmcnt(8)")
    elif opt.lateK == 2:
        e("s_waitcnt vmcnt(4)")
        issue("K")
        e("s_waitcnt vmcnt(8)")
    elif opt.lateK == 3:
        e("s_waitcnt vmcnt(0)")
        issue("K")
    else:
        e(f"s_cmp_gt_u32 {sr(sREM)}, 2")
        e("s_waitcnt vmcnt(24)")
        e("s_cbranch_scc1 L_vok")
        e("s_waitcnt vmcnt(16)")
    e("s_branch L_vok")
    lab("L_last")
    lsum()
    e(f"s_cmp_eq_u32 {sr(sMW)}, 2")
    e("s_waitcnt vmcnt(12)")
    e("s_cbranch_scc1 L_vok")
    e(f"s_cmp_eq_u32 {sr(sMW)}, 1")
    e("s_waitcnt vmcnt(9)")
    e("s_cbranch_scc1 L_vok")
    e("s_waitcnt vmcnt(0)")
    lab("L_vok")
    vreads()
    for ee in range(8):
        e(f"s_waitcnt lgkmcnt({14-2*ee})")
        pv(ee)
    e(f"s_cmp_eq_u32 {sr(sREM)}, 1")
    e("s_cbranch_scc1 L_epi")
    e(f"s_cmp_eq_u32 {sr(sREM)}, 2")
    e("s_cbranch_scc1 L_noV")
    issue("V")
    lab("L_noV")
    e(f"s_xor_b32 {sr(sLI)}, {sr(sLI)}, 0x10000")
    for i in range(12):
        e(f"v_xor_b32 {vr(vKA+i)}, 0x10000, {vr(vKA+i)}")
    c("a cached load of the nonce can only be stale towards 0")
    e(f"s_cmp_eq_u32 {sr(sIT)}, 5")
    e("s_cbranch_scc0 L_hook_done")
    e(f"s_load_dword {sr(sN)}, {sr(sDBG,2)}, 0x40")
    lab("L_hook_done")
    if opt.stamps and opt.probe == "first":
        e(f"s_cmp_eq_u32 {sr(sIT)}, {opt.mid+1}")
        e(f"s_cbranch_scc0 L_q2")
        stamp(5)
        e("s_waitcnt lgkmcnt(0)")
        lab("L_q2")
    e(f"s_sub_u32 {sr(sREM)}, {sr(sREM)}, 1")
    e("s_branch L_loop")

    lab("L_epi")
    stamp(2)
    vSt = vS
    vOq = vF
    vR = 12
    vWt = 20
    c("finishers only need columns 0..3")
    e(f"s_cmp_eq_u32 {sr(sROLE)}, 1")
    e(f"s_cselect_b64 exec, {sr(mSL,2)}, -1")
    e(f"ds_write_b64 {vr(vLWs)}, {vr(vM,2)} offset:{STAT}")
    e("s_nop 1")
    for ee in range(8):
        e(f"ds_write_b128 {vr(vLWa)}, {vr(vO+4*ee,4)} offset:{64*ee}")
    e("s_mov_b64 exec, -1")
    e("s_cbranch_scc1 L_fin")

    def maxchain(ms):
        e(f"v_max3_f32 {vr(vMX)}, {vr(ms[0])}, {vr(ms[1])}, {vr(ms[2])}")
        i = 3
        while i < len(ms):
            if i + 1 < len(ms):
                e(f"v_max3_f32 {vr(vMX)}, {vr(vMX)}, {vr(ms[i])}, {vr(ms[i+1])}"); i += 2
            else:
                e(f"v_max_f32 {vr(vMX)}, {vr(vMX)}, {vr(ms[i])}"); i += 1
        for i in range(len(ms)):
            e(f"v_sub_f32 {vr(vWt+i)}, {vr(ms[i])}, {vr(vMX)}")
        for i in range(len(ms)):
            e(f"v_mul_f32 {vr(vWt+i)}, {sr(sCS)}, {vr(vWt+i)}")
        for i in range(len(ms)):
            e(f"v_exp_f32 {vr(vWt+i)}, {vr(vWt+i)}")
    def axpy(dst, src, wi, first):
        wp = vWt + (wi & ~1); sl = wi & 1
        for r in range(0, 8, 2):
            if first:
                e(f"v_pk_mul_f32 {vr(dst+r,2)}, {vr(src+r,2)}, {vr(wp,2)} op_sel:[0,{sl}] op_sel_hi:[1,{sl}]")
            else:
                e(f"v_pk_fma_f32 {vr(dst+r,2)}, {vr(src+r,2)}, {vr(wp,2)}, {vr(dst+r,2)} op_sel:[0,{sl},0] op_sel_hi:[1,{sl},1]")
    def premerge(n):
        maxchain([vGs+4*k for k in range(n)])
        e(f"v_mov_b32 {vr(vGs)}, {vr(vMX)}")
        e(f"v_mul_f32 {vr(vGs+1)}, {vr(vWt)}, {vr(vGs+1)}")
        axpy(vGo, vGo, 0, True)
        for i in range(1, n):
            e(f"v_fmac_f32 {vr(vGs+1)}, {vr(vWt+i)}, {vr(vGs+4*i+1)}")
            axpy(vGo, vGo+8*i, i, False)
    def lds_reduce(nglob):
        c("thread: column vCC, quads vC and vC+16")
        e("s_waitcnt lgkmcnt(0)")
        e("s_barrier")
        if nglob:
            probe("tail", 1)
        for w in range(NW):
            e(f"ds_read_b64 {vr(vSt+2*w,2)}, {vr(vA1)} offset:{WSTR*w+STAT}")
        if nglob:
            e(f"ds_read_b64 {vr(vGs+4,2)}, {vr(vPX)} offset:{PXO+2048}")
            e(f"ds_read_b128 {vr(vGo+8,4)}, {vr(vPX)} offset:{PXO}")
            e(f"ds_read_b128 {vr(vGo+12,4)}, {vr(vPX)} offset:{PXO+1024}")
        for w in range(NW):
            for q in range(2):
                e(f"ds_read_b128 {vr(vOq+8*w+4*q,4)}, {vr(vA2)} offset:{WSTR*w+256*q}")
        e(f"s_waitcnt lgkmcnt({2*NW})")
        ms = [vSt+2*w for w in range(NW)]
        ls = [vSt+2*w+1 for w in range(NW)]
        os_ = [vOq+8*w for w in range(NW)]
        if nglob:
            ms += [vGs, vGs+4]; ls += [vGs+1, vGs+5]; os_ += [vGo, vGo+8]
        maxchain(ms)
        e("s_nop 0")
        e(f"v_mul_f32 {vr(vAL)}, {vr(vWt)}, {vr(ls[0])}")
        for i in range(1, len(ms)):
            e(f"v_fmac_f32 {vr(vAL)}, {vr(vWt+i)}, {vr(ls[i])}")
        if nglob:
            e(f"v_rcp_f32 {vr(vAL)}, {vr(vAL)}")
        order_ = list(range(NW, len(ms))) + list(range(NW))
        first = True
        for i in order_:
            if i < NW:
                e(f"s_waitcnt lgkmcnt({2*(NW-1-i)})")
            axpy(vR, os_[i], i, first)
            first = False

    c("---------- mixed helper: publish the workgroup partial, every word tagged with a byte of the nonce")
    need_nonce()
    tag_setup()
    lds_reduce(0)
    for r in range(8):
        tag(vR+r, r)
    tag(vAL, 1)
    e(f"v_xor_b32 {vr(vX0)}, {vr(vMX)}, {vr(vN)}")
    e(f"v_mov_b32 {vr(vX1)}, {vr(vN)}")
    e(f"global_store_dwordx4 {vr(vWO)}, {vr(vR,4)}, {sr(sWS,2)}{PP}") if not opt.nopub else None
    e(f"global_store_dwordx4 {vr(vWO)}, {vr(vR+4,4)}, {sr(sWS,2)} offset:256{PP}") if not opt.nopub else None
    e(f"v_cmp_eq_u32 vcc, 0, {vr(vC)}")
    e(f"s_and_saveexec_b64 {sr(sCM,2)}, vcc")
    e(f"global_store_dwordx4 {vr(vWS_)}, {vr(vMX,4)}, {sr(sWS,2)}{PP}") if not opt.nopub else None
    e(f"s_mov_b64 exec, {sr(sCM,2)}")
    e("s_branch L_done")

    c("---------- finisher")
    lab("L_fin")
    e(f"s_cmp_lg_u32 {sr(sMW)}, 0")
    e("s_cbranch_scc1 L_merge")
    e("s_waitcnt lgkmcnt(0)")
    e("s_barrier")
    e("s_branch L_done")
    lab("L_merge")
    need_nonce()
    for i in range(4):
        e(f"s_bfe_u32 {sr(sCM+8+i)}, {sr(sN)}, 0x{0x80000+8*i:x}")
    def untag(ks, acc, acc2):
        c("strip the tags (a matching tag leaves a zero low byte) and collect what is left of them")
        regs = []
        for k in ks:
            e(f"v_xor_b32 {vr(vGs+4*k+1)}, {sr(sCM+9)}, {vr(vGs+4*k+1)}")
            e(f"v_xor_b32 {vr(vGs+4*k+2)}, {vr(vGs+4*k)}, {vr(vGs+4*k+2)}")
            regs.append(vGs+4*k+1)
            for r in range(8):
                e(f"v_xor_b32 {vr(vGo+8*k+r)}, {sr(sCM+8+(r&3))}, {vr(vGo+8*k+r)}")
                regs.append(vGo+8*k+r)
        first = True
        for k in ks:
            e(f"v_msad_u8 {vr(acc2)}, {vr(vGs+4*k+2)}, {sr(sN)}, {'0' if first else vr(acc2)}")
            first = False
        e(f"v_or3_b32 {vr(acc)}, {vr(regs[0])}, {vr(regs[1])}, {vr(regs[2])}")
        i = 3
        while i < len(regs):
            if i + 1 < len(regs):
                e(f"v_or3_b32 {vr(acc)}, {vr(acc)}, {vr(regs[i])}, {vr(regs[i+1])}"); i += 2
            else:
                e(f"v_or_b32 {vr(acc)}, {vr(acc)}, {vr(regs[i])}"); i += 1
        e(f"v_and_b32 {vr(acc)}, 0xff, {vr(acc)}")
        e(f"v_or_b32 {vr(acc)}, {vr(acc)}, {vr(acc2)}")
        e(f"v_cmp_ne_u32 vcc, 0, {vr(acc)}")
    e(f"s_mov_b32 {sr(t5)}, 0")
    e(f"s_cmp_eq_u32 {sr(sMW)}, 1")
    e("s_cbranch_scc1 L_chkB")
    e("s_branch L_chkA")
    for part, n in (("A", 4), ("B", 3)):
        lab(f"L_reload{part}")
        gload(part)
        lab(f"L_chk{part}")
        e("s_waitcnt vmcnt(0)")
        untag(range(n), vX0, vX1)
        e(f"s_add_u32 {sr(t5)}, {sr(t5)}, 1")
        e(f"s_cbranch_vccz L_ready{part}")
        e(f"s_sleep {opt.rsleep}")
        e(f"s_cmp_lt_u32 {sr(t5)}, 0x40000")
        e(f"s_cbranch_scc1 L_reload{part}")
        lab(f"L_ready{part}")
        if part == "B":
            probe("tail", 0)
        premerge(n)
        if part == "A":
            e(f"ds_write_b64 {vr(vPX)}, {vr(vGs,2)} offset:{PXO+2048}")
            e(f"ds_write_b128 {vr(vPX)}, {vr(vGo,4)} offset:{PXO}")
            e(f"ds_write_b128 {vr(vPX)}, {vr(vGo+4,4)} offset:{PXO+1024}")
            e("s_waitcnt lgkmcnt(0)")
            e("s_barrier")
            e("s_branch L_done")
    lds_reduce(1)
    for r in range(0, 8, 2):
        e(f"v_pk_mul_f32 {vr(vR+r,2)}, {vr(vR+r,2)}, {vr(vMX,2)} op_sel:[0,1] op_sel_hi:[1,1]")
    for r in range(4):
        e(f"v_cvt_pk_bf16_f32 {vr(vWt+r)}, {vr(vR+2*r)}, {vr(vR+2*r+1)}")
    po = opt.pol_out
    e(f"global_store_dwordx2 {vr(vOA)}, {vr(vWt,2)}, {sr(sOUT,2)}{po}")
    e(f"global_store_dwordx2 {vr(vOA)}, {vr(vWt+2,2)}, {sr(sOUT,2)} offset:128{po}")
    e("s_branch L_done")

    if opt.spec:
        lab("L_respec")
        c("the guess was wrong: reload the first item")
        e("s_waitcnt vmcnt(0)")
        issue("K"); issue("V")
        e("s_branch L_specok")

    lab("L_early")
    c("merge waves, last item: fetch the partials under the V wait")
    e(f"s_cmp_eq_u32 {sr(sMW)}, 1")
    e("s_cbranch_scc1 L_earlyB")
    gload("A")
    e("s_branch L_sm")
    lab("L_earlyB")
    gload("B")
    e("s_branch L_sm")

    lab("L_helper")
    e(f"s_cmp_lt_u32 {sr(sIDX)}, 4")
    e("s_cbranch_scc1 L_sh_pro")
    c("======== mixed helper. v=idx-4: j=v%3, u=v/3: r=((x>>1)+j)&3 + 4*(u&1), quad=u>>1, pair=x&1")
    cpf()
    e(f"v_lshlrev_b32 {vr(vT+7)}, 2, {vr(vC)}")
    e("s_waitcnt lgkmcnt(0)")
    e(f"global_load_dword {vr(vKY)}, {vr(vT+7)}, {sr(sCTX,2)}")
    misc()
    srd_k()
    e(f"s_mov_b32 {sr(sROLE)}, 0")
    e(f"s_sub_u32 {sr(t7)}, {sr(sIDX)}, 4")
    e(f"s_mul_i32 {sr(t1)}, {sr(t7)}, 11")
    e(f"s_lshr_b32 {sr(t1)}, {sr(t1)}, 5")
    e(f"s_mul_i32 {sr(t6)}, {sr(t1)}, 3")
    e(f"s_sub_u32 {sr(t7)}, {sr(t7)}, {sr(t6)}")
    e(f"s_add_u32 {sr(sKS)}, {sr(t7)}, 4")
    e(f"s_and_b32 {sr(t0)}, {sr(sHD)}, 2")
    e(f"s_and_b32 {sr(t6)}, {sr(t1)}, 2")
    e(f"s_lshl_b32 {sr(t6)}, {sr(t6)}, 1")
    e(f"s_or_b32 {sr(sHD)}, {sr(t6)}, {sr(t0)}")
    e(f"s_and_b32 {sr(t1)}, {sr(t1)}, 1")
    e(f"s_lshl_b32 {sr(t1)}, {sr(t1)}, 2")
    e(f"s_lshr_b32 {sr(sX_)}, s2, 1")
    if opt.spread:
        e(f"s_add_u32 {sr(sX_)}, {sr(sX_)}, {sr(t7)}")
    e(f"s_and_b32 {sr(sX_)}, {sr(sX_)}, 3")
    e(f"s_add_u32 {sr(sX_)}, {sr(sX_)}, {sr(t1)}")
    e(f"s_lshl_b32 {sr(t0)}, {sr(t0)}, 3")
    e(f"s_lshr_b32 {sr(t4)}, 0x{FPACK:08x}, {sr(t0)}")
    e(f"s_bfe_u32 {sr(t5)}, {sr(t4)}, 0x80008")
    e(f"s_and_b32 {sr(t4)}, {sr(t4)}, 0xff")
    e(f"s_cmp_lt_u32 {sr(t5)}, {sr(t4)}")
    e(f"s_cselect_b32 {sr(sS0)}, 1, 0")
    e(f"s_max_u32 {sr(sEND)}, {sr(t4)}, {sr(t5)}")
    e(f"s_min_u32 {sr(t5)}, {sr(t4)}, {sr(t5)}")
    c("x = j + 3*(w + 4*lane)")
    e(f"v_lshl_add_u32 {vr(vT+5)}, {vr(vL)}, 2, {sr(sW)}")
    e(f"v_mul_u32_u24 {vr(vT+5)}, 3, {vr(vT+5)}")
    e(f"v_add_u32 {vr(vT+5)}, {sr(t7)}, {vr(vT+5)}")
    e("s_waitcnt vmcnt(0)")
    ranks()
    e(f"s_sub_u32 {sr(t1)}, 15, {sr(sX_)}")
    e(f"v_cmp_eq_u32 {sr(sCM,2)}, {sr(sX_)}, {vr(vX3)}")
    e(f"v_cmp_eq_u32 {sr(sCM+2,2)}, {sr(t1)}, {vr(vX3)}")
    e(f"s_ff1_i32_b32 {sr(t0)}, {sr(sCM)}")
    e(f"s_ff1_i32_b32 {sr(t1)}, {sr(sCM+2)}")
    e(f"v_readlane_b32 {sr(t2)}, {vr(vKY)}, {sr(t0)}")
    e(f"v_readlane_b32 {sr(t3)}, {vr(vKY)}, {sr(t1)}")
    e(f"v_readlane_b32 {sr(t4)}, {vr(vKL)}, {sr(t1)}")
    e(f"s_lshl_b32 {sr(t0)}, {sr(t0)}, 3")
    e(f"s_lshl_b32 {sr(t1)}, {sr(t1)}, 19")
    e(f"s_or_b32 {sr(t0)}, {sr(t0)}, {sr(t1)}")
    e(f"s_mul_i32 {sr(t0)}, {sr(t0)}, 0x101")
    e(f"s_mul_i32 {sr(t6)}, {sr(sHD)}, 0x01010101")
    e(f"s_add_u32 {sr(sBHP)}, {sr(t0)}, {sr(t6)}")
    e(f"s_add_u32 {sr(sBHP)}, {sr(sBHP)}, 0x01000100")
    e(f"s_lshr_b32 {sr(t2)}, {sr(t2)}, 4")
    e(f"s_lshr_b32 {sr(t3)}, {sr(t3)}, 4")
    c("segments: [long both heads][long extra][short both heads][short extra], steps descending")
    P = sCM + 8
    TOP = sCM + 12
    e(f"s_sub_i32 {sr(t0)}, {sr(t3)}, {sr(sEND)}")
    e(f"s_max_i32 {sr(t0)}, {sr(t0)}, 0")
    e(f"s_lshl_b32 {sr(P)}, {sr(t0)}, 1")
    e(f"s_min_u32 {sr(TOP)}, {sr(t3)}, {sr(sEND)}")
    e(f"s_sub_i32 {sr(t0)}, {sr(TOP)}, {sr(t5)}")
    e(f"s_max_i32 {sr(t0)}, {sr(t0)}, 0")
    e(f"s_add_u32 {sr(P+1)}, {sr(P)}, {sr(t0)}")
    e(f"s_sub_i32 {sr(t0)}, {sr(t2)}, {sr(sEND)}")
    e(f"s_max_i32 {sr(t0)}, {sr(t0)}, 0")
    e(f"s_lshl_b32 {sr(t0)}, {sr(t0)}, 1")
    e(f"s_add_u32 {sr(P+2)}, {sr(P+1)}, {sr(t0)}")
    e(f"s_mov_b32 {sr(TOP+1)}, {sr(t2)}")
    e(f"s_min_u32 {sr(TOP+2)}, {sr(t2)}, {sr(sEND)}")
    e(f"s_sub_i32 {sr(t0)}, {sr(TOP+2)}, {sr(t5)}")
    e(f"s_max_i32 {sr(t0)}, {sr(t0)}, 0")
    e(f"s_add_u32 {sr(P+3)}, {sr(P+2)}, {sr(t0)}")
    for i in range(3):
        e(f"v_cmp_ge_u32 {sr(sCM+2*i,2)}, {vr(vT+5)}, {sr(P+i)}")
    e(f"v_cmp_gt_u32 {sr(sCM+6,2)}, {sr(P+3)}, {vr(vT+5)}")
    e(f"v_mov_b32 {vr(vX0)}, {sr(t3)}")
    e(f"v_mov_b32 {vr(vX2)}, 0")
    for i in range(3):
        e(f"v_mov_b32 {vr(vT+i)}, {sr(P+i)}")
        e(f"v_mov_b32 {vr(vT+11+i)}, {sr(TOP+i)}")
    for i in range(3):
        e(f"v_cndmask_b32 {vr(vX2)}, {vr(vX2)}, {vr(vT+i)}, {sr(sCM+2*i,2)}")
        e(f"v_cndmask_b32 {vr(vX0)}, {vr(vX0)}, {vr(vT+11+i)}, {sr(sCM+2*i,2)}")
    e(f"s_xor_b64 vcc, {sr(sCM,2)}, {sr(sCM+2,2)}")
    e(f"s_xor_b64 vcc, vcc, {sr(sCM+4,2)}")
    e(f"v_sub_u32 {vr(vX2)}, {vr(vT+5)}, {vr(vX2)}")
    e(f"v_lshrrev_b32 {vr(vT)}, 1, {vr(vX2)}")
    e(f"v_and_b32 {vr(vX1)}, 1, {vr(vX2)}")
    e(f"v_mov_b32 {vr(vT+1)}, {sr(sS0)}")
    e(f"v_cndmask_b32 {vr(vT)}, {vr(vT)}, {vr(vX2)}, vcc")
    e(f"v_cndmask_b32 {vr(vX1)}, {vr(vX1)}, {vr(vT+1)}, vcc")
    e(f"v_sub_u32 {vr(vX0)}, {vr(vX0)}, {vr(vT)}")
    e(f"v_add_u32 {vr(vX0)}, -1, {vr(vX0)}")
    e(f"v_cndmask_b32 {vr(vT+1)}, 2, 0, {sr(sCM+2,2)}")
    e(f"v_add_u32 {vr(vX1)}, {vr(vX1)}, {vr(vT+1)}")
    e(f"v_lshlrev_b32 {vr(vX3)}, 3, {vr(vX1)}")
    e(f"v_bfe_u32 {vr(vX3)}, {sr(sBHP)}, {vr(vX3)}, 8")
    list_addr_bh()
    e("s_nop 0")
    predict()
    e(f"v_readfirstlane_b32 {sr(t2)}, {vr(vMETA)}")
    e(f"s_and_b32 {sr(t2)}, {sr(t2)}, 0xffff")
    limits(t4, t2)
    stamp(1)
    issue("K")
    c("a wave without items runs one item with no active column")
    e(f"s_bcnt1_i32_b64 {sr(sREM)}, {sr(sCM+6,2)}")
    e(f"s_cselect_b64 {sr(mIT,2)}, {sr(mSL,2)}, 0")
    e(f"s_max_u32 {sr(sREM)}, {sr(sREM)}, 1")
    e("s_branch L_go")

    def sh_issue():
        la = g.newlab()
        e(f"s_and_b32 {sr(t1)}, {sr(sZI)}, 63")
        e(f"v_readlane_b32 {sr(t0)}, {vr(vE)}, {sr(t1)}")
        e(f"s_mov_b32 m0, {sr(sSL)}")
        e(f"s_add_u32 {sr(sSL)}, {sr(sSL)}, 0x4000")
        e(f"s_and_b32 {sr(sSL)}, {sr(sSL)}, 0xffff")
        e(f"s_lshl_b32 {sr(t0)}, {sr(t0)}, 15")
        e(f"s_or_b32 {sr(sB0)}, {sr(t0)}, {sr(sH8)}")
        dma4(vKO, srdK, sB0)
        e(f"s_add_u32 {sr(sZI)}, {sr(sZI)}, {sr(sSTR)}")
        e(f"s_and_b32 {sr(t1)}, {sr(sZI)}, 63")
        e(f"s_cbranch_scc1 {la}")
        for q in range(3):
            e(f"v_mov_b32 {vr(vE+q)}, {vr(vE+q+1)}")
        lab(la)
    def sh_check():
        e(f"s_bitcmp1_b32 {sr(sW)}, 0")
        e(f"s_cselect_b64 vcc, -1, 0")
        for q in range(4):
            e(f"v_cndmask_b32 {vr(vE+q)}, {vr(vU+2*q)}, {vr(vU+2*q+1)}, vcc")
        for i in range(8):
            e(f"v_xor_b32_dpp {vr(vU+8+i)}, {vr(vU+i)}, {vr(vU+i)} row_newbcast:0 row_mask:0xf bank_mask:0xf")
        e(f"v_or3_b32 {vr(vU+8)}, {vr(vU+8)}, {vr(vU+9)}, {vr(vU+10)}")
        e(f"v_or3_b32 {vr(vU+11)}, {vr(vU+11)}, {vr(vU+12)}, {vr(vU+13)}")
        e(f"v_or3_b32 {vr(vU+8)}, {vr(vU+8)}, {vr(vU+14)}, {vr(vU+15)}")
        e(f"v_or_b32 {vr(vU+8)}, {vr(vU+8)}, {vr(vU+11)}")
        e(f"v_cmp_ne_u32 vcc, 0, {vr(vU+8)}")
        e(f"s_cmp_eq_u64 vcc, 0")
        e(f"s_cselect_b32 {sr(sSTR)}, 16, 1")
    lab("L_sh_pro")
    c("======== shared-prefix workgroup (h, part=idx): steps 16*idx..+15, wave w owns rows 4w..4w+3")
    c("guess: all rows share block = column (checked below). waves 0,1 load K, waves 2,3 load V")
    e(f"s_lshl_b32 {sr(sS0)}, {sr(sIDX)}, 4")
    e(f"s_and_b32 {sr(t1)}, {sr(sW)}, 1")
    e(f"s_lshl1_add_u32 {sr(t1)}, {sr(sS0)}, {sr(t1)}")
    e(f"v_lshl_add_u32 {vr(vE)}, {vr(vG)}, 3, {sr(t1)}")
    e(f"s_lshl_b32 {sr(sH8)}, {sr(sHD)}, 8")
    e(f"s_mov_b32 {sr(sZI)}, 0")
    e(f"s_mov_b32 {sr(sSTR)}, 16")
    e(f"s_lshl_b32 {sr(sSL)}, {sr(sW)}, 12")
    e(f"s_cmp_lt_u32 {sr(sW)}, 2")
    e("s_waitcnt lgkmcnt(0)")
    e("s_cbranch_scc1 L_sh_k")
    setup_v(vKO)
    e(f"s_mov_b64 {sr(sK,2)}, {sr(sV,2)}")
    lab("L_sh_k")
    srd_k()
    stamp(1)
    sh_issue()
    misc()
    e(f"s_mov_b32 {sr(sROLE)}, 2")
    e(f"s_mov_b32 {sr(sKS)}, {sr(sIDX)}")
    e(f"s_lshl_b32 {sr(t1)}, {sr(sW)}, 5")
    e(f"s_or_b32 {sr(t1)}, {sr(t1)}, {sr(sHD)}")
    e(f"s_mul_i32 {sr(sBHP)}, {sr(t1)}, 0x01010101")
    e(f"s_add_u32 {sr(sBHP)}, {sr(sBHP)}, 0x18100800")
    c("entries: lane (g,row=c) loads 4 steps: row*1024 + (s0+4g)*8")
    e(f"s_lshl_b32 {sr(t2)}, {sr(sS0)}, 3")
    e(f"v_lshl_add_u32 {vr(vT+3)}, {vr(vC)}, 10, {sr(t2)}")
    e(f"v_lshl_add_u32 {vr(vT+3)}, {vr(vG)}, 5, {vr(vT+3)}")
    e(f"v_mov_b32 {vr(vKL)}, {WNON}")
    e(f"s_or_b32 {sr(t7)}, s2, {sr(sW)}")
    e("s_cbranch_scc1 L_sh_noprev")
    e(f"global_load_dword {vr(vN)}, {vr(vKL)}, {sr(sWS,2)} sc1")
    lab("L_sh_noprev")
    e(f"global_load_dwordx4 {vr(vU,4)}, {vr(vT+3)}, {sr(sBT,2)}")
    e(f"global_load_dwordx4 {vr(vU+4,4)}, {vr(vT+3)}, {sr(sBT,2)} offset:16")
    col_addr()
    col_load()
    sh_issue()
    sh_issue()
    e(f"s_mov_b32 {sr(sZC)}, 0")
    e("s_branch L_init")
    lab("L_sh_verify")
    e(f"s_or_b32 {sr(t7)}, s2, {sr(sW)}")
    e("s_cbranch_scc1 L_sh_nononce")
    c("workgroup 0: nonce = what the previous launch left, every byte stepped through 1..255")
    e(f"v_readfirstlane_b32 {sr(t0)}, {vr(vN)}")
    e(f"s_mov_b32 {sr(t2)}, 0")
    for i in range(4):
        e(f"s_bfe_u32 {sr(t1)}, {sr(t0)}, 0x{0x80000+8*i:x}")
        e(f"s_cmp_eq_u32 {sr(t1)}, 0xff")
        e(f"s_cselect_b32 {sr(t1)}, 0, {sr(t1)}")
        e(f"s_add_u32 {sr(t1)}, {sr(t1)}, 1")
        if i:
            e(f"s_lshl_b32 {sr(t1)}, {sr(t1)}, {8*i}")
        e(f"s_or_b32 {sr(t2)}, {sr(t2)}, {sr(t1)}")
    e(f"v_mov_b32 {vr(vN)}, {sr(t2)}")
    e(f"v_mov_b32 {vr(vX0)}, 64")
    e("s_mov_b64 exec, 1")
    e(f"global_store_dword {vr(vKL)}, {vr(vN)}, {sr(sWS,2)} sc1")
    e("s_waitcnt vmcnt(0)")
    e(f"global_store_dword {vr(vX0)}, {vr(vN)}, {sr(sDBG,2)} sc1")
    e("s_mov_b64 exec, -1")
    lab("L_sh_nononce")
    e(f"v_mov_b32 {vr(vKY)}, {vr(vE)}")
    sh_check()
    e(f"v_cmp_ne_u32 {sr(sCM,2)}, {vr(vKY)}, {vr(vE)}")
    e(f"s_or_b64 vcc, vcc, {sr(sCM,2)}")
    e("s_cbranch_scc0 L_sh_w")
    e("s_waitcnt vmcnt(0)")
    e(f"s_mov_b32 {sr(sZI)}, 0")
    e(f"s_lshl_b32 {sr(sSL)}, {sr(sW)}, 12")
    e(f"s_mov_b32 {sr(t7)}, 3")
    lab("L_sh_redo")
    sh_issue()
    e(f"s_sub_u32 {sr(t7)}, {sr(t7)}, 1")
    e(f"s_cmp_lg_u32 {sr(t7)}, 0")
    e("s_cbranch_scc1 L_sh_redo")

    lab("L_sh_loop")
    e(f"s_lshl_b32 {sr(t0)}, {sr(sSTR)}, 1")
    e(f"s_add_u32 {sr(t0)}, {sr(t0)}, {sr(sZC)}")
    e(f"s_cmp_lt_u32 {sr(t0)}, 256")
    e("s_waitcnt vmcnt(8)")
    e("s_cbranch_scc1 L_sh_w")
    e(f"s_cmp_eq_u32 {sr(t0)}, 256")
    e("s_waitcnt vmcnt(4)")
    e("s_cbranch_scc1 L_sh_w")
    e("s_waitcnt vmcnt(0)")
    lab("L_sh_w")
    e("s_barrier")
    e(f"s_cmp_lt_u32 {sr(sZI)}, 256")
    e("s_cbranch_scc0 L_sh_noiss")
    sh_issue()
    lab("L_sh_noiss")
    e(f"s_cmp_eq_u32 {sr(sIT)}, 8")
    e("s_cbranch_scc0 L_sh_nosig")
    e(f"s_load_dword {sr(sN)}, {sr(sDBG,2)}, 0x40")
    lab("L_sh_nosig")
    c("step = s0 + 4*((z>>4)&3) + (z>>6), row = z&15")
    e(f"s_bfe_u32 {sr(t0)}, {sr(sZC)}, 0x20004")
    e(f"s_lshl_b32 {sr(t0)}, {sr(t0)}, 2")
    e(f"s_lshr_b32 {sr(t1)}, {sr(sZC)}, 6")
    e(f"s_add_u32 {sr(t0)}, {sr(t0)}, {sr(t1)}")
    e(f"s_add_u32 {sr(t0)}, {sr(t0)}, {sr(sS0)}")
    e(f"s_lshl_b32 {sr(sPOS)}, {sr(t0)}, 5")
    e(f"s_mov_b64 {sr(sMK,2)}, -1")
    e(f"s_cmp_eq_u32 {sr(sSTR)}, 16")
    e("s_cbranch_scc1 L_sh_go")
    e(f"s_and_b32 {sr(t0)}, {sr(sZC)}, 3")
    e(f"s_lshl_b32 {sr(t0)}, {sr(t0)}, 2")
    e(f"s_lshl_b64 {sr(sMK,2)}, {sr(mSL,2)}, {sr(t0)}")
    e(f"s_bfe_u32 {sr(t0)}, {sr(sZC)}, 0x20002")
    e(f"s_cmp_eq_u32 {sr(t0)}, {sr(sW)}")
    e("s_cbranch_scc0 L_sh_next")
    lab("L_sh_go")
    probe("cons", 0)
    kreads()
    masks()
    qk()
    e("s_nop 3")
    vreads()
    softmax_a()
    rescale()
    e("s_waitcnt lgkmcnt(0)")
    for ee in range(8):
        pv(ee)
    probe("cons", 1)
    lab("L_sh_next")
    c("advance the fragment addresses to the next ring slot")
    e(f"s_add_u32 {sr(sIT)}, {sr(sIT)}, 1")
    e(f"s_bitcmp1_b32 {sr(sIT)}, 0")
    e(f"s_cselect_b32 {sr(t0)}, 1, 3")
    e(f"s_lshl_b32 {sr(t0)}, {sr(t0)}, 14")
    for i in range(12):
        e(f"v_xor_b32 {vr(vKA+i)}, {sr(t0)}, {vr(vKA+i)}")
    e(f"s_add_u32 {sr(sZC)}, {sr(sZC)}, {sr(sSTR)}")
    e(f"s_cmp_lt_u32 {sr(sZC)}, 256")
    e("s_cbranch_scc1 L_sh_loop")
    stamp(2)
    c("publish this wave's 16 columns (transpose through its own LDS region)")
    lsum()
    part_addr(vC, None, vWS_, vA1)
    e("s_waitcnt lgkmcnt(0)")
    need_nonce()
    tag_setup()
    for i in range(32):
        tag(vO+i, i)
    tag(vLs, 1)
    e(f"v_xor_b32 {vr(vM+2)}, {vr(vM)}, {vr(vN)}")
    e(f"v_mov_b32 {vr(vM+3)}, {vr(vN)}")
    e("s_barrier")
    for ee in range(8):
        e(f"ds_write_b128 {vr(vLWa)}, {vr(vO+4*ee,4)} offset:{64*ee}")
    e(f"v_mul_u32_u24 {vr(vA2)}, {CSTR}, {vr(vG)}")
    e(f"v_lshl_add_u32 {vr(vA2)}, {vr(vC)}, 4, {vr(vA2)}")
    e(f"v_add_u32 {vr(vA2)}, {sr(sLB)}, {vr(vA2)}")
    e(f"v_lshlrev_b32 {vr(vCC)}, 12, {vr(vG)}")
    e(f"v_lshl_add_u32 {vr(vCC)}, {vr(vC)}, 4, {vr(vCC)}")
    e(f"s_lshl_b32 {sr(t6)}, {sr(sKS)}, 9")
    e("s_waitcnt lgkmcnt(0)")
    for i in range(4):
        for q in range(2):
            e(f"ds_read_b128 {vr(vOq+8*i+4*q,4)}, {vr(vA2)} offset:{4*CSTR*i+256*q}")
    e("s_mov_b64 exec, 0xffff")
    e(f"global_store_dwordx4 {vr(vWS_)}, {vr(vM,4)}, {sr(sWS,2)}{PP}") if not opt.nopub else None
    e("s_mov_b64 exec, -1")
    for i in range(4):
        slot_base(i, vSt+i, vCC)
        e(f"s_waitcnt lgkmcnt({6-2*i})")
        e(f"global_store_dwordx4 {vr(vSt+i)}, {vr(vOq+8*i,4)}, {sr(sWS,2)}{PP}") if not opt.nopub else None
        e(f"global_store_dwordx4 {vr(vSt+i)}, {vr(vOq+8*i+4,4)}, {sr(sWS,2)} offset:256{PP}") if not opt.nopub else None

    lab("L_done")
    if opt.stamps:
        e("s_waitcnt vmcnt(0)")
        stamp(3)
        e(f"s_getreg_b32 {sr(t5)}, hwreg(HW_REG_XCC_ID)")
        e(f"s_getreg_b32 {sr(t6)}, hwreg(HW_REG_HW_ID)")
        e("s_waitcnt lgkmcnt(0)")
        e(f"s_lshl_b32 {sr(t3)}, s2, 2")
        e(f"s_add_u32 {sr(t3)}, {sr(t3)}, {sr(sW)}")
        e(f"s_lshl_b32 {sr(t3)}, {sr(t3)}, 6")
        e(f"s_add_u32 {sr(t3)}, {sr(t3)}, {STAMPS}")
        e(f"s_sub_u32 {sr(sIT)}, {sr(sIT)}, 1")
        e(f"v_mov_b32 v4, {sr(t3)}")
        for i in range(8):
            e(f"v_mov_b32 v{8+i}, {sr(sST+i)}")
        e(f"v_mov_b32 v16, {sr(t5)}")
        e(f"v_mov_b32 v17, {sr(t6)}")
        for i in range(4):
            e(f"v_mov_b32 v{18+i}, {sr(sST+8+i)}")
        e(f"v_mov_b32 v22, {sr(sBHP)}")
        e(f"v_mov_b32 v23, {sr(sIT)}")
        e("s_mov_b64 exec, 1")
        e(f"global_store_dwordx4 v4, v[8:11], {sr(sWS,2)}")
        e(f"global_store_dwordx4 v4, v[12:15], {sr(sWS,2)} offset:16")
        e(f"global_store_dwordx4 v4, v[16:19], {sr(sWS,2)} offset:32")
        e(f"global_store_dwordx4 v4, v[20:23], {sr(sWS,2)} offset:48")
    if opt.amp:
        p = [int(x) for x in opt.amp.split(",")]
        a, b = p[0], p[1]
        if len(p) > 2:
            e(f"s_cmp_eq_u32 s2, {p[2]}")
            e("s_cbranch_scc0 L_end")
            e(f"s_cmp_eq_u32 {sr(sW)}, {p[3]}")
            e("s_cbranch_scc0 L_end")
        e(f"s_sub_u32 {sr(t0)}, {sr(sST+2*b)}, {sr(sST+2*a)}")
        e(f"s_lshl_b32 {sr(t0)}, {sr(t0)}, {5 if len(p)>2 else 3}")
        e(f"s_min_u32 {sr(t0)}, {sr(t0)}, 100000")
        lab("L_amp")
        e(f"s_memrealtime {sr(t2,2)}")
        e("s_waitcnt lgkmcnt(0)")
        e(f"s_sub_u32 {sr(t1)}, {sr(t2)}, {sr(sST+6)}")
        e(f"s_cmp_lt_u32 {sr(t1)}, {sr(t0)}")
        e("s_cbranch_scc1 L_amp")
    if opt.amp2:
        b, lo, hi, sh = [int(x) for x in opt.amp2.split(",")]
        neg = b >= 100
        b %= 100
        e(f"s_cmp_lt_u32 s2, {lo}")
        e("s_cbranch_scc1 L_end")
        e(f"s_cmp_ge_u32 s2, {hi}")
        e("s_cbranch_scc1 L_end")
        e("s_mov_b64 exec, -1")
        e(f"v_mov_b32 v4, 0x2f0000")
        e(f"global_load_dword v5, v4, {sr(sWS,2)} sc1")
        e("s_waitcnt vmcnt(0)")
        e(f"v_readfirstlane_b32 {sr(t4)}, v5")
        if neg:
            e(f"s_sub_u32 {sr(t0)}, {sr(t4)}, {sr(sST+2*b)}")
        else:
            e(f"s_sub_u32 {sr(t0)}, {sr(sST+2*b)}, {sr(t4)}")
        e(f"s_add_u32 {sr(t0)}, {sr(t0)}, 200")
        e(f"s_max_i32 {sr(t0)}, {sr(t0)}, 0")
        e(f"s_lshl_b32 {sr(t0)}, {sr(t0)}, {sh}")
        e(f"s_min_u32 {sr(t0)}, {sr(t0)}, 100000")
        lab("L_amp2")
        e(f"s_memrealtime {sr(t2,2)}")
        e("s_waitcnt lgkmcnt(0)")
        e(f"s_sub_u32 {sr(t1)}, {sr(t2)}, {sr(t4)}")
        e(f"s_cmp_lt_u32 {sr(t1)}, {sr(t0)}")
        e("s_cbranch_scc1 L_amp2")
    if opt.amp3:
        a, b, st = [int(x) for x in opt.amp3.split(",")]
        e(f"s_cmp_eq_u32 {sr(sW)}, 0")
        e("s_cbranch_scc0 L_end")
        e("s_mov_b64 exec, -1")
        e(f"v_mov_b32 v4, 0x2f0100")
        e(f"s_cmp_eq_u32 s2, {b}")
        e("s_cbranch_scc0 L_a3a")
        e(f"v_mov_b32 v5, {sr(sST+2*st)}")
        e(f"global_store_dword v4, v5, {sr(sWS,2)} sc1")
        lab("L_a3a")
        e(f"s_cmp_eq_u32 s2, {a}")
        e("s_cbranch_scc0 L_end")
        lab("L_a3b")
        e(f"s_memrealtime {sr(t2,2)}")
        e("s_waitcnt lgkmcnt(0)")
        e(f"s_sub_u32 {sr(t1)}, {sr(t2)}, {sr(sST)}")
        e(f"s_cmp_lt_u32 {sr(t1)}, 2800")
        e("s_cbranch_scc1 L_a3b")
        e(f"global_load_dword v5, v4, {sr(sWS,2)} sc1")
        e("s_waitcnt vmcnt(0)")
        e(f"v_readfirstlane_b32 {sr(t4)}, v5")
        e(f"s_sub_u32 {sr(t0)}, {sr(sST+2*st)}, {sr(t4)}")
        e(f"s_add_u32 {sr(t0)}, {sr(t0)}, 400")
        e(f"s_max_i32 {sr(t0)}, {sr(t0)}, 0")
        e(f"s_lshl_b32 {sr(t0)}, {sr(t0)}, 4")
        e(f"s_add_u32 {sr(t0)}, {sr(t0)}, 3000")
        e(f"s_min_u32 {sr(t0)}, {sr(t0)}, 100000")
        lab("L_a3c")
        e(f"s_memrealtime {sr(t2,2)}")
        e("s_waitcnt lgkmcnt(0)")
        e(f"s_sub_u32 {sr(t1)}, {sr(t2)}, {sr(sST)}")
        e(f"s_cmp_lt_u32 {sr(t1)}, {sr(t0)}")
        e("s_cbranch_scc1 L_a3c")
    lab("L_end")
    e("s_endpgm")

    out = HEADER + DOC
    out += f"; @launch grid=(256,1,1) block=({NW*64},1,1) lds={LDS}\n"
    out += '.amdgcn_target "amdgcn-amd-amdhsa--gfx950"\n.text\n'
    out += f".globl {NAME}_kernel\n.p2align 8\n.type {NAME}_kernel,@function\n{NAME}_kernel:\n"
    out += "\n".join(g.lines) + "\n"
    out += f""".section .rodata,"a"
.p2align 6
.amdhsa_kernel {NAME}_kernel
  .amdhsa_next_free_vgpr {NV}
  .amdhsa_next_free_sgpr 102
  .amdhsa_accum_offset {NV}
  .amdhsa_group_segment_fixed_size 0
  .amdhsa_kernarg_size 64
  .amdhsa_user_sgpr_count 2
  .amdhsa_user_sgpr_kernarg_segment_ptr 1
  .amdhsa_system_sgpr_workgroup_id_x 1
.end_amdhsa_kernel
"""
    return out

if __name__ == "__main__":
    ap = argparse.ArgumentParser()
    ap.add_argument("-o", default=f"cdna_kernels/{NAME}.s")
    ap.add_argument("--F", default="36,26,31,30")
    ap.add_argument("--spec", type=int, default=1)
    ap.add_argument("--spread", type=int, default=1)
    ap.add_argument("--rsleep", type=int, default=1)
    ap.add_argument("--lds", type=int, default=0)
    ap.add_argument("--pol", default="nt")
    ap.add_argument("--pol_out", default="")
    ap.add_argument("--stamps", action="store_true")
    ap.add_argument("--nobar", action="store_true")
    ap.add_argument("--amp", default="")
    ap.add_argument("--lateK", type=int, default=0)
    ap.add_argument("--pf", type=int, default=0)
    ap.add_argument("--tlb", type=int, default=0)
    ap.add_argument("--tlbsh", type=int, default=21)
    ap.add_argument("--nopub", type=int, default=0)
    ap.add_argument("--pol_pub", default="sc1")
    ap.add_argument("--pol_get", default="sc1")
    ap.add_argument("--noclear", type=int, default=0)
    ap.add_argument("--nosig", type=int, default=0)
    ap.add_argument("--dummy", type=int, default=0)
    ap.add_argument("--mw", type=int, default=0)
    ap.add_argument("--amp3", default="")
    ap.add_argument("--cpf", type=int, default=0)
    ap.add_argument("--amp2", default="")
    ap.add_argument("--mid", type=int, default=1)
    ap.add_argument("--probe", default="first")
    ap.add_argument("--clk", default="s_memrealtime")
    opt = ap.parse_args()
    for k in ("pol", "pol_out", "pol_pub", "pol_get"):
        v = getattr(opt, k)
        setattr(opt, k, (" " + v.replace("+", " ")) if v else "")
    opt.code_bytes = 4096
    txt = build(opt)
    if opt.cpf:
        import subprocess, re, tempfile, os
        d = tempfile.mkdtemp()
        open(d + "/a.s", "w").write(txt)
        subprocess.check_call(["clang", "-target", "amdgcn-amd-amdhsa", "-mcpu=gfx950", "-c", d + "/a.s", "-o", d + "/a.o"])
        o = subprocess.check_output(["llvm-objdump", "-d", "--mcpu=gfx950", d + "/a.o"]).decode()
        end = int(re.search(r"^([0-9a-f]+) <L_end>:", o, re.M).group(1), 16)
        opt.code_bytes = end - 32
        txt = build(opt)
    open(opt.o, "w").write(txt)
```

```python
import sys, struct, argparse

NAME = "standalone__paged_block_table_kv_radixattention__sampling"

HEADER = """; Kernarg layout for this problem (64 bytes, ptrs only, base s[0:1]):
"""

DOC = """; Paged GQA decode attention, one launch, 256 workgroups x 4 waves.
;   ids   0..31  : first 128 table columns, all 16 rows at once when the rows name the same blocks (checked; otherwise row by row)
;   ids 128..255 : finishers, one per (row, kv head): first steps of columns 128.., then merge all partials and write the output
; The first loads of a wave use a guessed block id that is checked against the table (reloaded on a mismatch).
"""

def f2u(x):
    return struct.unpack("<I", struct.pack("<f", x))[0]

class Gen:
    def __init__(self, opt):
        self.o = opt
        self.lines = []
        self.nlab = 0
    def e(self, s):
        self.lines.append("    " + s)
    def c(self, s):
        self.lines.append("    ; " + s)
    def lab(self, name):
        self.lines.append(name + ":")
    def newlab(self, p="L"):
        self.nlab += 1
        return f"{p}_{self.nlab}"

def vr(b, n=1):
    return f"v{b}" if n == 1 else f"v[{b}:{b+n-1}]"
def sr(b, n=1):
    return f"s{b}" if n == 1 else f"s[{b}:{b+n-1}]"

def build(opt):
    g = Gen(opt)
    e, c, lab = g.e, g.c, g.lab
    NW = 4
    Fc = [int(x) for x in opt.F.split(",")]
    FPACK = sum((64 + Fc[i]) << (8*i) for i in range(4))
    KVB = 2176 * 32768
    CSTR = 528
    WSTR = 16384
    STAT = 16 * CSTR
    LDS = max(65536, opt.lds)
    pol = opt.pol
    PP = opt.pol_pub
    PG = opt.pol_get
    WSTAT = 0x200000
    STAMPS = 0x300000
    NG = 7
    NL = 21
    WNON = 0x220000
    sQ, sK, sV, sBT, sCTX, sOUT, sDBG, sWS = 4, 6, 8, 10, 12, 14, 16, 18
    srdK, srdV = 20, 24
    sBHP, sKS, sX_, sIDX = 28, 29, 30, 31
    sW, sHD, sS0, sSTR, sROLE = 32, 33, 34, 35, 36
    sIT, sREM, sLB = 37, 38, 39
    sCS, sONCE, sZI, sZC = 40, 41, 42, 43
    mSL = 44
    sB0, sB1, sPOS, sH8 = 46, 47, 48, 49
    sMK = 50
    sSL, sEND = 52, 53
    mIT = 54
    sFAST = 56
    sMW = 62
    sPHP = sBHP
    sR0, sR1, sN = 58, 59, 63
    sCM = 66
    t0, t1, t2, t3, t4, t5, t6, t7 = 82, 83, 84, 85, 86, 87, 88, 89
    sST = 90
    vL, vG, vC = 1, 2, 3
    vKO, vVO = 4, 8
    vQ = 12
    vO = 28
    vM, vLs, vCG = 60, 61, 62
    vMETA = 63
    vTB = 64
    vFM, vFI = 66, 67
    vS = 68
    vP = 76
    vF = 80
    vT = vF
    vLIM, vFILL, vMX, vAL, vX0, vX1, vX2, vX3 = 112, 113, 114, 115, 116, 117, 118, 119
    vKA, vVA = 120, 124
    vLE = 132
    vE = 134
    vKY, vKL = 138, 139
    vU = 140
    vGs, vGo = 140, 168
    vWO, vWS_, vOA, vLWa, vLWs, vA1, vA2, vCC = 224, 225, 226, 227, 228, 229, 230, 231
    vN = 133
    vPX = 223
    PXO = WSTR + 12288
    NV = 232

    def stamp(i):
        if opt.stamps:
            e(f"s_memrealtime {sr(sST+2*i,2)}")
    def probe(name, which):
        if opt.stamps and opt.probe == name:
            e(f"{opt.clk} {sr(sST+8+2*which,2)}")
            e("s_waitcnt lgkmcnt(0)")

    def list_addr_bh():
        c("vX0=step vX1=slot vX3=b*8+h -> vX3 table offset, vMETA")
        e(f"v_med3_i32 {vr(vX0)}, {vr(vX0)}, 0, {vr(vT+6)}")
        e(f"v_lshlrev_b32 {vr(vMETA)}, 5, {vr(vX0)}")
        e(f"v_lshl_add_u32 {vr(vMETA)}, {vr(vX1)}, 18, {vr(vMETA)}")
        e(f"v_lshl_add_u32 {vr(vMETA)}, {vr(vX3)}, 29, {vr(vMETA)}")
        e(f"v_lshrrev_b32 {vr(vX3)}, 3, {vr(vX3)}")
        e(f"v_lshlrev_b32 {vr(vX3)}, 10, {vr(vX3)}")
        e(f"v_lshl_add_u32 {vr(vX3)}, {vr(vX0)}, 3, {vr(vX3)}")
    def list_load():
        e(f"global_load_dwordx2 {vr(vTB,2)}, {vr(vX3)}, {sr(sBT,2)}")
    def predict():
        c("guess for the first item (checked against the table below): block = 128*row + column")
        e(f"v_readfirstlane_b32 {sr(t0)}, {vr(vX3)}")
        e(f"v_readfirstlane_b32 {sr(t2)}, {vr(vMETA)}")
        e(f"s_lshr_b32 {sr(t1)}, {sr(t0)}, 10")
        e(f"s_lshl_b32 {sr(t1)}, {sr(t1)}, 22")
        e(f"s_and_b32 {sr(t0)}, {sr(t0)}, 0x3ff")
        e(f"s_lshl_b32 {sr(t0)}, {sr(t0)}, 13")
        e(f"s_add_u32 {sr(t0)}, {sr(t0)}, {sr(t1)}")
        e(f"s_lshr_b32 {sr(t2)}, {sr(t2)}, 29")
        e(f"s_lshl_b32 {sr(t2)}, {sr(t2)}, 8")
        e(f"s_or_b32 {sr(sB0)}, {sr(t0)}, {sr(t2)}")
        e(f"s_add_u32 {sr(sB1)}, {sr(sB0)}, 0x8000")
    vQO, vCO = vT + 8, vT + 9
    def col_addr():
        c("per-lane column: Q offset and ctx offset")
        e(f"v_lshlrev_b32 {vr(vCO)}, 1, {vr(vC)}")
        e(f"v_and_b32 {vr(vCO)}, 24, {vr(vCO)}")
        e(f"v_bfe_u32 {vr(vCO)}, {sr(sBHP)}, {vr(vCO)}, 8")
        e(f"v_lshl_add_u32 {vr(vQO)}, {vr(vCO)}, 10, {vr(vT+10)}")
        e(f"v_lshrrev_b32 {vr(vCO)}, 1, {vr(vCO)}")
        e(f"v_and_b32 {vr(vCO)}, 60, {vr(vCO)}")
    def col_load():
        e(f"global_load_dword {vr(vCG)}, {vr(vCO)}, {sr(sCTX,2)}")
        for m in range(4):
            e(f"global_load_dwordx4 {vr(vQ+4*m,4)}, {vr(vQO)}, {sr(sQ,2)} offset:{64*m}")
    def part_addr(vcol, vo, vs, tmp):
        c("partial addresses for column vcol: row R=(b*8+h)*4+(col&3); O: R*4096 + k*512 ; stats: R*128 + k*16")
        e(f"v_lshlrev_b32 {vr(tmp)}, 1, {vr(vcol)}")
        e(f"v_and_b32 {vr(tmp)}, 24, {vr(tmp)}")
        e(f"v_bfe_u32 {vr(tmp)}, {sr(sPHP)}, {vr(tmp)}, 8")
        e(f"v_and_b32 {vr(vs)}, 3, {vr(vcol)}")
        e(f"v_lshl_add_u32 {vr(tmp)}, {vr(tmp)}, 2, {vr(vs)}")
        if vo is not None:
            e(f"s_lshl_b32 {sr(t3)}, {sr(sKS)}, 9")
            e(f"v_lshl_add_u32 {vr(vo)}, {vr(tmp)}, 12, {sr(t3)}")
        e(f"s_lshl_b32 {sr(t3)}, {sr(sKS)}, 4")
        e(f"s_add_u32 {sr(t3)}, {sr(t3)}, {WSTAT}")
        e(f"v_lshl_add_u32 {vr(vs)}, {vr(tmp)}, 7, {sr(t3)}")
    def slot_base(i, vdst, vlane):
        e(f"s_bfe_u32 {sr(t3)}, {sr(sPHP)}, 0x{0x80000+8*i:x}")
        e(f"s_lshl_b32 {sr(t3)}, {sr(t3)}, 14")
        e(f"s_add_u32 {sr(t3)}, {sr(t3)}, {sr(t6)}")
        e(f"v_add_u32 {vr(vdst)}, {sr(t3)}, {vr(vlane)}")
    def need_nonce():
        c("the nonce was normally fetched in the loop")
        la = g.newlab(); lb = g.newlab()
        e(f"s_mov_b32 {sr(t5)}, 0")
        e(f"v_mov_b32 {vr(vX0)}, 64")
        lab(la)
        e(f"s_cmp_lg_u32 {sr(sN)}, 0")
        e(f"s_cbranch_scc1 {lb}")
        e(f"global_load_dword {vr(vN)}, {vr(vX0)}, {sr(sDBG,2)} sc1")
        e("s_sleep 8")
        e(f"s_add_u32 {sr(t5)}, {sr(t5)}, 1")
        e("s_waitcnt vmcnt(0)")
        e(f"v_readfirstlane_b32 {sr(sN)}, {vr(vN)}")
        e(f"s_cmp_lt_u32 {sr(t5)}, 0x40000")
        e(f"s_cbranch_scc1 {la}")
        lab(lb)
    def tag_setup():
        e(f"v_mov_b32 {vr(vN)}, {sr(sN)}")
        for i in range(4):
            e(f"s_mov_b32 {sr(sCM+8+i)}, 0x0706050{i}")
    def tag(reg, i):
        e(f"v_perm_b32 {vr(reg)}, {vr(reg)}, {vr(vN)}, {sr(sCM+8+(i&3))}")
    def setup_k():
        c("K DMA source offsets (XOR-swizzled)")
        e(f"v_xor_b32 {vr(vT+16)}, {vr(vC)}, {vr(vG)}")
        e(f"v_lshlrev_b32 {vr(vT+17)}, 11, {vr(vG)}")
        e(f"v_lshl_add_u32 {vr(vKO)}, {vr(vT+16)}, 4, {vr(vT+17)}")
        for n in range(1, 4):
            e(f"v_xor_b32 {vr(vKO+n)}, {n<<6}, {vr(vKO)}")
            e(f"v_add_u32 {vr(vKO+n)}, {n*7168}, {vr(vKO+n)}")
        e(f"s_lshl_b32 {sr(sLB)}, {sr(sW)}, 14")
        e(f"s_mov_b32 {sr(srdK+2)}, {KVB}")
        e(f"s_mov_b32 {sr(srdK+3)}, 0x20000")
    def setup_v(dst=None):
        c("V DMA source offsets")
        d = vVO if dst is None else dst
        e(f"v_lshlrev_b32 {vr(vT+16)}, 1, {vr(vG)}")
        e(f"v_xor_b32 {vr(vT+16)}, {vr(vC)}, {vr(vT+16)}")
        e(f"v_lshl_add_u32 {vr(d)}, {vr(vT+16)}, 4, {vr(vT+17)}")
        e(f"v_xor_b32 {vr(d+1)}, 128, {vr(d)}")
        e(f"v_add_u32 {vr(d+3)}, {3*7168}, {vr(d+1)}")
        e(f"v_add_u32 {vr(d+1)}, 7168, {vr(d+1)}")
        e(f"v_add_u32 {vr(d+2)}, {2*7168}, {vr(d)}")
    def srd_k():
        e(f"s_mov_b32 {sr(srdK)}, {sr(sK)}")
        e(f"s_and_b32 {sr(srdK+1)}, {sr(sK+1)}, 0xffff")
    def srd_v():
        e(f"s_mov_b32 {sr(srdV)}, {sr(sV)}")
        e(f"s_and_b32 {sr(srdV+1)}, {sr(sV+1)}, 0xffff")
        e(f"s_mov_b32 {sr(srdV+3)}, 0x20000")
    def misc():
        e(f"v_and_b32 {vr(vL)}, 63, v0")
        e(f"v_and_b32 {vr(vX2)}, 3, v0")
        e(f"v_lshlrev_b32 {vr(vT+10)}, 4, {vr(vG)}")
        e(f"v_lshl_add_u32 {vr(vT+10)}, {vr(vX2)}, 8, {vr(vT+10)}")
        e(f"v_mov_b32 {vr(vT+6)}, 127")
        e(f"s_mov_b32 {sr(mSL)}, 0x000f000f")
        e(f"s_mov_b32 {sr(mSL+1)}, {sr(mSL)}")
        e(f"s_mov_b32 {sr(sIT)}, 0")
    def cpf():
        if opt.cpf:
            c("pull the kernel's code into L2: one dword per 64 bytes")
            e(f"v_lshlrev_b32 {vr(vF+30)}, 6, v0")
            e(f"v_min_u32 {vr(vF+30)}, {opt.code_bytes}, {vr(vF+30)}")
            e(f"global_load_dword {vr(vF+31)}, {vr(vF+30)}, {sr(sCM,2)}")
    def ranks():
        c("vKY: ctx of row c -> key = nsteps*16 + row ; vX3 = rank of the key")
        e(f"v_mov_b32 {vr(vX2)}, 0x1000")
        e(f"v_cmp_lt_i32 vcc, 0, {vr(vKY)}")
        e(f"v_min_i32 {vr(vKY)}, {vr(vKY)}, {vr(vX2)}")
        e(f"v_mov_b32 {vr(vX3)}, 0")
        e(f"v_cndmask_b32 {vr(vKL)}, {vr(vX2)}, {vr(vKY)}, vcc")
        e(f"v_add_u32 {vr(vKY)}, 31, {vr(vKL)}")
        e(f"v_lshrrev_b32 {vr(vKY)}, 5, {vr(vKY)}")
        e(f"v_lshl_add_u32 {vr(vKY)}, {vr(vKY)}, 4, {vr(vC)}")
        e("s_nop 1")
        for k in range(1, 16):
            e(f"v_sub_u32_dpp {vr(vT+(k&3))}, {vr(vKY)}, {vr(vKY)} row_ror:{k} row_mask:0xf bank_mask:0xf")
            e(f"v_lshrrev_b32 {vr(vT+(k&3))}, 31, {vr(vT+(k&3))}")
            e(f"v_add_u32 {vr(vX3)}, {vr(vX3)}, {vr(vT+(k&3))}")
    PARTS = {"A": range(0, 4), "B": range(4, NG)}
    def gload(part):
        for i, k in enumerate(PARTS[part]):
            e(f"global_load_dwordx4 {vr(vGs+4*i,4)}, {vr(vWS_)}, {sr(sWS,2)} offset:{16*k}{PG}")
            for q in range(2):
                e(f"global_load_dwordx4 {vr(vGo+8*i+4*q,4)}, {vr(vWO)}, {sr(sWS,2)} offset:{512*k+256*q}{PG}")
    def lsum():
        c("reduce l over the 4 lane groups")
        e(f"v_mov_b32 {vr(vX0)}, {vr(vLs)}")
        e("s_nop 1")
        e(f"v_permlane32_swap_b32 {vr(vLs)}, {vr(vX0)}")
        e(f"v_add_f32 {vr(vLs)}, {vr(vLs)}, {vr(vX0)}")
        e(f"v_mov_b32 {vr(vX0)}, {vr(vLs)}")
        e("s_nop 1")
        e(f"v_permlane16_swap_b32 {vr(vLs)}, {vr(vX0)}")
        e(f"v_add_f32 {vr(vLs)}, {vr(vLs)}, {vr(vX0)}")
    def limits(tl, pos):
        c("tokens past the context are not fetched: they fall outside num_records and read as zero")
        e(f"s_sub_i32 {sr(tl)}, {sr(tl)}, {sr(pos)}")
        e(f"s_max_i32 {sr(tl)}, {sr(tl)}, 0")
        e(f"s_min_u32 {sr(t0)}, {sr(tl)}, 16")
        e(f"s_min_u32 {sr(t1)}, {sr(tl)}, 32")
        e(f"s_sub_u32 {sr(t1)}, {sr(t1)}, {sr(t0)}")
        e(f"s_lshl_b32 {sr(t0)}, {sr(t0)}, 11")
        e(f"s_lshl_b32 {sr(t1)}, {sr(t1)}, 11")
        e(f"s_add_u32 {sr(t0)}, {sr(t0)}, {sr(sB0)}")
        e(f"s_add_u32 {sr(t1)}, {sr(t1)}, {sr(sB1)}")
        e(f"s_min_u32 {sr(sR0)}, {sr(t0)}, {KVB}")
        e(f"s_min_u32 {sr(sR1)}, {sr(t1)}, {KVB}")
    def fetch():
        e(f"v_readlane_b32 {sr(t2)}, {vr(vMETA)}, {sr(sIT)}")
        e(f"v_readlane_b32 {sr(t0)}, {vr(vTB)}, {sr(sIT)}")
        e(f"v_readlane_b32 {sr(t1)}, {vr(vTB+1)}, {sr(sIT)}")
        e(f"s_bfe_u32 {sr(t3)}, {sr(t2)}, 0x40010")
        e(f"s_lshr_b32 {sr(t4)}, {sr(t2)}, 29")
        e(f"v_readlane_b32 {sr(t5)}, {vr(vLE)}, {sr(t3)}")
        e(f"s_lshl_b32 {sr(t4)}, {sr(t4)}, 8")
        e(f"s_lshl_b32 {sr(t0)}, {sr(t0)}, 15")
        e(f"s_lshl_b32 {sr(t1)}, {sr(t1)}, 15")
        e(f"s_or_b32 {sr(sB0)}, {sr(t0)}, {sr(t4)}")
        e(f"s_or_b32 {sr(sB1)}, {sr(t1)}, {sr(t4)}")
        e(f"s_and_b32 {sr(sPOS)}, {sr(t2)}, 0xffff")
        e(f"s_lshl_b64 {sr(sMK,2)}, {sr(mIT,2)}, {sr(t3)}")
        e(f"s_add_u32 {sr(sIT)}, {sr(sIT)}, 1")
        limits(t5, sPOS)
    def decode():
        pass
    def dma4(off, srd, soff):
        for n in range(4):
            o = f" offset:{1024*n}" if n else ""
            e(f"buffer_load_dwordx4 {vr(off+n)}, {sr(srd,4)}, {sr(soff)} offen{o}{pol} lds")
    def issue(kv):
        off = vVO if kv == "V" else vKO
        srd = srdV if kv == "V" else srdK
        base = 8192 if kv == "V" else 0
        if base:
            e(f"s_add_u32 m0, {sr(sLB)}, {base}")
        else:
            e(f"s_mov_b32 m0, {sr(sLB)}")
        e(f"s_mov_b32 {sr(srd+2)}, {sr(sR0)}")
        dma4(off, srd, sB0)
        e(f"s_add_u32 m0, {sr(sLB)}, {base+4096}")
        e(f"s_mov_b32 {sr(srd+2)}, {sr(sR1)}")
        dma4(off, srd, sB1)
    e("s_cmp_ge_u32 s2, 256")
    e("s_cbranch_scc1 L_end")
    e(f"s_load_dwordx16 s[4:19], s[0:1], 0")
    stamp(0)
    if opt.cpf:
        e(f"s_getpc_b64 {sr(sCM,2)}")
    e(f"v_lshrrev_b32 {vr(vX0)}, 6, v0")
    e(f"v_and_b32 {vr(vC)}, 15, v0")
    e(f"v_bfe_u32 {vr(vG)}, v0, 4, 2")
    e(f"v_readfirstlane_b32 {sr(sW)}, {vr(vX0)}")
    e(f"s_lshr_b32 {sr(sIDX)}, s2, 3")
    c("head: bit1 = id&1, bits 0/2 rotate with idx")
    e(f"s_lshr_b32 {sr(t0)}, s2, 1")
    e(f"s_add_u32 {sr(t0)}, {sr(t0)}, {sr(sIDX)}")
    e(f"s_and_b32 {sr(t1)}, {sr(t0)}, 2")
    e(f"s_and_b32 {sr(t0)}, {sr(t0)}, 1")
    e(f"s_and_b32 {sr(t2)}, s2, 1")
    e(f"s_or_b32 {sr(t1)}, {sr(t1)}, {sr(t2)}")
    e(f"s_lshl1_add_u32 {sr(sHD)}, {sr(t1)}, {sr(t0)}")
    setup_k()
    e(f"s_cmp_lt_u32 {sr(sIDX)}, 16")
    e("s_cbranch_scc1 L_helper")
    c("======== finisher (b, h): steps 64+w+4*lane")
    c("guess for the first item (checked against the table below): block = 128*row + column")
    e(f"s_sub_u32 {sr(t0)}, {sr(sIDX)}, 15")
    e(f"s_lshl_b32 {sr(t0)}, {sr(t0)}, 6")
    e(f"s_add_u32 {sr(t0)}, {sr(t0)}, {sr(sW)}")
    e(f"s_lshl_b32 {sr(t0)}, {sr(t0)}, 8")
    e(f"s_add_u32 {sr(t0)}, {sr(t0)}, {sr(sHD)}")
    e(f"s_lshl_b32 {sr(sB0)}, {sr(t0)}, 8")
    e(f"s_add_u32 {sr(sB1)}, {sr(sB0)}, 0x8000")
    e(f"s_mov_b32 {sr(sR0)}, {sr(sB1)}")
    e(f"s_add_u32 {sr(sR1)}, {sr(sB1)}, 0x8000")
    e("s_waitcnt lgkmcnt(0)")
    srd_k()
    stamp(1)
    issue("K")
    misc()
    e(f"s_mov_b32 {sr(sROLE)}, 1")
    e(f"s_and_b32 {sr(t1)}, s2, 0x78")
    e(f"s_or_b32 {sr(t1)}, {sr(t1)}, {sr(sHD)}")
    e(f"s_mul_i32 {sr(sBHP)}, {sr(t1)}, 0x01010101")
    e(f"s_add_u32 {sr(t2)}, {sr(sW)}, 64")
    e(f"v_lshl_add_u32 {vr(vX0)}, {vr(vL)}, 2, {sr(t2)}")
    e(f"v_mov_b32 {vr(vX1)}, 0")
    e(f"v_mov_b32 {vr(vX3)}, {sr(t1)}")
    list_addr_bh()
    e(f"s_and_b32 {sr(t0)}, {sr(sHD)}, 3")
    e(f"s_lshl_b32 {sr(t0)}, {sr(t0)}, 3")
    e(f"s_lshr_b32 {sr(sEND)}, 0x{FPACK:08x}, {sr(t0)}")
    e(f"s_and_b32 {sr(sEND)}, {sr(sEND)}, 0xff")
    e(f"s_mov_b32 {sr(sKS)}, 0")
    e(f"s_mov_b64 {sr(mIT,2)}, -1")
    lab("L_go")
    list_load()
    col_addr()
    col_load()
    setup_v()
    srd_v()
    issue("V")
    lab("L_init")
    if opt.amp2:
        e(f"s_or_b32 {sr(t0)}, s2, {sr(sW)}")
        e("s_cbranch_scc1 L_noref")
        e(f"v_mov_b32 {vr(vX0)}, 0x2f0000")
        e(f"v_mov_b32 {vr(vX1)}, {sr(sST)}")
        e(f"global_store_dword {vr(vX0)}, {vr(vX1)}, {sr(sWS,2)} sc1")
        lab("L_noref")
    e(f"s_mov_b32 {sr(sCS)}, 0x{f2u(128**-0.5 * 1.4426950408889634):08x}")
    for i in range(32):
        e(f"v_mov_b32 {vr(vO+i)}, 0")
    e(f"v_mov_b32 {vr(vM)}, 0x{f2u(-1e30):08x}")
    e(f"v_mov_b32 {vr(vLs)}, 0")
    e(f"v_mov_b32 {vr(vFM)}, 0x{f2u(-1e9/(128**-0.5)):08x}")
    e(f"v_mov_b32 {vr(vFI)}, 0x{f2u(-3e38):08x}")
    c("LDS fragment addresses")
    e(f"s_cmp_eq_u32 {sr(sROLE)}, 2")
    e(f"s_cselect_b32 {sr(t0)}, 0, {sr(sLB)}")
    e(f"v_xor_b32 {vr(vX0)}, {vr(vC)}, {vr(vG)}")
    e(f"v_lshl_add_u32 {vr(vX1)}, {vr(vC)}, 8, {sr(t0)}")
    e(f"v_lshl_add_u32 {vr(vKA)}, {vr(vX0)}, 4, {vr(vX1)}")
    for m in range(1, 4):
        e(f"v_xor_b32 {vr(vKA+m)}, {m<<6}, {vr(vKA)}")
    e(f"v_lshrrev_b32 {vr(vX0)}, 2, {vr(vL)}")
    e(f"v_lshl_add_u32 {vr(vX1)}, {vr(vX0)}, 8, {sr(t0)}")
    e(f"v_and_b32 {vr(vX0)}, 7, {vr(vX0)}")
    e(f"v_lshl_add_u32 {vr(vX1)}, {vr(vX0)}, 5, {vr(vX1)}")
    e(f"v_and_b32 {vr(vX0)}, 3, {vr(vL)}")
    e(f"v_lshl_add_u32 {vr(vVA)}, {vr(vX0)}, 3, {vr(vX1)}")
    for ee in range(1, 8):
        e(f"v_xor_b32 {vr(vVA+ee)}, {ee<<5}, {vr(vVA)}")
    c("epilogue addresses")
    e(f"s_cmp_eq_u32 {sr(sROLE)}, 1")
    e(f"s_cselect_b32 {sr(t0)}, 3, 15")
    e(f"v_lshrrev_b32 {vr(vCC)}, 4, v0")
    e(f"v_and_b32 {vr(vCC)}, {sr(t0)}, {vr(vCC)}")
    part_addr(vCC, vWO, vWS_, vX0)
    e(f"v_lshl_add_u32 {vr(vWO)}, {vr(vC)}, 4, {vr(vWO)}")
    e(f"v_mul_u32_u24 {vr(vLWa)}, {CSTR}, {vr(vC)}")
    e(f"v_lshl_add_u32 {vr(vLWa)}, {vr(vG)}, 4, {vr(vLWa)}")
    e(f"v_add_u32 {vr(vLWa)}, {sr(sLB)}, {vr(vLWa)}")
    e(f"v_lshl_add_u32 {vr(vLWs)}, {vr(vC)}, 3, {sr(sLB)}")
    e(f"v_lshlrev_b32 {vr(vA1)}, 3, {vr(vCC)}")
    e(f"v_mul_u32_u24 {vr(vA2)}, {CSTR}, {vr(vCC)}")
    e(f"v_lshl_add_u32 {vr(vA2)}, {vr(vC)}, 4, {vr(vA2)}")
    e(f"s_and_b32 {sr(t3)}, {sr(sBHP)}, 0xff")
    e(f"s_lshl_b32 {sr(t3)}, {sr(t3)}, 10")
    e(f"v_lshl_add_u32 {vr(vOA)}, {vr(vG)}, 8, {sr(t3)}")
    e(f"v_lshl_add_u32 {vr(vOA)}, {vr(vC)}, 3, {vr(vOA)}")
    e(f"s_add_u32 {sr(sMW)}, {sr(sW)}, 1")
    e(f"s_cmp_lt_u32 {sr(sW)}, 2")
    e(f"s_cselect_b32 {sr(sMW)}, {sr(sMW)}, 0")
    e(f"s_mul_i32 {sr(sMW)}, {sr(sMW)}, {sr(sROLE)}")
    e(f"v_lshlrev_b32 {vr(vPX)}, 4, {vr(vL)}")
    e(f"s_mov_b32 {sr(sN)}, 0")
    c("table/ctx/Q were issued before the first V loads (shared role: before items 1,2)")
    e(f"s_cmp_eq_u32 {sr(sROLE)}, 2")
    e("s_waitcnt vmcnt(8)")
    e(f"v_mov_b32 {vr(vX1)}, 0x1000")
    e(f"v_cmp_lt_i32 vcc, 0, {vr(vCG)}")
    e(f"v_lshlrev_b32 {vr(vX0)}, 2, {vr(vG)}")
    e(f"v_med3_i32 {vr(vCG)}, {vr(vCG)}, 0, {vr(vX1)}")
    e(f"v_cndmask_b32 {vr(vLE)}, {vr(vX1)}, {vr(vCG)}, vcc")
    e(f"v_sub_u32 {vr(vCG)}, {vr(vCG)}, {vr(vX0)}")
    e("s_cbranch_scc1 L_sh_verify")
    e(f"s_mov_b64 {sr(sCM,2)}, {sr(sB0,2)}")
    e(f"s_mov_b64 {sr(sCM+2,2)}, {sr(sR0,2)}")
    fetch()
    e(f"s_xor_b64 {sr(sCM,2)}, {sr(sCM,2)}, {sr(sB0,2)}")
    e(f"s_xor_b64 {sr(sCM+2,2)}, {sr(sCM+2,2)}, {sr(sR0,2)}")
    e(f"s_or_b64 {sr(sCM,2)}, {sr(sCM,2)}, {sr(sCM+2,2)}")
    e("s_cbranch_scc1 L_respec")
    lab("L_specok")
    e(f"s_cmp_eq_u32 {sr(sROLE)}, 1")
    e("s_cbranch_scc0 L_cnt")
    c("finisher item count (at least one: a step past the context is fully masked)")
    e(f"v_readfirstlane_b32 {sr(t1)}, {vr(vLE)}")
    e(f"s_add_u32 {sr(t1)}, {sr(t1)}, 31")
    e(f"s_lshr_b32 {sr(t1)}, {sr(t1)}, 5")
    e(f"s_min_u32 {sr(t1)}, {sr(t1)}, {sr(sEND)}")
    e(f"s_sub_i32 {sr(t1)}, {sr(t1)}, {sr(sW)}")
    e(f"s_sub_i32 {sr(t1)}, {sr(t1)}, 61")
    e(f"s_ashr_i32 {sr(t1)}, {sr(t1)}, 2")
    e(f"s_max_i32 {sr(sREM)}, {sr(t1)}, 1")
    lab("L_cnt")

    def kreads():
        for m in range(4):
            e(f"ds_read_b128 {vr(vF+8*m,4)}, {vr(vKA+m)}")
            e(f"ds_read_b128 {vr(vF+8*m+4,4)}, {vr(vKA+m)} offset:4096")
    def qk():
        for m in range(4):
            e(f"s_waitcnt lgkmcnt({6-2*m})")
            c0 = "0" if m == 0 else vr(vS, 4)
            c1 = "0" if m == 0 else vr(vS+4, 4)
            e(f"v_mfma_f32_16x16x32_bf16 {vr(vS,4)}, {vr(vF+8*m,4)}, {vr(vQ+4*m,4)}, {c0}")
            e(f"v_mfma_f32_16x16x32_bf16 {vr(vS+4,4)}, {vr(vF+8*m+4,4)}, {vr(vQ+4*m,4)}, {c1}")
    def masks():
        e(f"v_subrev_u32 {vr(vLIM)}, {sr(sPOS)}, {vr(vCG)}")
        e(f"v_cndmask_b32 {vr(vLIM)}, 0, {vr(vLIM)}, {sr(sMK,2)}")
        e(f"v_cndmask_b32 {vr(vFILL)}, {vr(vFI)}, {vr(vFM)}, {sr(sMK,2)}")
        e(f"v_cmp_gt_i32 {sr(sFAST,2)}, 20, {vr(vLIM)}")
    def vreads():
        for ee in range(8):
            e(f"ds_read_b64_tr_b16 {vr(vF+4*ee,2)}, {vr(vVA+ee)} offset:8192")
            e(f"ds_read_b64_tr_b16 {vr(vF+4*ee+2,2)}, {vr(vVA+ee)} offset:12288")
    def softmax_a():
        la = g.newlab()
        e(f"s_cmp_eq_u64 {sr(sFAST,2)}, 0")
        e(f"s_cbranch_scc1 {la}")
        for j in range(8):
            e(f"v_cmp_lt_i32 {sr(sCM+2*j,2)}, {(j>>2)*16+(j&3)}, {vr(vLIM)}")
        for j in range(8):
            e(f"v_cndmask_b32 {vr(vS+j)}, {vr(vFILL)}, {vr(vS+j)}, {sr(sCM+2*j,2)}")
        lab(la)
        e(f"v_max3_f32 {vr(vMX)}, {vr(vS)}, {vr(vS+1)}, {vr(vS+2)}")
        e(f"v_max3_f32 {vr(vX0)}, {vr(vS+3)}, {vr(vS+4)}, {vr(vS+5)}")
        e(f"v_max3_f32 {vr(vMX)}, {vr(vMX)}, {vr(vS+6)}, {vr(vS+7)}")
        e(f"v_max3_f32 {vr(vMX)}, {vr(vMX)}, {vr(vX0)}, {vr(vM)}")
        e(f"v_mov_b32 {vr(vX0)}, {vr(vMX)}")
        e("s_nop 1")
        e(f"v_permlane32_swap_b32 {vr(vMX)}, {vr(vX0)}")
        e(f"v_max_f32 {vr(vMX)}, {vr(vMX)}, {vr(vX0)}")
        e(f"v_mov_b32 {vr(vX0)}, {vr(vMX)}")
        e("s_nop 1")
        e(f"v_permlane16_swap_b32 {vr(vMX)}, {vr(vX0)}")
        e(f"v_max_f32 {vr(vMX)}, {vr(vMX)}, {vr(vX0)}")
        e(f"v_mul_f32 {vr(vX1)}, {sr(sCS)}, {vr(vMX)}")
        e(f"v_sub_f32 {vr(vAL)}, {vr(vM)}, {vr(vMX)}")
        e(f"v_cmp_lt_f32 vcc, {vr(vM)}, {vr(vMX)}")
        for j in range(8):
            e(f"v_fma_f32 {vr(vS+j)}, {vr(vS+j)}, {sr(sCS)}, -{vr(vX1)}")
        e(f"v_mul_f32 {vr(vAL)}, {sr(sCS)}, {vr(vAL)}")
        for j in range(8):
            e(f"v_exp_f32 {vr(vS+j)}, {vr(vS+j)}")
        e(f"v_exp_f32 {vr(vAL)}, {vr(vAL)}")
        e(f"v_mov_b32 {vr(vM)}, {vr(vMX)}")
        for u in range(4):
            e(f"v_cvt_pk_bf16_f32 {vr(vP+u)}, {vr(vS+2*u)}, {vr(vS+2*u+1)}")
        e(f"v_pk_add_f32 {vr(vS,2)}, {vr(vS,2)}, {vr(vS+2,2)}")
        e(f"v_pk_add_f32 {vr(vS+4,2)}, {vr(vS+4,2)}, {vr(vS+6,2)}")
        e(f"v_pk_add_f32 {vr(vS,2)}, {vr(vS,2)}, {vr(vS+4,2)}")
        e(f"v_fma_f32 {vr(vLs)}, {vr(vLs)}, {vr(vAL)}, {vr(vS)}")
        e(f"v_add_f32 {vr(vLs)}, {vr(vLs)}, {vr(vS+1)}")
    def rescale():
        la = g.newlab()
        e(f"s_cbranch_vccz {la}")
        for i in range(0, 32, 2):
            e(f"v_pk_mul_f32 {vr(vO+i,2)}, {vr(vO+i,2)}, {vr(vMX,2)} op_sel:[0,1] op_sel_hi:[1,1]")
        lab(la)
    def pv(ee):
        ob = vO + 4*ee
        e(f"v_mfma_f32_16x16x32_bf16 {vr(ob,4)}, {vr(vF+4*ee,4)}, {vr(vP,4)}, {vr(ob,4)}")

    lab("L_loop")
    e("s_waitcnt vmcnt(8) lgkmcnt(0)")
    if opt.stamps and opt.probe == "first":
        e(f"s_cmp_eq_u32 {sr(sIT)}, 1")
        e(f"s_cbranch_scc0 L_q1")
        stamp(4)
        e("s_waitcnt lgkmcnt(0)")
        lab("L_q1")
    kreads()
    masks()
    fetch()
    qk()
    e(f"s_cmp_eq_u32 {sr(sREM)}, 1")
    e("s_cbranch_scc1 L_noK")
    if not opt.lateK:
        issue("K")
    else:
        e("s_nop 6")
    e("s_branch L_sm")
    lab("L_noK")
    e(f"s_cmp_lg_u32 {sr(sMW)}, 0")
    e("s_cbranch_scc1 L_early")
    e("s_nop 6")
    lab("L_sm")
    softmax_a()
    rescale()
    e(f"s_cmp_eq_u32 {sr(sREM)}, 1")
    e("s_cbranch_scc1 L_last")
    if opt.lateK == 1:
        issue("K")
        e("s_waitcnt vmcnt(8)")
    elif opt.lateK == 2:
        e("s_waitcnt vmcnt(4)")
        issue("K")
        e("s_waitcnt vmcnt(8)")
    elif opt.lateK == 3:
        e("s_waitcnt vmcnt(0)")
        issue("K")
    else:
        e("s_waitcnt vmcnt(8)")
    e("s_branch L_vok")
    lab("L_last")
    lsum()
    e(f"s_cmp_eq_u32 {sr(sMW)}, 2")
    e("s_waitcnt vmcnt(12)")
    e("s_cbranch_scc1 L_vok")
    e(f"s_cmp_eq_u32 {sr(sMW)}, 1")
    e("s_waitcnt vmcnt(9)")
    e("s_cbranch_scc1 L_vok")
    e("s_waitcnt vmcnt(0)")
    lab("L_vok")
    vreads()
    for ee in range(8):
        e(f"s_waitcnt lgkmcnt({14-2*ee})")
        pv(ee)
    e(f"s_cmp_eq_u32 {sr(sREM)}, 1")
    e("s_cbranch_scc1 L_epi")
    issue("V")
    c("a cached load of the nonce can only be stale towards 0")
    e(f"s_cmp_eq_u32 {sr(sIT)}, 4")
    e("s_cbranch_scc0 L_hook_done")
    e(f"s_load_dword {sr(sN)}, {sr(sDBG,2)}, 0x40")
    lab("L_hook_done")
    if opt.stamps and opt.probe == "first":
        e(f"s_cmp_eq_u32 {sr(sIT)}, {opt.mid+1}")
        e(f"s_cbranch_scc0 L_q2")
        stamp(5)
        e("s_waitcnt lgkmcnt(0)")
        lab("L_q2")
    e(f"s_sub_u32 {sr(sREM)}, {sr(sREM)}, 1")
    e("s_branch L_loop")

    lab("L_epi")
    stamp(2)
    vSt = vS
    vOq = vF
    vR = 12
    vWt = 20
    c("finishers only need columns 0..3")
    e(f"s_cmp_eq_u32 {sr(sROLE)}, 1")
    e(f"s_cselect_b64 exec, {sr(mSL,2)}, -1")
    e(f"ds_write_b64 {vr(vLWs)}, {vr(vM,2)} offset:{STAT}")
    e("s_nop 1")
    for ee in range(8):
        e(f"ds_write_b128 {vr(vLWa)}, {vr(vO+4*ee,4)} offset:{64*ee}")
    e("s_mov_b64 exec, -1")
    e("s_cbranch_scc1 L_fin")

    def maxchain(ms):
        e(f"v_max3_f32 {vr(vMX)}, {vr(ms[0])}, {vr(ms[1])}, {vr(ms[2])}")
        i = 3
        while i < len(ms):
            if i + 1 < len(ms):
                e(f"v_max3_f32 {vr(vMX)}, {vr(vMX)}, {vr(ms[i])}, {vr(ms[i+1])}"); i += 2
            else:
                e(f"v_max_f32 {vr(vMX)}, {vr(vMX)}, {vr(ms[i])}"); i += 1
        for i in range(len(ms)):
            e(f"v_sub_f32 {vr(vWt+i)}, {vr(ms[i])}, {vr(vMX)}")
        for i in range(len(ms)):
            e(f"v_mul_f32 {vr(vWt+i)}, {sr(sCS)}, {vr(vWt+i)}")
        for i in range(len(ms)):
            e(f"v_exp_f32 {vr(vWt+i)}, {vr(vWt+i)}")
    def axpy(dst, src, wi, first):
        wp = vWt + (wi & ~1); sl = wi & 1
        for r in range(0, 8, 2):
            if first:
                e(f"v_pk_mul_f32 {vr(dst+r,2)}, {vr(src+r,2)}, {vr(wp,2)} op_sel:[0,{sl}] op_sel_hi:[1,{sl}]")
            else:
                e(f"v_pk_fma_f32 {vr(dst+r,2)}, {vr(src+r,2)}, {vr(wp,2)}, {vr(dst+r,2)} op_sel:[0,{sl},0] op_sel_hi:[1,{sl},1]")
    def premerge(n):
        maxchain([vGs+4*k for k in range(n)])
        e(f"v_mov_b32 {vr(vGs)}, {vr(vMX)}")
        e(f"v_mul_f32 {vr(vGs+1)}, {vr(vWt)}, {vr(vGs+1)}")
        axpy(vGo, vGo, 0, True)
        for i in range(1, n):
            e(f"v_fmac_f32 {vr(vGs+1)}, {vr(vWt+i)}, {vr(vGs+4*i+1)}")
            axpy(vGo, vGo+8*i, i, False)
    def lds_reduce(nglob):
        c("thread: column vCC, quads vC and vC+16")
        e("s_waitcnt lgkmcnt(0)")
        e("s_barrier")
        if nglob:
            probe("tail", 1)
        for w in range(NW):
            e(f"ds_read_b64 {vr(vSt+2*w,2)}, {vr(vA1)} offset:{WSTR*w+STAT}")
        if nglob:
            e(f"ds_read_b64 {vr(vGs+4,2)}, {vr(vPX)} offset:{PXO+2048}")
            e(f"ds_read_b128 {vr(vGo+8,4)}, {vr(vPX)} offset:{PXO}")
            e(f"ds_read_b128 {vr(vGo+12,4)}, {vr(vPX)} offset:{PXO+1024}")
        for w in range(NW):
            for q in range(2):
                e(f"ds_read_b128 {vr(vOq+8*w+4*q,4)}, {vr(vA2)} offset:{WSTR*w+256*q}")
        e(f"s_waitcnt lgkmcnt({2*NW})")
        ms = [vSt+2*w for w in range(NW)]
        ls = [vSt+2*w+1 for w in range(NW)]
        os_ = [vOq+8*w for w in range(NW)]
        if nglob:
            ms += [vGs, vGs+4]; ls += [vGs+1, vGs+5]; os_ += [vGo, vGo+8]
        maxchain(ms)
        e("s_nop 0")
        e(f"v_mul_f32 {vr(vAL)}, {vr(vWt)}, {vr(ls[0])}")
        for i in range(1, len(ms)):
            e(f"v_fmac_f32 {vr(vAL)}, {vr(vWt+i)}, {vr(ls[i])}")
        if nglob:
            e(f"v_rcp_f32 {vr(vAL)}, {vr(vAL)}")
        order_ = list(range(NW, len(ms))) + list(range(NW))
        first = True
        for i in order_:
            if i < NW:
                e(f"s_waitcnt lgkmcnt({2*(NW-1-i)})")
            axpy(vR, os_[i], i, first)
            first = False

    c("---------- mixed helper: publish the workgroup partial, every word tagged with a byte of the nonce")
    need_nonce()
    tag_setup()
    lds_reduce(0)
    for r in range(8):
        tag(vR+r, r)
    tag(vAL, 1)
    e(f"v_xor_b32 {vr(vX0)}, {vr(vMX)}, {vr(vN)}")
    e(f"v_mov_b32 {vr(vX1)}, {vr(vN)}")
    e(f"global_store_dwordx4 {vr(vWO)}, {vr(vR,4)}, {sr(sWS,2)}{PP}") if not opt.nopub else None
    e(f"global_store_dwordx4 {vr(vWO)}, {vr(vR+4,4)}, {sr(sWS,2)} offset:256{PP}") if not opt.nopub else None
    e(f"v_cmp_eq_u32 vcc, 0, {vr(vC)}")
    e(f"s_and_saveexec_b64 {sr(sCM,2)}, vcc")
    e(f"global_store_dwordx4 {vr(vWS_)}, {vr(vMX,4)}, {sr(sWS,2)}{PP}") if not opt.nopub else None
    e(f"s_mov_b64 exec, {sr(sCM,2)}")
    e("s_branch L_done")

    c("---------- finisher")
    lab("L_fin")
    e(f"s_cmp_lg_u32 {sr(sMW)}, 0")
    e("s_cbranch_scc1 L_merge")
    e("s_waitcnt lgkmcnt(0)")
    e("s_barrier")
    e("s_branch L_done")
    lab("L_merge")
    need_nonce()
    for i in range(4):
        e(f"s_bfe_u32 {sr(sCM+8+i)}, {sr(sN)}, 0x{0x80000+8*i:x}")
    def untag(ks, acc, acc2):
        c("strip the tags (a matching tag leaves a zero low byte) and collect what is left of them")
        regs = []
        for k in ks:
            e(f"v_xor_b32 {vr(vGs+4*k+1)}, {sr(sCM+9)}, {vr(vGs+4*k+1)}")
            e(f"v_xor_b32 {vr(vGs+4*k+2)}, {vr(vGs+4*k)}, {vr(vGs+4*k+2)}")
            regs.append(vGs+4*k+1)
            for r in range(8):
                e(f"v_xor_b32 {vr(vGo+8*k+r)}, {sr(sCM+8+(r&3))}, {vr(vGo+8*k+r)}")
                regs.append(vGo+8*k+r)
        first = True
        for k in ks:
            e(f"v_msad_u8 {vr(acc2)}, {vr(vGs+4*k+2)}, {sr(sN)}, {'0' if first else vr(acc2)}")
            first = False
        e(f"v_or3_b32 {vr(acc)}, {vr(regs[0])}, {vr(regs[1])}, {vr(regs[2])}")
        i = 3
        while i < len(regs):
            if i + 1 < len(regs):
                e(f"v_or3_b32 {vr(acc)}, {vr(acc)}, {vr(regs[i])}, {vr(regs[i+1])}"); i += 2
            else:
                e(f"v_or_b32 {vr(acc)}, {vr(acc)}, {vr(regs[i])}"); i += 1
        e(f"v_and_b32 {vr(acc)}, 0xff, {vr(acc)}")
        e(f"v_or_b32 {vr(acc)}, {vr(acc)}, {vr(acc2)}")
        e(f"v_cmp_ne_u32 vcc, 0, {vr(acc)}")
    e(f"s_mov_b32 {sr(t5)}, 0")
    e(f"s_cmp_eq_u32 {sr(sMW)}, 1")
    e("s_cbranch_scc1 L_chkB")
    e("s_branch L_chkA")
    for part, n in (("A", 4), ("B", 3)):
        lab(f"L_reload{part}")
        gload(part)
        lab(f"L_chk{part}")
        e("s_waitcnt vmcnt(0)")
        untag(range(n), vX0, vX1)
        e(f"s_add_u32 {sr(t5)}, {sr(t5)}, 1")
        e(f"s_cbranch_vccz L_ready{part}")
        e(f"s_sleep {opt.rsleep}")
        e(f"s_cmp_lt_u32 {sr(t5)}, 0x40000")
        e(f"s_cbranch_scc1 L_reload{part}")
        lab(f"L_ready{part}")
        if part == "B":
            probe("tail", 0)
        premerge(n)
        if part == "A":
            e(f"ds_write_b64 {vr(vPX)}, {vr(vGs,2)} offset:{PXO+2048}")
            e(f"ds_write_b128 {vr(vPX)}, {vr(vGo,4)} offset:{PXO}")
            e(f"ds_write_b128 {vr(vPX)}, {vr(vGo+4,4)} offset:{PXO+1024}")
            e("s_waitcnt lgkmcnt(0)")
            e("s_barrier")
            e("s_branch L_done")
    lds_reduce(1)
    for r in range(0, 8, 2):
        e(f"v_pk_mul_f32 {vr(vR+r,2)}, {vr(vR+r,2)}, {vr(vMX,2)} op_sel:[0,1] op_sel_hi:[1,1]")
    for r in range(4):
        e(f"v_cvt_pk_bf16_f32 {vr(vWt+r)}, {vr(vR+2*r)}, {vr(vR+2*r+1)}")
    po = opt.pol_out
    e(f"global_store_dwordx2 {vr(vOA)}, {vr(vWt,2)}, {sr(sOUT,2)}{po}")
    e(f"global_store_dwordx2 {vr(vOA)}, {vr(vWt+2,2)}, {sr(sOUT,2)} offset:128{po}")
    e("s_branch L_done")

    if opt.spec:
        lab("L_respec")
        c("the guess was wrong: reload the first item")
        e("s_waitcnt vmcnt(0)")
        issue("K"); issue("V")
        e("s_branch L_specok")

    lab("L_early")
    c("merge waves, last item: fetch the partials under the V wait")
    e(f"s_cmp_eq_u32 {sr(sMW)}, 1")
    e("s_cbranch_scc1 L_earlyB")
    gload("A")
    e("s_branch L_sm")
    lab("L_earlyB")
    gload("B")
    e("s_branch L_sm")

    lab("L_helper")
    e(f"s_cmp_lt_u32 {sr(sIDX)}, 4")
    e("s_cbranch_scc1 L_sh_pro")
    c("======== mixed helper. v=idx-4: j=v%3, u=v/3: r=((x>>1)+j)&3 + 4*(u&1), quad=u>>1, pair=x&1")
    cpf()
    e(f"v_lshlrev_b32 {vr(vT+7)}, 2, {vr(vC)}")
    e("s_waitcnt lgkmcnt(0)")
    e(f"global_load_dword {vr(vKY)}, {vr(vT+7)}, {sr(sCTX,2)}")
    misc()
    srd_k()
    e(f"s_mov_b32 {sr(sROLE)}, 0")
    e(f"s_sub_u32 {sr(t7)}, {sr(sIDX)}, 4")
    e(f"s_mul_i32 {sr(t1)}, {sr(t7)}, 11")
    e(f"s_lshr_b32 {sr(t1)}, {sr(t1)}, 5")
    e(f"s_mul_i32 {sr(t6)}, {sr(t1)}, 3")
    e(f"s_sub_u32 {sr(t7)}, {sr(t7)}, {sr(t6)}")
    e(f"s_add_u32 {sr(sKS)}, {sr(t7)}, 4")
    e(f"s_and_b32 {sr(t0)}, {sr(sHD)}, 2")
    e(f"s_and_b32 {sr(t6)}, {sr(t1)}, 2")
    e(f"s_lshl_b32 {sr(t6)}, {sr(t6)}, 1")
    e(f"s_or_b32 {sr(sHD)}, {sr(t6)}, {sr(t0)}")
    e(f"s_and_b32 {sr(t1)}, {sr(t1)}, 1")
    e(f"s_lshl_b32 {sr(t1)}, {sr(t1)}, 2")
    e(f"s_lshr_b32 {sr(sX_)}, s2, 1")
    if opt.spread:
        e(f"s_add_u32 {sr(sX_)}, {sr(sX_)}, {sr(t7)}")
    e(f"s_and_b32 {sr(sX_)}, {sr(sX_)}, 3")
    e(f"s_add_u32 {sr(sX_)}, {sr(sX_)}, {sr(t1)}")
    e(f"s_lshl_b32 {sr(t0)}, {sr(t0)}, 3")
    e(f"s_lshr_b32 {sr(t4)}, 0x{FPACK:08x}, {sr(t0)}")
    e(f"s_bfe_u32 {sr(t5)}, {sr(t4)}, 0x80008")
    e(f"s_and_b32 {sr(t4)}, {sr(t4)}, 0xff")
    e(f"s_cmp_lt_u32 {sr(t5)}, {sr(t4)}")
    e(f"s_cselect_b32 {sr(sS0)}, 1, 0")
    e(f"s_max_u32 {sr(sEND)}, {sr(t4)}, {sr(t5)}")
    e(f"s_min_u32 {sr(t5)}, {sr(t4)}, {sr(t5)}")
    c("x = j + 3*(w + 4*lane)")
    e(f"v_lshl_add_u32 {vr(vT+5)}, {vr(vL)}, 2, {sr(sW)}")
    e(f"v_mul_u32_u24 {vr(vT+5)}, 3, {vr(vT+5)}")
    e(f"v_add_u32 {vr(vT+5)}, {sr(t7)}, {vr(vT+5)}")
    e("s_waitcnt vmcnt(0)")
    ranks()
    e(f"s_sub_u32 {sr(t1)}, 15, {sr(sX_)}")
    e(f"v_cmp_eq_u32 {sr(sCM,2)}, {sr(sX_)}, {vr(vX3)}")
    e(f"v_cmp_eq_u32 {sr(sCM+2,2)}, {sr(t1)}, {vr(vX3)}")
    e(f"s_ff1_i32_b32 {sr(t0)}, {sr(sCM)}")
    e(f"s_ff1_i32_b32 {sr(t1)}, {sr(sCM+2)}")
    e(f"v_readlane_b32 {sr(t2)}, {vr(vKY)}, {sr(t0)}")
    e(f"v_readlane_b32 {sr(t3)}, {vr(vKY)}, {sr(t1)}")
    e(f"v_readlane_b32 {sr(t4)}, {vr(vKL)}, {sr(t1)}")
    e(f"s_lshl_b32 {sr(t0)}, {sr(t0)}, 3")
    e(f"s_lshl_b32 {sr(t1)}, {sr(t1)}, 19")
    e(f"s_or_b32 {sr(t0)}, {sr(t0)}, {sr(t1)}")
    e(f"s_mul_i32 {sr(t0)}, {sr(t0)}, 0x101")
    e(f"s_mul_i32 {sr(t6)}, {sr(sHD)}, 0x01010101")
    e(f"s_add_u32 {sr(sBHP)}, {sr(t0)}, {sr(t6)}")
    e(f"s_add_u32 {sr(sBHP)}, {sr(sBHP)}, 0x01000100")
    e(f"s_lshr_b32 {sr(t2)}, {sr(t2)}, 4")
    e(f"s_lshr_b32 {sr(t3)}, {sr(t3)}, 4")
    c("segments: [long both heads][long extra][short both heads][short extra], steps descending")
    P = sCM + 8
    TOP = sCM + 12
    e(f"s_sub_i32 {sr(t0)}, {sr(t3)}, {sr(sEND)}")
    e(f"s_max_i32 {sr(t0)}, {sr(t0)}, 0")
    e(f"s_lshl_b32 {sr(P)}, {sr(t0)}, 1")
    e(f"s_min_u32 {sr(TOP)}, {sr(t3)}, {sr(sEND)}")
    e(f"s_sub_i32 {sr(t0)}, {sr(TOP)}, {sr(t5)}")
    e(f"s_max_i32 {sr(t0)}, {sr(t0)}, 0")
    e(f"s_add_u32 {sr(P+1)}, {sr(P)}, {sr(t0)}")
    e(f"s_sub_i32 {sr(t0)}, {sr(t2)}, {sr(sEND)}")
    e(f"s_max_i32 {sr(t0)}, {sr(t0)}, 0")
    e(f"s_lshl_b32 {sr(t0)}, {sr(t0)}, 1")
    e(f"s_add_u32 {sr(P+2)}, {sr(P+1)}, {sr(t0)}")
    e(f"s_mov_b32 {sr(TOP+1)}, {sr(t2)}")
    e(f"s_min_u32 {sr(TOP+2)}, {sr(t2)}, {sr(sEND)}")
    e(f"s_sub_i32 {sr(t0)}, {sr(TOP+2)}, {sr(t5)}")
    e(f"s_max_i32 {sr(t0)}, {sr(t0)}, 0")
    e(f"s_add_u32 {sr(P+3)}, {sr(P+2)}, {sr(t0)}")
    for i in range(3):
        e(f"v_cmp_ge_u32 {sr(sCM+2*i,2)}, {vr(vT+5)}, {sr(P+i)}")
    e(f"v_cmp_gt_u32 {sr(sCM+6,2)}, {sr(P+3)}, {vr(vT+5)}")
    e(f"v_mov_b32 {vr(vX0)}, {sr(t3)}")
    e(f"v_mov_b32 {vr(vX2)}, 0")
    for i in range(3):
        e(f"v_mov_b32 {vr(vT+i)}, {sr(P+i)}")
        e(f"v_mov_b32 {vr(vT+11+i)}, {sr(TOP+i)}")
    for i in range(3):
        e(f"v_cndmask_b32 {vr(vX2)}, {vr(vX2)}, {vr(vT+i)}, {sr(sCM+2*i,2)}")
        e(f"v_cndmask_b32 {vr(vX0)}, {vr(vX0)}, {vr(vT+11+i)}, {sr(sCM+2*i,2)}")
    e(f"s_xor_b64 vcc, {sr(sCM,2)}, {sr(sCM+2,2)}")
    e(f"s_xor_b64 vcc, vcc, {sr(sCM+4,2)}")
    e(f"v_sub_u32 {vr(vX2)}, {vr(vT+5)}, {vr(vX2)}")
    e(f"v_lshrrev_b32 {vr(vT)}, 1, {vr(vX2)}")
    e(f"v_and_b32 {vr(vX1)}, 1, {vr(vX2)}")
    e(f"v_mov_b32 {vr(vT+1)}, {sr(sS0)}")
    e(f"v_cndmask_b32 {vr(vT)}, {vr(vT)}, {vr(vX2)}, vcc")
    e(f"v_cndmask_b32 {vr(vX1)}, {vr(vX1)}, {vr(vT+1)}, vcc")
    e(f"v_sub_u32 {vr(vX0)}, {vr(vX0)}, {vr(vT)}")
    e(f"v_add_u32 {vr(vX0)}, -1, {vr(vX0)}")
    e(f"v_cndmask_b32 {vr(vT+1)}, 2, 0, {sr(sCM+2,2)}")
    e(f"v_add_u32 {vr(vX1)}, {vr(vX1)}, {vr(vT+1)}")
    e(f"v_lshlrev_b32 {vr(vX3)}, 3, {vr(vX1)}")
    e(f"v_bfe_u32 {vr(vX3)}, {sr(sBHP)}, {vr(vX3)}, 8")
    list_addr_bh()
    e("s_nop 0")
    predict()
    e(f"v_readfirstlane_b32 {sr(t2)}, {vr(vMETA)}")
    e(f"s_and_b32 {sr(t2)}, {sr(t2)}, 0xffff")
    limits(t4, t2)
    stamp(1)
    issue("K")
    c("a wave without items runs one item with no active column")
    e(f"s_bcnt1_i32_b64 {sr(sREM)}, {sr(sCM+6,2)}")
    e(f"s_cselect_b64 {sr(mIT,2)}, {sr(mSL,2)}, 0")
    e(f"s_max_u32 {sr(sREM)}, {sr(sREM)}, 1")
    e("s_branch L_go")

    def sh_issue():
        la = g.newlab()
        e(f"s_and_b32 {sr(t1)}, {sr(sZI)}, 63")
        e(f"v_readlane_b32 {sr(t0)}, {vr(vE)}, {sr(t1)}")
        e(f"s_mov_b32 m0, {sr(sSL)}")
        e(f"s_add_u32 {sr(sSL)}, {sr(sSL)}, 0x4000")
        e(f"s_and_b32 {sr(sSL)}, {sr(sSL)}, 0xffff")
        e(f"s_lshl_b32 {sr(t0)}, {sr(t0)}, 15")
        e(f"s_or_b32 {sr(sB0)}, {sr(t0)}, {sr(sH8)}")
        dma4(vKO, srdK, sB0)
        e(f"s_add_u32 {sr(sZI)}, {sr(sZI)}, {sr(sSTR)}")
        e(f"s_and_b32 {sr(t1)}, {sr(sZI)}, 63")
        e(f"s_cbranch_scc1 {la}")
        for q in range(3):
            e(f"v_mov_b32 {vr(vE+q)}, {vr(vE+q+1)}")
        lab(la)
    def sh_check():
        e(f"s_bitcmp1_b32 {sr(sW)}, 0")
        e(f"s_cselect_b64 vcc, -1, 0")
        for q in range(4):
            e(f"v_cndmask_b32 {vr(vE+q)}, {vr(vU+2*q)}, {vr(vU+2*q+1)}, vcc")
        for i in range(8):
            e(f"v_xor_b32_dpp {vr(vU+8+i)}, {vr(vU+i)}, {vr(vU+i)} row_newbcast:0 row_mask:0xf bank_mask:0xf")
        e(f"v_or3_b32 {vr(vU+8)}, {vr(vU+8)}, {vr(vU+9)}, {vr(vU+10)}")
        e(f"v_or3_b32 {vr(vU+11)}, {vr(vU+11)}, {vr(vU+12)}, {vr(vU+13)}")
        e(f"v_or3_b32 {vr(vU+8)}, {vr(vU+8)}, {vr(vU+14)}, {vr(vU+15)}")
        e(f"v_or_b32 {vr(vU+8)}, {vr(vU+8)}, {vr(vU+11)}")
        e(f"v_cmp_ne_u32 vcc, 0, {vr(vU+8)}")
        e(f"s_cmp_eq_u64 vcc, 0")
        e(f"s_cselect_b32 {sr(sSTR)}, 16, 1")
    lab("L_sh_pro")
    c("======== shared-prefix workgroup (h, part=idx): steps 16*idx..+15, wave w owns rows 4w..4w+3")
    c("guess: all rows share block = column (checked below). waves 0,1 load K, waves 2,3 load V")
    e(f"s_lshl_b32 {sr(sS0)}, {sr(sIDX)}, 4")
    e(f"s_and_b32 {sr(t1)}, {sr(sW)}, 1")
    e(f"s_lshl1_add_u32 {sr(t1)}, {sr(sS0)}, {sr(t1)}")
    e(f"v_lshl_add_u32 {vr(vE)}, {vr(vG)}, 3, {sr(t1)}")
    e(f"s_lshl_b32 {sr(sH8)}, {sr(sHD)}, 8")
    e(f"s_mov_b32 {sr(sZI)}, 0")
    e(f"s_mov_b32 {sr(sSTR)}, 16")
    e(f"s_lshl_b32 {sr(sSL)}, {sr(sW)}, 12")
    e(f"s_cmp_lt_u32 {sr(sW)}, 2")
    e("s_waitcnt lgkmcnt(0)")
    e("s_cbranch_scc1 L_sh_k")
    setup_v(vKO)
    e(f"s_mov_b64 {sr(sK,2)}, {sr(sV,2)}")
    lab("L_sh_k")
    srd_k()
    stamp(1)
    sh_issue()
    misc()
    e(f"s_mov_b32 {sr(sROLE)}, 2")
    e(f"s_mov_b32 {sr(sKS)}, {sr(sIDX)}")
    e(f"s_lshl_b32 {sr(t1)}, {sr(sW)}, 5")
    e(f"s_or_b32 {sr(t1)}, {sr(t1)}, {sr(sHD)}")
    e(f"s_mul_i32 {sr(sBHP)}, {sr(t1)}, 0x01010101")
    e(f"s_add_u32 {sr(sBHP)}, {sr(sBHP)}, 0x18100800")
    c("entries: lane (g,row=c) loads 4 steps: row*1024 + (s0+4g)*8")
    e(f"s_lshl_b32 {sr(t2)}, {sr(sS0)}, 3")
    e(f"v_lshl_add_u32 {vr(vT+3)}, {vr(vC)}, 10, {sr(t2)}")
    e(f"v_lshl_add_u32 {vr(vT+3)}, {vr(vG)}, 5, {vr(vT+3)}")
    e(f"v_mov_b32 {vr(vKL)}, {WNON}")
    e(f"s_or_b32 {sr(t7)}, s2, {sr(sW)}")
    e("s_cbranch_scc1 L_sh_noprev")
    e(f"global_load_dword {vr(vN)}, {vr(vKL)}, {sr(sWS,2)} sc1")
    lab("L_sh_noprev")
    e(f"global_load_dwordx4 {vr(vU,4)}, {vr(vT+3)}, {sr(sBT,2)}")
    e(f"global_load_dwordx4 {vr(vU+4,4)}, {vr(vT+3)}, {sr(sBT,2)} offset:16")
    col_addr()
    col_load()
    sh_issue()
    sh_issue()
    e(f"s_mov_b32 {sr(sZC)}, 0")
    e("s_branch L_init")
    lab("L_sh_verify")
    e(f"s_or_b32 {sr(t7)}, s2, {sr(sW)}")
    e("s_cbranch_scc1 L_sh_nononce")
    c("workgroup 0: nonce = what the previous launch left, every byte stepped through 1..255")
    e(f"v_readfirstlane_b32 {sr(t0)}, {vr(vN)}")
    e(f"s_mov_b32 {sr(t2)}, 0")
    for i in range(4):
        e(f"s_bfe_u32 {sr(t1)}, {sr(t0)}, 0x{0x80000+8*i:x}")
        e(f"s_cmp_eq_u32 {sr(t1)}, 0xff")
        e(f"s_cselect_b32 {sr(t1)}, 0, {sr(t1)}")
        e(f"s_add_u32 {sr(t1)}, {sr(t1)}, 1")
        if i:
            e(f"s_lshl_b32 {sr(t1)}, {sr(t1)}, {8*i}")
        e(f"s_or_b32 {sr(t2)}, {sr(t2)}, {sr(t1)}")
    e(f"v_mov_b32 {vr(vN)}, {sr(t2)}")
    e(f"v_mov_b32 {vr(vX0)}, 64")
    e("s_mov_b64 exec, 1")
    e(f"global_store_dword {vr(vKL)}, {vr(vN)}, {sr(sWS,2)} sc1")
    e("s_waitcnt vmcnt(0)")
    e(f"global_store_dword {vr(vX0)}, {vr(vN)}, {sr(sDBG,2)} sc1")
    e("s_mov_b64 exec, -1")
    lab("L_sh_nononce")
    e(f"v_mov_b32 {vr(vKY)}, {vr(vE)}")
    sh_check()
    e(f"v_cmp_ne_u32 {sr(sCM,2)}, {vr(vKY)}, {vr(vE)}")
    e(f"s_or_b64 vcc, vcc, {sr(sCM,2)}")
    e("s_cbranch_scc0 L_sh_w")
    e("s_waitcnt vmcnt(0)")
    e(f"s_mov_b32 {sr(sZI)}, 0")
    e(f"s_lshl_b32 {sr(sSL)}, {sr(sW)}, 12")
    e(f"s_mov_b32 {sr(t7)}, 3")
    lab("L_sh_redo")
    sh_issue()
    e(f"s_sub_u32 {sr(t7)}, {sr(t7)}, 1")
    e(f"s_cmp_lg_u32 {sr(t7)}, 0")
    e("s_cbranch_scc1 L_sh_redo")

    lab("L_sh_loop")
    e(f"s_lshl_b32 {sr(t0)}, {sr(sSTR)}, 1")
    e(f"s_add_u32 {sr(t0)}, {sr(t0)}, {sr(sZC)}")
    e(f"s_cmp_lt_u32 {sr(t0)}, 256")
    e("s_waitcnt vmcnt(8)")
    e("s_cbranch_scc1 L_sh_w")
    e(f"s_cmp_eq_u32 {sr(t0)}, 256")
    e("s_waitcnt vmcnt(4)")
    e("s_cbranch_scc1 L_sh_w")
    e("s_waitcnt vmcnt(0)")
    lab("L_sh_w")
    e("s_barrier")
    e(f"s_cmp_lt_u32 {sr(sZI)}, 256")
    e("s_cbranch_scc0 L_sh_noiss")
    sh_issue()
    lab("L_sh_noiss")
    e(f"s_cmp_eq_u32 {sr(sIT)}, 8")
    e("s_cbranch_scc0 L_sh_nosig")
    e(f"s_load_dword {sr(sN)}, {sr(sDBG,2)}, 0x40")
    lab("L_sh_nosig")
    c("step = s0 + 4*((z>>4)&3) + (z>>6), row = z&15")
    e(f"s_bfe_u32 {sr(t0)}, {sr(sZC)}, 0x20004")
    e(f"s_lshl_b32 {sr(t0)}, {sr(t0)}, 2")
    e(f"s_lshr_b32 {sr(t1)}, {sr(sZC)}, 6")
    e(f"s_add_u32 {sr(t0)}, {sr(t0)}, {sr(t1)}")
    e(f"s_add_u32 {sr(t0)}, {sr(t0)}, {sr(sS0)}")
    e(f"s_lshl_b32 {sr(sPOS)}, {sr(t0)}, 5")
    e(f"s_mov_b64 {sr(sMK,2)}, -1")
    e(f"s_cmp_eq_u32 {sr(sSTR)}, 16")
    e("s_cbranch_scc1 L_sh_go")
    e(f"s_and_b32 {sr(t0)}, {sr(sZC)}, 3")
    e(f"s_lshl_b32 {sr(t0)}, {sr(t0)}, 2")
    e(f"s_lshl_b64 {sr(sMK,2)}, {sr(mSL,2)}, {sr(t0)}")
    e(f"s_bfe_u32 {sr(t0)}, {sr(sZC)}, 0x20002")
    e(f"s_cmp_eq_u32 {sr(t0)}, {sr(sW)}")
    e("s_cbranch_scc0 L_sh_next")
    lab("L_sh_go")
    probe("cons", 0)
    kreads()
    masks()
    qk()
    e("s_nop 3")
    vreads()
    softmax_a()
    rescale()
    e("s_waitcnt lgkmcnt(0)")
    for ee in range(8):
        pv(ee)
    probe("cons", 1)
    lab("L_sh_next")
    c("advance the fragment addresses to the next ring slot")
    e(f"s_add_u32 {sr(sIT)}, {sr(sIT)}, 1")
    e(f"s_bitcmp1_b32 {sr(sIT)}, 0")
    e(f"s_cselect_b32 {sr(t0)}, 1, 3")
    e(f"s_lshl_b32 {sr(t0)}, {sr(t0)}, 14")
    for i in range(12):
        e(f"v_xor_b32 {vr(vKA+i)}, {sr(t0)}, {vr(vKA+i)}")
    e(f"s_add_u32 {sr(sZC)}, {sr(sZC)}, {sr(sSTR)}")
    e(f"s_cmp_lt_u32 {sr(sZC)}, 256")
    e("s_cbranch_scc1 L_sh_loop")
    stamp(2)
    c("publish this wave's 16 columns (transpose through its own LDS region)")
    lsum()
    part_addr(vC, None, vWS_, vA1)
    e("s_waitcnt lgkmcnt(0)")
    need_nonce()
    tag_setup()
    for i in range(32):
        tag(vO+i, i)
    tag(vLs, 1)
    e(f"v_xor_b32 {vr(vM+2)}, {vr(vM)}, {vr(vN)}")
    e(f"v_mov_b32 {vr(vM+3)}, {vr(vN)}")
    e("s_barrier")
    for ee in range(8):
        e(f"ds_write_b128 {vr(vLWa)}, {vr(vO+4*ee,4)} offset:{64*ee}")
    e(f"v_mul_u32_u24 {vr(vA2)}, {CSTR}, {vr(vG)}")
    e(f"v_lshl_add_u32 {vr(vA2)}, {vr(vC)}, 4, {vr(vA2)}")
    e(f"v_add_u32 {vr(vA2)}, {sr(sLB)}, {vr(vA2)}")
    e(f"v_lshlrev_b32 {vr(vCC)}, 12, {vr(vG)}")
    e(f"v_lshl_add_u32 {vr(vCC)}, {vr(vC)}, 4, {vr(vCC)}")
    e(f"s_lshl_b32 {sr(t6)}, {sr(sKS)}, 9")
    e("s_waitcnt lgkmcnt(0)")
    for i in range(4):
        for q in range(2):
            e(f"ds_read_b128 {vr(vOq+8*i+4*q,4)}, {vr(vA2)} offset:{4*CSTR*i+256*q}")
    e("s_mov_b64 exec, 0xffff")
    e(f"global_store_dwordx4 {vr(vWS_)}, {vr(vM,4)}, {sr(sWS,2)}{PP}") if not opt.nopub else None
    e("s_mov_b64 exec, -1")
    for i in range(4):
        slot_base(i, vSt+i, vCC)
        e(f"s_waitcnt lgkmcnt({6-2*i})")
        e(f"global_store_dwordx4 {vr(vSt+i)}, {vr(vOq+8*i,4)}, {sr(sWS,2)}{PP}") if not opt.nopub else None
        e(f"global_store_dwordx4 {vr(vSt+i)}, {vr(vOq+8*i+4,4)}, {sr(sWS,2)} offset:256{PP}") if not opt.nopub else None

    lab("L_done")
    if opt.stamps:
        e("s_waitcnt vmcnt(0)")
        stamp(3)
        e(f"s_getreg_b32 {sr(t5)}, hwreg(HW_REG_XCC_ID)")
        e(f"s_getreg_b32 {sr(t6)}, hwreg(HW_REG_HW_ID)")
        e("s_waitcnt lgkmcnt(0)")
        e(f"s_lshl_b32 {sr(t3)}, s2, 2")
        e(f"s_add_u32 {sr(t3)}, {sr(t3)}, {sr(sW)}")
        e(f"s_lshl_b32 {sr(t3)}, {sr(t3)}, 6")
        e(f"s_add_u32 {sr(t3)}, {sr(t3)}, {STAMPS}")
        e(f"s_sub_u32 {sr(sIT)}, {sr(sIT)}, 1")
        e(f"v_mov_b32 v4, {sr(t3)}")
        for i in range(8):
            e(f"v_mov_b32 v{8+i}, {sr(sST+i)}")
        e(f"v_mov_b32 v16, {sr(t5)}")
        e(f"v_mov_b32 v17, {sr(t6)}")
        for i in range(4):
            e(f"v_mov_b32 v{18+i}, {sr(sST+8+i)}")
        e(f"v_mov_b32 v22, {sr(sBHP)}")
        e(f"v_mov_b32 v23, {sr(sIT)}")
        e("s_mov_b64 exec, 1")
        e(f"global_store_dwordx4 v4, v[8:11], {sr(sWS,2)}")
        e(f"global_store_dwordx4 v4, v[12:15], {sr(sWS,2)} offset:16")
        e(f"global_store_dwordx4 v4, v[16:19], {sr(sWS,2)} offset:32")
        e(f"global_store_dwordx4 v4, v[20:23], {sr(sWS,2)} offset:48")
    if opt.amp:
        p = [int(x) for x in opt.amp.split(",")]
        a, b = p[0], p[1]
        if len(p) > 2:
            e(f"s_cmp_eq_u32 s2, {p[2]}")
            e("s_cbranch_scc0 L_end")
            e(f"s_cmp_eq_u32 {sr(sW)}, {p[3]}")
            e("s_cbranch_scc0 L_end")
        e(f"s_sub_u32 {sr(t0)}, {sr(sST+2*b)}, {sr(sST+2*a)}")
        e(f"s_lshl_b32 {sr(t0)}, {sr(t0)}, {5 if len(p)>2 else 3}")
        e(f"s_min_u32 {sr(t0)}, {sr(t0)}, 100000")
        lab("L_amp")
        e(f"s_memrealtime {sr(t2,2)}")
        e("s_waitcnt lgkmcnt(0)")
        e(f"s_sub_u32 {sr(t1)}, {sr(t2)}, {sr(sST+6)}")
        e(f"s_cmp_lt_u32 {sr(t1)}, {sr(t0)}")
        e("s_cbranch_scc1 L_amp")
    if opt.amp2:
        b, lo, hi, sh = [int(x) for x in opt.amp2.split(",")]
        neg = b >= 100
        b %= 100
        e(f"s_cmp_lt_u32 s2, {lo}")
        e("s_cbranch_scc1 L_end")
        e(f"s_cmp_ge_u32 s2, {hi}")
        e("s_cbranch_scc1 L_end")
        e("s_mov_b64 exec, -1")
        e(f"v_mov_b32 v4, 0x2f0000")
        e(f"global_load_dword v5, v4, {sr(sWS,2)} sc1")
        e("s_waitcnt vmcnt(0)")
        e(f"v_readfirstlane_b32 {sr(t4)}, v5")
        if neg:
            e(f"s_sub_u32 {sr(t0)}, {sr(t4)}, {sr(sST+2*b)}")
        else:
            e(f"s_sub_u32 {sr(t0)}, {sr(sST+2*b)}, {sr(t4)}")
        e(f"s_add_u32 {sr(t0)}, {sr(t0)}, 200")
        e(f"s_max_i32 {sr(t0)}, {sr(t0)}, 0")
        e(f"s_lshl_b32 {sr(t0)}, {sr(t0)}, {sh}")
        e(f"s_min_u32 {sr(t0)}, {sr(t0)}, 100000")
        lab("L_amp2")
        e(f"s_memrealtime {sr(t2,2)}")
        e("s_waitcnt lgkmcnt(0)")
        e(f"s_sub_u32 {sr(t1)}, {sr(t2)}, {sr(t4)}")
        e(f"s_cmp_lt_u32 {sr(t1)}, {sr(t0)}")
        e("s_cbranch_scc1 L_amp2")
    if opt.amp3:
        a, b, st = [int(x) for x in opt.amp3.split(",")]
        e(f"s_cmp_eq_u32 {sr(sW)}, 0")
        e("s_cbranch_scc0 L_end")
        e("s_mov_b64 exec, -1")
        e(f"v_mov_b32 v4, 0x2f0100")
        e(f"s_cmp_eq_u32 s2, {b}")
        e("s_cbranch_scc0 L_a3a")
        e(f"v_mov_b32 v5, {sr(sST+2*st)}")
        e(f"global_store_dword v4, v5, {sr(sWS,2)} sc1")
        lab("L_a3a")
        e(f"s_cmp_eq_u32 s2, {a}")
        e("s_cbranch_scc0 L_end")
        lab("L_a3b")
        e(f"s_memrealtime {sr(t2,2)}")
        e("s_waitcnt lgkmcnt(0)")
        e(f"s_sub_u32 {sr(t1)}, {sr(t2)}, {sr(sST)}")
        e(f"s_cmp_lt_u32 {sr(t1)}, 2800")
        e("s_cbranch_scc1 L_a3b")
        e(f"global_load_dword v5, v4, {sr(sWS,2)} sc1")
        e("s_waitcnt vmcnt(0)")
        e(f"v_readfirstlane_b32 {sr(t4)}, v5")
        e(f"s_sub_u32 {sr(t0)}, {sr(sST+2*st)}, {sr(t4)}")
        e(f"s_add_u32 {sr(t0)}, {sr(t0)}, 400")
        e(f"s_max_i32 {sr(t0)}, {sr(t0)}, 0")
        e(f"s_lshl_b32 {sr(t0)}, {sr(t0)}, 4")
        e(f"s_add_u32 {sr(t0)}, {sr(t0)}, 3000")
        e(f"s_min_u32 {sr(t0)}, {sr(t0)}, 100000")
        lab("L_a3c")
        e(f"s_memrealtime {sr(t2,2)}")
        e("s_waitcnt lgkmcnt(0)")
        e(f"s_sub_u32 {sr(t1)}, {sr(t2)}, {sr(sST)}")
        e(f"s_cmp_lt_u32 {sr(t1)}, {sr(t0)}")
        e("s_cbranch_scc1 L_a3c")
    lab("L_end")
    e("s_endpgm")

    out = HEADER + DOC
    out += f"; @launch grid=(256,1,1) block=({NW*64},1,1) lds={LDS}\n"
    out += '.amdgcn_target "amdgcn-amd-amdhsa--gfx950"\n.text\n'
    out += f".globl {NAME}_kernel\n.p2align 8\n.type {NAME}_kernel,@function\n{NAME}_kernel:\n"
    out += "\n".join(g.lines) + "\n"
    out += f""".section .rodata,"a"
.p2align 6
.amdhsa_kernel {NAME}_kernel
  .amdhsa_next_free_vgpr {NV}
  .amdhsa_next_free_sgpr 102
  .amdhsa_accum_offset {NV}
  .amdhsa_group_segment_fixed_size 0
  .amdhsa_kernarg_size 64
  .amdhsa_user_sgpr_count 2
  .amdhsa_user_sgpr_kernarg_segment_ptr 1
  .amdhsa_system_sgpr_workgroup_id_x 1
.end_amdhsa_kernel
"""
    return out

if __name__ == "__main__":
    ap = argparse.ArgumentParser()
    ap.add_argument("-o", default=f"cdna_kernels/{NAME}.s")
    ap.add_argument("--F", default="36,26,31,30")
    ap.add_argument("--spec", type=int, default=1)
    ap.add_argument("--spread", type=int, default=1)
    ap.add_argument("--rsleep", type=int, default=1)
    ap.add_argument("--lds", type=int, default=0)
    ap.add_argument("--pol", default="nt")
    ap.add_argument("--pol_out", default="")
    ap.add_argument("--stamps", action="store_true")
    ap.add_argument("--nobar", action="store_true")
    ap.add_argument("--amp", default="")
    ap.add_argument("--lateK", type=int, default=0)
    ap.add_argument("--pf", type=int, default=0)
    ap.add_argument("--tlb", type=int, default=0)
    ap.add_argument("--tlbsh", type=int, default=21)
    ap.add_argument("--nopub", type=int, default=0)
    ap.add_argument("--pol_pub", default="sc1")
    ap.add_argument("--pol_get", default="sc1")
    ap.add_argument("--noclear", type=int, default=0)
    ap.add_argument("--nosig", type=int, default=0)
    ap.add_argument("--dummy", type=int, default=0)
    ap.add_argument("--mw", type=int, default=0)
    ap.add_argument("--amp3", default="")
    ap.add_argument("--cpf", type=int, default=0)
    ap.add_argument("--amp2", default="")
    ap.add_argument("--mid", type=int, default=1)
    ap.add_argument("--probe", default="first")
    ap.add_argument("--clk", default="s_memrealtime")
    opt = ap.parse_args()
    for k in ("pol", "pol_out", "pol_pub", "pol_get"):
        v = getattr(opt, k)
        setattr(opt, k, (" " + v.replace("+", " ")) if v else "")
    opt.code_bytes = 4096
    txt = build(opt)
    if opt.cpf:
        import subprocess, re, tempfile, os
        d = tempfile.mkdtemp()
        open(d + "/a.s", "w").write(txt)
        subprocess.check_call(["clang", "-target", "amdgcn-amd-amdhsa", "-mcpu=gfx950", "-c", d + "/a.s", "-o", d + "/a.o"])
        o = subprocess.check_output(["llvm-objdump", "-d", "--mcpu=gfx950", d + "/a.o"]).decode()
        end = int(re.search(r"^([0-9a-f]+) <L_end>:", o, re.M).group(1), 16)
        opt.code_bytes = end - 32
        txt = build(opt)
    open(opt.o, "w").write(txt)
```
